```python
import torch

def _softmax(x, axis=-1):
    return torch.softmax(x, dim=axis)
def _gelu(x):
    return torch.nn.functional.gelu(x, approximate="tanh")
def _silu(x):
    return torch.nn.functional.silu(x)
def _sigmoid(x):
    return torch.sigmoid(x)
def _layernorm(x, axis=-1, eps=1e-5):
    m = x.mean(dim=axis, keepdim=True)
    v = x.var(dim=axis, keepdim=True, unbiased=False)
    return (x - m) / torch.sqrt(v + eps)
def _scatter_add(tgt, idx, src, axis=0):
    return tgt.clone().index_add_(axis, idx, src)
def _segment_sum(src, seg, n):
    out = torch.zeros((n,) + src.shape[1:], dtype=src.dtype)
    return out.index_add_(0, seg, src)
def _pad(x, pw):
    flat = tuple(v for pair in reversed(pw) for v in pair)
    return torch.nn.functional.pad(x, flat)

kernel_name = 'interleave_layers__ssm_conv_h3__geglu_ffn__prompt'

def setup_inputs():

    _w = (lambda a: (lambda t: t.to(torch.bfloat16) if t.is_floating_point() else t)(torch.as_tensor(a)))
    def _A_setup():
        B, S, D = 1, 2048, 576
        ks = 4
        return {
            "q": _w((lambda *s: torch.randn(*s, dtype=torch.bfloat16) * 0.05)(B, S, D)),
            "k": _w((lambda *s: torch.randn(*s, dtype=torch.bfloat16) * 0.8)(B, S, D)),
            "v": _w((lambda *s: torch.randn(*s, dtype=torch.bfloat16) * 0.8)(B, S, D)),
            "shift_k": _w((lambda *s: torch.randn(*s, dtype=torch.bfloat16) * 0.8)(D, ks) * 0.5),
            "ssm_k": _w((lambda *s: torch.randn(*s, dtype=torch.bfloat16) * 0.8)(D, S) * (1.0 / S ** 0.5)),
            "ssm_D": _w((lambda *s: torch.randn(*s, dtype=torch.bfloat16) * 0.8)(D)),
        }
    _A_in = _A_setup()

    def _B_setup():
        B, S, D, F = 1, 2048, 576, 4608
        return {
            "x": _w((lambda *s: torch.randn(*s, dtype=torch.bfloat16) * 0.05)(B, S, D)),
            "w_gate": _w((lambda *s: torch.randn(*s, dtype=torch.bfloat16) * 0.05)(D, F)),
            "w_up": _w((lambda *s: torch.randn(*s, dtype=torch.bfloat16) * 0.05)(D, F)),
            "w_down": _w((lambda *s: torch.randn(*s, dtype=torch.bfloat16) * 0.05)(F, D)),
        }
    _B_in = _B_setup()

    return {
        "A_q": _A_in["q"],
        "A_k": _A_in["k"],
        "A_v": _A_in["v"],
        "A_shift_k": _A_in["shift_k"],
        "A_ssm_k": _A_in["ssm_k"],
        "A_ssm_D": _A_in["ssm_D"],
        "B_x": _B_in["x"],
        "B_w_gate": _B_in["w_gate"],
        "B_w_up": _B_in["w_up"],
        "B_w_down": _B_in["w_down"],
    }

def reference(A_q, A_k, A_v, A_shift_k, A_ssm_k, A_ssm_D, B_x, B_w_gate, B_w_up, B_w_down):
    def _A_ref(q, k, v, shift_k, ssm_k, ssm_D):
        B, S, D = q.shape
        ks = shift_k.shape[-1]
        k_pad = _pad(k, ((0, 0), (ks - 1, 0), (0, 0)))
        k_shift = torch.zeros_like(k)
        for t in range(ks):
            k_shift = k_shift + k_pad[:, t:t + S, :] * shift_k[:, ks - 1 - t][None, None, :]
        kv = k_shift * v
        L = 2 * S
        kv_pad = _pad(kv, ((0, 0), (0, S), (0, 0)))
        kf_pad = _pad(ssm_k, ((0, 0), (0, S)))
        kv_f = (lambda x, axes=(-2,-1): torch.fft.rfft2(x.float(), dim=axes))(kv_pad[:, None, :, :], axes=(1, 2))
        kf_f = (lambda x, axes=(-2,-1): torch.fft.rfft2(x.float(), dim=axes))(kf_pad[:, None, :], axes=(1, 2))
        kf_f = (lambda x, *d: x.permute(*d))(kf_f, 1, 2, 0)
        y_f = kv_f * kf_f[None, :, :, :]
        y = (lambda x, s, axes=(-2,-1): torch.fft.irfft2(x, s=s, dim=axes).to(torch.bfloat16))(y_f, (1, L), axes=(1, 2))[:, 0, :S, :]
        y = y + kv * ssm_D[None, None, :]
        return q * y

    def _B_ref(x, w_gate, w_up, w_down):
        return (_gelu(x @ w_gate) * (x @ w_up)) @ w_down

    x = A_q
    x = x + _A_ref(_layernorm(x, axis=-1), A_k, A_v, A_shift_k, A_ssm_k, A_ssm_D)
    x = x + _B_ref(_layernorm(x, axis=-1), B_w_gate, B_w_up, B_w_down)
    x = x + _A_ref(_layernorm(x, axis=-1), A_k, A_v, A_shift_k, A_ssm_k, A_ssm_D)
    x = x + _B_ref(_layernorm(x, axis=-1), B_w_gate, B_w_up, B_w_down)
    return x
```

```python
import re

TRANS = {"v_exp_f32", "v_log_f32", "v_rcp_f32", "v_rsq_f32", "v_sqrt_f32", "v_sin_f32", "v_cos_f32"}
RMW_VALU = {"v_fmac_f32", "v_dot2c_f32_bf16", "v_writelane_b32", "v_pk_fmac_f16"}


def regs_of(tok):
    tok = tok.strip()
    neg = tok.startswith("-")
    if neg:
        tok = tok[1:]
    m = re.fullmatch(r"abs\((.*)\)", tok) or re.fullmatch(r"\|(.*)\|", tok)
    if m:
        tok = m.group(1)
    m = re.fullmatch(r"([vas])(\d+)", tok)
    if m:
        return {(m.group(1), int(m.group(2)))}
    m = re.fullmatch(r"([vas])\[(\d+):(\d+)\]", tok)
    if m:
        return {(m.group(1), i) for i in range(int(m.group(2)), int(m.group(3)) + 1)}
    if tok in ("vcc", "exec", "m0"):
        return {(tok, 0)}
    if tok in ("vcc_lo", "vcc_hi"):
        return {("vcc", 0)}
    if tok in ("exec_lo", "exec_hi"):
        return {("exec", 0)}
    return set()


def v(n, w=1):
    return f"v{n}" if w == 1 else f"v[{n}:{n + w - 1}]"


def a(n, w=1):
    return f"a{n}" if w == 1 else f"a[{n}:{n + w - 1}]"


def s(n, w=1):
    return f"s{n}" if w == 1 else f"s[{n}:{n + w - 1}]"


class Ins:
    __slots__ = ("text", "op", "cls", "defs", "uses", "srcc", "srcab", "passes", "states", "wide_store", "dpp", "lds_dma", "dotab")


class AB:
    def __init__(self):
        self.out = []
        self.hist = []
        self.vmq = []
        self.lgq = []
        self.nins = 0
        self.stats = {}

    def raw(self, text):
        self.out.append(text)

    def comment(self, text):
        self.out.append("  ; " + text)

    def label(self, name, reset=True):
        self.out.append(f"{name}:")
        if reset:
            pass

    def snapshot(self):
        return (list(self.hist), [(set(d), t) for d, t in self.vmq], [(set(d), sm, t) for d, sm, t in self.lgq])

    def restore(self, snap):
        self.hist = list(snap[0])
        self.vmq = [(set(d), t) for d, t in snap[1]]
        self.lgq = [(set(d), sm, t) for d, sm, t in snap[2]]

    def _classify(self, op, ops, mods):
        i = Ins()
        i.op = op
        i.defs = set()
        i.uses = set()
        i.srcc = set()
        i.srcab = set()
        i.passes = 0
        i.states = 1
        i.wide_store = False
        i.dpp = False
        i.lds_dma = False
        R = [regs_of(o) for o in ops]
        i.dotab = (R[1] | R[2]) if op.startswith("v_dot") else set()
        base = op.replace("_e32", "").replace("_e64", "").replace("_dpp", "").replace("_sdwa", "")
        if op.startswith("v_mfma"):
            i.cls = "mfma"
            i.defs = R[0]
            i.srcab = R[1] | R[2]
            i.srcc = R[3]
            i.uses = i.srcab | i.srcc | {("exec", 0)}
            i.passes = 8 if "32x32" in op else 4
        elif op.startswith("v_"):
            i.cls = "trans" if base in TRANS else "valu"
            if base.startswith("v_cmpx"):
                i.defs = R[0] | {("exec", 0)}
                i.uses = set().union(*R[1:])
            elif base.startswith("v_permlane") and "swap" in base:
                i.defs = R[0] | R[1]
                i.uses = R[0] | R[1]
            elif base in ("v_add_co_u32", "v_sub_co_u32", "v_subrev_co_u32", "v_addc_co_u32", "v_subb_co_u32", "v_div_scale_f32", "v_mad_u64_u32"):
                i.defs = R[0] | R[1]
                i.uses = set().union(*R[2:])
            else:
                i.defs = R[0]
                i.uses = set().union(*R[1:]) if len(R) > 1 else set()
                if base in RMW_VALU:
                    i.uses |= R[0]
                if "quad_perm" in mods or "row_" in mods or "wave_" in mods:
                    i.dpp = True
                    i.uses |= R[0]
                if "dst_sel" in mods and "UNUSED_PRESERVE" in mods:
                    i.uses |= R[0]
            i.uses |= {("exec", 0)}
        elif op.startswith("ds_"):
            i.cls = "ds"
            if op.startswith("ds_read") or op.startswith("ds_bpermute") or op.startswith("ds_permute") or op.startswith("ds_swizzle"):
                i.defs = R[0]
                i.uses = set().union(*R[1:])
            elif "_rtn" in op:
                i.defs = R[0]
                i.uses = set().union(*R[1:])
            else:
                i.uses = set().union(*R)
            i.uses |= {("exec", 0)}
        elif op.startswith("buffer_") or op.startswith("global_"):
            i.cls = "vmem"
            if op in ("buffer_inv", "buffer_wbl2"):
                pass
            elif "_load" in op:
                if re.search(r"\blds\b", mods) or "load_lds" in op:
                    i.lds_dma = True
                    i.uses = set().union(*R) | {("m0", 0)}
                else:
                    i.defs = R[0]
                    i.uses = set().union(*R[1:])
                    if "d16" in op:
                        i.uses |= R[0]
            elif "_store" in op:
                i.uses = set().union(*R)
                if op.endswith("x3") or op.endswith("x4"):
                    i.wide_store = True
                    i.srcc = R[0] if op.startswith("buffer_") else R[1]
            elif "_atomic" in op:
                i.uses = set().union(*R)
                if re.search(r"\bsc0\b", mods):
                    i.defs = R[0]
            i.uses |= {("exec", 0)}
        elif op.startswith("s_load") or op.startswith("s_buffer_load") or op in ("s_memtime", "s_memrealtime") or op.startswith("s_atomic"):
            i.cls = "smem"
            i.defs = R[0]
            i.uses = set().union(*R[1:]) if len(R) > 1 else set()
        elif op == "s_nop":
            i.cls = "nop"
            i.states = int(ops[0]) + 1
        elif op in ("s_waitcnt", "s_barrier", "s_setprio", "s_sleep", "s_endpgm") or op.startswith("s_cbranch") or op == "s_branch":
            i.cls = "ctl"
        elif op.startswith("s_cmp"):
            i.cls = "salu"
            i.uses = set().union(*R)
        elif op.startswith("s_"):
            i.cls = "salu"
            i.defs = R[0]
            i.uses = set().union(*R[1:]) if len(R) > 1 else set()
            if "saveexec" in op:
                i.defs |= {("exec", 0)}
                i.uses |= {("exec", 0)}
            if op in ("s_addk_i32", "s_mulk_i32"):
                i.uses |= R[0]
        else:
            raise ValueError("unknown op " + op)
        return i

    def _need_states(self, c):
        need = 0
        dist = 0
        isv = lambda r: r[0] in ("v", "a")
        for p in reversed(self.hist):
            req = 0
            pv = p.cls in ("valu", "trans")
            vdefs = {r for r in p.defs if isv(r)}
            sdefs = {r for r in p.defs if r[0] in ("s", "vcc")}
            if pv:
                if c.cls == "mfma" and (vdefs & c.uses):
                    req = max(req, 2)
                if c.cls == "mfma" and ("exec", 0) in p.defs:
                    req = max(req, 4)
                if c.cls in ("valu", "trans") and c.dpp and (vdefs & c.uses):
                    req = max(req, 2)
                if c.cls in ("valu", "trans") and c.dpp and ("exec", 0) in p.defs:
                    req = max(req, 5)
                if c.op.startswith("v_permlane") and (vdefs & c.uses):
                    req = max(req, 2)
                if c.op.startswith("v_permlane") and ("exec", 0) in p.defs:
                    req = max(req, 4)
                if (c.op.startswith("v_readlane") or c.op.startswith("v_readfirstlane")) and (vdefs & c.uses):
                    req = max(req, 1)
                if (c.op.startswith("v_readlane") or c.op.startswith("v_readfirstlane") or c.op.startswith("v_writelane")) and ("exec", 0) in p.defs:
                    req = max(req, 4)
                if c.cls == "vmem" and (sdefs & c.uses):
                    req = max(req, 5)
                if c.cls in ("valu", "trans") and (sdefs & c.uses):
                    req = max(req, 4 if c.op.startswith("v_readlane") or c.op.startswith("v_writelane") or c.op.startswith("v_div_fmas") else 2)
                if c.cls == "salu" and (sdefs & c.uses):
                    req = max(req, 2)
                if p.cls == "trans" and c.cls in ("valu", "mfma") and (vdefs & c.uses):
                    req = max(req, 1)
                if p.op.startswith("v_dot") and (vdefs & (c.uses | c.defs)) and c.cls in ("valu", "trans", "mfma", "vmem", "ds"):
                    if not (c.op == p.op and not (vdefs & c.dotab)):
                        req = max(req, 3)
                if ("sdwa" in p.op or ("op_sel" in p.text and not p.op.startswith("v_pk_"))) and c.cls in ("valu", "trans") and (vdefs & (c.uses | c.defs)):
                    req = max(req, 1)
            if p.cls == "salu" and ("m0", 0) in p.defs and c.cls == "vmem" and c.lds_dma:
                req = max(req, 1)
            if p.cls == "vmem" and p.wide_store and (p.srcc & c.defs):
                req = max(req, 2 if c.cls in ("valu", "trans", "mfma") else 1)
            if p.cls == "mfma":
                n4 = p.passes == 4
                if c.cls == "mfma":
                    if p.defs & c.srcab:
                        req = max(req, 8 if n4 else 12)
                    if p.defs & c.srcc:
                        if not (p.defs == c.srcc and p.passes == c.passes):
                            req = max(req, 6 if n4 else 10)
                    elif p.defs & c.defs:
                        req = max(req, 8 if n4 else 12)
                elif c.cls in ("valu", "trans", "vmem", "ds"):
                    if p.defs & (c.uses | c.defs):
                        req = max(req, 8 if n4 else 12)
                    if c.cls in ("valu", "trans") and (p.srcc & c.defs):
                        req = max(req, 3 if n4 else 7)
            need = max(need, req - dist)
            dist += p.states
            if dist > 24:
                break
        return need

    def _push(self, i):
        self.hist.append(i)
        if len(self.hist) > 40:
            self.hist = self.hist[-30:]
        self.nins += 1
        self.stats[i.cls] = self.stats.get(i.cls, 0) + 1

    def nop(self, n):
        while n > 0:
            k = min(n, 16)
            i = self._classify("s_nop", [str(k - 1)], "")
            i.text = f"s_nop {k - 1}"
            self.out.append("  " + i.text)
            self._push(i)
            n -= k

    def wait(self, vm=None, lgkm=None):
        parts = []
        if vm is not None and vm < len(self.vmq):
            vm = min(vm, 63)
            parts.append(f"vmcnt({vm})")
            self.vmq = self.vmq[len(self.vmq) - vm:] if vm > 0 else []
        if lgkm is not None and lgkm < len(self.lgq):
            if any(sm for _, sm, _ in self.lgq):
                lgkm = 0
            lgkm = min(lgkm, 15)
            parts.append(f"lgkmcnt({lgkm})")
            self.lgq = self.lgq[len(self.lgq) - lgkm:] if lgkm > 0 else []
        if parts:
            i = self._classify("s_waitcnt", [], "")
            i.text = "s_waitcnt " + " ".join(parts)
            self.out.append("  " + i.text)
            self._push(i)

    def wait_tag_vm(self, tag):
        idx = -1
        for k, (d, t) in enumerate(self.vmq):
            if t == tag:
                idx = k
        if idx >= 0:
            self.wait(vm=len(self.vmq) - 1 - idx)

    def wait_all(self):
        self.wait(vm=0, lgkm=0)

    def force_wait(self, text):
        i = self._classify("s_waitcnt", [], "")
        i.text = "s_waitcnt " + text
        self.out.append("  " + i.text)
        self._push(i)

    def _auto_wait(self, c):
        touched = c.uses | c.defs
        vm = None
        for k in range(len(self.vmq) - 1, -1, -1):
            if self.vmq[k][0] & touched:
                vm = len(self.vmq) - 1 - k
                break
        lg = None
        for k in range(len(self.lgq) - 1, -1, -1):
            if self.lgq[k][0] & touched:
                lg = len(self.lgq) - 1 - k
                break
        self.wait(vm, lg)

    def I(self, op, *ops, mods="", tag=None):
        ops = [str(o) for o in ops]
        c = self._classify(op, ops, mods)
        c.text = op + (" " + ", ".join(ops) if ops else "") + (" " + mods if mods else "")
        self._auto_wait(c)
        n = self._need_states(c)
        if n > 0:
            self.nop(n)
        self.out.append("  " + c.text)
        self._push(c)
        if c.cls == "vmem":
            self.vmq.append((set(c.defs), tag))
            if len(self.vmq) > 63:
                pass
        elif c.cls == "ds":
            self.lgq.append((set(c.defs), False, tag))
        elif c.cls == "smem":
            self.lgq.append((set(c.defs), True, tag))
        return c

    def barrier(self):
        self.I("s_barrier")

    def text(self):
        return "\n".join(self.out)
```

```python
def kd(name, vgpr=256, sgpr=96, accum=None):
    if accum is None: accum = min(256, (vgpr + 3)//4*4)
    return f""".amdhsa_kernel {name}
  .amdhsa_next_free_vgpr {vgpr}
  .amdhsa_next_free_sgpr {sgpr}
  .amdhsa_accum_offset {accum}
  .amdhsa_group_segment_fixed_size 0
  .amdhsa_kernarg_size 104
  .amdhsa_user_sgpr_count 2
  .amdhsa_user_sgpr_kernarg_segment_ptr 1
  .amdhsa_system_sgpr_workgroup_id_x 1
.end_amdhsa_kernel"""
def head(name):
    return f".globl {name}\n.p2align 8\n.type {name},@function\n{name}:"
def srd(r, lo, nbytes):
    return f"  s_mov_b32 s{r}, s{lo}\n  s_mov_b32 s{r+1}, s{lo+1}\n  s_mov_b32 s{r+2}, {nbytes}\n  s_mov_b32 s{r+3}, 0x20000"
def module(launches, bodies, kds):
    out = []
    for (n, g, b, lds) in launches:
        out.append(f"; @launch kernel={n} grid=({g},1,1) block=({b},1,1) lds={lds}")
    out.append('.amdgcn_target "amdgcn-amd-amdhsa--gfx950"\n.text')
    out += bodies
    out.append('.section .rodata,"a"')
    for k in kds:
        out.append(".p2align 6"); out.append(k)
    return "\n".join(out) + "\n"
STAMP0 = "  s_memtime s[80:81]\n  s_memrealtime s[82:83]\n  s_waitcnt lgkmcnt(0)"
def stamp1(srdws, vtmp=1):
    return f"""  s_memtime s[84:85]
  s_memrealtime s[86:87]
  s_waitcnt lgkmcnt(0)
  s_sub_u32 s84, s84, s80
  s_sub_u32 s86, s86, s82
  v_mov_b32 v{vtmp+1}, s84
  v_mov_b32 v{vtmp+2}, s86
  s_lshl_b32 s88, s2, 13
  v_lshlrev_b32 v{vtmp}, 3, v0
  v_add_u32 v{vtmp}, s88, v{vtmp}
  buffer_store_dwordx2 v[{vtmp+1}:{vtmp+2}], v{vtmp}, s[{srdws}:{srdws+3}], 0 offen
  s_waitcnt vmcnt(0)"""
```

```python
from ab import *
from lay import *
import tl
MF = "v_mfma_f32_16x16x32_bf16"

HE, HO, UB, WSZ = 0, 4288, 8512, 13184
YL = 4 * WSZ
CONV_LDS = YL + 4 * 4160

def emit_conv(b, name):
    b.I("s_load_dwordx4", s(12, 4), s(0, 2), 32)
    b.I("s_load_dwordx2", s(8, 2), s(0, 2), 96)
    b.I("v_lshrrev_b32", v(1), 6, v(0))
    b.I("v_and_b32", v(2), 63, v(0))
    b.I("v_readfirstlane_b32", s(3), v(1))
    b.I("v_lshlrev_b32", v(3), 4, v(2))
    b.I("s_lshl_b32", s(4), s(2), 2)
    b.I("s_add_u32", s(4), s(4), s(3))
    b.I("s_mul_i32", s(5), s(3), WSZ)
    b.I("s_mov_b32", s(10), WS_BYTES)
    b.I("s_mov_b32", s(11), 0x20000)
    b.I("s_lshl_b32", s(6), s(4), 12)
    I_, G_ = 4, 5
    b.I("v_and_b32", v(I_), 15, v(2))
    b.I("v_lshrrev_b32", v(G_), 4, v(2))
    b.wait_all()
    b.I("s_mov_b32", s(16), s(14))
    b.I("s_mov_b32", s(17), s(15))
    b.I("s_mov_b32", s(18), 1152)
    b.I("s_mov_b32", s(19), 0x20000)
    b.I("s_add_u32", s(12), s(12), s(6))
    b.I("s_addc_u32", s(13), s(13), 0)
    b.I("s_mov_b32", s(14), 4096)
    b.I("s_mov_b32", s(15), 0x20000)
    H = 64
    for r in range(4):
        b.I("buffer_load_dwordx4", v(H + 8 * r, 4), v(3), s(12, 4), 0, mods=f"offen offset:{1024 * r}")
    b.I("v_add_u32", v(6), 16, v(3))
    for r in range(4):
        b.I("buffer_load_dword", v(H + 8 * r + 4), v(6), s(12, 4), 0, mods=f"offen offset:{1024 * r}")
    b.I("s_add_u32", "m0", s(5), UB + 32)
    b.I("s_add_u32", s(7), s(6), KVT)
    for r in range(4):
        b.I("buffer_load_dwordx4", v(3), s(8, 4), s(7), mods=f"offen offset:{1024 * r} lds", tag="u")
    b.I("s_lshl_b32", s(7), s(4), 1)
    b.I("v_mov_b32", v(7), s(7))
    b.I("buffer_load_ushort", v(8), v(7), s(16, 4), 0, mods="offen")
    b.I("v_mov_b32", v(12), 0)
    for k in range(1, 4):
        b.I("v_mov_b32", v(12 + k), 0)
    b.I("v_add_u32", v(9), s(5), v(3))
    b.I("v_cmp_gt_u32", "vcc", 32, v(2))
    b.I("s_and_saveexec_b64", s(20, 2), "vcc")
    b.I("ds_write_b128", v(9), v(12, 4), mods=f"offset:{UB + 32 + 4096}")
    b.I("v_cmp_gt_u32", "vcc", 4, v(2))
    b.I("s_and_b64", "exec", "exec", "vcc")
    b.I("ds_write_b128", v(9), v(12, 4), mods=f"offset:{HE}")
    b.I("ds_write_b128", v(9), v(12, 4), mods=f"offset:{HE + 4160}")
    b.I("ds_write_b128", v(9), v(12, 4), mods=f"offset:{HO}")
    b.I("ds_write_b128", v(9), v(12, 4), mods=f"offset:{HO + 4160}")
    b.I("v_cmp_gt_u32", "vcc", 2, v(2))
    b.I("s_and_b64", "exec", "exec", "vcc")
    b.I("ds_write_b128", v(9), v(12, 4), mods=f"offset:{UB}")
    b.I("s_mov_b64", "exec", s(20, 2))
    AA = 16
    b.I("v_and_b32", v(10), 1, v(I_))
    b.I("v_mul_u32_u24", v(10), HO - 2, v(10))
    b.I("v_sub_u32", v(10), HO, v(10))
    b.I("v_lshl_add_u32", v(10), v(I_), 1, v(10))
    b.I("v_lshl_add_u32", v(10), v(G_), 4, v(10))
    b.I("v_add_u32", v(AA), s(5), v(10))
    for k in range(1, 5):
        b.I("v_add_u32", v(AA + k), 1024 * k, v(AA))
    BA = 21
    b.I("v_lshlrev_b32", v(10), 5, v(I_))
    b.I("v_lshlrev_b32", v(11), 4, v(G_))
    b.I("v_sub_u32", v(10), v(11), v(10))
    b.I("s_add_u32", s(7), s(5), UB + 480)
    b.I("v_add_u32", v(BA), s(7), v(10))
    for r in range(4):
        b.I("ds_write_b128", v(9), v(H + 8 * r, 4), mods=f"offset:{HE + 64 + 1024 * r}")
    b.I("v_lshlrev_b32", v(11), 16, v(H))
    for r in range(4):
        for k in range(4):
            b.I("v_alignbyte_b32", v(H + 8 * r + k), v(H + 8 * r + k + 1), v(H + 8 * r + k), 2)
        b.I("ds_write_b128", v(9), v(H + 8 * r, 4), mods=f"offset:{HO + 64 + 1024 * r}")
    b.I("v_cmp_eq_u32", "vcc", 0, v(2))
    b.I("s_and_saveexec_b64", s(20, 2), "vcc")
    b.I("ds_write_b32", v(9), v(11), mods=f"offset:{HO + 60}")
    b.I("s_mov_b64", "exec", s(20, 2))
    DA = 24
    b.I("v_lshlrev_b32", v(10), 3, v(G_))
    b.I("v_add_u32", v(10), v(10), v(I_))
    b.I("v_sub_u32", v(10), 31, v(10))
    b.I("v_lshlrev_b32", v(11), 16, v(8))
    for r in range(4):
        b.I("v_cmp_eq_u32", "vcc", 2 * r, v(10))
        b.I("v_cndmask_b32", v(DA + r), 0, v(8), "vcc")
        b.I("v_cmp_eq_u32", "vcc", 2 * r + 1, v(10))
        b.I("v_cndmask_b32", v(DA + r), v(DA + r), v(11), "vcc")
    b.wait_tag_vm("u")
    b.wait(lgkm=0)
    ACC = 28
    AR, NA = 64, 6
    def breg(beta):
        k = beta + 8
        return a(4 * k, 4) if k < 64 else v(60, 4)
    loaded = set()
    def load_b(beta):
        if beta in loaded or beta < -8 or beta > 56:
            return
        loaded.add(beta)
        b.I("ds_read_b128", breg(beta), v(BA), mods=f"offset:{(56 - beta) * 64}")
    def load_a(mu):
        if mu > 64:
            return
        r = AR + 4 * (mu % NA)
        base = AA + mu // 16
        o = 16 * (mu % 16)
        b.I("ds_read2_b32", v(r, 2), v(base), mods=f"offset0:{o} offset1:{o + 1}")
        b.I("ds_read2_b32", v(r + 2, 2), v(base), mods=f"offset0:{o + 2} offset1:{o + 3}")
    for ct in range(8):
        load_b(8 * ct)
    load_a(0)
    for ct in range(8):
        load_b(8 * ct - 1)
    load_a(1)
    for ct in range(8):
        b.I(MF, v(ACC + 4 * ct, 4), v(DA, 4), breg(8 * ct), "0")
    PF = NA - 1
    nexta = 2
    for mu in range(65):
        cts = [ct for ct in range(8) if 8 * ct + 8 >= mu]
        pend = [8 * ct - (mu + 2) for ct in range(8) if 8 * ct - (mu + 2) >= -8 and (8 * ct - (mu + 2)) not in loaded]
        while nexta <= min(64, mu + PF) and (not pend or nexta <= mu + 2):
            load_a(nexta)
            nexta += 1
            if pend:
                break
        for ct in cts:
            d = v(ACC + 4 * ct, 4)
            b.I(MF, d, v(AR + 4 * (mu % NA), 4), breg(8 * ct - mu), d)
            if pend:
                load_b(pend.pop(0))
        for be in pend:
            load_b(be)
    YW, YR, YS = 96, 97, 98
    b.I("s_mul_i32", s(7), s(3), 4160)
    b.I("s_add_u32", s(7), s(7), YL)
    b.I("v_lshlrev_b32", v(YW), 5, v(I_))
    b.I("v_lshl_add_u32", v(YW), v(G_), 3, v(YW))
    b.I("v_add_u32", v(YW), s(7), v(YW))
    b.I("v_bfe_u32", v(10), v(2), 2, 2)
    b.I("v_mul_u32_u24", v(YR), 4160, v(10))
    b.I("v_lshl_add_u32", v(YR), v(G_), 5, v(YR))
    b.I("v_and_b32", v(10), 3, v(2))
    b.I("v_lshl_add_u32", v(YR), v(10), 3, v(YR))
    b.I("s_lshl_b32", s(7), s(3), 10)
    b.I("s_add_u32", s(7), s(7), YL)
    b.I("v_add_u32", v(YR), s(7), v(YR))
    b.I("v_mul_u32_u24", v(YS), 18432, v(G_))
    b.I("v_lshl_add_u32", v(YS), v(I_), 3, v(YS))
    b.I("s_mul_i32", s(22), s(3), 32 * 18432)
    b.I("s_lshl_b32", s(7), s(2), 7)
    b.I("s_add_u32", s(22), s(22), s(7))
    b.I("s_add_u32", s(22), s(22), YB)
    for ct in range(8):
        r = ACC + 4 * ct
        b.I("v_cvt_pk_bf16_f32", v(r), v(r), v(r + 1))
        b.I("v_cvt_pk_bf16_f32", v(r + 1), v(r + 2), v(r + 3))
        b.I("ds_write_b64", v(YW), v(r, 2), mods=f"offset:{512 * ct}")
    b.wait(lgkm=0)
    b.barrier()
    for k in range(8):
        b.I("ds_read_b64_tr_b16", v(64 + 2 * k, 2), v(YR), mods=f"offset:{128 * k}")
    for k in range(8):
        b.I("s_add_u32", s(24 + (k & 1)), s(22), 4 * k * 18432)
        b.I("buffer_store_dwordx2", v(64 + 2 * k, 2), v(YS), s(8, 4), s(24 + (k & 1)), mods="offen")
    b.wait_all()
    tl.end(b)
    b.I("s_endpgm")


def k_conv(name):
    b = AB()
    b.raw(f".globl {name}\n.p2align 8\n.type {name},@function\n{name}:")
    tl.start(b)
    b.I("s_cmp_ge_u32", s(2), 144)
    b.I("s_cbranch_scc1", f"{name}_end")
    emit_conv(b, name)
    b.label(f"{name}_end")
    b.I("s_endpgm")
    return b
```

```python
from ab import *
from lay import *

MF = "v_mfma_f32_16x16x32_bf16"

DEF = dict(
    xsched={-1: [0, 1, 2, 3], 0: [4, 5], 1: [6, 7], 2: [8, 9], 3: [10, 11], 4: [12, 13], 5: [14, 15], 6: [16, 17]},
    epochs=[[0, 1], [2, 3], [4, 5], [6, 7, 8, 9], list(range(10, 18))],
    prioA_step=7,
    xring=6,
    stamps=False,
    aux="sc1",
)

class Stamps:
    def __init__(self, b, on, base=60):
        self.b, self.on, self.n, self.base = b, on, 0, base
    def __call__(self):
        if self.on:
            self.b.I("s_memtime", s(self.base + 2 * self.n, 2))
            self.n += 1

def gelu_tiles(b, tiles, temps):
    G = 2
    for i in range(0, len(tiles), G):
        grp = tiles[i:i + G]
        vals = []
        for j, (ab_, dst) in enumerate(grp):
            vals.append((ab_, ab_ + 2, temps[(2 * j) % len(temps)]))
            vals.append((ab_ + 1, ab_ + 3, temps[(2 * j + 1) % len(temps)]))
        for g, u, t in vals:
            b.I("v_fmaak_f32", v(t), v(g), v(g), fhex(KP))
        for g, u, t in vals:
            b.I("v_mul_f32", v(u), v(g), v(u))
        for g, u, t in vals:
            b.I("v_mul_f32", v(g), v(t), v(g))
        for g, u, t in vals:
            b.I("v_exp_f32_e64", v(g), "-" + v(g))
        for g, u, t in vals:
            b.I("v_add_f32", v(g), "1.0", v(g))
        for g, u, t in vals:
            b.I("v_rcp_f32", v(g), v(g))
        for g, u, t in vals:
            b.I("v_mul_f32", v(u), v(u), v(g))
        for (ab_, dst) in grp:
            b.I("v_cvt_pk_bf16_f32", v(dst), v(ab_ + 2), v(ab_ + 3))


def ffn_role(b, role, P, name):
    A = role == "A"
    NT = 5 if A else 4
    VL = [0, 1, 2]
    VS, VS2 = 3, 255
    XR = 4
    NX = P["xring"]
    WR = XR + 4 * NX
    NW = 15
    ACC = WR + 4 * NW
    assert ACC + 160 <= 248, ACC
    TEMPS = [248, 249, 250, 251]
    acc = lambda t, n: ACC + (t * 8 + n) * 4
    st = Stamps(b, P["stamps"])
    SRD = s(8, 4)
    steps = []
    ep_of = {}
    for e, l in enumerate(P["epochs"]):
        for ks in l:
            ep_of[ks] = e
    NE = len(P["epochs"])
    for ks in range(18):
        w = [(20, ks * 4096, t * 1024) for t in range(4)]
        if A:
            w.append((21, ks * 4096, 0))
        steps.append(dict(ph=1, k=ks, w=w, b=[((ks * 8 + n) * 1024, ep_of[ks]) for n in range(8)], first=(ks == 0)))
    korder = [0, 1, 2, 3, 8, 4, 5, 6, 7] if A else [4, 5, 6, 7, 0, 1, 2, 3, 8]
    for i, kp in enumerate(korder):
        w = [(22, kp * 36 * 1024, t * 1024) for t in range(4)]
        if A:
            w.append((23, kp * 36 * 1024, 0))
        ep = (NE if i < 5 else NE + 1) if A else NE + 1
        steps.append(dict(ph=2, k=kp, w=w, b=[((kp * 8 + n) * 1024, ep) for n in range(8)], first=(i == 0)))
    wseq = [(si, j) for si, stp in enumerate(steps) for j in range(len(stp["w"]))]
    bseq = [(si, n) for si, stp in enumerate(steps) for n in range(8)]
    wslot = {}
    bslot = {}
    wfree = list(range(NW))
    bfree = list(range(NX))
    stt = dict(wi=0, bi=0, epoch=-1, lastsb=None, stmp=0)

    def issue_w():
        if stt["wi"] >= len(wseq) or not wfree:
            return False
        si, j = wseq[stt["wi"]]
        sb, c, imm = steps[si]["w"][j]
        if stt["lastsb"] != (sb, c):
            stt["stmp"] ^= 1
            b.I("s_add_u32", s(28 + stt["stmp"]), s(sb), c)
            stt["lastsb"] = (sb, c)
        sl = wfree.pop(0)
        wslot[(si, j)] = sl
        b.I("buffer_load_dwordx4", v(WR + 4 * sl, 4), v(VL[0]), SRD, s(28 + stt["stmp"]), mods=f"offen offset:{imm}")
        stt["wi"] += 1
        return True

    def issue_x(ks):
        b.I("s_add_u32", "m0", s(25), ks * 8192)
        b.I("s_add_u32", s(30), s(24), ks * 8192)
        b.I("buffer_load_dwordx4", v(VL[0]), SRD, s(30), mods="offen lds", tag=("x", ep_of[ks]))

    def enter_epoch(e):
        while stt["epoch"] < e:
            ne = stt["epoch"] + 1
            assert ne < NE, "P2 epochs are explicit"
            b.wait_tag_vm(("x", ne))
            b.barrier()
            stt["epoch"] = ne

    def issue_b(allow_epoch=True):
        if stt["bi"] >= len(bseq) or not bfree:
            return False
        si, n = bseq[stt["bi"]]
        addr, ep = steps[si]["b"][n]
        if ep > stt["epoch"]:
            if ep >= NE or not allow_epoch:
                return False
            enter_epoch(ep)
        sl = bfree.pop(0)
        bslot[(si, n)] = sl
        b.I("ds_read_b128", v(XR + 4 * sl, 4), v(VL[addr >> 16]), mods=f"offset:{addr & 0xffff}")
        stt["bi"] += 1
        return True

    def run_step(si):
        stp = steps[si]
        nt = len(stp["w"])
        for n in range(8):
            if (si, n) not in bslot:
                while (si, n) not in bslot:
                    assert issue_b(), (role, si, n)
            for t in range(nt):
                d = v(acc(t, n), 4)
                b.I(MF, d, v(WR + 4 * wslot[(si, t)], 4), v(XR + 4 * bslot[(si, n)], 4), "0" if stp["first"] else d)
                if n == 7:
                    wfree.append(wslot[(si, t)])
                    if t == 0 and stp["ph"] == 1:
                        for ks in P["xsched"].get(stp["k"], []):
                            issue_x(ks)
                    issue_w()
            bfree.append(bslot[(si, n)])
            issue_b()
        while issue_w():
            pass

    st()
    x0 = P["xsched"][-1]
    for j in range(NT):
        issue_w()
    issue_x(x0[0]); issue_x(x0[1])
    for j in range(NT):
        issue_w()
    for ks in x0[2:]:
        issue_x(ks)
    while issue_w():
        pass
    while issue_b():
        pass
    st()
    for si in range(18):
        if A and si == P["prioA_step"]:
            b.I("s_setprio", 1)
        run_step(si)
    st()
    tiles_all = []
    for n in range(8):
        for t in range(NT):
            tiles_all.append((acc(t, n), acc(0, n) + t if t < 4 else acc(4, n)))

    def write_h():
        for n in range(8):
            b.I("ds_write_b128", v(252), v(acc(0, n), 4), mods=f"offset:{n * 1024}")
        if A:
            for n in range(8):
                b.I("ds_write_b32", v(253), v(acc(4, n)), mods=f"offset:{n * 1024}")
    if A:
        gelu_tiles(b, tiles_all, TEMPS)
        st()
        b.barrier()
        write_h()
        b.wait(lgkm=0)
        b.barrier()
        stt["epoch"] = NE
        st()
        while issue_b():
            pass
        for si in range(18, 23):
            run_step(si)
        st()
        b.barrier()
        stt["epoch"] = NE + 1
        while issue_b():
            pass
        for si in range(23, 27):
            run_step(si)
    else:
        b.wait(lgkm=0)
        b.barrier()
        b.barrier()
        gelu_tiles(b, tiles_all, TEMPS)
        st()
        write_h()
        b.wait(lgkm=0)
        st()
        b.barrier()
        stt["epoch"] = NE + 1
        st()
        while issue_b():
            pass
        for si in range(18, 27):
            run_step(si)
    st()
    aux = P["aux"]
    for n in range(8):
        b.I("s_add_u32", s(28), s(26), n * 18432)
        for dd in range(2):
            e, o = acc(2 * dd, n), acc(2 * dd + 1, n)
            b.I("v_cvt_pk_bf16_f32", v(e), v(e), v(e + 1))
            b.I("v_cvt_pk_bf16_f32", v(e + 1), v(e + 2), v(e + 3))
            b.I("v_cvt_pk_bf16_f32", v(e + 2), v(o), v(o + 1))
            b.I("v_cvt_pk_bf16_f32", v(e + 3), v(o + 2), v(o + 3))
            b.I("buffer_store_dwordx4", v(e, 4), v(VS), SRD, s(28), mods=f"offen offset:{dd * 1024} {aux}")
        if A:
            e = acc(4, n)
            b.I("s_add_u32", s(29), s(27), n * 18432)
            b.I("v_cvt_pk_bf16_f32", v(e), v(e), v(e + 1))
            b.I("v_cvt_pk_bf16_f32", v(e + 1), v(e + 2), v(e + 3))
            b.I("buffer_store_dwordx2", v(e, 2), v(VS2), SRD, s(29), mods=f"offen {aux}")
    if P["stamps"]:
        st()
        b.wait_all()
        st()
        b.wait_all()
        b.I("s_lshl_b32", s(28), s(2), 3)
        b.I("s_add_u32", s(28), s(28), s(3))
        b.I("s_lshl_b32", s(28), s(28), 7)
        b.I("s_add_u32", s(28), s(28), STAMP)
        b.I("v_mov_b32", v(4), 0)
        for i in range(st.n):
            b.I("v_mov_b32", v(8), s(st.base + 2 * i))
            b.I("buffer_store_dword", v(8), v(4), SRD, s(28), mods=f"offen offset:{4 * i}")
    b.wait_all()
    b.I("s_endpgm")


def k_ffn(name, **kw):
    P = dict(DEF); P.update(kw)
    b = AB()
    b.raw(f".globl {name}\n.p2align 8\n.type {name},@function\n{name}:")
    b.I("s_cmp_ge_u32", s(2), 256)
    b.I("s_cbranch_scc1", f"{name}_end")
    b.I("s_load_dwordx2", s(8, 2), s(0, 2), 96)
    b.I("v_lshrrev_b32", v(4), 6, v(0))
    b.I("v_and_b32", v(5), 63, v(0))
    b.I("v_readfirstlane_b32", s(3), v(4))
    b.I("v_lshlrev_b32", v(0), 4, v(5))
    b.I("v_add_u32", v(1), 0x10000, v(0))
    b.I("v_add_u32", v(2), 0x20000, v(0))
    b.I("v_and_b32", v(6), 15, v(5))
    b.I("v_lshrrev_b32", v(7), 4, v(5))
    b.I("v_lshl_add_u32", v(6), v(6), 2, v(7))
    b.I("v_lshlrev_b32", v(3), 4, v(6))
    b.I("v_lshlrev_b32", v(255), 3, v(6))
    b.I("s_mov_b32", s(10), WS_BYTES)
    b.I("s_mov_b32", s(11), 0x20000)
    b.I("s_and_b32", s(4), s(2), 7)
    b.I("s_lshl_b32", s(4), s(4), 1)
    b.I("s_bfe_u32", s(5), s(2), 0x10003)
    b.I("s_add_u32", s(4), s(4), s(5))
    b.I("s_lshr_b32", s(5), s(2), 4)
    b.I("s_mul_i32", s(6), s(4), 9)
    b.I("s_add_u32", s(7), s(6), s(3))
    b.I("s_mul_i32", s(20), s(7), 18 * 4096)
    b.I("s_add_u32", s(20), s(20), WGU)
    b.I("s_add_u32", s(7), s(6), 8)
    b.I("s_mul_i32", s(21), s(7), 18 * 4096)
    b.I("s_lshl_b32", s(25), s(3), 10)
    b.I("s_add_u32", s(21), s(21), s(25))
    b.I("s_add_u32", s(21), s(21), WGU)
    b.I("s_mul_i32", s(22), s(6), 36 * 1024)
    b.I("s_add_u32", s(22), s(22), WD)
    b.I("s_add_u32", s(23), s(22), s(25))
    b.I("s_add_u32", s(23), s(23), 32 * 1024)
    b.I("s_lshl_b32", s(7), s(3), 12)
    b.I("s_add_u32", s(22), s(22), s(7))
    b.I("s_mul_i32", s(24), s(5), 147456)
    b.I("s_add_u32", s(24), s(24), s(25))
    b.I("s_add_u32", s(24), s(24), XN)
    b.I("s_lshl_b32", s(7), s(5), 4)
    b.I("s_add_u32", s(7), s(7), s(4))
    b.I("s_mul_i32", s(26), s(7), 8 * 18432)
    b.I("s_add_u32", s(26), s(26), PART)
    b.I("s_lshl_b32", s(7), s(3), 9)
    b.I("s_add_u32", s(27), s(26), s(7))
    b.I("s_add_u32", s(27), s(27), 16384)
    b.I("s_lshl_b32", s(7), s(3), 11)
    b.I("s_add_u32", s(26), s(26), s(7))
    b.I("s_lshl_b32", s(7), s(3), 13)
    b.I("v_add_u32", v(252), s(7), v(0))
    b.I("s_lshl_b32", s(7), s(3), 2)
    b.I("s_add_u32", s(7), s(7), 64 * 1024)
    b.I("v_add_u32", v(253), s(7), v(0))
    b.wait_all()
    b.I("s_cmp_ge_u32", s(3), 4)
    b.I("s_cbranch_scc1", f"{name}_B")
    snap = b.snapshot()
    ffn_role(b, "A", P, name)
    b.restore(snap)
    b.raw(".p2align 6")
    b.label(f"{name}_B")
    ffn_role(b, "B", P, name)
    b.label(f"{name}_end")
    b.I("s_endpgm")
    return b
```

```python
from ab import *
from lay import *
MF = "v_mfma_f32_16x16x32_bf16"

def rowreduce(b, x, t):
    b.I("v_add_f32_dpp", v(x), v(x), v(x), mods="quad_perm:[1,0,3,2] row_mask:0xf bank_mask:0xf")
    b.I("v_add_f32_dpp", v(x), v(x), v(x), mods="quad_perm:[2,3,0,1] row_mask:0xf bank_mask:0xf")
    b.I("v_mov_b32", v(t), v(x))
    b.I("v_permlane16_swap_b32", v(t), v(x))
    b.I("v_add_f32", v(x), v(x), v(t))
    b.I("v_mov_b32", v(t), v(x))
    b.I("v_permlane32_swap_b32", v(t), v(x))
    b.I("v_add_f32", v(x), v(x), v(t))

def rbf(b, x):
    b.I("v_cvt_pk_bf16_f32", v(x), v(x), v(x))
    b.I("v_lshlrev_b32", v(x), 16, v(x))

def ln_stats(b, X, T, scale=None):
    a0, a1 = T, T + 2
    b.I("v_pk_add_f32", v(a0, 2), v(X, 2), v(X + 2, 2))
    b.I("v_pk_add_f32", v(a1, 2), v(X + 4, 2), v(X + 6, 2))
    for i in range(4, 18):
        acc = a0 if i % 2 == 0 else a1
        b.I("v_pk_add_f32", v(acc, 2), v(acc, 2), v(X + 2 * i, 2))
    b.I("v_pk_add_f32", v(a0, 2), v(a0, 2), v(a1, 2))
    M = T + 10
    b.I("v_add_f32", v(M), v(a0), v(a0 + 1))
    rowreduce(b, M, T)
    b.I("v_mul_f32", v(M), fhex(-1.0 / 576), v(M))
    d0, d1 = T + 4, T + 6
    for i in range(18):
        d = d0 if i % 2 == 0 else d1
        acc = a0 if i % 2 == 0 else a1
        b.I("v_pk_add_f32", v(d, 2), v(X + 2 * i, 2), v(M, 2), mods="op_sel_hi:[1,0]")
        if i < 2:
            b.I("v_pk_mul_f32", v(acc, 2), v(d, 2), v(d, 2))
        else:
            b.I("v_pk_fma_f32", v(acc, 2), v(d, 2), v(d, 2), v(acc, 2))
    b.I("v_pk_add_f32", v(a0, 2), v(a0, 2), v(a1, 2))
    R = T + 8
    b.I("v_add_f32", v(R), v(a0), v(a0 + 1))
    rowreduce(b, R, T)
    b.I("v_mul_f32", v(R), fhex(1.0 / 576), v(R))
    rbf(b, R)
    b.I("v_add_f32", v(R), fhex(1e-5), v(R))
    rbf(b, R)
    b.I("v_sqrt_f32", v(R), v(R))
    rbf(b, R)
    b.I("v_rcp_f32", v(R), v(R))
    rbf(b, M)
    if scale is not None:
        b.I("v_mul_f32", v(R), fhex(scale), v(R))
    b.I("v_mul_f32", v(M), v(M), v(R))
    return R, M

def unpack(b, dst, src):
    b.I("v_lshlrev_b32", v(dst), 16, v(src))
    b.I("v_and_b32", v(dst + 1), 0xffff0000, v(src))

def swap_pairs(b, P):
    for i in range(4):
        b.I("v_permlane16_swap_b32", v(P + 4 * i), v(P + 4 * i + 2))
        b.I("v_permlane16_swap_b32", v(P + 4 * i + 1), v(P + 4 * i + 3))

def k_ln(name, mode, NP=16):
    b = AB()
    b.raw(f".globl {name}\n.p2align 8\n.type {name},@function\n{name}:")
    b.I("s_cmp_ge_u32", s(2), 256)
    b.I("s_cbranch_scc1", f"{name}_end")
    b.I("s_load_dwordx2", s(8, 2), s(0, 2), 96)
    if mode == 0:
        b.I("s_load_dwordx2", s(12, 2), s(0, 2), 0)
    if mode == 2:
        b.I("s_load_dwordx2", s(12, 2), s(0, 2), 80)
    WS, IO = s(8, 4), s(12, 4)
    L, C16, G, TOK, CQ, GH, GL = 1, 2, 3, 4, 5, 6, 7
    b.I("v_lshrrev_b32", v(8), 6, v(0))
    b.I("v_and_b32", v(L), 63, v(0))
    b.I("v_readfirstlane_b32", s(3), v(8))
    b.I("v_and_b32", v(C16), 15, v(L))
    b.I("v_lshrrev_b32", v(G), 4, v(L))
    b.I("v_lshrrev_b32", v(TOK), 2, v(C16))
    b.I("v_and_b32", v(CQ), 3, v(L))
    b.I("v_lshrrev_b32", v(GH), 1, v(G))
    b.I("v_and_b32", v(GL), 1, v(G))
    b.I("s_mov_b32", s(10), WS_BYTES)
    b.I("s_mov_b32", s(11), 0x20000)
    b.I("s_mov_b32", s(14), S * D * 2)
    b.I("s_mov_b32", s(15), 0x20000)
    b.I("s_and_b32", s(4), s(2), 0xf0)
    b.I("s_and_b32", s(5), s(2), 7)
    b.I("s_lshl_b32", s(5), s(5), 1)
    b.I("s_add_u32", s(4), s(4), s(5))
    b.I("s_bfe_u32", s(5), s(2), 0x10003)
    b.I("s_add_u32", s(4), s(4), s(5))
    b.I("s_lshl_b32", s(5), s(4), 1)
    b.I("s_add_u32", s(5), s(5), s(3))
    b.I("s_lshr_b32", s(6), s(4), 4)
    b.I("s_bfe_u32", s(7), s(4), 0x30001)
    b.I("s_and_b32", s(16), s(5), 3)
    VP, VP2, VN, VN2, VY, VR, VR2, VX, VX2 = 8, 9, 10, 11, 12, 13, 14, 15, 16
    XP = 20
    YP = 40
    X = 60
    T = 96
    A1, A2 = 108, 112
    ACC = 116
    PB = 152
    OP = 184
    if mode != 0:
        b.I("v_mul_u32_u24", v(VP), 147456, v(G))
        b.I("v_lshl_add_u32", v(VP2), v(C16), 3, v(VP))
        b.I("v_lshl_add_u32", v(VP), v(C16), 4, v(VP))
        b.I("s_lshl_b32", s(17), s(6), 7)
        b.I("s_add_u32", s(17), s(17), s(7))
        b.I("s_mul_i32", s(17), s(17), 18432)
        b.I("s_add_u32", s(17), s(17), PART)
        b.I("s_lshl_b32", s(18), s(16), 7)
        b.I("s_add_u32", s(19), s(17), s(18))
        b.I("s_add_u32", s(17), s(19), s(18))
    b.I("v_lshlrev_b32", v(VN), 4, v(L))
    b.I("v_lshlrev_b32", v(VN2), 3, v(L))
    b.I("s_mul_i32", s(20), s(5), 4608)
    if mode != 1:
        b.I("v_mul_u32_u24", v(VR), 1152, v(TOK))
        b.I("v_lshl_add_u32", v(VR), v(GH), 6, v(VR))
        b.I("v_lshl_add_u32", v(VR), v(CQ), 4, v(VR))
        b.I("v_lshl_add_u32", v(VR2), v(GL), 3, v(VR))
        b.I("v_lshl_add_u32", v(VR), v(GL), 7, v(VR))
    if mode != 2:
        b.I("v_lshlrev_b32", v(VY), 3, v(TOK))
        b.I("v_lshl_add_u32", v(VY), v(GH), 10, v(VY))
        b.I("v_lshl_add_u32", v(VY), v(CQ), 8, v(VY))
        b.I("v_lshl_add_u32", v(VY), v(GL), 7, v(VY))
        b.I("s_lshr_b32", s(21), s(5), 2)
        b.I("s_mul_i32", s(21), s(21), 18432)
        b.I("s_lshl_b32", s(22), s(16), 5)
        b.I("s_add_u32", s(21), s(21), s(22))
        b.I("s_add_u32", s(21), s(21), YB)
        b.I("v_lshlrev_b32", v(VX), 4, v(TOK))
        b.I("v_lshl_add_u32", v(VX), v(CQ), 8, v(VX))
        b.I("v_lshl_add_u32", v(VX), v(GH), 13, v(VX))
        b.I("v_lshl_add_u32", v(VX2), v(GL), 3, v(VX))
        b.I("v_lshl_add_u32", v(VX), v(GL), 14, v(VX))
        b.I("s_mul_i32", s(23), s(6), 147456)
        b.I("s_lshl_b32", s(22), s(7), 10)
        b.I("s_add_u32", s(23), s(23), s(22))
        b.I("s_lshl_b32", s(22), s(16), 6)
        b.I("s_add_u32", s(23), s(23), s(22))
        b.I("s_add_u32", s(23), s(23), XN)
    b.wait_all()
    preg = {}
    if mode == 0:
        for i in range(4):
            b.I("buffer_load_dwordx4", v(XP + 4 * i, 4), v(VR), IO, s(20), mods=f"offen offset:{256 * i}")
        b.I("buffer_load_dwordx2", v(XP + 16, 2), v(VR2), IO, s(20), mods="offen offset:1024")
    else:
        b.I("s_add_u32", s(24), s(20), X1 if mode == 1 else X3)
        for i in range(4):
            b.I("buffer_load_dwordx4", v(XP + 4 * i, 4), v(VN), WS, s(24), mods=f"offen offset:{1024 * i}")
        b.I("s_add_u32", s(24), s(24), 4096)
        b.I("buffer_load_dwordx2", v(XP + 16, 2), v(VN2), WS, s(24), mods="offen")
    if mode != 0:
        NJ = NP // 4
        k = 0
        for dg in range(4):
            for j in range(NJ):
                b.I("s_add_u32", s(24 + (k & 1)), s(17), j * 4 * 147456 + dg * 4096)
                for dd in range(4):
                    r = a(4 * (k * 4 + dd), 4)
                    preg[(dg * 4 + dd, j)] = r
                    b.I("buffer_load_dwordx4", r, v(VP), WS, s(24 + (k & 1)), mods=f"offen offset:{dd * 1024}")
                k += 1
        for j in range(NJ):
            b.I("s_add_u32", s(24 + (j & 1)), s(19), j * 4 * 147456 + 16384)
            for dd in range(2):
                r = PB + (j * 2 + dd) * 4
                preg[(16 + dd, j)] = v(r, 4)
                for h in range(2):
                    b.I("buffer_load_dwordx2", v(r + 2 * h, 2), v(VP2), WS, s(24 + (j & 1)), mods=f"offen offset:{dd * 1024 + h * 512}")
    if mode != 2:
        for aa in range(9):
            if aa % 2 == 0:
                b.I("s_add_u32", s(26), s(21), aa * 2048)
            b.I("buffer_load_dwordx2", v(YP + 2 * aa, 2), v(VY), WS, s(26), mods=f"offen offset:{(aa % 2) * 2048}")
    if mode != 0:
        for r in range(4):
            for (AR, off) in ((A1, 0), (A2, 8)):
                b.I("v_mov_b32", v(AR + r), 0)
                b.I("v_cmp_eq_u32", "vcc", off + 2 * r, v(C16))
                b.I("v_mov_b32", v(T), 0x3f80)
                b.I("v_cndmask_b32", v(AR + r), v(AR + r), v(T), "vcc")
                b.I("v_cmp_eq_u32", "vcc", off + 2 * r + 1, v(C16))
                b.I("v_mov_b32", v(T), 0x3f800000)
                b.I("v_cndmask_b32", v(AR + r), v(AR + r), v(T), "vcc")
    if mode == 0:
        swap_pairs(b, XP)
    for i in range(18):
        unpack(b, X + 2 * i, XP + i)
    if mode != 0:
        SC = T + 10
        b.I("v_mov_b32", v(SC), fhex(OUTSCALE))
        for aa in range(9):
            d = v(ACC + 4 * aa, 4)
            first = True
            for j in range(NJ):
                for h in range(2):
                    b.I(MF, d, v(A1 if h == 0 else A2, 4), preg[(2 * aa + h, j)], "0" if first else d)
                    first = False
        for i in range(18):
            b.I("v_pk_fma_f32", v(X + 2 * i, 2), v(ACC + 2 * i, 2), v(SC, 2), v(X + 2 * i, 2), mods="op_sel_hi:[1,0,1]")
    if mode == 2:
        for i in range(18):
            b.I("v_cvt_pk_bf16_f32", v(OP + i), v(X + 2 * i), v(X + 2 * i + 1))
        swap_pairs(b, OP)
        for i in range(4):
            b.I("buffer_store_dwordx4", v(OP + 4 * i, 4), v(VR), IO, s(20), mods=f"offen offset:{256 * i}")
        b.I("buffer_store_dwordx2", v(OP + 16, 2), v(VR2), IO, s(20), mods="offen offset:1024")
    else:
        R, B = ln_stats(b, X, T)
        for i in range(18):
            t0 = T + 2 * (i % 2)
            t1 = T + 4 + 2 * (i % 2)
            unpack(b, t0, YP + i)
            b.I("v_pk_fma_f32", v(t1, 2), v(X + 2 * i, 2), v(R, 2), v(B, 2), mods="op_sel_hi:[1,0,0]")
            b.I("v_pk_fma_f32", v(X + 2 * i, 2), v(t1, 2), v(t0, 2), v(X + 2 * i, 2))
            b.I("v_cvt_pk_bf16_f32", v(OP + i), v(X + 2 * i), v(X + 2 * i + 1))
        b.I("s_add_u32", s(24), s(20), X1 if mode == 0 else X3)
        for i in range(4):
            b.I("buffer_store_dwordx4", v(OP + 4 * i, 4), v(VN), WS, s(24), mods=f"offen offset:{1024 * i}")
        b.I("s_add_u32", s(25), s(24), 4096)
        b.I("buffer_store_dwordx2", v(OP + 16, 2), v(VN2), WS, s(25), mods="offen")
        R, B = ln_stats(b, X, T, scale=ALPHA)
        for i in range(18):
            b.I("v_pk_fma_f32", v(X + 2 * i, 2), v(X + 2 * i, 2), v(R, 2), v(B, 2), mods="op_sel_hi:[1,0,0]")
            b.I("v_cvt_pk_bf16_f32", v(XP + i), v(X + 2 * i), v(X + 2 * i + 1))
        swap_pairs(b, XP)
        for i in range(4):
            b.I("s_add_u32", s(24 + (i & 1)), s(23), i * 32768)
            b.I("buffer_store_dwordx4", v(XP + 4 * i, 4), v(VX), WS, s(24 + (i & 1)), mods="offen")
        b.I("s_add_u32", s(26), s(23), 8 * 16384)
        b.I("buffer_store_dwordx2", v(XP + 16, 2), v(VX2), WS, s(26), mods="offen")
    b.wait_all()
    b.label(f"{name}_end")
    b.I("s_endpgm")
    return b
```

```python
from ab import *
from lay import *

NKV = 288
NU_GU = 1296
NU_D = 648

def emit_kv(b, name):
    b.I("s_load_dwordx4", s(12, 4), s(0, 2), 8)
    b.I("s_load_dwordx2", s(24, 2), s(0, 2), 24)
    b.I("s_load_dwordx2", s(8, 2), s(0, 2), 96)
    b.I("s_mul_i32", s(4), s(2), 7282)
    b.I("s_lshr_b32", s(4), s(4), 16)
    b.I("s_mul_i32", s(5), s(4), 9)
    b.I("s_sub_u32", s(5), s(2), s(5))
    TP, CG = 1, 2
    b.I("v_lshrrev_b32", v(TP), 3, v(0))
    b.I("v_and_b32", v(CG), 7, v(0))
    b.I("s_mul_i32", s(6), s(4), 64 * 1152)
    b.I("s_lshl_b32", s(7), s(5), 7)
    b.I("s_add_u32", s(6), s(6), s(7))
    b.I("s_sub_u32", s(6), s(6), 3 * 1152)
    b.I("v_mul_u32_u24", v(3), 2304, v(TP))
    b.I("v_lshl_add_u32", v(3), v(CG), 4, v(3))
    b.I("v_add_u32", v(3), s(6), v(3))
    for r in range(1, 5):
        b.I("v_add_u32", v(3 + r), r * 1152, v(3))
    b.I("s_lshl_b32", s(7), s(5), 9)
    b.I("v_lshlrev_b32", v(8), 6, v(CG))
    b.I("v_add_u32", v(8), s(7), v(8))
    b.I("s_mov_b32", s(10), WS_BYTES)
    b.I("s_mov_b32", s(11), 0x20000)
    b.I("s_mov_b32", s(26), 576 * 8)
    b.I("s_mov_b32", s(27), 0x20000)
    b.I("s_mov_b32", s(30), 0x05040100)
    b.I("s_mov_b32", s(31), 0x07060302)
    b.wait_all()
    b.I("s_mov_b32", s(16), s(14))
    b.I("s_mov_b32", s(17), s(15))
    b.I("s_mov_b32", s(18), S * D * 2)
    b.I("s_mov_b32", s(19), 0x20000)
    b.I("s_mov_b32", s(14), S * D * 2)
    b.I("s_mov_b32", s(15), 0x20000)
    K, V, W = 12, 32, 40
    for r in range(5):
        b.I("buffer_load_dwordx4", v(K + 4 * r, 4), v(3 + r), s(12, 4), 0, mods="offen")
    for r in range(2):
        b.I("buffer_load_dwordx4", v(V + 4 * r, 4), v(6 + r), s(16, 4), 0, mods="offen")
    for i in range(4):
        b.I("buffer_load_dwordx4", v(W + 4 * i, 4), v(8), s(24, 4), 0, mods=f"offen offset:{16 * i}")
    b.I("v_sub_u32", v(9), 31, v(TP))
    b.I("v_lshrrev_b32", v(10), 2, v(9))
    b.I("v_xor_b32", v(10), v(10), v(CG))
    b.I("v_and_b32", v(9), 3, v(9))
    b.I("v_lshlrev_b32", v(9), 2, v(9))
    b.I("v_lshl_add_u32", v(9), v(10), 4, v(9))
    b.I("v_lshl_add_u32", v(9), v(CG), 10, v(9))
    b.I("v_lshrrev_b32", v(10), 6, v(0))
    b.I("v_xor_b32", v(10), v(10), v(CG))
    b.I("v_lshlrev_b32", v(10), 4, v(10))
    b.I("v_lshl_add_u32", v(10), v(TP), 7, v(10))
    b.I("v_xor_b32", v(11), 64, v(10))
    b.I("v_lshlrev_b32", v(56), 12, v(TP))
    b.I("v_lshl_add_u32", v(56), v(CG), 4, v(56))
    b.I("s_lshl_b32", s(20), s(5), 18)
    b.I("s_lshl_b32", s(21), s(4), 7)
    b.I("s_sub_u32", s(20), s(20), s(21))
    b.I("s_add_u32", s(20), s(20), KVT + 1984 * 2)
    b.I("s_add_u32", s(21), s(20), 32 * 4096)
    T = 60
    for dw in range(4):
        for h in range(2):
            ch = 2 * dw + h
            sel = s(30 + h)
            for r in range(1, 5):
                b.I("v_perm_b32", v(T + r), v(K + 4 * (r - 1) + dw), v(K + 4 * r + dw), sel)
            b.I("v_dot2_f32_bf16", v(T + 5), v(T + 1), v(W + 2 * ch + 1), 0)
            b.I("v_dot2_f32_bf16", v(T + 6), v(T + 2), v(W + 2 * ch + 1), 0)
            if h == 0:
                b.I("v_lshlrev_b32", v(T + 7), 16, v(V + dw))
                b.I("v_lshlrev_b32", v(T + 8), 16, v(V + 4 + dw))
            else:
                b.I("v_and_b32", v(T + 7), 0xffff0000, v(V + dw))
                b.I("v_and_b32", v(T + 8), 0xffff0000, v(V + 4 + dw))
            b.I("v_dot2_f32_bf16", v(T + 5), v(T + 3), v(W + 2 * ch), v(T + 5))
            b.I("v_dot2_f32_bf16", v(T + 6), v(T + 4), v(W + 2 * ch), v(T + 6))
            b.I("v_mul_f32", v(T + 5), v(T + 5), v(T + 7))
            b.I("v_mul_f32", v(T + 6), v(T + 6), v(T + 8))
            b.I("v_cvt_pk_bf16_f32", v(T + 10 + ch), v(T + 6), v(T + 5))
            b.I("ds_write_b32", v(9), v(T + 10 + ch), mods=f"offset:{ch * 128}")
    b.wait(lgkm=0)
    b.barrier()
    b.I("ds_read_b128", v(12, 4), v(10))
    b.I("ds_read_b128", v(16, 4), v(11), mods="offset:4096")
    b.I("buffer_store_dwordx4", v(12, 4), v(56), s(8, 4), s(20), mods="offen")
    b.I("buffer_store_dwordx4", v(16, 4), v(56), s(8, 4), s(21), mods="offen")
    b.wait_all()
    b.I("s_endpgm")


def emit_relayout(b, name, unit_sgpr, ldsbase_v, aux="sc1"):
    U = unit_sgpr
    b.I("s_load_dwordx4", s(12, 4), s(0, 2), 56)
    b.I("s_load_dwordx2", s(20, 2), s(0, 2), 72)
    b.I("s_load_dwordx2", s(8, 2), s(0, 2), 96)
    L = 1
    b.I("v_and_b32", v(L), 63, v(0))
    b.I("v_lshrrev_b32", v(2), 3, v(L))
    b.I("v_and_b32", v(3), 7, v(L))
    b.I("v_lshrrev_b32", v(4), 4, v(L))
    b.I("v_bfe_u32", v(5), v(L), 2, 2)
    b.I("v_lshl_add_u32", v(4), v(4), 3, v(5))
    b.I("v_and_b32", v(5), 3, v(L))
    b.I("v_lshlrev_b32", v(6), 4, v(L))
    b.I("s_mov_b32", s(10), WS_BYTES)
    b.I("s_mov_b32", s(11), 0x20000)
    b.I("s_mov_b32", s(22), F * D * 2)
    b.I("s_mov_b32", s(23), 0x20000)
    b.wait_all()
    b.I("s_mov_b32", s(16), s(14))
    b.I("s_mov_b32", s(17), s(15))
    b.I("s_mov_b32", s(18), F * D * 2)
    b.I("s_mov_b32", s(19), 0x20000)
    b.I("s_mov_b32", s(14), F * D * 2)
    b.I("s_mov_b32", s(15), 0x20000)
    b.I("s_cmp_ge_u32", s(U), NU_GU)
    b.I("s_cbranch_scc1", f"{name}_wd")
    snap = b.snapshot()
    b.I("s_mul_i32", s(24), s(U), 3641)
    b.I("s_lshr_b32", s(24), s(24), 18)
    b.I("s_mul_i32", s(25), s(24), 72)
    b.I("s_sub_u32", s(25), s(U), s(25))
    b.I("s_mul_i32", s(26), s(24), 32 * 9216)
    b.I("s_lshl_b32", s(27), s(25), 7)
    b.I("s_add_u32", s(26), s(26), s(27))
    b.I("v_mul_u32_u24", v(7), 9216, v(2))
    b.I("v_lshl_add_u32", v(7), v(3), 4, v(7))
    G, UU = 16, 32
    for i in range(4):
        b.I("s_add_u32", s(28), s(26), i * 8 * 9216)
        b.I("buffer_load_dwordx4", v(G + 4 * i, 4), v(7), s(12, 4), s(28), mods="offen")
        b.I("buffer_load_dwordx4", v(UU + 4 * i, 4), v(7), s(16, 4), s(28), mods="offen")
    b.I("v_mul_u32_u24", v(8), 264, v(2))
    b.I("v_lshl_add_u32", v(8), v(3), 5, v(8))
    b.I("v_add_u32", v(8), v(ldsbase_v), v(8))
    b.I("v_mul_u32_u24", v(9), 264, v(4))
    b.I("v_lshl_add_u32", v(9), v(5), 5, v(9))
    b.I("v_add_u32", v(9), v(ldsbase_v), v(9))
    for i in range(1, 4):
        b.I("v_add_u32", v(10 + i), i * 8 * 264, v(8))
    b.I("s_mul_i32", s(27), s(25), 36)
    b.I("s_add_u32", s(27), s(27), s(24))
    b.I("s_lshl_b32", s(27), s(27), 12)
    b.I("s_add_u32", s(27), s(27), WGU)
    b.I("s_add_u32", s(29), s(27), 18 * 4096)
    for i in range(4):
        ad = 8 if i == 0 else 10 + i
        for k in range(4):
            b.I("ds_write2_b32", v(ad), v(G + 4 * i + k), v(UU + 4 * i + k), mods=f"offset0:{2 * k} offset1:{2 * k + 1}")
    O = 48
    for kl in range(2):
        for t in range(4):
            o = O + (kl * 4 + t) * 4
            for h in range(2):
                b.I("ds_read_b64_tr_b16", v(o + 2 * h, 2), v(9), mods=f"offset:{kl * 128 + t * 8 + h * 4 * 264}")
    for kl in range(2):
        for t in range(4):
            o = O + (kl * 4 + t) * 4
            b.I("buffer_store_dwordx4", v(o, 4), v(6), s(8, 4), s(27 if kl == 0 else 29), mods=f"offen offset:{t * 1024} {aux}")
    b.wait_all()
    b.I("s_endpgm")
    b.restore(snap)
    b.label(f"{name}_wd")
    b.I("s_sub_u32", s(24), s(U), NU_GU)
    b.I("s_mul_i32", s(25), s(24), 7282)
    b.I("s_lshr_b32", s(25), s(25), 16)
    b.I("s_mul_i32", s(26), s(25), 9)
    b.I("s_sub_u32", s(24), s(24), s(26))
    b.I("s_mul_i32", s(26), s(25), 64 * 1152)
    b.I("s_lshl_b32", s(27), s(24), 7)
    b.I("s_add_u32", s(26), s(26), s(27))
    b.I("v_mul_u32_u24", v(7), 1152, v(2))
    b.I("v_lshl_add_u32", v(7), v(3), 4, v(7))
    for i in range(8):
        b.I("s_add_u32", s(28), s(26), i * 8 * 1152)
        b.I("buffer_load_dwordx4", v(16 + 4 * i, 4), v(7), s(20, 4), s(28), mods="offen")
    b.I("v_mul_u32_u24", v(8), 144, v(2))
    b.I("v_lshl_add_u32", v(8), v(3), 4, v(8))
    b.I("v_add_u32", v(8), v(ldsbase_v), v(8))
    b.I("v_mul_u32_u24", v(9), 144, v(4))
    b.I("v_lshl_add_u32", v(9), v(5), 4, v(9))
    b.I("v_add_u32", v(9), v(ldsbase_v), v(9))
    b.I("s_mul_i32", s(27), s(25), 18)
    b.I("s_add_u32", s(27), s(27), s(24))
    b.I("s_lshl_b32", s(27), s(27), 12)
    b.I("s_add_u32", s(27), s(27), WD)
    b.I("s_add_u32", s(29), s(27), 36 * 1024)
    for i in range(8):
        b.I("ds_write_b128", v(8), v(16 + 4 * i, 4), mods=f"offset:{i * 8 * 144}")
    for kl in range(2):
        for dt in range(4):
            o = O + (kl * 4 + dt) * 4
            for h in range(2):
                b.I("ds_read_b64_tr_b16", v(o + 2 * h, 2), v(9), mods=f"offset:{(kl * 32 + h * 4) * 144 + (dt >> 1) * 64 + (dt & 1) * 8}")
    for kl in range(2):
        for dt in range(4):
            o = O + (kl * 4 + dt) * 4
            b.I("buffer_store_dwordx4", v(o, 4), v(6), s(8, 4), s(27 if kl == 0 else 29), mods=f"offen offset:{dt * 1024} {aux}")
    b.wait_all()
    b.I("s_endpgm")


def k_prep(name):
    b = AB()
    b.raw(f".globl {name}\n.p2align 8\n.type {name},@function\n{name}:")
    b.I("s_cmp_ge_u32", s(2), NKV)
    b.I("s_cbranch_scc1", f"{name}_rl")
    snap = b.snapshot()
    emit_kv(b, name)
    b.restore(snap)
    b.label(f"{name}_rl")
    b.I("s_cmp_ge_u32", s(2), NKV + 486)
    b.I("s_cbranch_scc1", f"{name}_end")
    b.I("v_lshrrev_b32", v(15), 6, v(0))
    b.I("v_readfirstlane_b32", s(3), v(15))
    b.I("v_mul_u32_u24", v(15), 9216, v(15))
    b.I("s_sub_u32", s(4), s(2), NKV)
    b.I("s_lshl_b32", s(4), s(4), 2)
    b.I("s_add_u32", s(4), s(4), s(3))
    emit_relayout(b, name, 4, 15)
    b.label(f"{name}_end")
    b.I("s_endpgm")
    return b
```

```python
S, D, F = 2048, 576, 4608
KVT  = 0x0
YB   = 0x240000
X1   = 0x480000
X3   = 0x6C0000
XN   = 0x900000
WGU  = 0xC00000
WD   = WGU + 144*18*4*1024
PART = 0x1C00000
HX   = 0x3000000
FLG  = 0x4200000
KFL  = 0x4280000
STAMP= 0x4300000
WS_BYTES = 0x10000000
import math
C2 = -2.0*math.log2(math.e)*math.sqrt(2.0/math.pi)
C1 = 0.044715*C2
ALPHA = (-C1)**(1.0/3.0)
KP = (1.0/0.044715)*ALPHA*ALPHA
OUTSCALE = 1.0/(ALPHA*ALPHA)
import struct
def f2u(x): return struct.unpack("<I", struct.pack("<f", x))[0]
def fhex(x): return hex(f2u(x))
```

```python
import sys
sys.path.insert(0, "dev")
from asmlib import kd, module
from k_ffn import k_ffn
from k_ln import k_ln
from k_prep import k_prep
from k_conv import k_conv, CONV_LDS

HDR = open("interleave_layers__ssm_conv_h3__geglu_ffn__prompt.s.ref").read().split("; Override")[0]

def build(launches, kernels):
    return HDR + module(launches, [k[0].text() for k in kernels.values()], [kd(n, k[1], k[2], k[3]) for n, k in kernels.items()])

def full(ffn_kw={}):
    ks = {
        "prep_kernel": (k_prep("prep_kernel"), 84, 96, 84),
        "conv_kernel": (k_conv("conv_kernel"), 512, 96, 256),
        "ln0_kernel": (k_ln("ln0_kernel", 0), 208, 96, 208),
        "ffn_kernel": (k_ffn("ffn_kernel", **ffn_kw), 256, 96, 256),
        "ln1_kernel": (k_ln("ln1_kernel", 1), 512, 96, 256),
        "ln2_kernel": (k_ln("ln2_kernel", 2), 512, 96, 256),
    }
    launches = [("prep_kernel", 774, 256, 36864), ("conv_kernel", 144, 256, CONV_LDS), ("ln0_kernel", 256, 128, 0),
                ("ffn_kernel", 256, 512, 147456), ("ln1_kernel", 256, 128, 0), ("ffn_kernel", 256, 512, 147456),
                ("ln2_kernel", 256, 128, 0)]
    return build(launches, ks), ks

if __name__ == "__main__":
    txt, ks = full()
    out = sys.argv[1] if len(sys.argv) > 1 else "interleave_layers__ssm_conv_h3__geglu_ffn__prompt.s"
    open(out, "w").write(txt)
    print(len(txt))
    for n, k in ks.items():
        print(n, k[0].stats)
```

```python
from ab import *
from lay import *
import tl

MF = "v_mfma_f32_16x16x32_bf16"

DEF = dict(
    pro=["w", 0, 1, "w", 2, 3],
    xsched={0: [4, 5], 1: [6, 7], 2: [8, 9], 3: [10, 11], 4: [12, 13], 5: [14, 15], 6: [16, 17]},
    epochs=[[0, 1], [2, 3], [4, 5], [6, 7, 8, 9], list(range(10, 18))],
    prioA_step=7,
    xring=6,
    stamps=False,
    aux="sc1",
)

class Stamps:
    def __init__(self, b, on, base=40):
        self.b, self.on, self.n, self.base = b, on, 0, base
    def __call__(self):
        if self.on:
            self.b.I("s_memtime", s(self.base + 2 * self.n, 2))
            self.n += 1

def gelu_tiles(b, tiles, temps):
    G = 2
    for i in range(0, len(tiles), G):
        grp = tiles[i:i + G]
        vals = []
        for j, (ab_, dst) in enumerate(grp):
            vals.append((ab_, ab_ + 2, temps[(2 * j) % len(temps)]))
            vals.append((ab_ + 1, ab_ + 3, temps[(2 * j + 1) % len(temps)]))
        for g, u, t in vals:
            b.I("v_fmaak_f32", v(t), v(g), v(g), fhex(KP))
        for g, u, t in vals:
            b.I("v_mul_f32", v(u), v(g), v(u))
        for g, u, t in vals:
            b.I("v_mul_f32", v(g), v(t), v(g))
        for g, u, t in vals:
            b.I("v_exp_f32_e64", v(g), "-" + v(g))
        for g, u, t in vals:
            b.I("v_add_f32", v(g), "1.0", v(g))
        for g, u, t in vals:
            b.I("v_rcp_f32", v(g), v(g))
        for g, u, t in vals:
            b.I("v_mul_f32", v(u), v(u), v(g))
        for (ab_, dst) in grp:
            b.I("v_cvt_pk_bf16_f32", v(dst), v(ab_ + 2), v(ab_ + 3))


def ffn_role(b, role, P, name):
    A = role == "A"
    NT = 5 if A else 4
    VL = [0, 1, 2]
    VS, VS2 = 3, 255
    XR = 4
    NX = P["xring"]
    WR = XR + 4 * NX
    NW = 15
    ACC = WR + 4 * NW
    assert ACC + 160 <= 248, ACC
    TEMPS = [248, 249, 250, 251]
    acc = lambda t, n: ACC + (t * 8 + n) * 4
    st = Stamps(b, P["stamps"])
    SRD = s(8, 4)
    steps = []
    ep_of = {}
    for e, l in enumerate(P["epochs"]):
        for ks in l:
            ep_of[ks] = e
    NE = len(P["epochs"])
    for ks in range(18):
        w = [(20, ks * 4096, t * 1024) for t in range(4)]
        if A:
            w.append((21, ks * 4096, 0))
        steps.append(dict(ph=1, k=ks, w=w, b=[((ks * 8 + n) * 1024, ep_of[ks]) for n in range(8)], first=(ks == 0)))
    korder = [0, 1, 2, 3, 8, 4, 5, 6, 7] if A else [4, 5, 6, 7, 0, 1, 2, 3, 8]
    for i, kp in enumerate(korder):
        w = [(22, kp * 36 * 1024, t * 1024) for t in range(4)]
        if A:
            w.append((23, kp * 36 * 1024, 0))
        ep = (NE if i < 5 else NE + 1) if A else NE + 1
        steps.append(dict(ph=2, k=kp, w=w, b=[((kp * 8 + n) * 1024, ep) for n in range(8)], first=(i == 0)))
    wseq = [(si, j) for si, stp in enumerate(steps) for j in range(len(stp["w"]))]
    bseq = [(si, n) for si, stp in enumerate(steps) for n in range(8)]
    wslot = {}
    bslot = {}
    wfree = list(range(NW))
    bfree = list(range(NX))
    stt = dict(wi=0, bi=0, epoch=-1, lastsb=None, stmp=0)

    def issue_w():
        if stt["wi"] >= len(wseq) or not wfree:
            return False
        si, j = wseq[stt["wi"]]
        sb, c, imm = steps[si]["w"][j]
        if stt["lastsb"] != (sb, c):
            stt["stmp"] ^= 1
            b.I("s_add_u32", s(28 + stt["stmp"]), s(sb), c)
            stt["lastsb"] = (sb, c)
        sl = wfree.pop(0)
        wslot[(si, j)] = sl
        b.I("buffer_load_dwordx4", v(WR + 4 * sl, 4), v(VL[0]), SRD, s(28 + stt["stmp"]), mods=f"offen offset:{imm}")
        stt["wi"] += 1
        return True

    def issue_x(ks):
        if P.get("nox") and ks > 1:
            return
        b.I("s_add_u32", "m0", s(25), ks * 8192)
        b.I("s_add_u32", s(30), s(24), ks * 8192)
        b.I("buffer_load_dwordx4", v(VL[0]), SRD, s(30), mods="offen lds", tag=("x", ep_of[ks]))

    def enter_epoch(e):
        while stt["epoch"] < e:
            ne = stt["epoch"] + 1
            assert ne < NE, "P2 epochs are explicit"
            if not (P.get("nobar") and ne > 0):
                b.wait_tag_vm(("x", ne))
                b.barrier()
            stt["epoch"] = ne

    def issue_b(allow_epoch=True):
        if stt["bi"] >= len(bseq) or not bfree:
            return False
        si, n = bseq[stt["bi"]]
        addr, ep = steps[si]["b"][n]
        if ep > stt["epoch"]:
            if ep >= NE or not allow_epoch:
                return False
            enter_epoch(ep)
        sl = bfree.pop(0)
        bslot[(si, n)] = sl
        b.I("ds_read_b128", v(XR + 4 * sl, 4), v(VL[addr >> 16]), mods=f"offset:{addr & 0xffff}")
        stt["bi"] += 1
        return True

    def run_step(si):
        stp = steps[si]
        nt = len(stp["w"])
        for n in range(8):
            if (si, n) not in bslot:
                while (si, n) not in bslot:
                    assert issue_b(), (role, si, n)
            for t in range(nt):
                d = v(acc(t, n), 4)
                b.I(MF, d, v(WR + 4 * wslot[(si, t)], 4), v(XR + 4 * bslot[(si, n)], 4), "0" if stp["first"] else d)
                if n == 7:
                    wfree.append(wslot[(si, t)])
                    if t == 0 and stp["ph"] == 1:
                        for ks in P["xsched"].get(stp["k"], []):
                            issue_x(ks)
                    issue_w()
            bfree.append(bslot[(si, n)])
            issue_b()
            if n < 7:
                for ks in P.get("xmid", {}).get((stp["k"], n), []) if stp["ph"] == 1 else []:
                    issue_x(ks)
                issue_w()
        while issue_w():
            pass

    st()
    deferred = False
    for it in P["pro"]:
        if it == "w":
            for j in range(NT):
                issue_w()
        elif it == "bar":
            b.barrier()
        elif it == "go":
            deferred = True
            break
        else:
            issue_x(it)
    while not deferred and issue_w():
        pass
    if P.get("prostamp"):
        st()
        n = len(b.vmq)
        for k in (1, 2, 4, 6, 8, 12):
            b.wait(vm=n - k)
            st()
    while issue_b():
        pass
    st()
    for si in range(18):
        if A and si == P["prioA_step"]:
            b.I("s_setprio", 1)
        run_step(si)
        if si in P.get("stampsteps", []):
            st()
    st()
    tiles_all = []
    for n in range(8):
        for t in range(NT):
            tiles_all.append((acc(t, n), acc(0, n) + t if t < 4 else acc(4, n)))

    def write_h():
        for n in range(8):
            b.I("ds_write_b128", v(252), v(acc(0, n), 4), mods=f"offset:{n * 1024}")
        if A:
            for n in range(8):
                b.I("ds_write_b32", v(253), v(acc(4, n)), mods=f"offset:{n * 1024}")
    if A:
        gelu_tiles(b, tiles_all, TEMPS)
        st()
        b.barrier()
        write_h()
        b.wait(lgkm=0)
        b.barrier()
        stt["epoch"] = NE
        st()
        while issue_b():
            pass
        for si in range(18, 23):
            run_step(si)
        st()
        b.barrier()
        stt["epoch"] = NE + 1
        while issue_b():
            pass
        for si in range(23, 27):
            run_step(si)
    else:
        b.wait(lgkm=0)
        b.barrier()
        b.barrier()
        gelu_tiles(b, tiles_all, TEMPS)
        st()
        write_h()
        b.wait(lgkm=0)
        st()
        b.barrier()
        stt["epoch"] = NE + 1
        st()
        while issue_b():
            pass
        for si in range(18, 27):
            run_step(si)
    st()
    aux = P["aux"]
    for n in range(8):
        b.I("s_add_u32", s(28), s(26), n * 18432)
        for dd in range(2):
            e, o = acc(2 * dd, n), acc(2 * dd + 1, n)
            b.I("v_cvt_pk_bf16_f32", v(e), v(e), v(e + 1))
            b.I("v_cvt_pk_bf16_f32", v(e + 1), v(e + 2), v(e + 3))
            b.I("v_cvt_pk_bf16_f32", v(e + 2), v(o), v(o + 1))
            b.I("v_cvt_pk_bf16_f32", v(e + 3), v(o + 2), v(o + 3))
            b.I("buffer_store_dwordx4", v(e, 4), v(VS), SRD, s(28), mods=f"offen offset:{dd * 1024} {aux}")
        if A:
            e = acc(4, n)
            b.I("s_add_u32", s(29), s(27), n * 18432)
            b.I("v_cvt_pk_bf16_f32", v(e), v(e), v(e + 1))
            b.I("v_cvt_pk_bf16_f32", v(e + 1), v(e + 2), v(e + 3))
            b.I("buffer_store_dwordx2", v(e, 2), v(VS2), SRD, s(29), mods=f"offen {aux}")
    if P["stamps"]:
        st()
        b.wait_all()
        st()
        b.wait_all()
        b.I("s_lshl_b32", s(28), s(2), 3)
        b.I("s_add_u32", s(28), s(28), s(3))
        b.I("s_lshl_b32", s(28), s(28), 7)
        b.I("s_add_u32", s(28), s(28), STAMP)
        b.I("v_mov_b32", v(4), 0)
        for i in range(st.n):
            b.I("v_mov_b32", v(8), s(st.base + 2 * i))
            b.I("buffer_store_dword", v(8), v(4), SRD, s(28), mods=f"offen offset:{4 * i}")
    b.wait_all()
    tl.end(b)
    b.I("s_endpgm")


def k_ffn(name, **kw):
    P = dict(DEF); P.update(kw)
    b = AB()
    b.raw(f".globl {name}\n.p2align 8\n.type {name},@function\n{name}:")
    tl.start(b)
    b.I("s_cmp_ge_u32", s(2), 256)
    b.I("s_cbranch_scc1", f"{name}_end")
    b.I("s_load_dwordx2", s(8, 2), s(0, 2), 96)
    b.I("v_lshrrev_b32", v(4), 6, v(0))
    b.I("v_and_b32", v(5), 63, v(0))
    b.I("v_readfirstlane_b32", s(3), v(4))
    b.I("v_lshlrev_b32", v(0), 4, v(5))
    b.I("v_add_u32", v(1), 0x10000, v(0))
    b.I("v_add_u32", v(2), 0x20000, v(0))
    b.I("v_and_b32", v(6), 15, v(5))
    b.I("v_lshrrev_b32", v(7), 4, v(5))
    b.I("v_lshl_add_u32", v(6), v(6), 2, v(7))
    b.I("v_lshlrev_b32", v(3), 4, v(6))
    b.I("v_lshlrev_b32", v(255), 3, v(6))
    b.I("s_mov_b32", s(10), WS_BYTES)
    b.I("s_mov_b32", s(11), 0x20000)
    b.I("s_and_b32", s(4), s(2), 7)
    b.I("s_lshl_b32", s(4), s(4), 1)
    b.I("s_bfe_u32", s(5), s(2), 0x10003)
    b.I("s_add_u32", s(4), s(4), s(5))
    b.I("s_lshr_b32", s(5), s(2), 4)
    b.I("s_mul_i32", s(6), s(4), 0 if P.get("fakew") else 9)
    b.I("s_add_u32", s(7), s(6), s(3))
    b.I("s_mul_i32", s(20), s(7), 18 * 4096)
    b.I("s_add_u32", s(20), s(20), WGU)
    b.I("s_add_u32", s(7), s(6), 8)
    b.I("s_mul_i32", s(21), s(7), 18 * 4096)
    b.I("s_lshl_b32", s(25), s(3), 10)
    b.I("s_add_u32", s(21), s(21), s(25))
    b.I("s_add_u32", s(21), s(21), WGU)
    b.I("s_mul_i32", s(22), s(6), 36 * 1024)
    b.I("s_add_u32", s(22), s(22), WD)
    b.I("s_add_u32", s(23), s(22), s(25))
    b.I("s_add_u32", s(23), s(23), 32 * 1024)
    b.I("s_lshl_b32", s(7), s(3), 12)
    b.I("s_add_u32", s(22), s(22), s(7))
    b.I("s_mul_i32", s(24), s(5), 0 if P.get("fakex") else 147456)
    b.I("s_add_u32", s(24), s(24), s(25))
    b.I("s_add_u32", s(24), s(24), XN)
    b.I("s_lshl_b32", s(7), s(5), 4)
    b.I("s_add_u32", s(7), s(7), s(4))
    b.I("s_mul_i32", s(26), s(7), 8 * 18432)
    b.I("s_add_u32", s(26), s(26), PART)
    b.I("s_lshl_b32", s(7), s(3), 9)
    b.I("s_add_u32", s(27), s(26), s(7))
    b.I("s_add_u32", s(27), s(27), 16384)
    b.I("s_lshl_b32", s(7), s(3), 11)
    b.I("s_add_u32", s(26), s(26), s(7))
    b.I("s_lshl_b32", s(7), s(3), 13)
    b.I("v_add_u32", v(252), s(7), v(0))
    b.I("s_lshl_b32", s(7), s(3), 2)
    b.I("s_add_u32", s(7), s(7), 64 * 1024)
    b.I("v_add_u32", v(253), s(7), v(0))
    b.wait_all()
    b.I("s_cmp_ge_u32", s(3), 4)
    b.I("s_cbranch_scc1", f"{name}_B")
    snap = b.snapshot()
    ffn_role(b, "A", P, name)
    b.restore(snap)
    b.raw(".p2align 6")
    b.label(f"{name}_B")
    ffn_role(b, "B", P, name)
    b.label(f"{name}_end")
    b.I("s_endpgm")
    return b
```

```python
from ab import *
from lay import *
import tl

MF = "v_mfma_f32_16x16x32_bf16"
LDS_FX = 147456
LDS_FC = LDS_FX + 1024
FFN2_LDS = LDS_FC + 64
HP = 73728

DEF = dict(
    xlead=5,
    xring=6,
    stamps=False,
    stampsteps=[],
    aux="sc1",
    b_pre=6,
    delay=3,
    bgelu0=1,
)


class Stamps:
    def __init__(self, b, on, base=40):
        self.b, self.on, self.n, self.base = b, on, 0, base

    def __call__(self):
        if self.on:
            self.b.I("s_memtime", s(self.base + 2 * self.n, 2))
            self.n += 1


def gelu_tiles(b, tiles, temps):
    G = 2
    for i in range(0, len(tiles), G):
        grp = tiles[i:i + G]
        vals = []
        for j, (ab_, dst) in enumerate(grp):
            vals.append((ab_, ab_ + 2, temps[(2 * j) % len(temps)]))
            vals.append((ab_ + 1, ab_ + 3, temps[(2 * j + 1) % len(temps)]))
        for g, u, t in vals:
            b.I("v_fmaak_f32", v(t), v(g), v(g), fhex(KP))
        for g, u, t in vals:
            b.I("v_mul_f32", v(u), v(g), v(u))
        for g, u, t in vals:
            b.I("v_mul_f32", v(g), v(t), v(g))
        for g, u, t in vals:
            b.I("v_exp_f32_e64", v(g), "-" + v(g))
        for g, u, t in vals:
            b.I("v_add_f32", v(g), "1.0", v(g))
        for g, u, t in vals:
            b.I("v_rcp_f32", v(g), v(g))
        for g, u, t in vals:
            b.I("v_mul_f32", v(u), v(u), v(g))
        for (ab_, dst) in grp:
            b.I("v_cvt_pk_bf16_f32", v(dst), v(ab_ + 2), v(ab_ + 3))


S_W = 3
S_GU, S_GUX = 20, 21
S_DO, S_DOX, S_DP, S_DPX = 22, 23, 32, 33
S_XG, S_XL = 24, 25
S_PM, S_PX = 26, 27
S_T0, S_T1, S_T2 = 28, 29, 30
S_HO, S_HP = 34, 35
S_HOX, S_HPX = 36, 37
S_FO, S_FP = 38, 39
S_CNT = 31
S_PMH, S_H4 = 16, 17
S_EX = 18
VL = [0, 1, 2]
VS, VS2 = 3, 255
V_HW, V_HWX = 252, 253
V_FR, V_FW = 254, 251
V_F = 250
TEMPS = [246 + 2, 249, 4, 5]


def ffn_role(b, role, P, name):
    A = role == "A"
    NT = 5 if A else 4
    XR = 4
    NX = P["xring"]
    WR = XR + 4 * NX
    NW = 15
    ACC = WR + 4 * NW
    assert ACC + 160 <= 248, ACC
    temps = [248, 249, XR, XR + 1]
    acc = lambda t, n: ACC + (t * 8 + n) * 4
    st = Stamps(b, P["stamps"])
    SRD = s(8, 4)
    aux = P["aux"]
    slow = []

    groups = []
    wdef = {}
    for ks in range(18):
        for t in range(4):
            wdef[("g", ks, t)] = (S_GU, ks * 4096, t * 1024)
        if A:
            wdef[("g", ks, 4)] = (S_GUX, ks * 4096, 0)
        for n in range(8):
            groups.append(dict(b=(ks * 8 + n) * 1024, ep=("x", ks), mf=[(acc(t, n), ("g", ks, t), ks == 0) for t in range(NT)],
                               tag=("p1", ks, n)))
    def p2_w(side, kp):
        sm, sx = (S_DO, S_DOX) if side == "o" else (S_DP, S_DPX)
        for h in range(2):
            wdef[("d", side, kp, h)] = (sm, kp * 36 * 1024, h * 1024)
        if A:
            wdef[("d", side, kp, 2)] = (sx, kp * 36 * 1024, 0)

    nhalf = 0
    VP2 = acc(3, 6)

    def p2_group(side, kp, n, ep, first, tag):
        mf = [(acc(h, n), ("d", side, kp, h), first) for h in range(2)]
        if A and n // 4 == nhalf:
            mf.append((acc(2, n % 4), ("d", side, kp, 2), first))
        return dict(b=(0 if side == "o" else HP) + (kp * 8 + n) * 1024, ep=ep, mf=mf, tag=tag, n=n)

    if A:
        seq1 = [("o", k) for k in (0, 1, 2, 3, 8)] + [("p", k) for k in (0, 1, 2, 3, 8)]
        seq2 = [("o", k) for k in (4, 5, 6, 7)]
        seq3 = [("p", k) for k in (4, 5, 6, 7)]
        for i, (sd, k) in enumerate(seq1):
            p2_w(sd, k)
            for n in range(8):
                groups.append(p2_group(sd, k, n, ("bar", 2), i == 0, ("a", i, n)))
        for i, (sd, k) in enumerate(seq2):
            p2_w(sd, k)
            for n in range(8):
                groups.append(p2_group(sd, k, n, ("bar", 3), False, ("b", i, n)))
    else:
        allk = [("o", k) for k in (4, 5, 6, 7, 0, 1, 2, 3, 8)] + [("p", k) for k in (0, 1, 2, 3, 8, 4, 5, 6, 7)]
        seq2 = allk[:P["b_pre"]]
        seq3 = allk[P["b_pre"]:]
        for i, (sd, k) in enumerate(seq2):
            p2_w(sd, k)
            for n in range(8):
                groups.append(p2_group(sd, k, n, ("bar", 3), i == 0, ("b", i, n)))
    for (sd, k) in seq3:
        p2_w(sd, k)
    norder = list(range(8))
    for n in norder:
        for i, (sd, k) in enumerate(seq3):
            groups.append(p2_group(sd, k, n, ("bar", 4), False, ("c", n, i, len(seq3))))

    wseq, last_use = [], {}
    for gi, g in enumerate(groups):
        for mi, (_, wk, _) in enumerate(g["mf"]):
            if wk not in last_use:
                wseq.append(wk)
            last_use[wk] = (gi, mi)
    wslot, bslot = {}, {}
    wfree = [WR + 4 * i for i in range(NW)]
    if not A:
        wfree += [acc(4, n) for n in range(8)]
    bfree = list(range(NX))
    stt = dict(wi=0, bi=0, bar=0, xok=-1, lastsb=None, stmp=0, flagrd=None, nslow=0)
    deferred = []

    def issue_w():
        if stt["wi"] >= len(wseq) or not wfree:
            return False
        wk = wseq[stt["wi"]]
        sb, c, imm = wdef[wk]
        if stt["lastsb"] != (sb, c):
            stt["stmp"] ^= 1
            b.I("s_add_u32", s(S_T0 + stt["stmp"]), s(sb), c)
            stt["lastsb"] = (sb, c)
        r = wfree.pop(0)
        wslot[wk] = r
        b.I("buffer_load_dwordx4", v(r, 4), v(VL[0]), SRD, s(S_T0 + stt["stmp"]), mods=f"offen offset:{imm}")
        stt["wi"] += 1
        return True

    def issue_x(ks):
        if ks > 17 or (P.get("nox") and ks > 1):
            return
        b.I("s_add_u32", "m0", s(S_XL), ks * 8192)
        b.I("s_add_u32", s(S_T2), s(S_XG), ks * 8192)
        b.I("buffer_load_dwordx4", v(VL[0]), SRD, s(S_T2), mods="offen lds", tag=("x", ks))
        b.I("buffer_load_dwordx4", v(VL[0]), SRD, s(S_T2), mods="offen offset:1024 lds", tag=("x", ks))

    def signal_x(k):
        b.wait_tag_vm(("x", k))
        b.I("v_mov_b32", v(temps[0]), k + 1)
        b.I("ds_write_b32", v(V_FW), v(temps[0]))
        stt["sig"] = k

    sigs = P["sigs"]
    sigvals = sorted(sigs.values())
    cover = lambda ks: min(x for x in sigvals if x >= ks)

    def read_flag():
        b.I("ds_read_b32", v(V_F), v(V_FR))
        stt["flagrd"] = True

    def check_x(k):
        if P.get("noflag") and k > 0:
            stt["xok"] = 17
            return
        if not stt["flagrd"]:
            read_flag()
        stt["flagrd"] = False
        i = stt["nslow"]
        stt["nslow"] += 1
        lab = f"{name}_{role}{nhalf}_x{i}"
        b.I("v_cmp_gt_u32", "vcc", k + 1, v(V_F))
        b.I("s_cbranch_vccnz", lab + "s")
        b.label(lab + "r")
        assert (not A) or stt.get("sig", -1) >= k, (k, stt.get("sig"))
        slow.append(f"{lab}s:\n  s_mov_b32 s{S_CNT}, 0x100000\n{lab}l:\n  ds_read_b32 v{V_F}, v{V_FR}\n  s_waitcnt lgkmcnt(0)\n"
                    f"  v_cmp_gt_u32 vcc, {k + 1}, v{V_F}\n  s_cbranch_vccz {lab}r\n  s_sub_u32 s{S_CNT}, s{S_CNT}, 1\n"
                    f"  s_cbranch_scc0 {lab}l\n  s_branch {lab}r")
        stt["xok"] = k

    def issue_b():
        if stt["bi"] >= len(groups) or not bfree:
            return False
        g = groups[stt["bi"]]
        kind, e = g["ep"]
        if kind == "bar":
            if e > stt["bar"]:
                return False
        elif e > stt["xok"]:
            check_x(cover(e))
        sl = bfree.pop(0)
        bslot[stt["bi"]] = sl
        addr = g["b"]
        base = VL[addr >> 16]
        if A and kind == "bar":
            base = VP2 + (addr >> 16) + (3 if g["n"] >= 4 else 0)
        b.I("ds_read_b128", v(XR + 4 * sl, 4), v(base), mods=f"offset:{addr & 0xffff}")
        stt["bi"] += 1
        if stt["bi"] < len(groups):
            k2, e2 = groups[stt["bi"]]["ep"]
            if k2 == "x" and e2 > stt["xok"]:
                read_flag()
        return True

    def tick():
        for d in deferred:
            d[0] -= 1
        while deferred and deferred[0][0] <= 0:
            deferred.pop(0)[1]()

    def flush_deferred():
        while deferred:
            deferred.pop(0)[1]()

    def out_n(n):
        def fn():
            b.I("s_add_u32", s(S_T2), s(S_PM if n < 4 else S_PMH), n * 18432)
            e, o = acc(0, n), acc(1, n)
            b.I("v_cvt_pk_bf16_f32", v(e), v(e), v(e + 1))
            b.I("v_cvt_pk_bf16_f32", v(e + 1), v(e + 2), v(e + 3))
            b.I("v_cvt_pk_bf16_f32", v(e + 2), v(o), v(o + 1))
            b.I("v_cvt_pk_bf16_f32", v(e + 3), v(o + 2), v(o + 3))
            b.I("buffer_store_dwordx4", v(e, 4), v(VS), SRD, s(S_T2), mods=f"offen {aux}")
            if A and n // 4 == nhalf:
                e = acc(2, n % 4)
                b.I("s_add_u32", s(S_T2), s(S_PX), n * 18432)
                b.I("v_cvt_pk_bf16_f32", v(e), v(e), v(e + 1))
                b.I("v_cvt_pk_bf16_f32", v(e + 1), v(e + 2), v(e + 3))
                b.I("buffer_store_dwordx2", v(e, 2), v(VS2), SRD, s(S_T2), mods=f"offen {aux}")
        return fn

    def run_groups(pred):
        while stt.get("gi", 0) < len(groups) and pred(groups[stt.get("gi", 0)]):
            gi = stt.get("gi", 0)
            g = groups[gi]
            tag = g["tag"]
            while gi not in bslot:
                assert issue_b(), (role, gi, tag)
            if tag[0] == "p1" and tag[2] == 0 and A and tag[1] in sigs and tag[1] >= 0:
                deferred.append([1, (lambda k=sigs[tag[1]]: signal_x(k))])
            for mi, (ar, wk, first) in enumerate(g["mf"]):
                while wk not in wslot:
                    assert issue_w(), (role, gi, wk)
                d = v(ar, 4)
                b.I(MF, d, v(wslot[wk], 4), v(XR + 4 * bslot[gi], 4), "0" if first else d)
                if last_use[wk] == (gi, mi):
                    wfree.append(wslot[wk])
                    if tag[0] == "p1" and A and mi == 0:
                        issue_x(tag[1] + P["xlead"])
                    issue_w()
                tick()
            bfree.append(bslot[gi])
            issue_b()
            if tag[0] == "p1" and A and tag[1] == 0:
                for ks in P["x0mid"].get(tag[2], []):
                    issue_x(ks)
            issue_w()
            if tag[0] == "c" and tag[2] == tag[3] - 1:
                deferred.append([P["delay"], out_n(tag[1])])
            if tag[0] == "p1" and tag[2] == 7 and tag[1] in P["stampsteps"]:
                st()
            stt["gi"] = gi + 1

    def publish(which):
        b.wait_tag_vm("h")
        b.I("s_mov_b64", s(S_EX, 2), "exec")
        b.I("s_mov_b64", "exec", 1)
        b.I("v_mov_b32", v(temps[0]), LDS_FC + 4 * which)
        b.I("v_mov_b32", v(temps[1]), 1)
        b.I("ds_add_rtn_u32", v(temps[0]), v(temps[0]), v(temps[1]))
        b.I("v_cmp_eq_u32", "vcc", 3, v(temps[0]))
        b.I("s_and_b64", "exec", "exec", "vcc")
        lab = f"{name}_{role}{nhalf}_pub"
        b.I("s_cbranch_execz", lab)
        snap = b.snapshot()
        b.I("v_mov_b32", v(temps[0]), 0)
        b.I("buffer_store_dword", v(temps[1]), v(temps[0]), SRD, s(S_FO), mods=f"offen offset:{128 * which} sc1")
        b.vmq.pop()
        b.label(lab)
        b.I("s_mov_b64", "exec", s(S_EX, 2))

    def poll(which):
        lab = f"{name}_{role}{nhalf}_poll{which}"
        b.I("v_mov_b32", v(temps[0]), 0)
        b.I("s_mov_b32", s(S_CNT), 1 << 20)
        b.label(lab)
        b.I("buffer_load_dword", v(temps[1]), v(temps[0]), SRD, s(S_FP), mods=f"offen offset:{128 * which} sc1")
        b.wait(vm=0)
        b.I("v_cmp_ne_u32", "vcc", 0, v(temps[1]))
        b.I("s_cbranch_vccnz", lab + "d")
        b.I("s_sleep", 1)
        b.I("s_sub_u32", s(S_CNT), s(S_CNT), 1)
        b.I("s_cbranch_scc0", lab)
        b.label(lab + "d")

    st()
    if A:
        issue_x(0)
        for j in range(NT):
            issue_w()
        issue_x(1)
        for j in range(NT):
            issue_w()
        signal_x(sigs[-1])
        while issue_b():
            pass
    else:
        check_x(cover(0))
        for j in range(2 * NT):
            issue_w()
        while issue_b():
            pass
    st()
    run_groups(lambda g: g["tag"][0] == "p1")
    flush_deferred()
    while issue_w():
        pass
    st()

    def gelu_n(n):
        tiles = [(acc(t, n), acc(0, n) + t) for t in range(4)]
        if A:
            tiles.append((acc(4, n), acc(4, 4 * (n // 4)) + n % 4))
        gelu_tiles(b, tiles, temps)
        if P.get("nohst"):
            return
        b.I("s_add_u32", s(S_T2), s(S_HO), (n // 4) * 4096)
        b.I("buffer_store_dwordx4", v(acc(0, n), 4), v(VL[0]), SRD, s(S_T2), mods=f"offen offset:{(n % 4) * 1024} sc1", tag="h")
        if A and n % 4 == 3:
            b.I("buffer_store_dwordx4", v(acc(4, n - 3), 4), v(VL[0]), SRD, s(S_HOX), mods=f"offen offset:{(n // 4) * 1024} sc1", tag="h")

    if A:
        for n in range(8):
            gelu_n(n)
        st()
        publish(0)
        poll(0)
        for n in range(8):
            if n % 4 == 0:
                b.I("s_add_u32", s(S_T2), s(S_HP), (n // 4) * 4096)
            b.I("buffer_load_dwordx4", v(acc(1, n), 4), v(VL[0]), SRD, s(S_T2), mods=f"offen offset:{(n % 4) * 1024} sc1")
        for q in range(2):
            b.I("buffer_load_dwordx4", v(acc(2, q), 4), v(VL[0]), SRD, s(S_HPX), mods=f"offen offset:{q * 1024} sc1")
        b.I("v_add_u32", v(temps[0]), HP, v(V_HW))
        b.I("v_add_u32", v(temps[1]), HP, v(V_HWX))
        b.wait(vm=0)
        st()
        b.barrier()
        for n in range(8):
            b.I("ds_write_b128", v(V_HW), v(acc(0, n), 4), mods=f"offset:{n * 1024}")
        for n in range(8):
            b.I("ds_write_b32", v(V_HWX), v(acc(4, 4 * (n // 4)) + n % 4), mods=f"offset:{n * 1024}")
        for n in range(8):
            b.I("ds_write_b128", v(temps[0]), v(acc(1, n), 4), mods=f"offset:{n * 1024}")
        for n in range(8):
            b.I("ds_write_b32", v(temps[1]), v(acc(2, n // 4) + n % 4), mods=f"offset:{n * 1024}")
        for i in range(3):
            b.I("v_add_u32", v(VP2 + i), s(S_H4), v(VL[i]))
            b.I("v_subrev_u32", v(VP2 + 3 + i), s(S_H4), v(VL[i]))
        b.wait(lgkm=0)
        b.barrier()
        stt["bar"] = 2
        st()
        wfree.extend([acc(2, 4) + 4 * i for i in range(10)])
        while issue_b():
            pass
        run_groups(lambda g: g["tag"][0] == "a")
        st()
        b.barrier()
        stt["bar"] = 3
        while issue_b():
            pass
        run_groups(lambda g: g["tag"][0] == "b")
        while issue_w():
            pass
        st()
        poll(1)
        for n in range(8):
            if n % 4 == 0:
                b.I("s_add_u32", s(S_T2), s(S_HP), 32768 + (n // 4) * 4096)
            b.I("buffer_load_dwordx4", v(acc(4, n), 4), v(VL[0]), SRD, s(S_T2), mods=f"offen offset:{(n % 4) * 1024} sc1")
        b.I("v_add_u32", v(temps[0]), HP + 32768, v(V_HW))
        for n in range(8):
            b.I("ds_write_b128", v(temps[0]), v(acc(4, n), 4), mods=f"offset:{n * 1024}")
        b.wait(lgkm=0)
        st()
        b.barrier()
        stt["bar"] = 4
    else:
        b.wait(lgkm=0)
        b.barrier()
        for n in range(8):
            if n == P["bgelu0"]:
                b.barrier()
            gelu_n(n)
            b.I("ds_write_b128", v(V_HW), v(acc(0, n), 4), mods=f"offset:{n * 1024}")
        st()
        wfree.extend([acc(2, 0) + 4 * i for i in range(16)])
        b.wait(lgkm=0)
        b.barrier()
        stt["bar"] = 3
        st()
        publish(1)
        while issue_w():
            pass
        while issue_b():
            pass
        st()
        run_groups(lambda g: g["tag"][0] == "b")
        while issue_w():
            pass
        st()
        b.barrier()
        stt["bar"] = 4
    st()
    while issue_b():
        pass
    run_groups(lambda g: True)
    flush_deferred()
    if P["stamps"]:
        st()
        b.wait_all()
        st()
        b.wait_all()
        b.I("s_lshl_b32", s(28), s(2), 3)
        b.I("s_add_u32", s(28), s(28), s(3))
        b.I("s_lshl_b32", s(28), s(28), 7)
        b.I("s_add_u32", s(28), s(28), STAMP)
        b.I("v_mov_b32", v(4), 0)
        for i in range(st.n):
            b.I("v_mov_b32", v(8), s(st.base + 2 * i))
            b.I("buffer_store_dword", v(8), v(4), SRD, s(28), mods=f"offen offset:{4 * i}")
    b.wait_all()
    tl.end(b)
    b.I("s_endpgm")
    for t in slow:
        b.raw(t)


def k_ffn2(name, **kw):
    P = dict(DEF)
    P.update(kw)
    if "sigs" not in P:
        P["sigs"] = {-1: 0, 0: 1, 1: 2, 2: 4, 4: 6, 6: 8, 8: 10, 10: 12, 12: 14, 14: 16, 15: 17}
    if "x0mid" not in P:
        P["x0mid"] = {0: [2], 3: [3], 5: [4]}
    b = AB()
    b.raw(f".globl {name}\n.p2align 8\n.type {name},@function\n{name}:")
    tl.start(b)
    b.I("s_cmp_ge_u32", s(2), 256)
    b.I("s_cbranch_scc1", f"{name}_end")
    b.I("s_load_dwordx2", s(8, 2), s(0, 2), 96)
    b.I("v_lshrrev_b32", v(4), 6, v(0))
    b.I("v_and_b32", v(5), 63, v(0))
    b.I("v_readfirstlane_b32", s(S_W), v(4))
    b.I("v_lshlrev_b32", v(6), 2, v(0))
    b.I("v_mov_b32", v(7), 0)
    b.I("v_cmp_gt_u32", "vcc", 272, v(0))
    b.I("s_and_saveexec_b64", s(S_EX, 2), "vcc")
    b.I("v_add_u32", v(6), LDS_FX, v(6))
    b.I("ds_write_b32", v(6), v(7))
    b.I("s_mov_b64", "exec", s(S_EX, 2))
    b.I("v_lshlrev_b32", v(0), 4, v(5))
    b.I("v_add_u32", v(1), 0x10000, v(0))
    b.I("v_add_u32", v(2), 0x20000, v(0))
    b.I("v_and_b32", v(6), 15, v(5))
    b.I("v_lshrrev_b32", v(7), 4, v(5))
    b.I("v_lshl_add_u32", v(6), v(6), 2, v(7))
    b.I("v_lshlrev_b32", v(VS), 4, v(6))
    b.I("v_lshlrev_b32", v(VS2), 3, v(6))
    b.I("s_mov_b32", s(10), WS_BYTES)
    b.I("s_mov_b32", s(11), 0x20000)
    b.I("s_and_b32", s(4), s(2), 7)
    b.I("s_bfe_u32", s(12), s(2), 0x10003)
    b.I("s_lshl_b32", s(13), s(4), 1)
    b.I("s_add_u32", s(13), s(13), s(12))
    b.I("s_xor_b32", s(14), s(13), 1)
    b.I("s_lshr_b32", s(5), s(2), 4)
    b.I("s_mul_i32", s(6), s(13), 9)
    b.I("s_add_u32", s(7), s(6), s(S_W))
    b.I("s_mul_i32", s(S_GU), s(7), 18 * 4096)
    b.I("s_add_u32", s(S_GU), s(S_GU), WGU)
    b.I("s_add_u32", s(7), s(6), 8)
    b.I("s_mul_i32", s(S_GUX), s(7), 18 * 4096)
    b.I("s_lshl_b32", s(7), s(S_W), 10)
    b.I("s_add_u32", s(S_GUX), s(S_GUX), s(7))
    b.I("s_add_u32", s(S_GUX), s(S_GUX), WGU)
    b.I("s_mul_i32", s(15), s(12), 18 * 1024)
    b.I("s_add_u32", s(15), s(15), WD)
    b.I("s_lshl_b32", s(16), s(S_W), 11)
    b.I("s_and_b32", s(17), s(S_W), 1)
    b.I("s_lshl_b32", s(17), s(17), 10)
    b.I("s_add_u32", s(17), s(17), 16 * 1024)
    for (sm, sx, f) in ((S_DO, S_DOX, 13), (S_DP, S_DPX, 14)):
        b.I("s_mul_i32", s(7), s(f), 9 * 36 * 1024)
        b.I("s_add_u32", s(7), s(7), s(15))
        b.I("s_add_u32", s(sm), s(7), s(16))
        b.I("s_add_u32", s(sx), s(7), s(17))
    b.I("s_mov_b32", s(S_XL), s(16))
    b.I("s_mul_i32", s(S_XG), s(5), 147456)
    b.I("s_add_u32", s(S_XG), s(S_XG), s(16))
    b.I("s_add_u32", s(S_XG), s(S_XG), XN)
    b.I("s_lshl_b32", s(7), s(5), 3)
    b.I("s_add_u32", s(7), s(7), s(4))
    b.I("s_mul_i32", s(7), s(7), 8 * 18432)
    b.I("s_mul_i32", s(15), s(12), 9 * 1024)
    b.I("s_add_u32", s(7), s(7), s(15))
    b.I("s_add_u32", s(7), s(7), PART)
    b.I("s_lshl_b32", s(15), s(S_W), 10)
    b.I("s_add_u32", s(S_PM), s(7), s(15))
    b.I("s_and_b32", s(15), s(S_W), 1)
    b.I("s_lshl_b32", s(15), s(15), 9)
    b.I("s_add_u32", s(S_PX), s(7), s(15))
    b.I("s_add_u32", s(S_PX), s(S_PX), 8192)
    b.I("s_lshl_b32", s(7), s(5), 4)
    b.I("s_lshl_b32", s(17), s(S_W), 13)
    for (sh, shx, sf, f) in ((S_HO, S_HOX, S_FO, 13), (S_HP, S_HPX, S_FP, 14)):
        b.I("s_add_u32", s(15), s(7), s(f))
        b.I("s_lshl_b32", s(sf), s(15), 8)
        b.I("s_add_u32", s(sf), s(sf), FLG)
        b.I("s_mul_i32", s(15), s(15), 73728)
        b.I("s_add_u32", s(15), s(15), HX)
        b.I("s_add_u32", s(sh), s(15), s(17))
        b.I("s_add_u32", s(shx), s(15), s(16))
        b.I("s_add_u32", s(shx), s(shx), 65536)
    b.I("v_add_u32", v(V_HW), s(17), v(0))
    b.I("s_lshl_b32", s(7), s(S_W), 2)
    b.I("s_add_u32", s(7), s(7), 64 * 1024)
    b.I("v_add_u32", v(V_HWX), s(7), v(0))
    b.I("v_and_b32", v(6), 3, v(5))
    b.I("v_lshlrev_b32", v(6), 8, v(6))
    b.I("v_add_u32", v(V_FR), LDS_FX, v(6))
    b.I("s_lshl_b32", s(7), s(S_W), 8)
    b.I("s_add_u32", s(7), s(7), LDS_FX)
    b.I("v_lshlrev_b32", v(6), 2, v(5))
    b.I("v_add_u32", v(V_FW), s(7), v(6))
    b.I("s_cmp_eq_u32", s(S_W), 2)
    b.I("s_cselect_b32", s(7), 1, 0)
    b.I("s_cmp_eq_u32", s(S_W), 3)
    b.I("s_cselect_b32", s(7), 1, s(7))
    b.I("s_lshl_b32", s(S_H4), s(7), 12)
    b.I("s_mul_i32", s(7), s(7), 4 * 18432)
    b.I("s_sub_u32", s(S_PMH), s(S_PM), s(7))
    b.I("s_add_u32", s(S_PM), s(S_PM), s(7))
    b.I("s_add_u32", s(S_PX), s(S_PX), s(7))
    b.wait_all()
    b.barrier()
    b.I("s_cmp_ge_u32", s(S_W), 4)
    b.I("s_cbranch_scc1", f"{name}_B")
    snap = b.snapshot()
    ffn_role(b, "A", P, name)
    b.restore(snap)
    b.raw(".p2align 6")
    b.label(f"{name}_B")
    ffn_role(b, "B", P, name)
    b.label(f"{name}_end")
    b.I("s_endpgm")
    return b
```

```python
from ab import *
from lay import *
import tl
MF = "v_mfma_f32_16x16x32_bf16"

def rowreduce(b, x, t):
    b.I("v_add_f32_dpp", v(x), v(x), v(x), mods="quad_perm:[1,0,3,2] row_mask:0xf bank_mask:0xf")
    b.I("v_add_f32_dpp", v(x), v(x), v(x), mods="quad_perm:[2,3,0,1] row_mask:0xf bank_mask:0xf")
    b.I("v_mov_b32", v(t), v(x))
    b.I("v_permlane16_swap_b32", v(t), v(x))
    b.I("v_add_f32", v(x), v(x), v(t))
    b.I("v_mov_b32", v(t), v(x))
    b.I("v_permlane32_swap_b32", v(t), v(x))
    b.I("v_add_f32", v(x), v(x), v(t))

def rbf(b, x):
    b.I("v_cvt_pk_bf16_f32", v(x), v(x), v(x))
    b.I("v_lshlrev_b32", v(x), 16, v(x))

def ln_stats(b, X, T, scale=None):
    a0, a1 = T, T + 2
    b.I("v_pk_add_f32", v(a0, 2), v(X, 2), v(X + 2, 2))
    b.I("v_pk_add_f32", v(a1, 2), v(X + 4, 2), v(X + 6, 2))
    for i in range(4, 18):
        acc = a0 if i % 2 == 0 else a1
        b.I("v_pk_add_f32", v(acc, 2), v(acc, 2), v(X + 2 * i, 2))
    b.I("v_pk_add_f32", v(a0, 2), v(a0, 2), v(a1, 2))
    M = T + 10
    b.I("v_add_f32", v(M), v(a0), v(a0 + 1))
    rowreduce(b, M, T)
    b.I("v_mul_f32", v(M), fhex(-1.0 / 576), v(M))
    d0, d1 = T + 4, T + 6
    for i in range(18):
        d = d0 if i % 2 == 0 else d1
        acc = a0 if i % 2 == 0 else a1
        b.I("v_pk_add_f32", v(d, 2), v(X + 2 * i, 2), v(M, 2), mods="op_sel_hi:[1,0]")
        if i < 2:
            b.I("v_pk_mul_f32", v(acc, 2), v(d, 2), v(d, 2))
        else:
            b.I("v_pk_fma_f32", v(acc, 2), v(d, 2), v(d, 2), v(acc, 2))
    b.I("v_pk_add_f32", v(a0, 2), v(a0, 2), v(a1, 2))
    R = T + 8
    b.I("v_add_f32", v(R), v(a0), v(a0 + 1))
    rowreduce(b, R, T)
    b.I("v_mul_f32", v(R), fhex(1.0 / 576), v(R))
    rbf(b, R)
    b.I("v_add_f32", v(R), fhex(1e-5), v(R))
    rbf(b, R)
    b.I("v_sqrt_f32", v(R), v(R))
    rbf(b, R)
    b.I("v_rcp_f32", v(R), v(R))
    rbf(b, M)
    if scale is not None:
        b.I("v_mul_f32", v(R), fhex(scale), v(R))
    b.I("v_mul_f32", v(M), v(M), v(R))
    return R, M

def unpack(b, dst, src):
    b.I("v_lshlrev_b32", v(dst), 16, v(src))
    b.I("v_and_b32", v(dst + 1), 0xffff0000, v(src))

def swap_pairs(b, P):
    for i in range(4):
        b.I("v_permlane16_swap_b32", v(P + 4 * i), v(P + 4 * i + 2))
        b.I("v_permlane16_swap_b32", v(P + 4 * i + 1), v(P + 4 * i + 3))

def k_ln(name, mode, NP=16):
    b = AB()
    b.raw(f".globl {name}\n.p2align 8\n.type {name},@function\n{name}:")
    tl.start(b)
    b.I("s_cmp_ge_u32", s(2), 256)
    b.I("s_cbranch_scc1", f"{name}_end")
    b.I("s_load_dwordx2", s(8, 2), s(0, 2), 96)
    if mode == 0:
        b.I("s_load_dwordx2", s(12, 2), s(0, 2), 0)
    if mode == 2:
        b.I("s_load_dwordx2", s(12, 2), s(0, 2), 80)
    WS, IO = s(8, 4), s(12, 4)
    L, C16, G, TOK, CQ, GH, GL = 1, 2, 3, 4, 5, 6, 7
    b.I("v_lshrrev_b32", v(8), 6, v(0))
    b.I("v_and_b32", v(L), 63, v(0))
    b.I("v_readfirstlane_b32", s(3), v(8))
    b.I("v_and_b32", v(C16), 15, v(L))
    b.I("v_lshrrev_b32", v(G), 4, v(L))
    b.I("v_lshrrev_b32", v(TOK), 2, v(C16))
    b.I("v_and_b32", v(CQ), 3, v(L))
    b.I("v_lshrrev_b32", v(GH), 1, v(G))
    b.I("v_and_b32", v(GL), 1, v(G))
    b.I("s_mov_b32", s(10), WS_BYTES)
    b.I("s_mov_b32", s(11), 0x20000)
    b.I("s_mov_b32", s(14), S * D * 2)
    b.I("s_mov_b32", s(15), 0x20000)
    b.I("s_and_b32", s(4), s(2), 0xf0)
    b.I("s_and_b32", s(5), s(2), 7)
    b.I("s_lshl_b32", s(5), s(5), 1)
    b.I("s_add_u32", s(4), s(4), s(5))
    b.I("s_bfe_u32", s(5), s(2), 0x10003)
    b.I("s_add_u32", s(4), s(4), s(5))
    b.I("s_lshl_b32", s(5), s(4), 1)
    b.I("s_add_u32", s(5), s(5), s(3))
    b.I("s_lshr_b32", s(6), s(4), 4)
    b.I("s_bfe_u32", s(7), s(4), 0x30001)
    b.I("s_and_b32", s(16), s(5), 3)
    VP, VP2, VN, VN2, VY, VR, VR2, VX, VX2 = 8, 9, 10, 11, 12, 13, 14, 15, 16
    XP = 20
    YP = 40
    X = 60
    T = 96
    A1, A2 = 108, 112
    ACC = 116
    PB = 152
    OP = 184
    if mode != 0:
        b.I("v_mul_u32_u24", v(VP), 147456, v(G))
        b.I("v_lshl_add_u32", v(VP2), v(C16), 3, v(VP))
        b.I("v_lshl_add_u32", v(VP), v(C16), 4, v(VP))
        b.I("s_lshl_b32", s(17), s(6), 7 if NP == 16 else 6)
        b.I("s_add_u32", s(17), s(17), s(7))
        b.I("s_mul_i32", s(17), s(17), 18432)
        b.I("s_add_u32", s(17), s(17), PART)
        b.I("s_lshl_b32", s(18), s(16), 7)
        b.I("s_add_u32", s(19), s(17), s(18))
        b.I("s_add_u32", s(17), s(19), s(18))
    b.I("v_lshlrev_b32", v(VN), 4, v(L))
    b.I("v_lshlrev_b32", v(VN2), 3, v(L))
    b.I("s_mul_i32", s(20), s(5), 4608)
    if mode != 1:
        b.I("v_mul_u32_u24", v(VR), 1152, v(TOK))
        b.I("v_lshl_add_u32", v(VR), v(GH), 6, v(VR))
        b.I("v_lshl_add_u32", v(VR), v(CQ), 4, v(VR))
        b.I("v_lshl_add_u32", v(VR2), v(GL), 3, v(VR))
        b.I("v_lshl_add_u32", v(VR), v(GL), 7, v(VR))
    if mode != 2:
        b.I("v_lshlrev_b32", v(VY), 3, v(TOK))
        b.I("v_lshl_add_u32", v(VY), v(GH), 10, v(VY))
        b.I("v_lshl_add_u32", v(VY), v(CQ), 8, v(VY))
        b.I("v_lshl_add_u32", v(VY), v(GL), 7, v(VY))
        b.I("s_lshr_b32", s(21), s(5), 2)
        b.I("s_mul_i32", s(21), s(21), 18432)
        b.I("s_lshl_b32", s(22), s(16), 5)
        b.I("s_add_u32", s(21), s(21), s(22))
        b.I("s_add_u32", s(21), s(21), YB)
        b.I("v_lshlrev_b32", v(VX), 4, v(TOK))
        b.I("v_lshl_add_u32", v(VX), v(CQ), 8, v(VX))
        b.I("v_lshl_add_u32", v(VX), v(GH), 13, v(VX))
        b.I("v_lshl_add_u32", v(VX2), v(GL), 3, v(VX))
        b.I("v_lshl_add_u32", v(VX), v(GL), 14, v(VX))
        b.I("s_mul_i32", s(23), s(6), 147456)
        b.I("s_lshl_b32", s(22), s(7), 10)
        b.I("s_add_u32", s(23), s(23), s(22))
        b.I("s_lshl_b32", s(22), s(16), 6)
        b.I("s_add_u32", s(23), s(23), s(22))
        b.I("s_add_u32", s(23), s(23), XN)
    b.wait_all()
    if mode != 2:
        b.I("s_lshl_b32", s(24), s(2), 8)
        b.I("s_add_u32", s(24), s(24), FLG)
        b.I("v_mov_b32", v(T), 0)
        b.I("v_lshlrev_b32", v(T + 1), 1, v(0))
        b.I("buffer_store_short", v(T), v(T + 1), WS, s(24), mods="offen")
    preg = {}
    if mode == 0:
        for i in range(4):
            b.I("buffer_load_dwordx4", v(XP + 4 * i, 4), v(VR), IO, s(20), mods=f"offen offset:{256 * i}")
        b.I("buffer_load_dwordx2", v(XP + 16, 2), v(VR2), IO, s(20), mods="offen offset:1024")
    else:
        b.I("s_add_u32", s(24), s(20), X1 if mode == 1 else X3)
        for i in range(4):
            b.I("buffer_load_dwordx4", v(XP + 4 * i, 4), v(VN), WS, s(24), mods=f"offen offset:{1024 * i}")
        b.I("s_add_u32", s(24), s(24), 4096)
        b.I("buffer_load_dwordx2", v(XP + 16, 2), v(VN2), WS, s(24), mods="offen")
    if mode != 0:
        NJ = NP // 4
        split = (16, 17) if NP == 16 else (8, 17)
        k = 0
        na = 0
        nv = 0
        for dg in range(5):
            for j in range(NJ):
                ds = [d for d in range(4 * dg, min(18, 4 * dg + 4))]
                sreg = s(24 + (k & 1))
                if any(d not in split for d in ds):
                    b.I("s_add_u32", sreg, s(17), j * 4 * 147456 + dg * 4096)
                    k += 1
                for d in ds:
                    if d in split:
                        continue
                    r = a(4 * na, 4)
                    na += 1
                    preg[(d, j)] = r
                    b.I("buffer_load_dwordx4", r, v(VP), WS, sreg, mods=f"offen offset:{(d % 4) * 1024}")
                for d in ds:
                    if d not in split:
                        continue
                    b.I("s_add_u32", s(27), s(19), j * 4 * 147456 + d * 1024)
                    r = PB + 4 * nv
                    nv += 1
                    preg[(d, j)] = v(r, 4)
                    for h in range(2):
                        b.I("buffer_load_dwordx2", v(r + 2 * h, 2), v(VP2), WS, s(27), mods=f"offen offset:{h * 512}")
    if mode != 2:
        for aa in range(9):
            if aa % 2 == 0:
                b.I("s_add_u32", s(26), s(21), aa * 2048)
            b.I("buffer_load_dwordx2", v(YP + 2 * aa, 2), v(VY), WS, s(26), mods=f"offen offset:{(aa % 2) * 2048}")
    if mode != 0:
        for r in range(4):
            for (AR, off) in ((A1, 0), (A2, 8)):
                b.I("v_mov_b32", v(AR + r), 0)
                b.I("v_cmp_eq_u32", "vcc", off + 2 * r, v(C16))
                b.I("v_mov_b32", v(T), 0x3f80)
                b.I("v_cndmask_b32", v(AR + r), v(AR + r), v(T), "vcc")
                b.I("v_cmp_eq_u32", "vcc", off + 2 * r + 1, v(C16))
                b.I("v_mov_b32", v(T), 0x3f800000)
                b.I("v_cndmask_b32", v(AR + r), v(AR + r), v(T), "vcc")
    if mode == 0:
        swap_pairs(b, XP)
    for i in range(18):
        unpack(b, X + 2 * i, XP + i)
    if mode != 0:
        SC = T + 10
        b.I("v_mov_b32", v(SC), fhex(OUTSCALE))
        for aa in range(9):
            d = v(ACC + 4 * aa, 4)
            first = True
            for j in range(NJ):
                for h in range(2):
                    b.I(MF, d, v(A1 if h == 0 else A2, 4), preg[(2 * aa + h, j)], "0" if first else d)
                    first = False
        for i in range(18):
            b.I("v_pk_fma_f32", v(X + 2 * i, 2), v(ACC + 2 * i, 2), v(SC, 2), v(X + 2 * i, 2), mods="op_sel_hi:[1,0,1]")
    if mode == 2:
        for i in range(18):
            b.I("v_cvt_pk_bf16_f32", v(OP + i), v(X + 2 * i), v(X + 2 * i + 1))
        swap_pairs(b, OP)
        for i in range(4):
            b.I("buffer_store_dwordx4", v(OP + 4 * i, 4), v(VR), IO, s(20), mods=f"offen offset:{256 * i}")
        b.I("buffer_store_dwordx2", v(OP + 16, 2), v(VR2), IO, s(20), mods="offen offset:1024")
    else:
        R, B = ln_stats(b, X, T)
        for i in range(18):
            t0 = T + 2 * (i % 2)
            t1 = T + 4 + 2 * (i % 2)
            unpack(b, t0, YP + i)
            b.I("v_pk_fma_f32", v(t1, 2), v(X + 2 * i, 2), v(R, 2), v(B, 2), mods="op_sel_hi:[1,0,0]")
            b.I("v_pk_fma_f32", v(X + 2 * i, 2), v(t1, 2), v(t0, 2), v(X + 2 * i, 2))
            b.I("v_cvt_pk_bf16_f32", v(OP + i), v(X + 2 * i), v(X + 2 * i + 1))
        b.I("s_add_u32", s(24), s(20), X1 if mode == 0 else X3)
        for i in range(4):
            b.I("buffer_store_dwordx4", v(OP + 4 * i, 4), v(VN), WS, s(24), mods=f"offen offset:{1024 * i}")
        b.I("s_add_u32", s(25), s(24), 4096)
        b.I("buffer_store_dwordx2", v(OP + 16, 2), v(VN2), WS, s(25), mods="offen")
        R, B = ln_stats(b, X, T, scale=ALPHA)
        for i in range(18):
            b.I("v_pk_fma_f32", v(X + 2 * i, 2), v(X + 2 * i, 2), v(R, 2), v(B, 2), mods="op_sel_hi:[1,0,0]")
            b.I("v_cvt_pk_bf16_f32", v(XP + i), v(X + 2 * i), v(X + 2 * i + 1))
        swap_pairs(b, XP)
        for i in range(4):
            b.I("s_add_u32", s(24 + (i & 1)), s(23), i * 32768)
            b.I("buffer_store_dwordx4", v(XP + 4 * i, 4), v(VX), WS, s(24 + (i & 1)), mods="offen")
        b.I("s_add_u32", s(26), s(23), 8 * 16384)
        b.I("buffer_store_dwordx2", v(XP + 16, 2), v(VX2), WS, s(26), mods="offen")
    b.wait_all()
    tl.end(b)
    b.label(f"{name}_end")
    b.I("s_endpgm")
    return b
```

```python
from ab import *
from lay import *
import tl

NKV = 288
NU_GU = 1296
NU_D = 648

def emit_kv(b, name, laux="", aux=""):
    b.I("s_load_dwordx4", s(12, 4), s(0, 2), 8)
    b.I("s_load_dwordx2", s(24, 2), s(0, 2), 24)
    b.I("s_load_dwordx2", s(8, 2), s(0, 2), 96)
    b.I("s_mul_i32", s(4), s(2), 7282)
    b.I("s_lshr_b32", s(4), s(4), 16)
    b.I("s_mul_i32", s(5), s(4), 9)
    b.I("s_sub_u32", s(5), s(2), s(5))
    TP, CG = 1, 2
    b.I("v_lshrrev_b32", v(TP), 3, v(0))
    b.I("v_and_b32", v(CG), 7, v(0))
    b.I("s_mul_i32", s(6), s(4), 64 * 1152)
    b.I("s_lshl_b32", s(7), s(5), 7)
    b.I("s_add_u32", s(6), s(6), s(7))
    b.I("s_sub_u32", s(6), s(6), 3 * 1152)
    b.I("v_mul_u32_u24", v(3), 2304, v(TP))
    b.I("v_lshl_add_u32", v(3), v(CG), 4, v(3))
    b.I("v_add_u32", v(3), s(6), v(3))
    for r in range(1, 5):
        b.I("v_add_u32", v(3 + r), r * 1152, v(3))
    b.I("s_lshl_b32", s(7), s(5), 9)
    b.I("v_lshlrev_b32", v(8), 6, v(CG))
    b.I("v_add_u32", v(8), s(7), v(8))
    b.I("s_mov_b32", s(10), WS_BYTES)
    b.I("s_mov_b32", s(11), 0x20000)
    b.I("s_mov_b32", s(26), 576 * 8)
    b.I("s_mov_b32", s(27), 0x20000)
    b.I("s_mov_b32", s(30), 0x05040100)
    b.I("s_mov_b32", s(31), 0x07060302)
    b.wait_all()
    b.I("s_mov_b32", s(16), s(14))
    b.I("s_mov_b32", s(17), s(15))
    b.I("s_mov_b32", s(18), S * D * 2)
    b.I("s_mov_b32", s(19), 0x20000)
    b.I("s_mov_b32", s(14), S * D * 2)
    b.I("s_mov_b32", s(15), 0x20000)
    K, V, W = 12, 32, 40
    for r in range(5):
        b.I("buffer_load_dwordx4", v(K + 4 * r, 4), v(3 + r), s(12, 4), 0, mods="offen " + laux)
    for r in range(2):
        b.I("buffer_load_dwordx4", v(V + 4 * r, 4), v(6 + r), s(16, 4), 0, mods="offen " + laux)
    for i in range(4):
        b.I("buffer_load_dwordx4", v(W + 4 * i, 4), v(8), s(24, 4), 0, mods=f"offen offset:{16 * i}")
    b.I("v_sub_u32", v(9), 31, v(TP))
    b.I("v_lshrrev_b32", v(10), 2, v(9))
    b.I("v_xor_b32", v(10), v(10), v(CG))
    b.I("v_and_b32", v(9), 3, v(9))
    b.I("v_lshlrev_b32", v(9), 2, v(9))
    b.I("v_lshl_add_u32", v(9), v(10), 4, v(9))
    b.I("v_lshl_add_u32", v(9), v(CG), 10, v(9))
    b.I("v_lshrrev_b32", v(10), 6, v(0))
    b.I("v_xor_b32", v(10), v(10), v(CG))
    b.I("v_lshlrev_b32", v(10), 4, v(10))
    b.I("v_lshl_add_u32", v(10), v(TP), 7, v(10))
    b.I("v_xor_b32", v(11), 64, v(10))
    b.I("v_lshlrev_b32", v(56), 12, v(TP))
    b.I("v_lshl_add_u32", v(56), v(CG), 4, v(56))
    b.I("s_lshl_b32", s(20), s(5), 18)
    b.I("s_lshl_b32", s(21), s(4), 7)
    b.I("s_sub_u32", s(20), s(20), s(21))
    b.I("s_add_u32", s(20), s(20), KVT + 1984 * 2)
    b.I("s_add_u32", s(21), s(20), 32 * 4096)
    T = 60
    for dw in range(4):
        for h in range(2):
            ch = 2 * dw + h
            sel = s(30 + h)
            for r in range(1, 5):
                b.I("v_perm_b32", v(T + r), v(K + 4 * (r - 1) + dw), v(K + 4 * r + dw), sel)
            b.I("v_dot2_f32_bf16", v(T + 5), v(T + 1), v(W + 2 * ch + 1), 0)
            b.I("v_dot2_f32_bf16", v(T + 6), v(T + 2), v(W + 2 * ch + 1), 0)
            if h == 0:
                b.I("v_lshlrev_b32", v(T + 7), 16, v(V + dw))
                b.I("v_lshlrev_b32", v(T + 8), 16, v(V + 4 + dw))
            else:
                b.I("v_and_b32", v(T + 7), 0xffff0000, v(V + dw))
                b.I("v_and_b32", v(T + 8), 0xffff0000, v(V + 4 + dw))
            b.I("v_dot2_f32_bf16", v(T + 5), v(T + 3), v(W + 2 * ch), v(T + 5))
            b.I("v_dot2_f32_bf16", v(T + 6), v(T + 4), v(W + 2 * ch), v(T + 6))
            b.I("v_mul_f32", v(T + 5), v(T + 5), v(T + 7))
            b.I("v_mul_f32", v(T + 6), v(T + 6), v(T + 8))
            b.I("v_cvt_pk_bf16_f32", v(T + 10 + ch), v(T + 6), v(T + 5))
            b.I("ds_write_b32", v(9), v(T + 10 + ch), mods=f"offset:{ch * 128}")
    b.wait(lgkm=0)
    b.barrier()
    b.I("ds_read_b128", v(12, 4), v(10))
    b.I("ds_read_b128", v(16, 4), v(11), mods="offset:4096")
    b.I("buffer_store_dwordx4", v(12, 4), v(56), s(8, 4), s(20), mods="offen " + aux)
    b.I("buffer_store_dwordx4", v(16, 4), v(56), s(8, 4), s(21), mods="offen " + aux)
    b.wait_all()
    tl.end(b)
    b.I("s_endpgm")


def emit_relayout(b, name, unit_sgpr, ldsbase_v, aux="sc1", laux=""):
    U = unit_sgpr
    b.I("s_load_dwordx4", s(12, 4), s(0, 2), 56)
    b.I("s_load_dwordx2", s(20, 2), s(0, 2), 72)
    b.I("s_load_dwordx2", s(8, 2), s(0, 2), 96)
    L = 1
    b.I("v_and_b32", v(L), 63, v(0))
    b.I("v_lshrrev_b32", v(2), 3, v(L))
    b.I("v_and_b32", v(3), 7, v(L))
    b.I("v_lshrrev_b32", v(4), 4, v(L))
    b.I("v_bfe_u32", v(5), v(L), 2, 2)
    b.I("v_lshl_add_u32", v(4), v(4), 3, v(5))
    b.I("v_and_b32", v(5), 3, v(L))
    b.I("v_lshlrev_b32", v(6), 4, v(L))
    b.I("s_mov_b32", s(10), WS_BYTES)
    b.I("s_mov_b32", s(11), 0x20000)
    b.I("s_mov_b32", s(22), F * D * 2)
    b.I("s_mov_b32", s(23), 0x20000)
    b.wait_all()
    b.I("s_mov_b32", s(16), s(14))
    b.I("s_mov_b32", s(17), s(15))
    b.I("s_mov_b32", s(18), F * D * 2)
    b.I("s_mov_b32", s(19), 0x20000)
    b.I("s_mov_b32", s(14), F * D * 2)
    b.I("s_mov_b32", s(15), 0x20000)
    b.I("s_cmp_ge_u32", s(U), NU_GU)
    b.I("s_cbranch_scc1", f"{name}_wd")
    snap = b.snapshot()
    b.I("s_mul_i32", s(24), s(U), 3641)
    b.I("s_lshr_b32", s(24), s(24), 18)
    b.I("s_mul_i32", s(25), s(24), 72)
    b.I("s_sub_u32", s(25), s(U), s(25))
    b.I("s_mul_i32", s(26), s(24), 32 * 9216)
    b.I("s_lshl_b32", s(27), s(25), 7)
    b.I("s_add_u32", s(26), s(26), s(27))
    b.I("v_mul_u32_u24", v(7), 9216, v(2))
    b.I("v_lshl_add_u32", v(7), v(3), 4, v(7))
    G, UU = 16, 32
    for i in range(4):
        b.I("s_add_u32", s(28), s(26), i * 8 * 9216)
        b.I("buffer_load_dwordx4", v(G + 4 * i, 4), v(7), s(12, 4), s(28), mods="offen " + laux)
        b.I("buffer_load_dwordx4", v(UU + 4 * i, 4), v(7), s(16, 4), s(28), mods="offen " + laux)
    b.I("v_mul_u32_u24", v(8), 264, v(2))
    b.I("v_lshl_add_u32", v(8), v(3), 5, v(8))
    b.I("v_add_u32", v(8), v(ldsbase_v), v(8))
    b.I("v_mul_u32_u24", v(9), 264, v(4))
    b.I("v_lshl_add_u32", v(9), v(5), 5, v(9))
    b.I("v_add_u32", v(9), v(ldsbase_v), v(9))
    for i in range(1, 4):
        b.I("v_add_u32", v(10 + i), i * 8 * 264, v(8))
    b.I("s_mul_i32", s(27), s(25), 36)
    b.I("s_add_u32", s(27), s(27), s(24))
    b.I("s_lshl_b32", s(27), s(27), 12)
    b.I("s_add_u32", s(27), s(27), WGU)
    b.I("s_add_u32", s(29), s(27), 18 * 4096)
    for i in range(4):
        ad = 8 if i == 0 else 10 + i
        for k in range(4):
            b.I("ds_write2_b32", v(ad), v(G + 4 * i + k), v(UU + 4 * i + k), mods=f"offset0:{2 * k} offset1:{2 * k + 1}")
    O = 48
    for kl in range(2):
        for t in range(4):
            o = O + (kl * 4 + t) * 4
            for h in range(2):
                b.I("ds_read_b64_tr_b16", v(o + 2 * h, 2), v(9), mods=f"offset:{kl * 128 + t * 8 + h * 4 * 264}")
    for kl in range(2):
        for t in range(4):
            o = O + (kl * 4 + t) * 4
            b.I("buffer_store_dwordx4", v(o, 4), v(6), s(8, 4), s(27 if kl == 0 else 29), mods=f"offen offset:{t * 1024} {aux}")
    b.wait_all()
    tl.end(b)
    b.I("s_endpgm")
    b.restore(snap)
    b.label(f"{name}_wd")
    b.I("s_sub_u32", s(24), s(U), NU_GU)
    b.I("s_mul_i32", s(25), s(24), 7282)
    b.I("s_lshr_b32", s(25), s(25), 16)
    b.I("s_mul_i32", s(26), s(25), 9)
    b.I("s_sub_u32", s(24), s(24), s(26))
    b.I("s_mul_i32", s(26), s(25), 64 * 1152)
    b.I("s_lshl_b32", s(27), s(24), 7)
    b.I("s_add_u32", s(26), s(26), s(27))
    b.I("v_mul_u32_u24", v(7), 1152, v(2))
    b.I("v_lshl_add_u32", v(7), v(3), 4, v(7))
    for i in range(8):
        b.I("s_add_u32", s(28), s(26), i * 8 * 1152)
        b.I("buffer_load_dwordx4", v(16 + 4 * i, 4), v(7), s(20, 4), s(28), mods="offen " + laux)
    b.I("v_mul_u32_u24", v(8), 144, v(2))
    b.I("v_lshl_add_u32", v(8), v(3), 4, v(8))
    b.I("v_add_u32", v(8), v(ldsbase_v), v(8))
    b.I("v_mul_u32_u24", v(9), 144, v(4))
    b.I("v_lshl_add_u32", v(9), v(5), 4, v(9))
    b.I("v_add_u32", v(9), v(ldsbase_v), v(9))
    b.I("s_mul_i32", s(27), s(25), 18)
    b.I("s_add_u32", s(27), s(27), s(24))
    b.I("s_lshl_b32", s(27), s(27), 12)
    b.I("s_add_u32", s(27), s(27), WD)
    b.I("s_add_u32", s(29), s(27), 36 * 1024)
    for i in range(8):
        b.I("ds_write_b128", v(8), v(16 + 4 * i, 4), mods=f"offset:{i * 8 * 144}")
    for kl in range(2):
        for dt in range(4):
            o = O + (kl * 4 + dt) * 4
            for h in range(2):
                b.I("ds_read_b64_tr_b16", v(o + 2 * h, 2), v(9), mods=f"offset:{(kl * 32 + h * 4) * 144 + (dt >> 1) * 64 + (dt & 1) * 8}")
    for kl in range(2):
        for dt in range(4):
            o = O + (kl * 4 + dt) * 4
            b.I("buffer_store_dwordx4", v(o, 4), v(6), s(8, 4), s(27 if kl == 0 else 29), mods=f"offen offset:{dt * 1024} {aux}")
    b.wait_all()
    tl.end(b)
    b.I("s_endpgm")


def k_prep(name, nkv=NKV, nrl=486, aux="sc1", laux="", kvl="", kvs=""):
    b = AB()
    b.raw(f".globl {name}\n.p2align 8\n.type {name},@function\n{name}:")
    tl.start(b)
    b.I("s_cmp_ge_u32", s(2), nkv)
    b.I("s_cbranch_scc1", f"{name}_rl")
    snap = b.snapshot()
    emit_kv(b, name, kvl, kvs)
    b.restore(snap)
    b.label(f"{name}_rl")
    b.I("s_cmp_ge_u32", s(2), nkv + nrl)
    b.I("s_cbranch_scc1", f"{name}_end")
    b.I("v_lshrrev_b32", v(15), 6, v(0))
    b.I("v_readfirstlane_b32", s(3), v(15))
    b.I("v_mul_u32_u24", v(15), 9216, v(15))
    b.I("s_sub_u32", s(4), s(2), nkv)
    b.I("s_lshl_b32", s(4), s(4), 2)
    b.I("s_add_u32", s(4), s(4), s(3))
    emit_relayout(b, name, 4, 15, aux, laux)
    b.label(f"{name}_end")
    b.I("s_endpgm")
    return b
```

```python
from ab import *
from lay import *
ON = False
TLBASE = 0x5000000
def start(b):
    if ON:
        b.raw("  s_memrealtime s[88:89]\n  s_load_dwordx4 s[92:95], s[0:1], 88")
        b.raw("  v_readfirstlane_b32 s87, v0\n  s_waitcnt lgkmcnt(0)")
def end(b):
    if ON:
        b.raw(f"""  s_memrealtime s[90:91]
  s_lshr_b32 s92, s92, 9
  s_and_b32 s92, s92, 31
  s_lshl_b32 s92, s92, 17
  s_lshl_b32 s93, s2, 7
  s_add_u32 s92, s92, s93
  s_lshr_b32 s87, s87, 6
  s_lshl_b32 s87, s87, 4
  s_add_u32 s92, s92, s87
  s_add_u32 s92, s92, {TLBASE}
  s_add_u32 s94, s94, s92
  s_addc_u32 s95, s95, 0
  s_getreg_b32 s93, hwreg(HW_REG_XCC_ID)
  s_waitcnt lgkmcnt(0)
  v_mov_b32 v4, s88
  v_mov_b32 v5, s90
  v_mov_b32 v6, s93
  v_mov_b32 v7, 1
  v_mov_b32 v0, 0
  global_store_dwordx4 v0, v[4:7], s[94:95]
  s_waitcnt vmcnt(0)""")
```

```python
import sys
sys.path.insert(0, "dev")
from asmlib import kd, module
from k_ffn import k_ffn
from k_ffn2 import k_ffn2, FFN2_LDS
from k_ln import k_ln
from k_prep import k_prep
from k_conv import k_conv, CONV_LDS

HDR = open("interleave_layers__ssm_conv_h3__geglu_ffn__prompt.s.ref").read().split("; Override")[0]

def build(launches, kernels):
    return HDR + module(launches, [k[0].text() for k in kernels.values()], [kd(n, k[1], k[2], k[3]) for n, k in kernels.items()])

def full(ffn_kw={}):
    ks = {
        "prep_kernel": (k_prep("prep_kernel", laux="nt", aux="sc1", kvl="nt"), 84, 96, 84),
        "conv_kernel": (k_conv("conv_kernel"), 512, 96, 256),
        "ln0_kernel": (k_ln("ln0_kernel", 0), 208, 96, 208),
        "ffn_kernel": (k_ffn2("ffn_kernel", **ffn_kw), 256, 96, 256),
        "ln1_kernel": (k_ln("ln1_kernel", 1, 8), 512, 96, 256),
        "ln2_kernel": (k_ln("ln2_kernel", 2, 8), 512, 96, 256),
    }
    launches = [("prep_kernel", 774, 256, 36864), ("conv_kernel", 144, 256, CONV_LDS), ("ln0_kernel", 256, 128, 0),
                ("ffn_kernel", 256, 512, FFN2_LDS), ("ln1_kernel", 256, 128, 0), ("ffn_kernel", 256, 512, FFN2_LDS),
                ("ln2_kernel", 256, 128, 0)]
    return build(launches, ks), ks

if __name__ == "__main__":
    import tl
    tl.ON = "--tl" in sys.argv
    sys.argv = [a for a in sys.argv if a != "--tl"]
    txt, ks = full()
    out = sys.argv[1] if len(sys.argv) > 1 else "interleave_layers__ssm_conv_h3__geglu_ffn__prompt.s"
    open(out, "w").write(txt)
    print(len(txt))
    for n, k in ks.items():
        print(n, k[0].stats)
```

```python
import re

TRANS = {"v_exp_f32", "v_log_f32", "v_rcp_f32", "v_rsq_f32", "v_sqrt_f32", "v_sin_f32", "v_cos_f32"}
RMW_VALU = {"v_fmac_f32", "v_dot2c_f32_bf16", "v_writelane_b32", "v_pk_fmac_f16"}


def regs_of(tok):
    tok = tok.strip()
    neg = tok.startswith("-")
    if neg:
        tok = tok[1:]
    m = re.fullmatch(r"abs\((.*)\)", tok) or re.fullmatch(r"\|(.*)\|", tok)
    if m:
        tok = m.group(1)
    m = re.fullmatch(r"([vas])(\d+)", tok)
    if m:
        return {(m.group(1), int(m.group(2)))}
    m = re.fullmatch(r"([vas])\[(\d+):(\d+)\]", tok)
    if m:
        return {(m.group(1), i) for i in range(int(m.group(2)), int(m.group(3)) + 1)}
    if tok in ("vcc", "exec", "m0"):
        return {(tok, 0)}
    if tok in ("vcc_lo", "vcc_hi"):
        return {("vcc", 0)}
    if tok in ("exec_lo", "exec_hi"):
        return {("exec", 0)}
    return set()


def v(n, w=1):
    return f"v{n}" if w == 1 else f"v[{n}:{n + w - 1}]"


def a(n, w=1):
    return f"a{n}" if w == 1 else f"a[{n}:{n + w - 1}]"


def s(n, w=1):
    return f"s{n}" if w == 1 else f"s[{n}:{n + w - 1}]"


class Ins:
    __slots__ = ("text", "op", "cls", "defs", "uses", "srcc", "srcab", "passes", "states", "wide_store", "dpp", "lds_dma", "dotab")


class AB:
    def __init__(self):
        self.out = []
        self.hist = []
        self.vmq = []
        self.lgq = []
        self.nins = 0
        self.stats = {}

    def raw(self, text):
        self.out.append(text)

    def comment(self, text):
        self.out.append("  ; " + text)

    def label(self, name, reset=True):
        self.out.append(f"{name}:")
        if reset:
            pass

    def snapshot(self):
        return (list(self.hist), [(set(d), t) for d, t in self.vmq], [(set(d), sm, t) for d, sm, t in self.lgq])

    def restore(self, snap):
        self.hist = list(snap[0])
        self.vmq = [(set(d), t) for d, t in snap[1]]
        self.lgq = [(set(d), sm, t) for d, sm, t in snap[2]]

    def _classify(self, op, ops, mods):
        i = Ins()
        i.op = op
        i.defs = set()
        i.uses = set()
        i.srcc = set()
        i.srcab = set()
        i.passes = 0
        i.states = 1
        i.wide_store = False
        i.dpp = False
        i.lds_dma = False
        R = [regs_of(o) for o in ops]
        i.dotab = (R[1] | R[2]) if op.startswith("v_dot") else set()
        base = op.replace("_e32", "").replace("_e64", "").replace("_dpp", "").replace("_sdwa", "")
        if op.startswith("v_mfma"):
            i.cls = "mfma"
            i.defs = R[0]
            i.srcab = R[1] | R[2]
            i.srcc = R[3]
            i.uses = i.srcab | i.srcc | {("exec", 0)}
            i.passes = 8 if "32x32" in op else 4
        elif op.startswith("v_"):
            i.cls = "trans" if base in TRANS else "valu"
            if base.startswith("v_cmpx"):
                i.defs = R[0] | {("exec", 0)}
                i.uses = set().union(*R[1:])
            elif base.startswith("v_permlane") and "swap" in base:
                i.defs = R[0] | R[1]
                i.uses = R[0] | R[1]
            elif base in ("v_add_co_u32", "v_sub_co_u32", "v_subrev_co_u32", "v_addc_co_u32", "v_subb_co_u32", "v_div_scale_f32", "v_mad_u64_u32"):
                i.defs = R[0] | R[1]
                i.uses = set().union(*R[2:])
            else:
                i.defs = R[0]
                i.uses = set().union(*R[1:]) if len(R) > 1 else set()
                if base in RMW_VALU:
                    i.uses |= R[0]
                if "quad_perm" in mods or "row_" in mods or "wave_" in mods:
                    i.dpp = True
                    i.uses |= R[0]
                if "dst_sel" in mods and "UNUSED_PRESERVE" in mods:
                    i.uses |= R[0]
            i.uses |= {("exec", 0)}
        elif op.startswith("ds_"):
            i.cls = "ds"
            if op.startswith("ds_read") or op.startswith("ds_bpermute") or op.startswith("ds_permute") or op.startswith("ds_swizzle"):
                i.defs = R[0]
                i.uses = set().union(*R[1:])
            elif "_rtn" in op:
                i.defs = R[0]
                i.uses = set().union(*R[1:])
            else:
                i.uses = set().union(*R)
            i.uses |= {("exec", 0)}
        elif op.startswith("buffer_") or op.startswith("global_"):
            i.cls = "vmem"
            if op in ("buffer_inv", "buffer_wbl2"):
                pass
            elif "_load" in op:
                if re.search(r"\blds\b", mods) or "load_lds" in op:
                    i.lds_dma = True
                    i.uses = set().union(*R) | {("m0", 0)}
                else:
                    i.defs = R[0]
                    i.uses = set().union(*R[1:])
                    if "d16" in op:
                        i.uses |= R[0]
            elif "_store" in op:
                i.uses = set().union(*R)
                if op.endswith("x3") or op.endswith("x4"):
                    i.wide_store = True
                    i.srcc = R[0] if op.startswith("buffer_") else R[1]
            elif "_atomic" in op:
                i.uses = set().union(*R)
                if re.search(r"\bsc0\b", mods):
                    i.defs = R[0]
            i.uses |= {("exec", 0)}
        elif op.startswith("s_load") or op.startswith("s_buffer_load") or op in ("s_memtime", "s_memrealtime") or op.startswith("s_atomic"):
            i.cls = "smem"
            i.defs = R[0]
            i.uses = set().union(*R[1:]) if len(R) > 1 else set()
        elif op == "s_nop":
            i.cls = "nop"
            i.states = int(ops[0]) + 1
        elif op in ("s_waitcnt", "s_barrier", "s_setprio", "s_sleep", "s_endpgm") or op.startswith("s_cbranch") or op == "s_branch":
            i.cls = "ctl"
        elif op.startswith("s_cmp"):
            i.cls = "salu"
            i.uses = set().union(*R)
        elif op.startswith("s_"):
            i.cls = "salu"
            i.defs = R[0]
            i.uses = set().union(*R[1:]) if len(R) > 1 else set()
            if "saveexec" in op:
                i.defs |= {("exec", 0)}
                i.uses |= {("exec", 0)}
            if op in ("s_addk_i32", "s_mulk_i32"):
                i.uses |= R[0]
        else:
            raise ValueError("unknown op " + op)
        return i

    def _need_states(self, c):
        need = 0
        dist = 0
        isv = lambda r: r[0] in ("v", "a")
        for p in reversed(self.hist):
            req = 0
            pv = p.cls in ("valu", "trans")
            vdefs = {r for r in p.defs if isv(r)}
            sdefs = {r for r in p.defs if r[0] in ("s", "vcc")}
            if pv:
                if c.cls == "mfma" and (vdefs & c.uses):
                    req = max(req, 2)
                if c.cls == "mfma" and ("exec", 0) in p.defs:
                    req = max(req, 4)
                if c.cls in ("valu", "trans") and c.dpp and (vdefs & c.uses):
                    req = max(req, 2)
                if c.cls in ("valu", "trans") and c.dpp and ("exec", 0) in p.defs:
                    req = max(req, 5)
                if c.op.startswith("v_permlane") and (vdefs & c.uses):
                    req = max(req, 2)
                if c.op.startswith("v_permlane") and ("exec", 0) in p.defs:
                    req = max(req, 4)
                if (c.op.startswith("v_readlane") or c.op.startswith("v_readfirstlane")) and (vdefs & c.uses):
                    req = max(req, 1)
                if (c.op.startswith("v_readlane") or c.op.startswith("v_readfirstlane") or c.op.startswith("v_writelane")) and ("exec", 0) in p.defs:
                    req = max(req, 4)
                if c.cls == "vmem" and (sdefs & c.uses):
                    req = max(req, 5)
                if c.cls in ("valu", "trans") and (sdefs & c.uses):
                    req = max(req, 4 if c.op.startswith("v_readlane") or c.op.startswith("v_writelane") or c.op.startswith("v_div_fmas") else 2)
                if c.cls == "salu" and (sdefs & c.uses):
                    req = max(req, 2)
                if p.cls == "trans" and c.cls in ("valu", "mfma") and (vdefs & c.uses):
                    req = max(req, 1)
                if p.op.startswith("v_dot") and (vdefs & (c.uses | c.defs)) and c.cls in ("valu", "trans", "mfma", "vmem", "ds"):
                    if not (c.op == p.op and not (vdefs & c.dotab)):
                        req = max(req, 3)
                if ("sdwa" in p.op or ("op_sel" in p.text and not p.op.startswith("v_pk_"))) and c.cls in ("valu", "trans") and (vdefs & (c.uses | c.defs)):
                    req = max(req, 1)
            if p.cls == "salu" and ("m0", 0) in p.defs and c.cls == "vmem" and c.lds_dma:
                req = max(req, 1)
            if p.cls == "vmem" and p.wide_store and (p.srcc & c.defs):
                req = max(req, 2 if c.cls in ("valu", "trans", "mfma") else 1)
            if p.cls == "mfma":
                n4 = p.passes == 4
                if c.cls == "mfma":
                    if p.defs & c.srcab:
                        req = max(req, 8 if n4 else 12)
                    if p.defs & c.srcc:
                        if not (p.defs == c.srcc and p.passes == c.passes):
                            req = max(req, 6 if n4 else 10)
                    elif p.defs & c.defs:
                        req = max(req, 8 if n4 else 12)
                elif c.cls in ("valu", "trans", "vmem", "ds"):
                    if p.defs & (c.uses | c.defs):
                        req = max(req, 8 if n4 else 12)
                    if c.cls in ("valu", "trans") and (p.srcc & c.defs):
                        req = max(req, 3 if n4 else 7)
            need = max(need, req - dist)
            dist += p.states
            if dist > 24:
                break
        return need

    def _push(self, i):
        self.hist.append(i)
        if len(self.hist) > 40:
            self.hist = self.hist[-30:]
        self.nins += 1
        self.stats[i.cls] = self.stats.get(i.cls, 0) + 1

    def nop(self, n):
        while n > 0:
            k = min(n, 16)
            i = self._classify("s_nop", [str(k - 1)], "")
            i.text = f"s_nop {k - 1}"
            self.out.append("  " + i.text)
            self._push(i)
            n -= k

    def wait(self, vm=None, lgkm=None):
        parts = []
        if vm is not None and vm < len(self.vmq):
            vm = min(vm, 63)
            parts.append(f"vmcnt({vm})")
            self.vmq = self.vmq[len(self.vmq) - vm:] if vm > 0 else []
        if lgkm is not None and lgkm < len(self.lgq):
            if any(sm for _, sm, _ in self.lgq):
                lgkm = 0
            lgkm = min(lgkm, 15)
            parts.append(f"lgkmcnt({lgkm})")
            self.lgq = self.lgq[len(self.lgq) - lgkm:] if lgkm > 0 else []
        if parts:
            i = self._classify("s_waitcnt", [], "")
            i.text = "s_waitcnt " + " ".join(parts)
            self.out.append("  " + i.text)
            self._push(i)

    def wait_tag_vm(self, tag):
        idx = -1
        for k, (d, t) in enumerate(self.vmq):
            if t == tag:
                idx = k
        if idx >= 0:
            self.wait(vm=len(self.vmq) - 1 - idx)

    def wait_tag_lg(self):
        self.wait(lgkm=0)

    def wait_all(self):
        self.wait(vm=0, lgkm=0)

    def force_wait(self, text):
        i = self._classify("s_waitcnt", [], "")
        i.text = "s_waitcnt " + text
        self.out.append("  " + i.text)
        self._push(i)

    def _auto_wait(self, c):
        self.wait_regs(c.uses | c.defs)

    def wait_regs(self, touched):
        vm = None
        for k in range(len(self.vmq) - 1, -1, -1):
            if self.vmq[k][0] & touched:
                vm = len(self.vmq) - 1 - k
                break
        lg = None
        for k in range(len(self.lgq) - 1, -1, -1):
            if self.lgq[k][0] & touched:
                lg = len(self.lgq) - 1 - k
                break
        self.wait(vm, lg)

    def I(self, op, *ops, mods="", tag=None):
        ops = [str(o) for o in ops]
        c = self._classify(op, ops, mods)
        c.text = op + (" " + ", ".join(ops) if ops else "") + (" " + mods if mods else "")
        self._auto_wait(c)
        n = self._need_states(c)
        if n > 0:
            self.nop(n)
        self.out.append("  " + c.text)
        self._push(c)
        if c.cls == "vmem":
            self.vmq.append((set(c.defs), tag))
            if len(self.vmq) > 63:
                pass
        elif c.cls == "ds":
            self.lgq.append((set(c.defs), False, tag))
        elif c.cls == "smem":
            self.lgq.append((set(c.defs), True, tag))
        return c

    def barrier(self):
        self.I("s_barrier")

    def text(self):
        return "\n".join(self.out)
```

```python
from ab import *
from lay import *
import tl

MF = "v_mfma_f32_16x16x32_bf16"
LDS_FX = 147456
FFN3_LDS = LDS_FX + 2048

DEF = dict(
    xring=6, space=True, mergew=True,
    a0w=5, a0w2=0, a1w=0, xpre=1, pace0=4, wpg0=3, wpg=1, bwk=14, la0=lambda gi: 99,
    xfly0=3, xfly=1, xprio=3,
    xw=12, b0w=8,
    bx0=4, bxr=0,
    nprio=1, fprioB=0,
    xchk=list(range(2, 19)),
    gate=9,
    knm=4,
    stamps=False,
    stampsteps=[],
    aux="sc1",
    a_plan=[("k", "oA", 0, 8), ("k", "pM", 0, 4), ("k", "oB", 0, 4), ("k", "pM", 4, 8), ("k", "pQ", 0, 8),
            ("k", "oB", 4, 8), ("n", "pB", 0, 8)],
    d0=1, dper=3, nw0=4, ap0=5,
    ap1=7, b2=False, b3=False, ringA=2, ringB=4, aprio=2, gprioA=0, pprioA=0, bprio=1, laX=8,
    evB=[(14, "P1")],
    evA=[(-1, "qr"), (1, "qs"), (2, "d0"), (16, "P1"), (24, "w0"), (26, "p1"), (32, "d1"), (56, "w1"), (60, "p2"), (66, "d2"), (92, "w2"),
         (106, "p3"), (112, "D3"), (124, "w3")],
    b_plan=[("k", "oA pM pQ", 0, 8), ("n", "oB pB", 0, 8)],
    laA=12, laB=16,
    delay=3,
    gdelay=2,
    gper=4,
    bp0=6,
    bp1=40,
)


class Stamps:
    def __init__(self, b, on, base=40):
        self.b, self.on, self.n, self.base = b, on, 0, base
        self.gmode = False

    def __call__(self, g=False):
        if self.on and (g or not self.gmode or self.n == 0):
            self.b.I("s_memtime", s(self.base + 2 * self.n, 2))
            self.n += 1


def gelu_thunks(b, tiles, temps):
    out = []
    I = lambda *a: out.append(lambda: b.I(*a))
    G = 2
    for i in range(0, len(tiles), G):
        grp = tiles[i:i + G]
        vals = []
        for j, (ab_, dst) in enumerate(grp):
            vals.append((ab_, ab_ + 2, temps[(2 * j) % len(temps)]))
            vals.append((ab_ + 1, ab_ + 3, temps[(2 * j + 1) % len(temps)]))
        for g, u, t in vals:
            I("v_fmaak_f32", v(t), v(g), v(g), fhex(KP))
        for g, u, t in vals:
            I("v_mul_f32", v(u), v(g), v(u))
        for g, u, t in vals:
            I("v_mul_f32", v(g), v(t), v(g))
        for g, u, t in vals:
            I("v_exp_f32_e64", v(g), "-" + v(g))
        for g, u, t in vals:
            I("v_add_f32", v(g), "1.0", v(g))
        for g, u, t in vals:
            I("v_rcp_f32", v(g), v(g))
        for g, u, t in vals:
            I("v_mul_f32", v(u), v(u), v(g))
        for (ab_, dst) in grp:
            I("v_cvt_pk_bf16_f32", v(dst), v(ab_ + 2), v(ab_ + 3))
    return out


S_W = 3
S_GU, S_GUX = 20, 21
S_DO, S_DOX, S_DP, S_DPX = 22, 23, 32, 33
S_XG, S_XL = 24, 25
S_PM, S_PX = 26, 27
S_T0, S_T1, S_T2 = 28, 29, 30
S_HO, S_HP = 34, 35
S_HOX, S_HPX = 36, 37
S_FO, S_FP = 38, 39
S_CNT = 31
S_PMH, S_H4 = 16, 17
S_W8 = 18
VL = [0, 1, 2]
VS, VS2 = 3, 255
V_HW, V_HWX = 252, 253
V_FR, V_FW = 254, 251
V_F = 250
V_Z = 249
V_T = 248

KS = {"oA": [("o", k) for k in (0, 1, 2, 3, 8)], "pM": [("p", k) for k in (0, 1, 2, 3)], "pQ": [("p", 8)],
      "oB": [("o", k) for k in (4, 5, 6, 7)], "pB": [("p", k) for k in (4, 5, 6, 7)]}


def slot_of(side, k):
    if k < 4 or k == 8:
        return (0 if side == "o" else 5) + (k if k < 4 else 4)
    return (6 if side == "o" else 10) + k


def ffn_role(b, role, P, name, late_setup):
    A = role == "A"
    NT = 5 if A else 4
    XR = 4
    NX = P["xring"]
    WR = XR + 4 * NX
    NW = 15
    ACC = WR + 4 * NW
    assert ACC + 160 <= 248, ACC
    acc = lambda t, n: ACC + (t * 8 + n) * 4
    temps = [XR, XR + 1, XR + 2, XR + 3] if A else [acc(4, 7) + i for i in range(4)]
    st = Stamps(b, P["stamps"])
    st.gmode = bool(P.get("sg"))
    SRD = s(8, 4)
    aux = P["aux"]
    slow = []
    KNM = P["knm"]
    K0 = 18 - KNM
    assert K0 >= 14
    psig = sorted(set([4, 9, 13, P["gate"]]))
    bval = {k: 19 + i for i, k in enumerate(psig)}
    B_H = [19 + len(psig), 20 + len(psig)]
    def req_of(cls, n):
        return {"oA": ("A", 3), "pM": ("A", 4 + n // 4), "pQ": ("A", 5), "oB": ("B", B_H[n // 4]),
                "pB": (("B", B_H[1] + 1) if P["b2"] else ("A", 6)) if n < 4 else (("B", B_H[1] + 2) if P["b3"] else ("A", 7))}[cls]

    groups = []
    wdef = {}
    cover = lambda ks: min(x for x in P["xchk"] if x >= ks + 1)
    for ks in range(18):
        for t in range(4):
            wdef[("g", ks, t)] = (S_GU, ks * 4096, t * 1024)
        if A:
            wdef[("g", ks, 4)] = (S_GUX, ks * 4096, 0)

    def p1_group(ks, n):
        return dict(b=(ks * 8 + n) * 1024, req=("A", 1) if ks == 0 else ("B", cover(ks) if A else (4 if ks < 4 else 18)), p2=False,
                    mf=[(acc(t, n), ("g", ks, t), ks == 0) for t in range(NT)], tag=("p1", ks, n))
    if A:
        for ks in range(18):
            for n in range(8):
                groups.append(p1_group(ks, n))
    else:
        for ks in range(K0):
            for n in range(8):
                groups.append(p1_group(ks, n))
        for n in range(8):
            for ks in range(K0, 18):
                groups.append(p1_group(ks, n))
    NP1 = len(groups)

    VP2 = acc(3, 6)

    def p2_w(side, kp):
        sm, sx = (S_DO, S_DOX) if side == "o" else (S_DP, S_DPX)
        for h in range(2):
            wdef[("d", side, kp, h)] = (sm, kp * 36 * 1024, h * 1024)
        if A:
            wdef[("d", side, kp, 2)] = (sx, kp * 36 * 1024, 0)

    cnt = {n: 0 for n in range(8)}
    marks = {}

    def p2_group(cls, side, kp, n):
        first = cnt[n] == 0
        cnt[n] += 1
        mf = [(acc(h, n), ("d", side, kp, h), first) for h in range(2)]
        if A and n % 2 == 0:
            mf.append((acc(2, n // 2), ("d", side, kp, 2), first))
        groups.append(dict(b=(slot_of(side, kp) * 8 + n) * 1024, req=req_of(cls, n), p2=True, mf=mf,
                           tag=("p2", n, cnt[n] == 18), n=n))

    for c in KS:
        for (sd, k) in KS[c]:
            p2_w(sd, k)
    for seg in P["a_plan" if A else "b_plan"]:
        if isinstance(seg, str):
            marks.setdefault(len(groups), []).append(seg)
            continue
        mode, cl, n0, n1 = seg
        ks_ = [(c, sd, k) for c in cl.split() for (sd, k) in KS[c]]
        if mode == "k":
            for (c, sd, k) in ks_:
                for n in range(n0, n1):
                    p2_group(c, sd, k, n)
        else:
            for n in range(n0, n1):
                for (c, sd, k) in ks_:
                    p2_group(c, sd, k, n)
    assert all(c == 18 for c in cnt.values())

    wseq, last_use = [], {}
    for gi, g in enumerate(groups):
        for mi, (_, wk, _) in enumerate(g["mf"]):
            if wk not in last_use:
                wseq.append(wk)
            last_use[wk] = (gi, mi)
    wslot, bslot = {}, {}
    wfree = [WR + 4 * i for i in range(NW)]
    if not A:
        wfree += [acc(4, n) for n in range(7)]
    bfree = [XR + 4 * i for i in range(NX)]
    stt = dict(wi=0, bi=0, gi=0, lastsb=None, stmp=0, flagrd=None, nslow=0, own=0, blim=NP1, la=99)
    passed = {"A": 0, "B": 0}
    deferred = []
    pend = []
    events = {}
    bextra = []

    used = set()

    def issue_w(force=False):
        if stt["wi"] >= len(wseq) or not wfree:
            return False
        if not force and stt["wi"] - len(used) >= stt["la"]:
            return False
        wk = wseq[stt["wi"]]
        sb, c, imm = wdef[wk]
        if stt["lastsb"] != (sb, c):
            stt["stmp"] ^= 1
            b.I("s_add_u32", s(S_T0 + stt["stmp"]), s(sb), c)
            stt["lastsb"] = (sb, c)
        r = wfree.pop(0)
        wslot[wk] = r
        if role in P.get("ablW", "") and wk[0] == "g" and wk[1] >= 4:
            stt["wi"] += 1
            return True
        b.I("buffer_load_dwordx4", v(r, 4), v(VL[0]), SRD, s(S_T0 + stt["stmp"]), mods=f"offen offset:{imm}")
        stt["wi"] += 1
        return True

    def issue_x(ks):
        if ks > 17:
            return
        b.I("s_add_u32", "m0", s(S_XL), ks * 8192)
        b.I("s_add_u32", s(S_T2), s(S_XG), ks * 8192)
        b.I("buffer_load_dwordx4", v(VL[0]), SRD, s(S_T2), mods="offen lds", tag=("x", ks))
        b.I("buffer_load_dwordx4", v(VL[0]), SRD, s(S_T2), mods="offen offset:1024 lds", tag=("x", ks))

    def signal(val):
        b.I("v_mov_b32", v(V_T), val)
        b.I("ds_write_b32", v(V_FW), v(V_T))
        stt["own"] = val

    def read_flag(grp):
        b.I("ds_read_b32", v(V_F), v(V_FR), mods=f"offset:{0 if grp == 'A' else 1024}")
        stt["flagrd"] = grp

    def ensure(grp, thr, sleep=0):
        if passed[grp] >= thr:
            return
        if grp == role:
            assert stt["own"] >= thr, (role, grp, thr, stt["own"])
        if stt["flagrd"] != grp:
            read_flag(grp)
        stt["flagrd"] = None
        i = stt["nslow"]
        stt["nslow"] += 1
        lab = f"{name}_{role}_x{i}"
        off = 0 if grp == "A" else 1024
        b.I("v_cmp_gt_u32", "vcc", thr, v(V_F))
        b.I("s_cbranch_vccnz", lab + "s")
        b.label(lab + "r")
        sl = f"  s_sleep {sleep}\n" if sleep else ""
        slow.append(f"{lab}s:\n  s_mov_b32 s{S_CNT}, 0x100000\n{lab}l:\n{sl}  ds_read_b32 v{V_F}, v{V_FR} offset:{off}\n  s_waitcnt lgkmcnt(0)\n"
                    f"  v_cmp_gt_u32 vcc, {thr}, v{V_F}\n  s_cbranch_vccz {lab}r\n  s_sub_u32 s{S_CNT}, s{S_CNT}, 1\n"
                    f"  s_cbranch_scc0 {lab}l\n  s_branch {lab}r")
        passed[grp] = thr

    def lim():
        return min([stt["blim"]] + [g for g in marks if g > stt["gi"] or (g == stt["gi"] and not stt.get("evdone") == g)])

    def issue_b():
        if stt["bi"] >= lim() or not bfree:
            return False
        g = groups[stt["bi"]]
        ensure(*g["req"], sleep=1 if g["p2"] else 0)
        sl = bfree.pop(0)
        bslot[stt["bi"]] = sl
        addr = g["b"]
        base = VL[addr >> 16]
        if A and g["p2"]:
            base = VP2 + (addr >> 16) + (3 if g["n"] % 2 else 0)
        if not (role in P.get("ablB", "") and not g["p2"] and g["tag"][1] >= 4):
            b.I("ds_read_b128", v(sl, 4), v(base), mods=f"offset:{addr & 0xffff}")
        stt["bi"] += 1
        if stt["bi"] < lim():
            gr, th = groups[stt["bi"]]["req"]
            if passed[gr] < th:
                read_flag(gr)
        return True

    def tick():
        for d in deferred:
            d[0] -= 1
        while deferred and deferred[0][0] <= 0:
            deferred.pop(0)[1]()
        for i in range(P["gper"]):
            if pend:
                pend.pop(0)()

    def flush_deferred():
        while deferred or pend:
            while pend:
                pend.pop(0)()
            if deferred:
                deferred.pop(0)[1]()

    def out_n(n):
        def fn():
            b.I("s_add_u32", s(S_T2), s(S_PM if n % 2 == 0 else S_PMH), n * 18432)
            e, o = acc(0, n), acc(1, n)
            b.I("v_cvt_pk_bf16_f32", v(e), v(e), v(e + 1))
            b.I("v_cvt_pk_bf16_f32", v(e + 1), v(e + 2), v(e + 3))
            b.I("v_cvt_pk_bf16_f32", v(e + 2), v(o), v(o + 1))
            b.I("v_cvt_pk_bf16_f32", v(e + 3), v(o + 2), v(o + 3))
            b.I("buffer_store_dwordx4", v(e, 4), v(VS), SRD, s(S_T2), mods=f"offen {aux}")
            if A and n % 2 == 0:
                e = acc(2, n // 2)
                b.I("s_add_u32", s(S_T2), s(S_PX), n * 18432)
                b.I("v_cvt_pk_bf16_f32", v(e), v(e), v(e + 1))
                b.I("v_cvt_pk_bf16_f32", v(e + 1), v(e + 2), v(e + 3))
                b.I("buffer_store_dwordx2", v(e, 2), v(VS2), SRD, s(S_T2), mods=f"offen {aux}")
        return fn

    def hstore(n):
        if P.get("nohst"):
            return
        b.I("s_add_u32", s(S_T2), s(S_HO), (n // 4) * 4096)
        b.I("buffer_store_dwordx4", v(acc(0, n), 4), v(VL[0]), SRD, s(S_T2), mods=f"offen offset:{(n % 4) * 1024} sc1", tag=("h", n // 4))

    def b_gelu(n):
        def fn():
            pend.extend(gelu_thunks(b, [(acc(t, n), acc(0, n) + t) for t in range(4)], temps))
            pend.append(lambda: hstore(n))

            def wr():
                ensure("A", 2)
                ensure("B", bval[13])
                b.I("ds_write_b128", v(V_HW), v(acc(0, n), 4), mods=f"offset:{n * 1024}")
                if 2 * (7 - n) < P["ringB"]:
                    bextra.extend([acc(2, n), acc(3, n)])
                else:
                    wfree.extend([acc(2, n), acc(3, n)])
                if n == 3:
                    signal(B_H[0])
                if n == P["bp0"]:
                    st()
                    publish(0)
                    st()
                if n in (0, 3):
                    st()
            pend.append(wr)
        return fn

    def run_groups(end):
        while stt["gi"] < end:
            gi = stt["gi"]
            g = groups[gi]
            tag = g["tag"]
            if P.get("sg") and gi >= NP1 - (0 if A else 32) and (gi - NP1) % P["sg"] == 0:
                st(True)
            for fn in events.get(gi, []):
                fn()
            if gi in marks:
                stt["evdone"] = gi
                while issue_b():
                    pass
            while gi not in bslot:
                assert issue_b(), (role, gi, tag)
            nm = len(g["mf"])
            wcnt = 0
            if A and gi < NP1:
                stt["la"] = P["la0"](gi)
            if P["mergew"] and gi > 0 and all(wk in wslot for _, wk, _ in g["mf"]):
                regs = {("v", wslot[wk] + i) for _, wk, _ in g["mf"] for i in range(4)} | {("v", bslot[gi] + i) for i in range(4)}
                b.wait_regs(regs)
            for mi, (ar, wk, first) in enumerate(g["mf"]):
                while wk not in wslot:
                    assert issue_w(True), (role, gi, wk)
                d = v(ar, 4)
                b.I(MF, d, v(wslot[wk], 4), v(bslot[gi], 4), "0" if first else d)
                used.add(wk)
                if last_use[wk] == (gi, mi):
                    wfree.append(wslot[wk])
                if mi == nm - 1:
                    bfree.append(bslot[gi])
                if P["space"]:
                    wok = wcnt < (P["wpg0"] if gi < P["pace0"] else P["wpg"]) and mi >= 1
                    if (mi < nm - 1 or len(bfree) >= 2) and issue_b():
                        pass
                    elif wok and (mi < nm - 1 or nm < 4) and issue_w():
                        wcnt += 1
                else:
                    if last_use[wk] == (gi, mi):
                        issue_w()
                tick()
            if not P["space"]:
                while issue_b():
                    pass
                issue_w()
            if tag[0] == "p1":
                if not A and tag[2] == 7 and tag[1] in bval:
                    signal(bval[tag[1]])
                if not A and tag[2] == 7 and tag[1] == K0 - 1:
                    b.I("s_setprio", P["nprio"])
                    stt["la"] = P["laB"]
                if not A and tag[1] == 17:
                    deferred.append([P["gdelay"], b_gelu(tag[2])])
                if tag[2] == 7 and tag[1] in P["stampsteps"]:
                    st()
            if dq and gi % P["dper"] == 0:
                dq.pop(0)[1]()
            if tag[0] == "p2" and tag[2]:
                deferred.append([P["delay"], out_n(tag[1])])
            stt["gi"] = gi + 1

    def publish(half):
        b.wait_tag_vm(("h", half))
        b.I("v_mov_b32", v(V_T), 0)
        b.I("v_mov_b32", v(V_Z), 1)
        b.I("buffer_store_dword", v(V_Z), v(V_T), SRD, s(S_FO), mods=f"offen offset:{4 * half} sc1")

    FOFF = [0, 4, 128, 132]

    def poll_issue(which):
        b.I("v_mov_b32", v(V_T), 0)
        b.I("buffer_load_dword", v(V_Z), v(V_T), SRD, s(S_FP), mods=f"offen offset:{FOFF[which]} sc1")

    def poll_check(which):
        lab = f"{name}_{role}_poll{which}"
        b.I("v_cmp_eq_u32", "vcc", 0, v(V_Z))
        b.I("s_cbranch_vccnz", lab + "s")
        b.label(lab + "r")
        slow.append(f"{lab}s:\n  s_mov_b32 s{S_CNT}, 0x100000\n  v_mov_b32 v{V_T}, 0\n{lab}l:\n"
                    f"  buffer_load_dword v{V_Z}, v{V_T}, s[8:11], s{S_FP} offen offset:{FOFF[which]} sc1\n  s_waitcnt vmcnt(0)\n"
                    f"  v_cmp_eq_u32 vcc, 0, v{V_Z}\n  s_cbranch_vccz {lab}r\n  s_sleep 1\n  s_sub_u32 s{S_CNT}, s{S_CNT}, 1\n"
                    f"  s_cbranch_scc0 {lab}l\n  s_branch {lab}r")

    dq = []

    def dma_batch(bt):
        lb, gb = (5 * 8192, 0) if bt < 2 else (14 * 8192, 5 * 8192)
        q = bt % 2
        tag = ("hp", bt)

        def one(i):
            b.I("s_add_u32", "m0", s(S_W8), lb + q * 4096)
            b.I("s_add_u32", s(S_T2), s(S_HP), gb + q * 4096)
            b.I("buffer_load_dwordx4", v(VL[0]), SRD, s(S_T2), mods=f"offen offset:{i * 1024} sc1 lds", tag=tag)

        def quad(i):
            b.I("s_add_u32", "m0", s(S_XL), 9 * 8192)
            b.I("buffer_load_dwordx4", v(VL[0]), SRD, s(S_HPX), mods=f"offen offset:{i * 1024} sc1 lds", tag=tag)
        for i in range(4):
            dq.append((bt, lambda i=i: one(i)))
        if bt == 1:
            for i in range(2):
                dq.append((bt, lambda i=i: quad(i)))

    def dma_partner(bt, now=None):
        ensure("B", [bval[9], bval[9], B_H[0], B_H[1]][bt], sleep=1)
        dma_batch(bt)
        for i in range(P["d0"] if now is None else now):
            if dq:
                dq.pop(0)[1]()

    def lim_for(thr):
        return next((i for i in range(NP1, len(groups)) if groups[i]["req"][0] == "A" and groups[i]["req"][1] >= thr), len(groups))

    def limB(thr):
        return next((i for i in range(NP1, len(groups)) if groups[i]["req"][0] == "B" and groups[i]["req"][1] >= thr), len(groups))

    def dma_done(bt):
        while dq and dq[0][0] <= bt:
            dq.pop(0)[1]()
        b.wait_tag_vm(("hp", bt))
        if A:
            signal(4 + bt)
            stt["blim"] = lim_for(5 + bt)
        else:
            signal(B_H[1] + bt - 1)
            stt["blim"] = limB(B_H[1] + bt)
        st()

    st()
    if A:
        b.I("s_setprio", P["aprio"])
        issue_x(0)
        for j in range(P["a0w"]):
            issue_w()
        if P.get("st0"):
            st()
        late_setup()
        if P.get("st0"):
            st()
        for j in range(P["a0w2"]):
            issue_w()
        b.wait_tag_vm(("x", 0))
        if P.get("st0"):
            st()
        signal(1)
        while issue_b():
            pass
        for j in range(P["a1w"]):
            issue_w()
    else:
        xsig = sorted(set(x - 1 for x in P["xchk"]) | {3})
        b.I("s_setprio", P["xprio"])
        nx = 1 + P["xfly0"]
        for k in range(1, 1 + P["xpre"]):
            issue_x(k)
        if P.get("st0"):
            st()
        late_setup()
        if P.get("st0"):
            st()
        for k in range(1 + P["xpre"], nx):
            issue_x(k)
        stt["blim"] = 32
        stt["la"] = P["laX"]
        for k in range(1, 18):
            b.wait_tag_vm(("x", k))
            if P.get("st0") and k < 6:
                st()
            if k in xsig:
                signal(k + 1)
            for j in range(2):
                if nx < min(18, k + 1 + P["xfly"]):
                    issue_x(nx)
                    nx += 1
            if k >= P["bwk"]:
                issue_w(True)
            if k >= P["bx0"]:
                run_groups(min(30, int((k + 1 - P["bx0"]) * P["bxr"])))
        b.I("s_setprio", P["bprio"])
        stt["la"] = 99
        stt["blim"] = NP1
        st()
        while issue_b():
            pass
    st()
    run_groups(NP1)
    if A:
        signal(2)
        b.I("s_setprio", P["gprioA"])
        stt["la"] = P["laA"]
        st()
        while issue_w():
            pass
        wrn = 0
        for n in range(8):
            tiles = [(acc(t, n), acc(0, n) + t) for t in range(4)] + [(acc(4, n), acc(4, 4 * (n // 4)) + n % 4)]
            th = gelu_thunks(b, tiles, temps)
            for i, f in enumerate(th):
                if n == P["nw0"] and i == 20:
                    read_flag("A")
                if n == P["nw0"] and i == 40:
                    ensure("A", 2)
                    read_flag("B")
                f()
            if n == P["ap1"]:
                poll_issue(0)
            hstore(n)
            if n >= P["nw0"]:
                ensure("B", bval[4], sleep=1)
                while wrn <= n:
                    b.I("ds_write_b32", v(V_HWX), v(acc(4, 4 * (wrn // 4)) + wrn % 4), mods=f"offset:{wrn * 1024}")
                    b.I("ds_write_b128", v(V_HW), v(acc(0, wrn), 4), mods=f"offset:{wrn * 1024}")
                    wrn += 1
            if n == P["ap0"]:
                publish(0)
        signal(3)
        st()
        for i in range(3):
            b.I("v_add_u32", v(VP2 + i), s(S_H4), v(VL[i]))
            b.I("v_subrev_u32", v(VP2 + 3 + i), s(S_H4), v(VL[i]))
        b.I("v_add_u32", v(VP2 + 6), s(S_XL), v(VL[0]))
        ex = [acc(2, 4) + 4 * i for i in range(10)] + [acc(4, n) for n in range(6)]
        bfree.extend(ex[:P["ringA"]])
        wfree.extend(ex[P["ringA"]:])

        def q_read():
            ensure("A", 3)
            for i in range(2):
                b.I("ds_read_b128", v(acc(4, 6 + i), 4), v(VP2 + 6), mods=f"offset:{4 * 8192 + i * 1024}")

        def q_store():
            for i in range(2):
                b.I("buffer_store_dwordx4", v(acc(4, 6 + i), 4), v(VL[0]), SRD, s(S_HOX), mods=f"offen offset:{i * 1024} sc1", tag=("h", 1))
            wfree.extend([acc(4, 6), acc(4, 7)])
        mk = {"P1": lambda: publish(1), "qr": q_read, "qs": q_store}
        for pr in range(4):
            mk[f"r{pr}"] = lambda pr=pr: b.I("s_setprio", pr)
        for bt in range(4):
            mk[f"p{bt}"] = lambda bt=bt: poll_issue(bt)
            mk[f"d{bt}"] = lambda bt=bt: (poll_check(bt), dma_partner(bt), st())
            mk[f"D{bt}"] = lambda bt=bt: (poll_check(bt), dma_partner(bt, 6), st())
            mk[f"w{bt}"] = lambda bt=bt: dma_done(bt)
        for e, m in P["evA"]:
            if e == -1:
                mk[m]()
            else:
                events.setdefault(NP1 + e, []).append(mk[m])
        for gi, ms in marks.items():
            for m in ms:
                events.setdefault(gi, []).append(mk[m])
        ensure("B", bval[P["gate"]], sleep=2)
        st()
        stt["blim"] = lim_for(4)
        b.I("s_setprio", P["pprioA"])
    else:
        st()
        flush_deferred()
        signal(B_H[1])
        bfree.extend(bextra + [acc(4, 7)])
        b.I("s_setprio", P["fprioB"])
        st()
        stt["blim"] = limB(B_H[1] + 1)
        mk = {"P1": lambda: (publish(1), st())}
        for bt in (2, 3):
            mk[f"p{bt}"] = lambda bt=bt: poll_issue(bt)
            mk[f"d{bt}"] = lambda bt=bt: (poll_check(bt), dma_partner(bt), st())
            mk[f"w{bt}"] = lambda bt=bt: dma_done(bt)
        for pr in range(4):
            mk[f"r{pr}"] = lambda pr=pr: b.I("s_setprio", pr)
        for e, m in P["evB"]:
            events.setdefault(NP1 + e, []).append(mk[m])
    while issue_b():
        pass
    run_groups(len(groups))
    flush_deferred()
    if P["stamps"]:
        st(True)
        b.wait_all()
        st(True)
        b.wait_all()
        b.I("s_lshl_b32", s(28), s(2), 3)
        b.I("s_add_u32", s(28), s(28), s(3))
        b.I("s_lshl_b32", s(28), s(28), 7)
        b.I("s_add_u32", s(28), s(28), STAMP)
        b.I("v_mov_b32", v(4), 0)
        for i in range(st.n):
            b.I("v_mov_b32", v(8), s(st.base + 2 * i))
            b.I("buffer_store_dword", v(8), v(4), SRD, s(28), mods=f"offen offset:{4 * i}")
    b.wait_all()
    tl.end(b)
    b.I("s_endpgm")
    for t in slow:
        b.raw(t)


def k_ffn3(name, **kw):
    P = dict(DEF)
    P.update(kw)
    b = AB()
    b.raw(f".globl {name}\n.p2align 8\n.type {name},@function\n{name}:")
    tl.start(b)
    b.I("s_cmp_ge_u32", s(2), 256)
    b.I("s_cbranch_scc1", f"{name}_end")
    b.I("s_load_dwordx2", s(8, 2), s(0, 2), 96)
    b.I("v_lshrrev_b32", v(4), 6, v(0))
    b.I("v_and_b32", v(5), 63, v(0))
    b.I("v_readfirstlane_b32", s(S_W), v(4))
    b.I("v_lshlrev_b32", v(6), 2, v(0))
    b.I("v_mov_b32", v(7), 0)
    b.I("v_add_u32", v(V_FW), LDS_FX, v(6))
    b.I("ds_write_b32", v(V_FW), v(7))
    b.I("v_lshlrev_b32", v(0), 4, v(5))
    b.I("v_add_u32", v(1), 0x10000, v(0))
    b.I("v_add_u32", v(2), 0x20000, v(0))
    b.I("v_and_b32", v(6), 15, v(5))
    b.I("v_lshrrev_b32", v(7), 4, v(5))
    b.I("v_lshl_add_u32", v(6), v(6), 2, v(7))
    b.I("v_lshlrev_b32", v(VS), 4, v(6))
    b.I("v_lshlrev_b32", v(VS2), 3, v(6))
    b.I("s_mov_b32", s(10), WS_BYTES)
    b.I("s_mov_b32", s(11), 0x20000)
    b.I("s_and_b32", s(4), s(2), 7)
    b.I("s_bfe_u32", s(12), s(2), 0x10003)
    b.I("s_lshl_b32", s(13), s(4), 1)
    b.I("s_add_u32", s(13), s(13), s(12))
    b.I("s_xor_b32", s(14), s(13), 1)
    b.I("s_lshr_b32", s(5), s(2), 4)
    b.I("s_mul_i32", s(6), s(13), 9)
    b.I("s_add_u32", s(7), s(6), s(S_W))
    b.I("s_mul_i32", s(S_GU), s(7), 18 * 4096)
    b.I("s_add_u32", s(S_GU), s(S_GU), WGU)
    b.I("s_add_u32", s(7), s(6), 8)
    b.I("s_mul_i32", s(S_GUX), s(7), 18 * 4096)
    b.I("s_lshl_b32", s(7), s(S_W), 10)
    b.I("s_add_u32", s(S_GUX), s(S_GUX), s(7))
    b.I("s_add_u32", s(S_GUX), s(S_GUX), WGU)
    b.I("s_and_b32", s(19), s(S_W), 3)
    b.I("s_lshl_b32", s(S_XL), s(19), 11)
    b.I("s_lshl_b32", s(S_W8), s(19), 13)
    b.I("s_mul_i32", s(S_XG), s(5), 147456)
    b.I("s_add_u32", s(S_XG), s(S_XG), s(S_XL))
    b.I("s_add_u32", s(S_XG), s(S_XG), XN)
    def late_setup():
        b.I("s_mul_i32", s(15), s(12), 18 * 1024)
        b.I("s_add_u32", s(15), s(15), WD)
        b.I("s_lshl_b32", s(16), s(S_W), 11)
        b.I("s_and_b32", s(17), s(S_W), 1)
        b.I("s_lshl_b32", s(17), s(17), 10)
        b.I("s_add_u32", s(17), s(17), 16 * 1024)
        for (sm, sx, f) in ((S_DO, S_DOX, 13), (S_DP, S_DPX, 14)):
            b.I("s_mul_i32", s(7), s(f), 9 * 36 * 1024)
            b.I("s_add_u32", s(7), s(7), s(15))
            b.I("s_add_u32", s(sm), s(7), s(16))
            b.I("s_add_u32", s(sx), s(7), s(17))
        b.I("s_lshl_b32", s(7), s(5), 3)
        b.I("s_add_u32", s(7), s(7), s(4))
        b.I("s_mul_i32", s(7), s(7), 8 * 18432)
        b.I("s_mul_i32", s(15), s(12), 9 * 1024)
        b.I("s_add_u32", s(7), s(7), s(15))
        b.I("s_add_u32", s(7), s(7), PART)
        b.I("s_lshl_b32", s(15), s(S_W), 10)
        b.I("s_add_u32", s(S_PM), s(7), s(15))
        b.I("s_and_b32", s(15), s(S_W), 1)
        b.I("s_lshl_b32", s(15), s(15), 9)
        b.I("s_add_u32", s(S_PX), s(7), s(15))
        b.I("s_add_u32", s(S_PX), s(S_PX), 8192)
        b.I("s_cmp_ge_u32", s(S_W), 4)
        b.I("s_cselect_b32", s(17), 5 * 8192, 0)
        b.I("s_cselect_b32", s(16), 10 * 8192, 0)
        b.I("s_add_u32", s(17), s(17), s(S_W8))
        b.I("s_add_u32", s(16), s(16), s(S_W8))
        b.I("v_add_u32", v(V_HW), s(16), v(0))
        b.I("s_lshl_b32", s(7), s(5), 4)
        for (sh, shx, sf, f) in ((S_HO, S_HOX, S_FO, 13), (S_HP, S_HPX, S_FP, 14)):
            b.I("s_add_u32", s(15), s(7), s(f))
            b.I("s_lshl_b32", s(sf), s(15), 8)
            b.I("s_add_u32", s(sf), s(sf), FLG)
            b.I("s_lshl_b32", s(16), s(S_W if sf == S_FO else 19), 5)
            b.I("s_add_u32", s(sf), s(sf), s(16))
            b.I("s_mul_i32", s(15), s(15), 73728)
            b.I("s_add_u32", s(15), s(15), HX)
            b.I("s_add_u32", s(sh), s(15), s(17 if sh == S_HO else S_W8))
            b.I("s_add_u32", s(shx), s(15), s(S_XL))
            b.I("s_add_u32", s(shx), s(shx), 32768)
        b.I("s_lshl_b32", s(7), s(S_W), 2)
        b.I("s_add_u32", s(7), s(7), 4 * 8192)
        b.I("v_add_u32", v(V_HWX), s(7), v(0))
        b.I("v_and_b32", v(6), 3, v(5))
        b.I("v_lshlrev_b32", v(6), 8, v(6))
        b.I("v_add_u32", v(V_FR), LDS_FX, v(6))
        b.I("s_cmp_eq_u32", s(S_W), 2)
        b.I("s_cselect_b32", s(7), 1, 0)
        b.I("s_cmp_eq_u32", s(S_W), 3)
        b.I("s_cselect_b32", s(7), 1, s(7))
        b.I("s_lshl_b32", s(S_H4), s(7), 10)
        b.I("s_mul_i32", s(7), s(7), 18432)
        b.I("s_sub_u32", s(S_PMH), s(S_PM), s(7))
        b.I("s_add_u32", s(S_PM), s(S_PM), s(7))
        b.I("s_add_u32", s(S_PX), s(S_PX), s(7))
        b.wait(lgkm=0)
        b.barrier()
    b.wait_tag_lg()
    b.I("s_cmp_ge_u32", s(S_W), 4)
    b.I("s_cbranch_scc1", f"{name}_B")
    snap = b.snapshot()
    ffn_role(b, "A", P, name, late_setup)
    b.restore(snap)
    b.raw(".p2align 6")
    b.label(f"{name}_B")
    ffn_role(b, "B", P, name, late_setup)
    b.label(f"{name}_end")
    b.I("s_endpgm")
    return b
```

```python
import sys
sys.path.insert(0, "dev")
from asmlib import kd, module
from k_ffn import k_ffn
from k_ffn2 import k_ffn2, FFN2_LDS
from k_ffn3 import k_ffn3, FFN3_LDS
from k_ln import k_ln
from k_prep import k_prep
from k_conv import k_conv, CONV_LDS

HDR = open("interleave_layers__ssm_conv_h3__geglu_ffn__prompt.s.ref").read().split("; Override")[0]

def build(launches, kernels):
    return HDR + module(launches, [k[0].text() for k in kernels.values()], [kd(n, k[1], k[2], k[3]) for n, k in kernels.items()])

def full(ffn_kw={}):
    ks = {
        "prep_kernel": (k_prep("prep_kernel", laux="nt", aux="sc1", kvl="nt"), 84, 96, 84),
        "conv_kernel": (k_conv("conv_kernel"), 512, 96, 256),
        "ln0_kernel": (k_ln("ln0_kernel", 0), 208, 96, 208),
        "ffn_kernel": (k_ffn3("ffn_kernel", **ffn_kw), 256, 96, 256),
        "ln1_kernel": (k_ln("ln1_kernel", 1, 8), 512, 96, 256),
        "ln2_kernel": (k_ln("ln2_kernel", 2, 8), 512, 96, 256),
    }
    launches = [("prep_kernel", 774, 256, 36864), ("conv_kernel", 144, 256, CONV_LDS), ("ln0_kernel", 256, 128, 0),
                ("ffn_kernel", 256, 512, FFN3_LDS), ("ln1_kernel", 256, 128, 0), ("ffn_kernel", 256, 512, FFN3_LDS),
                ("ln2_kernel", 256, 128, 0)]
    return build(launches, ks), ks

if __name__ == "__main__":
    import tl
    tl.ON = "--tl" in sys.argv
    sys.argv = [a for a in sys.argv if a != "--tl"]
    txt, ks = full(dict(b_plan=[('k','oA',0,8),('n','pM pQ oB pB',0,8)], laB=26))
    out = sys.argv[1] if len(sys.argv) > 1 else "interleave_layers__ssm_conv_h3__geglu_ffn__prompt.s"
    open(out, "w").write(txt)
    print(len(txt))
    for n, k in ks.items():
        print(n, k[0].stats)
```

```python
from ab import *
from lay import *
import tl
MF = "v_mfma_f32_16x16x32_bf16"

HS = 4416
UB = 4 * HS
WSZ = UB + 4672
YL = 4 * WSZ
FRONT_LDS = YL + 64 * 272
NCONV = 144


def conv_order():
    seq = []
    for r in range(8):
        mus = [r + 8 * a_ for a_ in range(9 if r == 0 else 8)]
        bes = [8 * d - r for d in range(8)] if r else [8 * d for d in range(8)] + [-8]
        done = set()
        cl = []
        for k in range(len(mus)):
            for a_ in range(k + 1):
                for d in range(k + 1):
                    if max(a_, d) != k:
                        continue
                    ct8 = mus[a_] + bes[d]
                    if 0 <= ct8 <= 56:
                        cl.append((mus[a_], bes[d], ct8 // 8))
            if r == 0 and k < 8:
                cl.append(("D", bes[k], k))
        seq += cl
    assert len(seq) == 304
    out = []
    seq = list(seq)
    while seq:
        rec = [x[2] for x in out[-2:]]
        for j in range(min(len(seq), 10)):
            if seq[j][2] not in rec:
                out.append(seq.pop(j))
                break
        else:
            out.append(seq.pop(0))
    return out


class St:
    def __init__(self, b, on, base=40):
        self.b, self.on, self.n, self.base = b, on, 0, base

    def __call__(self):
        if self.on:
            self.b.I("s_memtime", s(self.base + 2 * self.n, 2))
            self.n += 1

    def dump(self, srd, wave):
        b = self.b
        if not self.on:
            return
        b.wait_all()
        b.I("s_lshl_b32", s(28), s(2), 3)
        b.I("s_add_u32", s(28), s(28), s(wave))
        b.I("s_lshl_b32", s(28), s(28), 7)
        b.I("s_add_u32", s(28), s(28), STAMP)
        b.I("v_mov_b32", v(4), 0)
        for i in range(self.n):
            b.I("v_mov_b32", v(8), s(self.base + 2 * i))
            b.I("buffer_store_dword", v(8), v(4), srd, s(28), mods=f"offen offset:{4 * i}")
        b.wait_all()


def emit_conv(b, name, P):
    st = St(b, P["stamps"])
    slow = []
    st()
    b.I("s_load_dwordx8", s(12, 8), s(0, 2), 8)
    b.I("s_load_dwordx2", s(24, 2), s(0, 2), 40)
    b.I("s_load_dwordx2", s(68, 2), s(0, 2), 88)
    b.I("s_load_dwordx2", s(8, 2), s(0, 2), 96)
    b.I("v_lshrrev_b32", v(1), 6, v(0))
    b.I("v_and_b32", v(2), 63, v(0))
    b.I("v_readfirstlane_b32", s(3), v(1))
    TP, CP = 1, 23
    b.I("v_lshrrev_b32", v(TP), 3, v(0))
    b.I("v_and_b32", v(CP), 7, v(0))
    b.I("s_mul_i32", s(33), s(2), 7282)
    b.I("s_lshr_b32", s(33), s(33), 16)
    b.I("s_mul_i32", s(34), s(33), 9)
    b.I("s_sub_u32", s(34), s(2), s(34))
    b.I("s_mul_i32", s(6), s(33), 128 * 1152)
    b.I("s_lshl_b32", s(7), s(34), 7)
    b.I("s_add_u32", s(6), s(6), s(7))
    GA, GH, GW = 6, 7, 10
    b.I("v_mul_u32_u24", v(GA), 4 * 1152, v(TP))
    b.I("v_lshl_add_u32", v(GA), v(CP), 4, v(GA))
    b.I("v_add_u32", v(GA), s(6), v(GA))
    b.I("v_subrev_u32", v(GH), 3 * 1152, v(GA))
    b.I("s_lshl_b32", s(7), s(34), 9)
    b.I("v_lshlrev_b32", v(GW), 6, v(CP))
    b.I("v_add_u32", v(GW), s(7), v(GW))
    b.I("v_lshlrev_b32", v(3), 4, v(2))
    b.I("s_lshl_b32", s(4), s(2), 2)
    b.I("s_add_u32", s(4), s(4), s(3))
    b.I("s_mul_i32", s(5), s(3), WSZ)
    b.I("s_lshl_b32", s(6), s(4), 12)
    b.I("s_mov_b32", s(10), WS_BYTES)
    b.I("s_mov_b32", s(11), 0x20000)
    b.I("s_mov_b32", s(30), S * D * 2)
    b.I("s_mov_b32", s(31), 0x20000)
    b.I("s_mov_b32", s(66), 576 * 8)
    b.I("s_mov_b32", s(67), 0x20000)
    b.wait_all()
    st()
    b.I("s_mov_b32", s(28), s(14))
    b.I("s_mov_b32", s(29), s(15))
    b.I("s_mov_b32", s(14), S * D * 2)
    b.I("s_mov_b32", s(15), 0x20000)
    K, V, W = 100, 128, 144
    ga = P["gaux"]
    for i in range(7):
        b.I("buffer_load_dwordx4", v(K + 4 * i, 4), v(GH if i < 3 else GA), s(12, 4), 0, mods=f"offen offset:{(i if i < 3 else i - 3) * 1152} {ga}")
    for i in range(4):
        b.I("buffer_load_dwordx4", v(V + 4 * i, 4), v(GA), s(28, 4), 0, mods=f"offen offset:{i * 1152} {ga}")
    b.I("s_mov_b32", s(64), s(16))
    b.I("s_mov_b32", s(65), s(17))
    for i in range(4):
        b.I("buffer_load_dwordx4", v(W + 4 * i, 4), v(GW), s(64, 4), 0, mods=f"offen offset:{16 * i}")
    b.I("s_add_u32", s(20), s(18), s(6))
    b.I("s_addc_u32", s(21), s(19), 0)
    b.I("s_mov_b32", s(22), 4096)
    b.I("s_mov_b32", s(23), 0x20000)
    b.I("s_mov_b32", s(26), 1152)
    b.I("s_mov_b32", s(27), 0x20000)
    b.I("s_mov_b32", s(70), 256)
    b.I("s_mov_b32", s(71), 0x20000)
    H = 64
    ha = P["haux"]
    for r in range(4):
        b.I("buffer_load_dwordx4", v(H + 8 * r, 4), v(3), s(20, 4), 0, mods=f"offen offset:{1024 * r} {ha}")
    b.I("v_add_u32", v(11), 16, v(3))
    for r in range(4):
        b.I("buffer_load_dword", v(H + 8 * r + 4), v(11), s(20, 4), 0, mods=f"offen offset:{1024 * r} {ha}")
    b.I("s_lshl_b32", s(7), s(4), 1)
    b.I("v_mov_b32", v(11), s(7))
    b.I("buffer_load_ushort", v(8), v(11), s(24, 4), 0, mods="offen")
    NV = 60
    b.I("s_memrealtime", s(72, 2))
    b.I("v_mov_b32", v(NV + 2), 0)
    b.I("v_mov_b32", v(NV + 3), 0)
    b.I("s_or_b32", s(73), s(73), 0x40000000)
    b.I("v_mov_b32", v(NV), s(72))
    b.I("v_mov_b32", v(NV + 1), s(73))
    b.I("s_cmp_eq_u32", s(3), 0)
    b.I("s_cselect_b64", "exec", 1, 0)
    b.I("buffer_atomic_cmpswap_x2", v(NV, 4), v(NV + 2), s(68, 4), 0, mods="offen sc0 sc1")
    b.I("s_mov_b64", "exec", -1)
    st()
    I_, G_ = 4, 5
    b.I("v_and_b32", v(I_), 15, v(2))
    b.I("v_lshrrev_b32", v(G_), 4, v(2))
    for k in range(4):
        b.I("v_mov_b32", v(12 + k), 0)
    b.I("v_add_u32", v(9), s(5), v(3))
    b.I("s_mov_b32", "exec_hi", 0)
    b.I("ds_write_b128", v(9), v(12, 4), mods=f"offset:{UB + 32 + 4096}")
    b.I("s_mov_b64", "exec", 31)
    for c in range(4):
        b.I("ds_write_b128", v(9), v(12, 4), mods=f"offset:{c * HS}")
        b.I("ds_write_b128", v(9), v(12, 4), mods=f"offset:{c * HS + 4144}")
    b.I("s_mov_b64", "exec", 3)
    b.I("ds_write_b128", v(9), v(12, 4), mods=f"offset:{UB}")
    b.I("s_mov_b64", "exec", -1)
    AA, BA, TW, TR, TS = 16, 17, 18, 19, 20
    b.I("v_add_u32", v(11), 1, v(I_))
    b.I("v_and_b32", v(AA), 3, v(11))
    b.I("v_mul_u32_u24", v(AA), HS, v(AA))
    b.I("v_lshrrev_b32", v(11), 2, v(11))
    b.I("v_lshl_add_u32", v(AA), v(11), 3, v(AA))
    b.I("v_lshl_add_u32", v(AA), v(G_), 4, v(AA))
    b.I("v_add_u32", v(AA), s(5), v(AA))
    b.I("v_lshlrev_b32", v(11), 5, v(I_))
    b.I("v_lshlrev_b32", v(BA), 4, v(G_))
    b.I("v_sub_u32", v(BA), v(BA), v(11))
    b.I("s_add_u32", s(7), s(5), UB + 480)
    b.I("v_add_u32", v(BA), s(7), v(BA))
    b.I("v_mul_u32_u24", v(TW), 8 * 272, v(CP))
    b.I("v_lshlrev_b32", v(11), 3, v(TP))
    b.I("v_sub_u32", v(TW), v(TW), v(11))
    b.I("v_add_u32", v(TW), YL + 248, v(TW))
    b.I("v_lshrrev_b32", v(11), 4, v(0))
    b.I("v_mul_u32_u24", v(TR), 272, v(11))
    b.I("v_lshl_add_u32", v(TR), v(I_), 4, v(TR))
    b.I("v_add_u32", v(TR), YL, v(TR))
    b.I("v_lshlrev_b32", v(TS), 12, v(11))
    b.I("v_lshl_add_u32", v(TS), v(I_), 4, v(TS))
    b.I("s_lshl_b32", s(35), s(34), 18)
    b.I("s_lshl_b32", s(7), s(33), 8)
    b.I("s_sub_u32", s(35), s(35), s(7))
    b.I("s_add_u32", s(35), s(35), KVT + 3840)
    b.I("s_mov_b32", s(38), 0x05040100)
    b.I("s_mov_b32", s(39), 0x07060302)
    YW, YR, YS = 96, 97, 98
    b.I("s_mul_i32", s(7), s(3), 4160)
    b.I("s_add_u32", s(7), s(7), YL)
    b.I("v_lshlrev_b32", v(YW), 5, v(I_))
    b.I("v_lshl_add_u32", v(YW), v(G_), 3, v(YW))
    b.I("v_add_u32", v(YW), s(7), v(YW))
    b.I("v_bfe_u32", v(11), v(2), 2, 2)
    b.I("v_mul_u32_u24", v(YR), 4160, v(11))
    b.I("v_lshl_add_u32", v(YR), v(G_), 5, v(YR))
    b.I("v_and_b32", v(11), 3, v(2))
    b.I("v_lshl_add_u32", v(YR), v(11), 3, v(YR))
    b.I("s_lshl_b32", s(7), s(3), 10)
    b.I("s_add_u32", s(7), s(7), YL)
    b.I("v_add_u32", v(YR), s(7), v(YR))
    b.I("v_mul_u32_u24", v(YS), 18432, v(G_))
    b.I("v_lshl_add_u32", v(YS), v(I_), 3, v(YS))
    b.I("s_mul_i32", s(32), s(3), 32 * 18432)
    b.I("s_lshl_b32", s(7), s(2), 7)
    b.I("s_add_u32", s(32), s(32), s(7))
    b.I("s_add_u32", s(32), s(32), YB)
    CO, CN = 21, 22
    b.I("s_lshl_b32", s(7), s(2), 7)
    b.I("v_mov_b32", v(CO), s(7))
    b.I("s_lshr_b32", s(7), s(2), 4)
    b.I("s_lshl_b32", s(7), s(7), 7)
    b.I("v_mul_u32_u24", v(CN), 9 * 128, v(I_))
    b.I("v_add_u32", v(CN), s(7), v(CN))
    b.I("s_mov_b32", s(74), KFL)
    PP, T, O = 160, 176, 192
    for ch in range(8):
        dw, h = ch >> 1, ch & 1
        pp = PP + 8 * (ch & 1)
        t = T + 8 * (ch & 1)
        for r in range(1, 7):
            b.I("v_perm_b32", v(pp + r), v(K + 4 * (r - 1) + dw), v(K + 4 * r + dw), s(38 + h))
        if ch == 0:
            st()
        for i in range(4):
            b.I("v_dot2_f32_bf16", v(t + i), v(pp + i + 1), v(W + 2 * ch + 1), 0)
        for i in range(4):
            if h == 0:
                b.I("v_lshlrev_b32", v(t + 4 + i), 16, v(V + 4 * i + dw))
            else:
                b.I("v_and_b32", v(t + 4 + i), 0xffff0000, v(V + 4 * i + dw))
        for i in range(4):
            b.I("v_dot2_f32_bf16", v(t + i), v(pp + i + 3), v(W + 2 * ch), v(t + i))
        if ch > 0:
            b.I("ds_write_b64", v(TW), v(O + 2 * (ch - 1), 2), mods=f"offset:{(ch - 1) * 272}")
        for i in range(4):
            b.I("v_mul_f32", v(t + i), v(t + i), v(t + 4 + i))
        for q in range(2):
            b.I("v_cvt_pk_bf16_f32", v(O + 2 * ch + q), v(t + 3 - 2 * q), v(t + 2 - 2 * q))
    b.I("ds_write_b64", v(TW), v(O + 14, 2), mods=f"offset:{7 * 272}")
    b.wait(lgkm=0)
    st()
    b.barrier()
    for i in range(4):
        b.I("ds_read_b128", v(K + 4 * i, 4), v(TR), mods=f"offset:{i * 16 * 272}")
    for i in range(4):
        b.I("s_add_u32", s(36 + (i & 1)), s(35), i * 65536)
        b.I("buffer_store_dwordx4", v(K + 4 * i, 4), v(TS), s(8, 4), s(36 + (i & 1)), mods="offen sc1")
    st()
    b.I("v_lshlrev_b32", v(11), 16, v(H))
    HB = [9, 12, 13, 14]
    for par in range(2):
        for r in range(4):
            hr = H + 8 * r
            if par:
                for k in range(4):
                    b.I("v_alignbyte_b32", v(hr + k), v(hr + k + 1), v(hr + k), 2)
            else:
                b.I("v_add_u32", v(116 + r), 2 * HS + 1024 * r, v(9))
                b.I("v_add_u32", v(120 + r), 3 * HS + 1024 * r, v(9))
            b.I("ds_write_b128", v(9), v(hr, 4), mods=f"offset:{par * HS + 64 + 1024 * r}")
            ad = 116 + 4 * par + r
            b.I("ds_write2_b32", v(ad), v(hr), v(hr + 1), mods="offset0:15 offset1:16")
            b.I("ds_write2_b32", v(ad), v(hr + 2), v(hr + 3), mods="offset0:17 offset1:18")
    b.I("s_mov_b64", "exec", 1)
    b.I("ds_write_b32", v(9), v(11), mods=f"offset:{HS + 60}")
    b.I("ds_write_b32", v(9), v(11), mods=f"offset:{3 * HS + 56}")
    b.I("s_mov_b64", "exec", -1)
    DA = 24
    b.I("v_lshlrev_b32", v(10), 3, v(G_))
    b.I("v_add_u32", v(10), v(10), v(I_))
    b.I("v_sub_u32", v(10), 31, v(10))
    b.I("v_lshlrev_b32", v(11), 16, v(8))
    for r in range(4):
        b.I("v_cmp_eq_u32", "vcc", 2 * r, v(10))
        b.I("v_cndmask_b32", v(DA + r), 0, v(8), "vcc")
        b.I("v_cmp_eq_u32", "vcc", 2 * r + 1, v(10))
        b.I("v_cndmask_b32", v(DA + r), v(DA + r), v(11), "vcc")
    b.I("s_add_u32", "m0", s(5), UB + 32)
    b.I("s_add_u32", s(7), s(6), KVT)
    b.wait_all()
    st()
    b.barrier()
    b.I("s_cmp_lg_u32", s(3), 0)
    b.I("s_cbranch_scc1", f"{name}_go")
    b.I("v_readfirstlane_b32", s(76), v(NV))
    b.I("v_readfirstlane_b32", s(77), v(NV + 1))
    b.I("s_cmp_eq_u64", s(76, 2), 0)
    b.I("s_cselect_b64", s(76, 2), s(72, 2), s(76, 2))
    b.I("v_mov_b32", v(NV), s(76))
    b.I("v_mov_b32", v(NV + 1), s(77))
    b.I("s_mov_b64", "exec", 1)
    b.I("buffer_store_dwordx2", v(NV, 2), v(CO), s(8, 4), s(74), mods="offen sc1")
    b.I("s_mov_b64", "exec", 0xffff)
    b.raw(f"""  s_mov_b32 s37, 0x40000
{name}_poll:
  buffer_load_dwordx2 v[{NV + 2}:{NV + 3}], v{CN}, s[8:11], s74 offen sc1
  s_waitcnt vmcnt(0)
  v_cmp_ne_u64 vcc, s[76:77], v[{NV + 2}:{NV + 3}]
  s_cbranch_vccz {name}_pd
  s_sleep {P["psleep"]}
  s_sub_u32 s37, s37, 1
  s_cbranch_scc0 {name}_poll
{name}_pd:
  s_mov_b64 exec, -1""")
    b.vmq = []
    b.label(f"{name}_go")
    b.barrier()
    st()
    for r in range(4):
        b.I("buffer_load_dwordx4", v(3), s(8, 4), s(7), mods=f"offen offset:{1024 * r} sc1 lds", tag="u")
    ACC = 28
    seq = conv_order()
    free = [100 + 4 * i for i in range(P["nfr"])]
    last = {}
    need = []
    for p, (ak, bk, ct) in enumerate(seq):
        for key in (("a", ak), ("b", bk)):
            if key == ("a", "D"):
                continue
            if key not in last:
                need.append((key, p))
            last[key] = p
    slot = {}
    q = []
    ni = [0]

    def refill(p):
        while ni[0] < len(need) and need[ni[0]][1] <= p + P["cla"] and free:
            key = need[ni[0]][0]
            ni[0] += 1
            r = free.pop(0)
            slot[key] = r
            if key[0] == "a":
                q.append((key, lambda r=r, mu=key[1]: b.I("ds_read_b64", v(r, 2), v(AA), mods=f"offset:{64 * mu}")))
                q.append((key, lambda r=r, mu=key[1]: b.I("ds_read_b64", v(r + 2, 2), v(AA), mods=f"offset:{64 * mu + 8}")))
            else:
                q.append((key, lambda r=r, be=key[1]: b.I("ds_read_b128", v(r, 4), v(BA), mods=f"offset:{(56 - be) * 64}")))
    refill(0)
    for it in [x for x in q if x[0][0] == "a"][:10]:
        q.remove(it)
        it[1]()
    b.wait_tag_vm("u")
    st()
    for i in range(5):
        if q:
            q.pop(0)[1]()
    started = set()
    for p, (ak, bk, ct) in enumerate(seq):
        refill(p)
        while any(k in (("a", ak), ("b", bk)) for k, _ in q):
            q.pop(0)[1]()
        d = v(ACC + 4 * ct, 4)
        b.I(MF, d, v(DA, 4) if ak == "D" else v(slot[("a", ak)], 4), v(slot[("b", bk)], 4), d if ct in started else "0")
        started.add(ct)
        for key in (("a", ak), ("b", bk)):
            if last.get(key) == p:
                free.append(slot[key])
        if q and len(b.lgq) < 15:
            q.pop(0)[1]()
        if p in (80, 200):
            st()
    st()
    for ct in range(8):
        r = ACC + 4 * ct
        b.I("v_cvt_pk_bf16_f32", v(r), v(r), v(r + 1))
        b.I("v_cvt_pk_bf16_f32", v(r + 1), v(r + 2), v(r + 3))
        b.I("ds_write_b64", v(YW), v(r, 2), mods=f"offset:{512 * ct}")
    b.wait(lgkm=0)
    b.barrier()
    for k in range(8):
        b.I("ds_read_b64_tr_b16", v(64 + 2 * k, 2), v(YR), mods=f"offset:{128 * k}")
    for k in range(8):
        b.I("s_add_u32", s(24 + (k & 1)), s(32), 4 * k * 18432)
        b.I("buffer_store_dwordx2", v(64 + 2 * k, 2), v(YS), s(8, 4), s(24 + (k & 1)), mods="offen " + P["yaux"])
    b.wait_all()
    st()
    st.dump(s(8, 4), 3)
    tl.end(b)
    b.I("s_endpgm")


def emit_rl(b, name, P, wg0, nwg):
    st = St(b, P["stamps"])
    st()
    if P["pf"]:
        b.raw(f"  s_getpc_b64 s[36:37]\n{name}_pc:")
        b.raw(f"  s_sub_u32 s36, s36, {name}_pc-{name}\n  s_subb_u32 s37, s37, 0")
        b.I("s_sub_u32", s(38), s(2), wg0)
        b.I("s_lshr_b32", s(38), s(38), 3)
        b.I("s_lshl_b32", s(38), s(38), 12)
        b.I("v_lshlrev_b32", v(240), 4, v(0))
        b.I("v_add_u32", v(240), s(38), v(240))
        b.I("v_add_u32", v(241), (nwg // 8) * 4096, v(240))
        for i in range(2):
            b.raw(f"  v_min_u32 v{240 + i}, {P['pf']}-{name}-16, v{240 + i}")
            b.I("global_load_dwordx4", v(244 + 4 * i, 4), v(240 + i), s(36, 2))
    NW = nwg // 8 * 4
    aux, laux = P["raux"], P["rlaux"]
    b.I("s_load_dwordx4", s(12, 4), s(0, 2), 56)
    b.I("s_load_dwordx2", s(20, 2), s(0, 2), 72)
    b.I("s_load_dwordx2", s(8, 2), s(0, 2), 96)
    b.I("v_lshrrev_b32", v(15), 6, v(0))
    b.I("v_readfirstlane_b32", s(3), v(15))
    b.I("v_mul_u32_u24", v(15), 9216, v(15))
    L = 1
    b.I("v_and_b32", v(L), 63, v(0))
    b.I("v_lshrrev_b32", v(2), 3, v(L))
    b.I("v_and_b32", v(3), 7, v(L))
    b.I("v_lshrrev_b32", v(4), 4, v(L))
    b.I("v_bfe_u32", v(5), v(L), 2, 2)
    b.I("v_lshl_add_u32", v(4), v(4), 3, v(5))
    b.I("v_and_b32", v(5), 3, v(L))
    b.I("v_lshlrev_b32", v(6), 4, v(L))
    b.I("s_mov_b32", s(10), WS_BYTES)
    b.I("s_mov_b32", s(11), 0x20000)
    b.I("s_mov_b32", s(22), F * D * 2)
    b.I("s_mov_b32", s(23), 0x20000)
    b.I("s_sub_u32", s(4), s(2), wg0)
    b.I("s_lshr_b32", s(4), s(4), 3)
    b.I("s_lshl_b32", s(4), s(4), 2)
    b.I("s_add_u32", s(4), s(4), s(3))
    b.I("s_sub_u32", s(5), NW - 1, s(4))
    b.I("s_and_b32", s(6), s(2), 7)
    if not P["xcd"]:
        b.I("s_add_u32", s(6), s(6), 3)
        b.I("s_and_b32", s(6), s(6), 7)
    b.I("s_mul_i32", s(6), s(6), 9)
    GL, DL, GW, GR, DW, DR = 7, 8, 9, 10, 11, 12
    b.I("v_mul_u32_u24", v(GL), 9216, v(2))
    b.I("v_lshl_add_u32", v(GL), v(3), 4, v(GL))
    b.I("v_mul_u32_u24", v(DL), 1152, v(2))
    b.I("v_lshl_add_u32", v(DL), v(3), 4, v(DL))
    b.I("v_mul_u32_u24", v(GW), 264, v(2))
    b.I("v_lshl_add_u32", v(GW), v(3), 5, v(GW))
    b.I("v_add_u32", v(GW), v(15), v(GW))
    b.I("v_mul_u32_u24", v(GR), 264, v(4))
    b.I("v_lshl_add_u32", v(GR), v(5), 5, v(GR))
    b.I("v_add_u32", v(GR), v(15), v(GR))
    b.I("v_mul_u32_u24", v(DW), 144, v(2))
    b.I("v_lshl_add_u32", v(DW), v(3), 4, v(DW))
    b.I("v_add_u32", v(DW), v(15), v(DW))
    b.I("v_mul_u32_u24", v(DR), 144, v(4))
    b.I("v_lshl_add_u32", v(DR), v(5), 4, v(DR))
    b.I("v_add_u32", v(DR), v(15), v(DR))
    GW2 = [GW, 13, 14, 2]
    for i in range(1, 4):
        b.I("v_add_u32", v(GW2[i]), i * 8 * 264, v(GW))
    units = P["rl"]
    for r, (ty, first, rev) in enumerate(units):
        so, do, em = 64 + 4 * r, 65 + 4 * r, 66 + 4 * r
        lim = 162 if ty == "g" else 81
        b.I("s_add_u32", s(24), s(5 if rev else 4), first)
        if first + NW > lim:
            b.I("s_cmp_lt_u32", s(24), lim)
            b.I("s_cselect_b64", s(em, 2), -1, 0)
            b.I("s_min_u32", s(24), s(24), lim - 1)
        b.I("s_mul_i32", s(25), s(24), 7282)
        b.I("s_lshr_b32", s(25), s(25), 16)
        b.I("s_mul_i32", s(26), s(25), 9)
        b.I("s_sub_u32", s(26), s(24), s(26))
        if ty == "g":
            b.I("s_add_u32", s(26), s(26), s(6))
            b.I("s_mul_i32", s(so), s(25), 32 * 9216)
            b.I("s_lshl_b32", s(27), s(26), 7)
            b.I("s_add_u32", s(so), s(so), s(27))
            b.I("s_mul_i32", s(27), s(26), 36)
            b.I("s_add_u32", s(27), s(27), s(25))
            b.I("s_lshl_b32", s(27), s(27), 12)
            b.I("s_add_u32", s(do), s(27), WGU)
        else:
            b.I("s_add_u32", s(25), s(25), s(6))
            b.I("s_mul_i32", s(so), s(25), 64 * 1152)
            b.I("s_lshl_b32", s(27), s(26), 7)
            b.I("s_add_u32", s(so), s(so), s(27))
            b.I("s_mul_i32", s(27), s(25), 18)
            b.I("s_add_u32", s(27), s(27), s(26))
            b.I("s_lshl_b32", s(27), s(27), 12)
            b.I("s_add_u32", s(do), s(27), WD)
    b.wait_all()
    st()
    b.I("s_mov_b32", s(16), s(14))
    b.I("s_mov_b32", s(17), s(15))
    b.I("s_mov_b32", s(18), F * D * 2)
    b.I("s_mov_b32", s(19), 0x20000)
    b.I("s_mov_b32", s(14), F * D * 2)
    b.I("s_mov_b32", s(15), 0x20000)
    RB = P.get("rlbase", 16)
    depth = P["rdepth"]
    nb = min(depth, len(units))
    OB = RB + 32 * nb

    def masked(r, fn):
        ty, first, rev = units[r]
        m = first + NW > (162 if ty == "g" else 81)
        if m:
            b.I("s_mov_b64", "exec", s(66 + 4 * r, 2))
        fn()
        if m:
            b.I("s_mov_b64", "exec", -1)

    def loads(r):
        ty = units[r][0]
        R = RB + 32 * (r % nb)
        so = 64 + 4 * r
        if ty == "g":
            for i in range(4):
                b.I("s_add_u32", s(28 + (i & 1)), s(so), i * 8 * 9216)
                b.I("buffer_load_dwordx4", v(R + 4 * i, 4), v(GL), s(12, 4), s(28 + (i & 1)), mods="offen " + laux)
                b.I("buffer_load_dwordx4", v(R + 16 + 4 * i, 4), v(GL), s(16, 4), s(28 + (i & 1)), mods="offen " + laux)
        else:
            for i in range(8):
                b.I("s_add_u32", s(28 + (i & 1)), s(so), i * 8 * 1152)
                b.I("buffer_load_dwordx4", v(R + 4 * i, 4), v(DL), s(20, 4), s(28 + (i & 1)), mods="offen " + laux)

    def tolds(r):
        ty = units[r][0]
        R = RB + 32 * (r % nb)
        if ty == "g":
            for i in range(4):
                for k in range(4):
                    b.I("ds_write2_b32", v(GW2[i]), v(R + 4 * i + k), v(R + 16 + 4 * i + k), mods=f"offset0:{2 * k} offset1:{2 * k + 1}")
        else:
            for i in range(8):
                b.I("ds_write_b128", v(DW), v(R + 4 * i, 4), mods=f"offset:{i * 8 * 144}")

    def out(r):
        ty = units[r][0]
        O = OB + 32 * (r % 2)
        do = 65 + 4 * r
        for kl in range(2):
            for t in range(4):
                o = O + (kl * 4 + t) * 4
                for h in range(2):
                    if ty == "g":
                        b.I("ds_read_b64_tr_b16", v(o + 2 * h, 2), v(GR), mods=f"offset:{kl * 128 + t * 8 + h * 4 * 264}")
                    else:
                        b.I("ds_read_b64_tr_b16", v(o + 2 * h, 2), v(DR), mods=f"offset:{(kl * 32 + h * 4) * 144 + (t >> 1) * 64 + (t & 1) * 8}")
        b.I("s_add_u32", s(30), s(do), 18 * 4096 if ty == "g" else 36 * 1024)
        for kl in range(2):
            for t in range(4):
                o = O + (kl * 4 + t) * 4
                b.I("buffer_store_dwordx4", v(o, 4), v(6), s(8, 4), s(do) if kl == 0 else s(30), mods=f"offen offset:{t * 1024} {aux}")

    for r in range(nb):
        masked(r, lambda: loads(r))
    st()
    for r in range(len(units)):
        masked(r, lambda: tolds(r))
        if r + nb < len(units):
            b.wait(lgkm=0)
            masked(r + nb, lambda: loads(r + nb))
        masked(r, lambda: out(r))
        st()
    b.wait_all()
    st()
    st.dump(s(8, 4), 3)
    tl.end(b)
    b.I("s_endpgm")


DEFF = dict(stamps=False, xcd=True, gaux="nt", psleep=2, nfr=36, cla=24, pf="ln2_kernel_end", haux="nt", yaux="", raux="sc1", rlaux="nt", rdepth=5,
            rl=[("g", 0, 0), ("g", 56, 0), ("g", 112, 0), ("d", 0, 1), ("d", 56, 1)], nrl=112)


def k_front(name, **kw):
    P = dict(DEFF)
    P.update(kw)
    b = AB()
    b.raw(f".globl {name}\n.p2align 8\n.type {name},@function\n{name}:")
    tl.start(b)
    b.I("s_cmp_ge_u32", s(2), NCONV)
    b.I("s_cbranch_scc1", f"{name}_rl")
    snap = b.snapshot()
    emit_conv(b, name, P)
    b.restore(snap)
    b.raw(".p2align 6")
    b.label(f"{name}_rl")
    b.I("s_cmp_ge_u32", s(2), NCONV + P["nrl"])
    b.I("s_cbranch_scc1", f"{name}_end")
    if P["nrl"]:
        emit_rl(b, name, P, NCONV, P["nrl"])
    b.label(f"{name}_end")
    b.I("s_endpgm")
    return b
```

```python
from ab import *
from lay import *
import tl
MF = "v_mfma_f32_16x16x32_bf16"

def rowreduce(b, x, t):
    b.I("v_add_f32_dpp", v(x), v(x), v(x), mods="quad_perm:[1,0,3,2] row_mask:0xf bank_mask:0xf")
    b.I("v_add_f32_dpp", v(x), v(x), v(x), mods="quad_perm:[2,3,0,1] row_mask:0xf bank_mask:0xf")
    b.I("v_mov_b32", v(t), v(x))
    b.I("v_permlane16_swap_b32", v(t), v(x))
    b.I("v_add_f32", v(x), v(x), v(t))
    b.I("v_mov_b32", v(t), v(x))
    b.I("v_permlane32_swap_b32", v(t), v(x))
    b.I("v_add_f32", v(x), v(x), v(t))

def rbf(b, x):
    b.I("v_cvt_pk_bf16_f32", v(x), v(x), v(x))
    b.I("v_lshlrev_b32", v(x), 16, v(x))

def ln_stats(b, X, T, scale=None):
    a0, a1 = T, T + 2
    b.I("v_pk_add_f32", v(a0, 2), v(X, 2), v(X + 2, 2))
    b.I("v_pk_add_f32", v(a1, 2), v(X + 4, 2), v(X + 6, 2))
    for i in range(4, 18):
        acc = a0 if i % 2 == 0 else a1
        b.I("v_pk_add_f32", v(acc, 2), v(acc, 2), v(X + 2 * i, 2))
    b.I("v_pk_add_f32", v(a0, 2), v(a0, 2), v(a1, 2))
    M = T + 10
    b.I("v_add_f32", v(M), v(a0), v(a0 + 1))
    rowreduce(b, M, T)
    b.I("v_mul_f32", v(M), fhex(-1.0 / 576), v(M))
    d0, d1 = T + 4, T + 6
    for i in range(18):
        d = d0 if i % 2 == 0 else d1
        acc = a0 if i % 2 == 0 else a1
        b.I("v_pk_add_f32", v(d, 2), v(X + 2 * i, 2), v(M, 2), mods="op_sel_hi:[1,0]")
        if i < 2:
            b.I("v_pk_mul_f32", v(acc, 2), v(d, 2), v(d, 2))
        else:
            b.I("v_pk_fma_f32", v(acc, 2), v(d, 2), v(d, 2), v(acc, 2))
    b.I("v_pk_add_f32", v(a0, 2), v(a0, 2), v(a1, 2))
    R = T + 8
    b.I("v_add_f32", v(R), v(a0), v(a0 + 1))
    rowreduce(b, R, T)
    b.I("v_mul_f32", v(R), fhex(1.0 / 576), v(R))
    rbf(b, R)
    b.I("v_add_f32", v(R), fhex(1e-5), v(R))
    rbf(b, R)
    b.I("v_sqrt_f32", v(R), v(R))
    rbf(b, R)
    b.I("v_rcp_f32", v(R), v(R))
    rbf(b, M)
    if scale is not None:
        b.I("v_mul_f32", v(R), fhex(scale), v(R))
    b.I("v_mul_f32", v(M), v(M), v(R))
    return R, M

def unpack(b, dst, src):
    b.I("v_lshlrev_b32", v(dst), 16, v(src))
    b.I("v_and_b32", v(dst + 1), 0xffff0000, v(src))

def swap_pairs(b, P):
    for i in range(4):
        b.I("v_permlane16_swap_b32", v(P + 4 * i), v(P + 4 * i + 2))
        b.I("v_permlane16_swap_b32", v(P + 4 * i + 1), v(P + 4 * i + 3))

def code_prefetch(b, name, first, last, vt, vd, thr, sp=40):
    b.raw(f"  s_getpc_b64 s[{sp}:{sp + 1}]\n{name}_pc:")
    b.raw(f"  s_add_u32 s{sp}, s{sp}, {first}-{name}_pc\n  s_addc_u32 s{sp + 1}, s{sp + 1}, 0")
    b.I("s_lshr_b32", s(sp + 2), s(2), 3)
    b.I("s_mul_i32", s(sp + 2), s(sp + 2), thr * 16)
    b.I("v_lshlrev_b32", v(vt), 4, v(0))
    b.I("v_add_u32", v(vt), s(sp + 2), v(vt))
    b.raw(f"  v_min_u32 v{vt}, {last}-{first}-16, v{vt}")
    b.I("global_load_dwordx4", v(vd, 4), v(vt), s(sp, 2))


def k_ln(name, mode, NP=16, pf=None, wpf=0):
    b = AB()
    b.raw(f".globl {name}\n.p2align 8\n.type {name},@function\n{name}:")
    tl.start(b)
    b.I("s_cmp_ge_u32", s(2), 256)
    b.I("s_cbranch_scc1", f"{name}_end")
    b.I("s_load_dwordx2", s(8, 2), s(0, 2), 96)
    if mode == 0:
        b.I("s_load_dwordx2", s(12, 2), s(0, 2), 0)
    if mode == 2:
        b.I("s_load_dwordx2", s(12, 2), s(0, 2), 80)
    WS, IO = s(8, 4), s(12, 4)
    L, C16, G, TOK, CQ, GH, GL = 1, 2, 3, 4, 5, 6, 7
    b.I("v_lshrrev_b32", v(8), 6, v(0))
    b.I("v_and_b32", v(L), 63, v(0))
    b.I("v_readfirstlane_b32", s(3), v(8))
    b.I("v_and_b32", v(C16), 15, v(L))
    b.I("v_lshrrev_b32", v(G), 4, v(L))
    b.I("v_lshrrev_b32", v(TOK), 2, v(C16))
    b.I("v_and_b32", v(CQ), 3, v(L))
    b.I("v_lshrrev_b32", v(GH), 1, v(G))
    b.I("v_and_b32", v(GL), 1, v(G))
    b.I("s_mov_b32", s(10), WS_BYTES)
    b.I("s_mov_b32", s(11), 0x20000)
    b.I("s_mov_b32", s(14), S * D * 2)
    b.I("s_mov_b32", s(15), 0x20000)
    b.I("s_and_b32", s(4), s(2), 0xf0)
    b.I("s_and_b32", s(5), s(2), 7)
    b.I("s_lshl_b32", s(5), s(5), 1)
    b.I("s_add_u32", s(4), s(4), s(5))
    b.I("s_bfe_u32", s(5), s(2), 0x10003)
    b.I("s_add_u32", s(4), s(4), s(5))
    b.I("s_lshl_b32", s(5), s(4), 1)
    b.I("s_add_u32", s(5), s(5), s(3))
    b.I("s_lshr_b32", s(6), s(4), 4)
    b.I("s_bfe_u32", s(7), s(4), 0x30001)
    b.I("s_and_b32", s(16), s(5), 3)
    VP, VP2, VN, VN2, VY, VR, VR2, VX, VX2 = 8, 9, 10, 11, 12, 13, 14, 15, 16
    XP = 20
    YP = 40
    X = 60
    T = 96
    A1, A2 = 108, 112
    ACC = 116
    PB = 152
    OP = 184
    if mode != 0:
        b.I("v_mul_u32_u24", v(VP), 147456, v(G))
        b.I("v_lshl_add_u32", v(VP2), v(C16), 3, v(VP))
        b.I("v_lshl_add_u32", v(VP), v(C16), 4, v(VP))
        b.I("s_lshl_b32", s(17), s(6), 7 if NP == 16 else 6)
        b.I("s_add_u32", s(17), s(17), s(7))
        b.I("s_mul_i32", s(17), s(17), 18432)
        b.I("s_add_u32", s(17), s(17), PART)
        b.I("s_lshl_b32", s(18), s(16), 7)
        b.I("s_add_u32", s(19), s(17), s(18))
        b.I("s_add_u32", s(17), s(19), s(18))
    b.I("v_lshlrev_b32", v(VN), 4, v(L))
    b.I("v_lshlrev_b32", v(VN2), 3, v(L))
    b.I("s_mul_i32", s(20), s(5), 4608)
    if mode != 1:
        b.I("v_mul_u32_u24", v(VR), 1152, v(TOK))
        b.I("v_lshl_add_u32", v(VR), v(GH), 6, v(VR))
        b.I("v_lshl_add_u32", v(VR), v(CQ), 4, v(VR))
        b.I("v_lshl_add_u32", v(VR2), v(GL), 3, v(VR))
        b.I("v_lshl_add_u32", v(VR), v(GL), 7, v(VR))
    if mode != 2:
        b.I("v_lshlrev_b32", v(VY), 3, v(TOK))
        b.I("v_lshl_add_u32", v(VY), v(GH), 10, v(VY))
        b.I("v_lshl_add_u32", v(VY), v(CQ), 8, v(VY))
        b.I("v_lshl_add_u32", v(VY), v(GL), 7, v(VY))
        b.I("s_lshr_b32", s(21), s(5), 2)
        b.I("s_mul_i32", s(21), s(21), 18432)
        b.I("s_lshl_b32", s(22), s(16), 5)
        b.I("s_add_u32", s(21), s(21), s(22))
        b.I("s_add_u32", s(21), s(21), YB)
        b.I("v_lshlrev_b32", v(VX), 4, v(TOK))
        b.I("v_lshl_add_u32", v(VX), v(CQ), 8, v(VX))
        b.I("v_lshl_add_u32", v(VX), v(GH), 13, v(VX))
        b.I("v_lshl_add_u32", v(VX2), v(GL), 3, v(VX))
        b.I("v_lshl_add_u32", v(VX), v(GL), 14, v(VX))
        b.I("s_mul_i32", s(23), s(6), 147456)
        b.I("s_lshl_b32", s(22), s(7), 10)
        b.I("s_add_u32", s(23), s(23), s(22))
        b.I("s_lshl_b32", s(22), s(16), 6)
        b.I("s_add_u32", s(23), s(23), s(22))
        b.I("s_add_u32", s(23), s(23), XN)
    b.wait_all()
    if mode != 2:
        b.I("s_lshl_b32", s(24), s(2), 8)
        b.I("s_add_u32", s(24), s(24), FLG)
        b.I("v_mov_b32", v(T), 0)
        b.I("v_lshlrev_b32", v(T + 1), 1, v(0))
        b.I("buffer_store_short", v(T), v(T + 1), WS, s(24), mods="offen")
    preg = {}
    if mode == 0:
        for i in range(4):
            b.I("buffer_load_dwordx4", v(XP + 4 * i, 4), v(VR), IO, s(20), mods=f"offen offset:{256 * i}")
        b.I("buffer_load_dwordx2", v(XP + 16, 2), v(VR2), IO, s(20), mods="offen offset:1024")
    else:
        b.I("s_add_u32", s(24), s(20), X1 if mode == 1 else X3)
        for i in range(4):
            b.I("buffer_load_dwordx4", v(XP + 4 * i, 4), v(VN), WS, s(24), mods=f"offen offset:{1024 * i}")
        b.I("s_add_u32", s(24), s(24), 4096)
        b.I("buffer_load_dwordx2", v(XP + 16, 2), v(VN2), WS, s(24), mods="offen")
    if mode != 0:
        NJ = NP // 4
        split = (16, 17) if NP == 16 else (8, 17)
        k = 0
        na = 0
        nv = 0
        for dg in range(5):
            for j in range(NJ):
                ds = [d for d in range(4 * dg, min(18, 4 * dg + 4))]
                sreg = s(24 + (k & 1))
                if any(d not in split for d in ds):
                    b.I("s_add_u32", sreg, s(17), j * 4 * 147456 + dg * 4096)
                    k += 1
                for d in ds:
                    if d in split:
                        continue
                    r = a(4 * na, 4)
                    na += 1
                    preg[(d, j)] = r
                    b.I("buffer_load_dwordx4", r, v(VP), WS, sreg, mods=f"offen offset:{(d % 4) * 1024}")
                for d in ds:
                    if d not in split:
                        continue
                    b.I("s_add_u32", s(27), s(19), j * 4 * 147456 + d * 1024)
                    r = PB + 4 * nv
                    nv += 1
                    preg[(d, j)] = v(r, 4)
                    for h in range(2):
                        b.I("buffer_load_dwordx2", v(r + 2 * h, 2), v(VP2), WS, s(27), mods=f"offen offset:{h * 512}")
    if mode != 2:
        for aa in range(9):
            if aa % 2 == 0:
                b.I("s_add_u32", s(26), s(21), aa * 2048)
            b.I("buffer_load_dwordx2", v(YP + 2 * aa, 2), v(VY), WS, s(26), mods=f"offen offset:{(aa % 2) * 2048}")
    if pf:
        code_prefetch(b, name, pf[0], pf[1], 202, 204, 128)
    if wpf:
        b.I("s_and_b32", s(44), s(2), 7)
        b.I("s_lshr_b32", s(45), s(2), 3)
        b.I("s_mul_i32", s(46), s(44), 1296 * 1024)
        b.I("s_mul_i32", s(47), s(45), 1296 * 32)
        b.I("s_add_u32", s(46), s(46), s(47))
        b.I("s_add_u32", s(46), s(46), WGU)
        b.I("v_lshlrev_b32", v(203), 4, v(0))
        for i in range(wpf):
            b.raw(f"  buffer_load_dwordx4 v[204:207], v203, s[8:11], s46 offen\n  s_add_u32 s46, s46, 2048")
            b.vmq.append((set(), None))
    if mode != 0:
        for r in range(4):
            for (AR, off) in ((A1, 0), (A2, 8)):
                b.I("v_mov_b32", v(AR + r), 0)
                b.I("v_cmp_eq_u32", "vcc", off + 2 * r, v(C16))
                b.I("v_mov_b32", v(T), 0x3f80)
                b.I("v_cndmask_b32", v(AR + r), v(AR + r), v(T), "vcc")
                b.I("v_cmp_eq_u32", "vcc", off + 2 * r + 1, v(C16))
                b.I("v_mov_b32", v(T), 0x3f800000)
                b.I("v_cndmask_b32", v(AR + r), v(AR + r), v(T), "vcc")
    if mode == 0:
        swap_pairs(b, XP)
    for i in range(18):
        unpack(b, X + 2 * i, XP + i)
    if mode != 0:
        SC = T + 10
        b.I("v_mov_b32", v(SC), fhex(OUTSCALE))
        for aa in range(9):
            d = v(ACC + 4 * aa, 4)
            first = True
            for j in range(NJ):
                for h in range(2):
                    b.I(MF, d, v(A1 if h == 0 else A2, 4), preg[(2 * aa + h, j)], "0" if first else d)
                    first = False
        for i in range(18):
            b.I("v_pk_fma_f32", v(X + 2 * i, 2), v(ACC + 2 * i, 2), v(SC, 2), v(X + 2 * i, 2), mods="op_sel_hi:[1,0,1]")
    if mode == 2:
        for i in range(18):
            b.I("v_cvt_pk_bf16_f32", v(OP + i), v(X + 2 * i), v(X + 2 * i + 1))
        swap_pairs(b, OP)
        for i in range(4):
            b.I("buffer_store_dwordx4", v(OP + 4 * i, 4), v(VR), IO, s(20), mods=f"offen offset:{256 * i}")
        b.I("buffer_store_dwordx2", v(OP + 16, 2), v(VR2), IO, s(20), mods="offen offset:1024")
    else:
        R, B = ln_stats(b, X, T)
        for i in range(18):
            t0 = T + 2 * (i % 2)
            t1 = T + 4 + 2 * (i % 2)
            unpack(b, t0, YP + i)
            b.I("v_pk_fma_f32", v(t1, 2), v(X + 2 * i, 2), v(R, 2), v(B, 2), mods="op_sel_hi:[1,0,0]")
            b.I("v_pk_fma_f32", v(X + 2 * i, 2), v(t1, 2), v(t0, 2), v(X + 2 * i, 2))
            b.I("v_cvt_pk_bf16_f32", v(OP + i), v(X + 2 * i), v(X + 2 * i + 1))
        b.I("s_add_u32", s(24), s(20), X1 if mode == 0 else X3)
        for i in range(4):
            b.I("buffer_store_dwordx4", v(OP + 4 * i, 4), v(VN), WS, s(24), mods=f"offen offset:{1024 * i}")
        b.I("s_add_u32", s(25), s(24), 4096)
        b.I("buffer_store_dwordx2", v(OP + 16, 2), v(VN2), WS, s(25), mods="offen")
        R, B = ln_stats(b, X, T, scale=ALPHA)
        for i in range(18):
            b.I("v_pk_fma_f32", v(X + 2 * i, 2), v(X + 2 * i, 2), v(R, 2), v(B, 2), mods="op_sel_hi:[1,0,0]")
            b.I("v_cvt_pk_bf16_f32", v(XP + i), v(X + 2 * i), v(X + 2 * i + 1))
        swap_pairs(b, XP)
        for i in range(4):
            b.I("s_add_u32", s(24 + (i & 1)), s(23), i * 32768)
            b.I("buffer_store_dwordx4", v(XP + 4 * i, 4), v(VX), WS, s(24 + (i & 1)), mods="offen")
        b.I("s_add_u32", s(26), s(23), 8 * 16384)
        b.I("buffer_store_dwordx2", v(XP + 16, 2), v(VX2), WS, s(26), mods="offen")
    b.wait_all()
    tl.end(b)
    b.label(f"{name}_end")
    b.I("s_endpgm")
    return b
```

```python
from ab import *
from lay import *
ON = False
TLBASE = 0x5000000
def start(b):
    if ON:
        b.raw("  s_memrealtime s[88:89]\n  s_memtime s[84:85]\n  s_load_dwordx4 s[92:95], s[0:1], 88")
        b.raw("  v_readfirstlane_b32 s87, v0\n  s_waitcnt lgkmcnt(0)")
def end(b):
    if ON:
        b.raw(f"""  s_memrealtime s[90:91]
  s_memtime s[82:83]
  s_lshr_b32 s92, s92, 9
  s_and_b32 s92, s92, 31
  s_lshl_b32 s92, s92, 17
  s_lshl_b32 s93, s2, 7
  s_add_u32 s92, s92, s93
  s_lshr_b32 s87, s87, 6
  s_lshl_b32 s87, s87, 4
  s_add_u32 s92, s92, s87
  s_add_u32 s92, s92, {TLBASE}
  s_add_u32 s94, s94, s92
  s_addc_u32 s95, s95, 0
  s_waitcnt lgkmcnt(0)
  s_sub_u32 s93, s82, s84
  v_mov_b32 v4, s88
  v_mov_b32 v5, s90
  v_mov_b32 v6, s93
  v_mov_b32 v7, 1
  v_mov_b32 v0, 0
  global_store_dwordx4 v0, v[4:7], s[94:95]
  s_waitcnt vmcnt(0)""")
```

```python
import sys
sys.path.insert(0, "dev")
from asmlib import kd, module
from k_ffn import k_ffn
from k_ffn2 import k_ffn2, FFN2_LDS
from k_ffn3 import k_ffn3, FFN3_LDS
from k_ln import k_ln
from k_prep import k_prep
from k_conv import k_conv, CONV_LDS
from k_front2 import k_front, FRONT_LDS

HDR = open("interleave_layers__ssm_conv_h3__geglu_ffn__prompt.s.ref").read().split("; Override")[0]

def build(launches, kernels):
    return HDR + module(launches, [k[0].text() for k in kernels.values()], [kd(n, k[1], k[2], k[3]) for n, k in kernels.items()])

def full(ffn_kw={}):
    ks = {
        "prep_kernel": (k_prep("prep_kernel", laux="nt", aux="sc1", kvl="nt"), 84, 96, 84),
        "conv_kernel": (k_conv("conv_kernel"), 512, 96, 256),
        "ln0_kernel": (k_ln("ln0_kernel", 0), 208, 96, 208),
        "ffn_kernel": (k_ffn3("ffn_kernel", **ffn_kw), 256, 96, 256),
        "ln1_kernel": (k_ln("ln1_kernel", 1, 8), 512, 96, 256),
        "ln2_kernel": (k_ln("ln2_kernel", 2, 8), 512, 96, 256),
    }
    launches = [("prep_kernel", 774, 256, 36864), ("conv_kernel", 144, 256, CONV_LDS), ("ln0_kernel", 256, 128, 0),
                ("ffn_kernel", 256, 512, FFN3_LDS), ("ln1_kernel", 256, 128, 0), ("ffn_kernel", 256, 512, FFN3_LDS),
                ("ln2_kernel", 256, 128, 0)]
    return build(launches, ks), ks

FFN_KW = dict(b_plan=[('k','oA',0,8),('n','pM pQ oB pB',0,8)], laB=26)
def full2(ffn_kw=FFN_KW, front_kw={}, ln0_kw={}):
    ks = {
        "front_kernel": (k_front("front_kernel", **front_kw), 256, 96, 256),
        "ln0_kernel": (k_ln("ln0_kernel", 0, **ln0_kw), 208, 96, 208),
        "ffn_kernel": (k_ffn3("ffn_kernel", **ffn_kw), 256, 96, 256),
        "ln1_kernel": (k_ln("ln1_kernel", 1, 8), 512, 96, 256),
        "ln2_kernel": (k_ln("ln2_kernel", 2, 8), 512, 96, 256),
    }
    launches = [("front_kernel", 256, 512, FRONT_LDS), ("ln0_kernel", 256, 128, 0),
                ("ffn_kernel", 256, 512, FFN3_LDS), ("ln1_kernel", 256, 128, 0), ("ffn_kernel", 256, 512, FFN3_LDS),
                ("ln2_kernel", 256, 128, 0)]
    return build(launches, ks), ks

if __name__ == "__main__":
    import tl
    tl.ON = "--tl" in sys.argv
    sys.argv = [a for a in sys.argv if a != "--tl"]
    txt, ks = full2()
    out = sys.argv[1] if len(sys.argv) > 1 else "interleave_layers__ssm_conv_h3__geglu_ffn__prompt.s"
    open(out, "w").write(txt)
    print(len(txt))
    for n, k in ks.items():
        print(n, k[0].stats)
```

```python
import sys
sys.path.insert(0, "dev")
from gen import *
for a in sys.argv[1:]:
    nm, _, js = a.partition("=")
    kw = eval("dict(" + js + ")") if js else {}
    l0 = kw.pop('ln0', {})
    txt, ks = full2(front_kw=kw, ln0_kw=l0)
    open(f"dev/{nm}.s", "w").write(txt)
```

```python
from ab import *
from lay import *
import tl
from k_front import St, conv_order
MF = "v_mfma_f32_16x16x32_bf16"

HS = 4416
UB = 4 * HS
WSZ = UB + 4672
YL = 4 * WSZ
HLB = YL + 16640
SY = HLB + 4 * 9216
FRONT_LDS = SY + 64
NCONV = 144


class RL:
    GL, DL, GW, GR, DW, DR = 207, 208, 209, 210, 211, 212
    GW2 = [209, 213, 214, 215]
    LN = 216
    US = 48

    def __init__(self, b, P, units, st, name):
        self.b, self.P, self.units, self.st, self.name, self.nl = b, P, units, st, name, 0

    def setup(self, idx, ldsbase):
        b = self.b
        T = 217
        b.I("v_and_b32", v(T), 63, v(0))
        b.I("v_lshlrev_b32", v(self.LN), 4, v(T))
        b.I("v_lshrrev_b32", v(T + 1), 3, v(T))
        b.I("v_and_b32", v(T + 2), 7, v(T))
        b.I("v_lshrrev_b32", v(T + 3), 4, v(T))
        b.I("v_bfe_u32", v(T + 4), v(T), 2, 2)
        b.I("v_lshl_add_u32", v(T + 3), v(T + 3), 3, v(T + 4))
        b.I("v_and_b32", v(T + 4), 3, v(T))
        tys = {u[0] for u in self.units}
        def mk(dst, m, r1, r2, sh, base):
            b.I("v_mul_u32_u24", v(dst), m, v(r1))
            b.I("v_lshl_add_u32", v(dst), v(r2), sh, v(dst))
            if base:
                b.I("v_add_u32", v(dst), s(ldsbase), v(dst))
        if "g" in tys:
            mk(self.GL, 9216, T + 1, T + 2, 4, 0)
            mk(self.GW, 264, T + 1, T + 2, 5, 1)
            mk(self.GR, 264, T + 3, T + 4, 5, 1)
            for i in range(1, 4):
                b.I("v_add_u32", v(self.GW2[i]), i * 8 * 264, v(self.GW))
        if "d" in tys:
            mk(self.DL, 1152, T + 1, T + 2, 4, 0)
            mk(self.DW, 144, T + 1, T + 2, 4, 1)
            mk(self.DR, 144, T + 3, T + 4, 4, 1)
        b.I("s_and_b32", s(24), s(2), 7)
        b.I("s_mul_i32", s(24), s(24), 9)
        for r, (ty, first, cnt, full) in enumerate(self.units):
            so, do = self.US + 2 * r, self.US + 1 + 2 * r
            b.I("s_add_u32", s(27), s(idx), first)
            b.I("s_mul_i32", s(25), s(27), 7282)
            b.I("s_lshr_b32", s(25), s(25), 16)
            b.I("s_mul_i32", s(26), s(25), 9)
            b.I("s_sub_u32", s(26), s(27), s(26))
            if ty == "g":
                b.I("s_add_u32", s(26), s(26), s(24))
                b.I("s_mul_i32", s(so), s(25), 32 * 9216)
                b.I("s_lshl_b32", s(27), s(26), 7)
                b.I("s_add_u32", s(so), s(so), s(27))
                b.I("s_mul_i32", s(27), s(26), 36)
                b.I("s_add_u32", s(27), s(27), s(25))
                b.I("s_lshl_b32", s(27), s(27), 12)
                b.I("s_add_u32", s(do), s(27), WGU)
            else:
                b.I("s_add_u32", s(25), s(25), s(24))
                b.I("s_mul_i32", s(so), s(25), 64 * 1152)
                b.I("s_lshl_b32", s(27), s(26), 7)
                b.I("s_add_u32", s(so), s(so), s(27))
                b.I("s_mul_i32", s(27), s(25), 18)
                b.I("s_add_u32", s(27), s(27), s(26))
                b.I("s_lshl_b32", s(27), s(27), 12)
                b.I("s_add_u32", s(do), s(27), WD)

    def srds(self):
        b = self.b
        b.I("s_mov_b32", s(16), s(14))
        b.I("s_mov_b32", s(17), s(15))
        b.I("s_mov_b32", s(18), F * D * 2)
        b.I("s_mov_b32", s(19), 0x20000)
        b.I("s_mov_b32", s(14), F * D * 2)
        b.I("s_mov_b32", s(15), 0x20000)
        b.I("s_mov_b32", s(22), F * D * 2)
        b.I("s_mov_b32", s(23), 0x20000)

    def masked(self, r, fn):
        fn()

    def loads(self, r, RB=16):
        b, laux = self.b, self.P["rlaux"]
        ty = self.units[r][0]
        R = RB + 32 * r
        so = self.US + 2 * r

        def fn():
            if ty == "g":
                for i in range(4):
                    b.I("s_add_u32", s(28 + (i & 1)), s(so), i * 8 * 9216)
                    b.I("buffer_load_dwordx4", v(R + 4 * i, 4), v(self.GL), s(12, 4), s(28 + (i & 1)), mods="offen " + laux)
                    b.I("buffer_load_dwordx4", v(R + 16 + 4 * i, 4), v(self.GL), s(16, 4), s(28 + (i & 1)), mods="offen " + laux)
            else:
                for i in range(8):
                    b.I("s_add_u32", s(28 + (i & 1)), s(so), i * 8 * 1152)
                    b.I("buffer_load_dwordx4", v(R + 4 * i, 4), v(self.DL), s(20, 4), s(28 + (i & 1)), mods="offen " + laux)
        self.masked(r, fn)

    def proc(self, r, RB=16):
        b, aux = self.b, self.P["raux"]
        ty = self.units[r][0]
        R = RB + 32 * r
        O = RB + 32 * len(self.units) + 32 * (r % 2)
        assert O + 32 <= 207
        do = self.US + 1 + 2 * r
        if ty == "g":
            for i in range(4):
                for k in range(4):
                    b.I("ds_write2_b32", v(self.GW2[i]), v(R + 4 * i + k), v(R + 16 + 4 * i + k), mods=f"offset0:{2 * k} offset1:{2 * k + 1}")
        else:
            for i in range(8):
                b.I("ds_write_b128", v(self.DW), v(R + 4 * i, 4), mods=f"offset:{i * 8 * 144}")
        for kl in range(2):
            for t in range(4):
                o = O + (kl * 4 + t) * 4
                for h in range(2):
                    if ty == "g":
                        b.I("ds_read_b64_tr_b16", v(o + 2 * h, 2), v(self.GR), mods=f"offset:{kl * 128 + t * 8 + h * 4 * 264}")
                    else:
                        b.I("ds_read_b64_tr_b16", v(o + 2 * h, 2), v(self.DR), mods=f"offset:{(kl * 32 + h * 4) * 144 + (t >> 1) * 64 + (t & 1) * 8}")
        b.I("s_add_u32", s(30), s(do), 18 * 4096 if ty == "g" else 36 * 1024)

        def fn():
            for kl in range(2):
                for t in range(4):
                    o = O + (kl * 4 + t) * 4
                    b.I("buffer_store_dwordx4", v(o, 4), v(self.LN), s(8, 4), s(do) if kl == 0 else s(30), mods=f"offen offset:{t * 1024} {aux}")
        self.masked(r, fn)

    def run(self, idx):
        b, st = self.b, self.st
        ths = sorted({u[2] for u in self.units if not u[3]})
        n0 = st.n
        for vi, lo in enumerate([0] + ths):
            if vi < len(ths):
                b.I("s_cmp_ge_u32", s(idx), ths[vi])
                b.I("s_cbranch_scc1", f"{self.name}_v{vi + 1}")
                snap = b.snapshot()
            st.n = n0
            rs = [r for r, u in enumerate(self.units) if u[3] or lo < u[2]]
            for r in rs:
                self.loads(r)
            st()
            for r in range(len(self.units)):
                if r in rs:
                    self.proc(r)
                st()
            b.wait_all()
            st()
            st.dump(s(8, 4), 3)
            tl.end(b)
            b.I("s_endpgm")
            if vi < len(ths):
                b.restore(snap)
                b.label(f"{self.name}_v{vi + 1}")


def emit_conv(b, name, P):
    st = St(b, P["stamps"], base=60)
    st()
    b.I("s_load_dwordx2", s(24, 2), s(0, 2), 40)
    b.I("s_load_dwordx4", s(44, 4), s(0, 2), 88)
    b.I("v_lshrrev_b32", v(1), 6, v(0))
    b.I("v_and_b32", v(2), 63, v(0))
    b.I("v_readfirstlane_b32", s(3), v(1))
    KT, VT, WT = 0, 136 * 128, 264 * 128
    b.I("s_mul_i32", s(33), s(2), 7282)
    b.I("s_lshr_b32", s(33), s(33), 16)
    b.I("s_mul_i32", s(34), s(33), 9)
    b.I("s_sub_u32", s(34), s(2), s(34))
    b.I("s_mul_i32", s(6), s(33), 128 * 1152)
    b.I("s_lshl_b32", s(7), s(34), 7)
    b.I("s_add_u32", s(6), s(6), s(7))
    GA, GH, GW = 6, 7, 10
    b.I("v_lshrrev_b32", v(GA), 3, v(0))
    b.I("v_and_b32", v(GW), 7, v(0))
    b.I("v_mul_u32_u24", v(GA), 1152, v(GA))
    b.I("v_lshl_add_u32", v(GA), v(GW), 4, v(GA))
    b.I("v_add_u32", v(GA), s(6), v(GA))
    b.I("s_lshl_b32", s(5), s(3), 10)
    b.I("s_mov_b32", s(4), 64 * 1152)
    b.I("s_mov_b32", s(30), S * D * 2)
    b.I("s_mov_b32", s(31), 0x20000)
    b.I("s_add_u32", "m0", s(5), KT + 1024)
    b.wait(lgkm=0)
    st()
    b.I("s_mov_b32", s(28), s(14))
    b.I("s_mov_b32", s(29), s(15))
    b.I("s_mov_b32", s(14), S * D * 2)
    b.I("s_mov_b32", s(15), 0x20000)
    ga = P["gaux"]
    b.I("buffer_load_dwordx4", v(GA), s(12, 4), 0, mods=f"offen {ga} lds")
    b.I("s_add_u32", "m0", s(5), KT + 1024 + 8192)
    b.I("buffer_load_dwordx4", v(GA), s(12, 4), s(4), mods=f"offen {ga} lds")
    b.I("s_add_u32", "m0", s(5), VT)
    b.I("buffer_load_dwordx4", v(GA), s(28, 4), 0, mods=f"offen {ga} lds")
    b.I("s_add_u32", "m0", s(5), VT + 8192)
    b.I("buffer_load_dwordx4", v(GA), s(28, 4), s(4), mods=f"offen {ga} lds")
    b.I("s_cmp_gt_u32", s(3), 1)
    b.I("s_cbranch_scc1", f"{name}_nx")
    b.I("s_cmp_eq_u32", s(3), 0)
    b.I("s_cbranch_scc0", f"{name}_w1")
    b.I("v_subrev_u32", v(GH), 8 * 1152, v(GA))
    b.I("s_mov_b32", "m0", KT)
    b.I("buffer_load_dwordx4", v(GH), s(12, 4), 0, mods=f"offen {ga} lds")
    b.I("s_branch", f"{name}_nx")
    b.label(f"{name}_w1")
    b.I("s_lshl_b32", s(7), s(34), 9)
    b.I("s_mov_b32", s(40), s(16))
    b.I("s_mov_b32", s(41), s(17))
    b.I("s_mov_b32", s(42), 576 * 8)
    b.I("s_mov_b32", s(43), 0x20000)
    b.I("v_lshlrev_b32", v(GH), 4, v(2))
    b.I("v_add_u32", v(GH), s(7), v(GH))
    b.I("s_mov_b32", "m0", WT)
    b.I("buffer_load_dwordx4", v(GH), s(40, 4), 0, mods="offen lds")
    b.label(f"{name}_nx")
    H = 64
    b.I("v_lshlrev_b32", v(3), 4, v(2))
    b.barrier()
    b.I("s_cmp_ge_u32", s(3), 4)
    b.I("s_cbranch_scc1", f"{name}_nh")
    b.I("s_lshl_b32", s(4), s(2), 2)
    b.I("s_add_u32", s(4), s(4), s(3))
    b.I("s_lshl_b32", s(6), s(4), 12)
    b.I("s_add_u32", s(20), s(18), s(6))
    b.I("s_addc_u32", s(21), s(19), 0)
    b.I("s_mov_b32", s(22), 4096)
    b.I("s_mov_b32", s(23), 0x20000)
    b.I("s_mov_b32", s(26), 1152)
    b.I("s_mov_b32", s(27), 0x20000)
    b.I("v_add_u32", v(11), 16, v(3))
    b.I("s_lshl_b32", s(7), s(4), 1)
    b.I("v_mov_b32", v(12), s(7))
    ha = P["haux"]
    vq = list(b.vmq)
    for r in range(4):
        b.I("buffer_load_dwordx4", v(H + 8 * r, 4), v(3), s(20, 4), 0, mods=f"offen offset:{1024 * r} {ha}")
    for r in range(4):
        b.I("buffer_load_dword", v(H + 8 * r + 4), v(11), s(20, 4), 0, mods=f"offen offset:{1024 * r} {ha}")
    b.I("buffer_load_ushort", v(8), v(12), s(24, 4), 0, mods="offen")
    b.vmq = vq
    if P["touch"]:
        b.I("s_branch", f"{name}_nh2")
    b.label(f"{name}_nh")
    if P["touch"]:
        G = P["touch"]
        b.I("s_mov_b32", s(8), s(46))
        b.I("s_mov_b32", s(9), s(47))
        b.I("s_mov_b32", s(10), WS_BYTES)
        b.I("s_mov_b32", s(11), 0x20000)
        b.I("s_sub_u32", s(7), s(3), 5)
        b.I("s_mul_i32", s(7), s(7), 12 * 65536)
        b.I("s_add_u32", s(7), s(7), YB)
        b.I("v_min_u32", v(12), 11, v(2))
        b.I("v_lshlrev_b32", v(12), 16, v(12))
        b.I("s_cmp_eq_u32", s(3), 4)
        b.I("s_cbranch_scc0", f"{name}_t1")
        b.I("s_lshl_b32", s(7), s(34), 18)
        b.I("v_min_u32", v(12), 3, v(2))
        b.I("v_lshlrev_b32", v(12), 16, v(12))
        b.I("v_add_u32", v(12), s(7), v(12))
        b.I("s_lshl_b32", s(7), s(2), 14)
        b.I("v_mov_b32", v(13), s(7))
        b.I("v_cmp_eq_u32", "vcc", 4, v(2))
        b.I("v_cndmask_b32", v(12), v(12), v(13), "vcc")
        b.I("v_mov_b32", v(13), KFL + 144 * 128)
        b.I("v_cmp_eq_u32", "vcc", 5, v(2))
        b.I("v_cndmask_b32", v(12), v(12), v(13), "vcc")
        b.I("s_mov_b32", s(7), 0)
        b.label(f"{name}_t1")
        b.I("buffer_load_dword", v(59), v(12), s(8, 4), s(7), mods="offen sc1")
        b.vmq = vq
        b.label(f"{name}_nh2")
    NV = 60
    TP, I_ = 1, 4
    K, V, W = 100, 116, 124
    b.I("v_lshrrev_b32", v(TP), 4, v(0))
    b.I("v_and_b32", v(I_), 15, v(0))
    b.I("s_mov_b32", s(8), s(46))
    b.I("s_mov_b32", s(9), s(47))
    b.I("s_mov_b32", s(46), 256)
    b.I("s_mov_b32", s(47), 0x20000)
    b.I("s_mov_b32", s(10), WS_BYTES)
    b.I("s_mov_b32", s(11), 0x20000)
    b.I("v_lshlrev_b32", v(GA), 9, v(TP))
    b.I("v_lshl_add_u32", v(GA), v(I_), 3, v(GA))
    b.I("v_lshlrev_b32", v(GW), 5, v(I_))
    TW, TR, TR2, TS = 18, 19, 20, 23
    b.I("v_lshrrev_b32", v(TW), 1, v(TP))
    b.I("v_sub_u32", v(TW), 15, v(TW))
    b.I("v_xor_b32", v(TW), v(TW), v(I_))
    b.I("v_lshlrev_b32", v(TW), 4, v(TW))
    b.I("v_lshl_add_u32", v(TW), v(I_), 10, v(TW))
    b.I("v_and_b32", v(11), 1, v(TP))
    b.I("v_lshlrev_b32", v(11), 3, v(11))
    b.I("v_sub_u32", v(TW), v(TW), v(11))
    b.I("v_add_u32", v(TW), YL + 8, v(TW))
    b.I("v_xor_b32", v(TR), s(3), v(I_))
    b.I("v_lshlrev_b32", v(TR), 4, v(TR))
    b.I("v_lshl_add_u32", v(TR), v(TP), 8, v(TR))
    b.I("v_xor_b32", v(TR2), 128, v(TR))
    b.I("v_add_u32", v(TR), YL, v(TR))
    b.I("v_add_u32", v(TR2), YL + 8192, v(TR2))
    b.I("v_lshlrev_b32", v(TS), 12, v(TP))
    b.I("v_lshl_add_u32", v(TS), v(I_), 4, v(TS))
    b.I("s_lshl_b32", s(35), s(34), 18)
    b.I("s_lshl_b32", s(7), s(33), 8)
    b.I("s_sub_u32", s(35), s(35), s(7))
    b.I("s_add_u32", s(35), s(35), KVT + 3840)
    b.I("s_add_u32", s(36), s(35), 32 * 4096)
    b.I("s_mov_b32", s(38), 0x05040100)
    b.I("s_mov_b32", s(39), 0x07060302)
    st()
    NA = 58
    b.I("v_mov_b32", v(NA), 0)
    b.I("s_and_b32", s(43), s(3), 6)
    b.raw(f"""  s_cmp_ge_u32 s3, 4
  s_cbranch_scc1 {name}_w0
  s_waitcnt vmcnt(9)
  s_branch {name}_w9
{name}_w0:
  s_waitcnt vmcnt({1 if P["touch"] else 0})
{name}_w9:""")
    b.vmq = []
    b.barrier()
    b.I("s_cmp_eq_u32", s(43), 4)
    b.I("s_cbranch_scc0", f"{name}_nt")
    b.raw(f"  buffer_load_dwordx2 v[{NV}:{NV + 1}], v{NA}, s[44:47], 0 offen sc1")
    b.label(f"{name}_nt")
    for i in range(7):
        b.I("ds_read_b64", v(K + 2 * i, 2), v(GA), mods=f"offset:{KT + (5 + i) * 128}")
    for i in range(2):
        b.I("ds_read_b128", v(W + 4 * i, 4), v(GW), mods=f"offset:{WT + 16 * i}")
    for i in range(4):
        b.I("ds_read_b64", v(V + 2 * i, 2), v(GA), mods=f"offset:{VT + i * 128}")
    PP, T, O = 132, 148, 164
    for ch in range(4):
        dw, h = ch >> 1, ch & 1
        pp = PP + 8 * (ch & 1)
        t = T + 8 * (ch & 1)
        for r in range(1, 7):
            b.I("v_perm_b32", v(pp + r), v(K + 2 * (r - 1) + dw), v(K + 2 * r + dw), s(38 + h))
        if ch == 0:
            st()
        for i in range(4):
            b.I("v_dot2_f32_bf16", v(t + i), v(pp + i + 1), v(W + 2 * ch + 1), 0)
        for i in range(4):
            if h == 0:
                b.I("v_lshlrev_b32", v(t + 4 + i), 16, v(V + 2 * i + dw))
            else:
                b.I("v_and_b32", v(t + 4 + i), 0xffff0000, v(V + 2 * i + dw))
        for i in range(4):
            b.I("v_dot2_f32_bf16", v(t + i), v(pp + i + 3), v(W + 2 * ch), v(t + i))
        if ch > 0:
            b.I("ds_write_b64", v(TW), v(O + 2 * (ch - 1), 2), mods=f"offset:{(ch - 1) * 256}")
        for i in range(4):
            b.I("v_mul_f32", v(t + i), v(t + i), v(t + 4 + i))
        for q in range(2):
            b.I("v_cvt_pk_bf16_f32", v(O + 2 * ch + q), v(t + 3 - 2 * q), v(t + 2 - 2 * q))
    b.I("ds_write_b64", v(TW), v(O + 6, 2), mods=f"offset:{3 * 256}")
    b.wait(lgkm=0)
    st()
    b.barrier()
    b.I("ds_read_b128", v(K, 4), v(TR))
    b.I("ds_read_b128", v(K + 4, 4), v(TR2))
    b.I("buffer_store_dwordx4", v(K, 4), v(TS), s(8, 4), s(35), mods="offen sc1")
    b.I("buffer_store_dwordx4", v(K + 4, 4), v(TS), s(8, 4), s(36), mods="offen sc1", tag="kv")
    st()
    b.I("s_cmp_lt_u32", s(3), 4)
    b.I("s_cbranch_scc1", f"{name}_cv")
    snap = b.snapshot()
    b.I("s_load_dwordx4", s(12, 4), s(0, 2), 56)
    b.I("s_load_dwordx2", s(20, 2), s(0, 2), 72)
    CO, CN = 56, 57
    b.I("s_lshl_b32", s(7), s(2), 7)
    b.I("v_mov_b32", v(CO), s(7))
    b.I("s_lshr_b32", s(7), s(2), 4)
    b.I("s_lshl_b32", s(7), s(7), 7)
    b.I("v_mul_u32_u24", v(CN), 9 * 128, v(I_))
    b.I("v_add_u32", v(CN), s(7), v(CN))
    b.I("s_mov_b32", s(42), KFL)
    b.wait(vm=0)
    b.raw(f"""  s_cmp_eq_u32 s43, 4
  s_cbranch_scc0 {name}_tge
  s_mov_b32 s43, 0x40000
{name}_tg:
  v_cmp_eq_u32 vcc, 0, v{NV + 1}
  s_cbranch_vccz {name}_tge
  buffer_load_dwordx2 v[{NV}:{NV + 1}], v{NA}, s[44:47], 0 offen sc1
  s_waitcnt vmcnt(0)
  s_sub_u32 s43, s43, 1
  s_cbranch_scc0 {name}_tg
{name}_tge:""")
    st()
    b.barrier()
    b.I("s_cmp_lg_u32", s(3), 4)
    b.I("s_cbranch_scc1", f"{name}_nf")
    b.I("s_mov_b64", "exec", 1)
    b.I("buffer_store_dwordx2", v(NV, 2), v(CO), s(8, 4), s(42), mods="offen sc1")
    b.I("s_mov_b64", "exec", -1)
    b.label(f"{name}_nf")
    b.I("s_cmp_lg_u32", s(3), 5)
    b.I("s_cbranch_scc1", f"{name}_np")
    b.raw(f"""  s_mov_b64 exec, 0xffff
  s_mov_b32 s43, 0x40000
{name}_poll:
  buffer_load_dwordx2 v[{NV + 2}:{NV + 3}], v{CN}, s[8:11], s42 offen sc1
  s_waitcnt vmcnt(0)
  v_cmp_ne_u64 vcc, v[{NV}:{NV + 1}], v[{NV + 2}:{NV + 3}]
  s_cbranch_vccz {name}_pe
  s_sleep {P["psleep"]}
  s_sub_u32 s43, s43, 1
  s_cbranch_scc0 {name}_poll
{name}_pe:
  s_mov_b64 exec, -1""")
    b.barrier()
    b.label(f"{name}_np")
    rl = RL(b, P, P["hl"], st, name + "_h")
    b.I("s_sub_u32", s(6), s(3), 4)
    b.I("s_mul_i32", s(37), s(6), 9216)
    b.I("s_add_u32", s(37), s(37), HLB)
    b.I("s_mul_i32", s(6), s(6), 18)
    b.I("s_lshr_b32", s(7), s(2), 3)
    b.I("s_add_u32", s(6), s(6), s(7))
    rl.setup(6, 37)
    rl.srds()
    b.I("s_cmp_eq_u32", s(3), 5)
    b.I("s_cbranch_scc1", f"{name}_pd")
    b.barrier()
    b.label(f"{name}_pd")
    st()
    rl.run(6)
    b.restore(snap)
    st.n = 6
    b.raw(".p2align 6")
    b.label(f"{name}_cv")
    b.I("s_lshl_b32", s(6), s(4), 12)
    b.I("s_mul_i32", s(5), s(3), WSZ)
    G_ = 5
    b.I("v_lshrrev_b32", v(G_), 4, v(2))
    for k in range(4):
        b.I("v_mov_b32", v(12 + k), 0)
    b.I("v_add_u32", v(9), s(5), v(3))
    b.I("s_mov_b32", "exec_hi", 0)
    b.I("ds_write_b128", v(9), v(12, 4), mods=f"offset:{UB + 32 + 4096}")
    b.I("s_mov_b64", "exec", 31)
    for c in range(4):
        b.I("ds_write_b128", v(9), v(12, 4), mods=f"offset:{c * HS}")
        b.I("ds_write_b128", v(9), v(12, 4), mods=f"offset:{c * HS + 4144}")
    b.I("s_mov_b64", "exec", 3)
    b.I("ds_write_b128", v(9), v(12, 4), mods=f"offset:{UB}")
    b.I("s_mov_b64", "exec", -1)
    SW, SR = 21, 22
    b.I("s_lshl_b32", s(7), s(3), 2)
    b.I("s_add_u32", s(7), s(7), SY)
    b.I("v_mov_b32", v(SW), s(7))
    b.I("ds_write_b32", v(SW), v(12))
    b.I("s_add_u32", "m0", s(5), UB + 32)
    b.I("s_add_u32", s(7), s(6), KVT)
    b.I("v_and_b32", v(SR), 3, v(2))
    b.I("v_lshlrev_b32", v(SR), 2, v(SR))
    b.I("v_add_u32", v(SR), SY, v(SR))
    AA, BA = 16, 17
    b.I("v_add_u32", v(11), 1, v(I_))
    b.I("v_and_b32", v(AA), 3, v(11))
    b.I("v_mul_u32_u24", v(AA), HS, v(AA))
    b.I("v_lshrrev_b32", v(11), 2, v(11))
    b.I("v_lshl_add_u32", v(AA), v(11), 3, v(AA))
    b.I("v_lshl_add_u32", v(AA), v(G_), 4, v(AA))
    b.I("v_add_u32", v(AA), s(5), v(AA))
    b.I("v_lshlrev_b32", v(11), 5, v(I_))
    b.I("v_lshlrev_b32", v(BA), 4, v(G_))
    b.I("v_sub_u32", v(BA), v(BA), v(11))
    b.I("s_add_u32", s(24), s(5), UB + 480)
    b.I("v_add_u32", v(BA), s(24), v(BA))
    YW, YR, YS = 96, 97, 98
    b.I("s_mul_i32", s(24), s(3), 4160)
    b.I("s_add_u32", s(24), s(24), YL)
    b.I("v_lshlrev_b32", v(YW), 5, v(I_))
    b.I("v_lshl_add_u32", v(YW), v(G_), 3, v(YW))
    b.I("v_add_u32", v(YW), s(24), v(YW))
    b.I("v_bfe_u32", v(11), v(2), 2, 2)
    b.I("v_mul_u32_u24", v(YR), 4160, v(11))
    b.I("v_lshl_add_u32", v(YR), v(G_), 5, v(YR))
    b.I("v_and_b32", v(11), 3, v(2))
    b.I("v_lshl_add_u32", v(YR), v(11), 3, v(YR))
    b.I("s_lshl_b32", s(24), s(3), 10)
    b.I("s_add_u32", s(24), s(24), YL)
    b.I("v_add_u32", v(YR), s(24), v(YR))
    b.I("v_mul_u32_u24", v(YS), 18432, v(G_))
    b.I("v_lshl_add_u32", v(YS), v(I_), 3, v(YS))
    b.I("s_mul_i32", s(32), s(3), 32 * 18432)
    b.I("s_lshl_b32", s(24), s(2), 7)
    b.I("s_add_u32", s(32), s(32), s(24))
    b.I("s_add_u32", s(32), s(32), YB)
    b.wait_tag_vm("kv")
    st()
    b.barrier()
    b.I("v_lshlrev_b32", v(11), 16, v(H))
    for par in range(2):
        for r in range(4):
            hr = H + 8 * r
            if par:
                for k in range(4):
                    b.I("v_alignbyte_b32", v(hr + k), v(hr + k + 1), v(hr + k), 2)
            else:
                b.I("v_add_u32", v(116 + r), 2 * HS + 1024 * r, v(9))
                b.I("v_add_u32", v(120 + r), 3 * HS + 1024 * r, v(9))
            b.I("ds_write_b128", v(9), v(hr, 4), mods=f"offset:{par * HS + 64 + 1024 * r}")
            ad = 116 + 4 * par + r
            b.I("ds_write2_b32", v(ad), v(hr), v(hr + 1), mods="offset0:15 offset1:16")
            b.I("ds_write2_b32", v(ad), v(hr + 2), v(hr + 3), mods="offset0:17 offset1:18")
    b.I("s_mov_b64", "exec", 1)
    b.I("ds_write_b32", v(9), v(11), mods=f"offset:{HS + 60}")
    b.I("ds_write_b32", v(9), v(11), mods=f"offset:{3 * HS + 56}")
    b.I("s_mov_b64", "exec", -1)
    DA = 24
    b.I("v_lshlrev_b32", v(10), 3, v(G_))
    b.I("v_add_u32", v(10), v(10), v(I_))
    b.I("v_sub_u32", v(10), 31, v(10))
    b.I("v_lshlrev_b32", v(11), 16, v(8))
    for r in range(4):
        b.I("v_cmp_eq_u32", "vcc", 2 * r, v(10))
        b.I("v_cndmask_b32", v(DA + r), 0, v(8), "vcc")
        b.I("v_cmp_eq_u32", "vcc", 2 * r + 1, v(10))
        b.I("v_cndmask_b32", v(DA + r), v(DA + r), v(11), "vcc")
    ACC = 28
    seq = conv_order()
    free = [100 + 4 * i for i in range(P["nfr"])]
    last = {}
    need = []
    for p, (ak, bk, ct) in enumerate(seq):
        for key in (("a", ak), ("b", bk)):
            if key == ("a", "D"):
                continue
            if key not in last:
                need.append((key, p))
            last[key] = p
    slot = {}
    q = []
    ni = [0]

    def refill(p):
        while ni[0] < len(need) and need[ni[0]][1] <= p + P["cla"] and free:
            key = need[ni[0]][0]
            ni[0] += 1
            r = free.pop(0)
            slot[key] = r
            if key[0] == "a":
                q.append((key, lambda r=r, mu=key[1]: b.I("ds_read_b64", v(r, 2), v(AA), mods=f"offset:{64 * mu}")))
                q.append((key, lambda r=r, mu=key[1]: b.I("ds_read_b64", v(r + 2, 2), v(AA), mods=f"offset:{64 * mu + 8}")))
            else:
                q.append((key, lambda r=r, be=key[1]: b.I("ds_read_b128", v(r, 4), v(BA), mods=f"offset:{(56 - be) * 64}")))
    refill(0)
    for it in [x for x in q if x[0][0] == "a"][:10]:
        q.remove(it)
        it[1]()
    b.wait(lgkm=0)
    b.barrier()
    st()
    for r in range(4):
        b.I("buffer_load_dwordx4", v(3), s(8, 4), s(7), mods=f"offen offset:{1024 * r} sc1 lds", tag="u")
    b.I("s_setprio", 2)
    b.wait_tag_vm("u")
    st()
    for i in range(7):
        if q:
            q.pop(0)[1]()
    started = set()
    for p, (ak, bk, ct) in enumerate(seq):
        refill(p)
        while any(k in (("a", ak), ("b", bk)) for k, _ in q):
            q.pop(0)[1]()
        d = v(ACC + 4 * ct, 4)
        b.I(MF, d, v(DA, 4) if ak == "D" else v(slot[("a", ak)], 4), v(slot[("b", bk)], 4), d if ct in started else "0")
        started.add(ct)
        for key in (("a", ak), ("b", bk)):
            if last.get(key) == p:
                free.append(slot[key])
        if q and len(b.lgq) < 15:
            q.pop(0)[1]()
    st()
    for ct in range(8):
        r = ACC + 4 * ct
        b.I("v_cvt_pk_bf16_f32", v(r), v(r), v(r + 1))
        b.I("v_cvt_pk_bf16_f32", v(r + 1), v(r + 2), v(r + 3))
        b.I("ds_write_b64", v(YW), v(r, 2), mods=f"offset:{512 * ct}")
    b.I("v_mov_b32", v(11), 1)
    b.I("ds_write_b32", v(SW), v(11))
    b.raw(f"""  s_mov_b32 s37, 0x100000
{name}_ep:
  ds_read_b32 v10, v{SR}
  s_waitcnt lgkmcnt(0)
  v_cmp_ne_u32 vcc, 1, v10
  s_cbranch_vccz {name}_epd
  s_sub_u32 s37, s37, 1
  s_cbranch_scc0 {name}_ep
{name}_epd:""")
    b.lgq = []
    st()
    for k in range(8):
        b.I("ds_read_b64_tr_b16", v(64 + 2 * k, 2), v(YR), mods=f"offset:{128 * k}")
    for k in range(8):
        b.I("s_add_u32", s(24 + (k & 1)), s(32), 4 * k * 18432)
        b.I("buffer_store_dwordx2", v(64 + 2 * k, 2), v(YS), s(8, 4), s(24 + (k & 1)), mods="offen " + P["yaux"])
    b.wait_all()
    st()
    st.dump(s(8, 4), 3)
    tl.end(b)
    b.I("s_endpgm")


def emit_rl(b, name, P, wg0, nwg):
    st = St(b, P["stamps"], base=60)
    st()
    b.I("s_load_dwordx4", s(44, 4), s(0, 2), 88)
    b.I("s_memrealtime", s(40, 2))
    b.wait(lgkm=0)
    b.I("s_load_dwordx4", s(12, 4), s(0, 2), 56)
    b.I("s_load_dwordx2", s(20, 2), s(0, 2), 72)
    b.I("s_mov_b32", s(8), s(46))
    b.I("s_mov_b32", s(9), s(47))
    b.I("s_cmp_lg_u32", s(2), wg0)
    b.I("s_cbranch_scc1", f"{name}_nl")
    b.I("s_mov_b32", s(46), 256)
    b.I("s_mov_b32", s(47), 0x20000)
    b.I("s_or_b32", s(41), s(41), 0x40000000)
    b.I("v_mov_b32", v(2), s(40))
    b.I("v_mov_b32", v(3), s(41))
    b.I("v_mov_b32", v(4), 0)
    b.I("v_cmp_eq_u32", "vcc", 0, v(0))
    b.I("s_and_saveexec_b64", s(42, 2), "vcc")
    b.I("s_cbranch_execz", f"{name}_nl2")
    b.I("buffer_store_dwordx2", v(2, 2), v(4), s(44, 4), 0, mods="offen sc1")
    b.label(f"{name}_nl2")
    b.I("s_mov_b64", "exec", -1)
    b.label(f"{name}_nl")
    b.I("v_lshrrev_b32", v(1), 6, v(0))
    b.I("v_readfirstlane_b32", s(3), v(1))
    b.I("s_sub_u32", s(4), s(2), wg0)
    b.I("s_lshr_b32", s(4), s(4), 3)
    b.I("s_mov_b32", s(10), WS_BYTES)
    b.I("s_mov_b32", s(11), 0x20000)
    b.I("s_mul_i32", s(6), s(3), nwg // 8)
    b.I("s_add_u32", s(6), s(6), s(4))
    b.I("s_mul_i32", s(5), s(3), 9216)
    rl = RL(b, P, P["rl"], st, name + "_r")
    rl.setup(6, 5)
    b.wait(lgkm=0)
    st()
    rl.srds()
    rl.run(6)


DEFF = dict(stamps=False, gaux="nt", psleep=1, nfr=36, cla=24, pf="ln2_kernel_end", haux="nt", yaux="", raux="sc1", rlaux="nt",
            ilv=True, hdelay=0, touch=0,
            rl=[("g", 0, 112, True), ("g", 112, 50, False)], hl=[("d", 0, 72, True), ("d", 72, 9, False)], nrl=112)


def k_front(name, **kw):
    P = dict(DEFF)
    P.update(kw)
    b = AB()
    b.raw(f".globl {name}\n.p2align 8\n.type {name},@function\n{name}:")
    tl.start(b)
    b.I("s_load_dwordx8", s(12, 8), s(0, 2), 8)
    if P["pf"]:
        b.raw(f"  s_getpc_b64 s[36:37]\n{name}_pc:")
        b.I("s_lshr_b32", s(38), s(2), 3)
        b.I("s_lshl_b32", s(38), s(38), 13)
        b.I("v_lshlrev_b32", v(240), 4, v(0))
        b.I("v_add_u32", v(240), s(38), v(240))
        b.raw(f"  v_min_u32 v240, {P['pf']}-{name}_pc-16, v240")
        b.I("global_load_dwordx4", v(244, 4), v(240), s(36, 2))
    b.I("s_cmp_ge_u32", s(2), NCONV)
    b.I("s_cbranch_scc1", f"{name}_rl")
    snap = b.snapshot()
    emit_conv(b, name, P)
    b.restore(snap)
    b.raw(".p2align 6")
    b.label(f"{name}_rl")
    b.I("s_cmp_ge_u32", s(2), NCONV + P["nrl"])
    b.I("s_cbranch_scc1", f"{name}_end")
    if P["nrl"]:
        emit_rl(b, name, P, NCONV, P["nrl"])
    b.label(f"{name}_end")
    b.raw("  s_waitcnt vmcnt(0) lgkmcnt(0)")
    b.I("s_endpgm")
    return b
```

```python
import sys
sys.path.insert(0, "dev")
from asmlib import kd, module
from k_ffn import k_ffn
from k_ffn2 import k_ffn2, FFN2_LDS
from k_ffn3 import k_ffn3, FFN3_LDS
from k_ln import k_ln
from k_prep import k_prep
from k_conv import k_conv, CONV_LDS
from k_front2 import k_front, FRONT_LDS

HDR = open("interleave_layers__ssm_conv_h3__geglu_ffn__prompt.s.ref").read().split("; Override")[0]

def build(launches, kernels):
    return HDR + module(launches, [k[0].text() for k in kernels.values()], [kd(n, k[1], k[2], k[3]) for n, k in kernels.items()])

def full(ffn_kw={}):
    ks = {
        "prep_kernel": (k_prep("prep_kernel", laux="nt", aux="sc1", kvl="nt"), 84, 96, 84),
        "conv_kernel": (k_conv("conv_kernel"), 512, 96, 256),
        "ln0_kernel": (k_ln("ln0_kernel", 0), 208, 96, 208),
        "ffn_kernel": (k_ffn3("ffn_kernel", **ffn_kw), 256, 96, 256),
        "ln1_kernel": (k_ln("ln1_kernel", 1, 8), 512, 96, 256),
        "ln2_kernel": (k_ln("ln2_kernel", 2, 8), 512, 96, 256),
    }
    launches = [("prep_kernel", 774, 256, 36864), ("conv_kernel", 144, 256, CONV_LDS), ("ln0_kernel", 256, 128, 0),
                ("ffn_kernel", 256, 512, FFN3_LDS), ("ln1_kernel", 256, 128, 0), ("ffn_kernel", 256, 512, FFN3_LDS),
                ("ln2_kernel", 256, 128, 0)]
    return build(launches, ks), ks

FFN_KW = dict(b_plan=[('k','oA',0,8),('n','pM pQ oB pB',0,8)], laB=26)
def full2(ffn_kw=FFN_KW, front_kw={}, ln0_kw={}):
    ks = {
        "front_kernel": (k_front("front_kernel", **front_kw), 256, 96, 256),
        "ln0_kernel": (k_ln("ln0_kernel", 0, **ln0_kw), 208, 96, 208),
        "ffn_kernel": (k_ffn3("ffn_kernel", **ffn_kw), 256, 96, 256),
        "ln1_kernel": (k_ln("ln1_kernel", 1, 8), 512, 96, 256),
        "ln2_kernel": (k_ln("ln2_kernel", 2, 8), 512, 96, 256),
    }
    launches = [("front_kernel", 256, 512, FRONT_LDS), ("ln0_kernel", 256, 128, 0),
                ("ffn_kernel", 256, 512, FFN3_LDS), ("ln1_kernel", 256, 128, 0), ("ffn_kernel", 256, 512, FFN3_LDS),
                ("ln2_kernel", 256, 128, 0)]
    return build(launches, ks), ks

from k_ffl import k_ffl, k_lnz
def full3(ffn_kw={}, front_kw={}, lnz_kw={}):
    fk = dict(FFN_KW); fk.update(dict(pf=("ffl_pub", "ffl_end"), preA=10, preB=4)); fk.update(ffn_kw)
    fr = dict(zero=True, qpf=1, pf="lnz_kernel_end"); fr.update(front_kw)
    bs = [k_front("front_kernel", **fr), k_ffl("ffa_kernel", "ffb_kernel", **fk), k_lnz("lnz_kernel", **lnz_kw)]
    launches = [("front_kernel", 256, 512, FRONT_LDS), ("ffa_kernel", 256, 512, FFN3_LDS), ("ffb_kernel", 256, 512, FFN3_LDS),
                ("lnz_kernel", 256, 512, 81920)]
    kds = [kd("front_kernel", 256, 96, 256), kd("ffa_kernel", 256, 96, 256), kd("ffb_kernel", 256, 96, 256), kd("lnz_kernel", 232, 96, 232)]
    return HDR + module(launches, [x.text() for x in bs], kds), {str(i): (x,) for i, x in enumerate(bs)}

from k_per import k_per
def full4(ffn_kw={}, front_kw={}):
    fk = dict(FFN_KW); fk.update(dict(pf=("per_ln1", "per_end"), pfn=6, preA=10, preB=4)); fk.update(ffn_kw)
    fr = dict(zero=True, qpf=1, pf="per_end"); fr.update(front_kw)
    bs = [k_front("front_kernel", **fr), k_per("per_kernel", **fk)]
    launches = [("front_kernel", 256, 512, FRONT_LDS), ("per_kernel", 256, 512, FFN3_LDS)]
    kds = [kd("front_kernel", 256, 96, 256), kd("per_kernel", 256, 96, 256)]
    return HDR + module(launches, [x.text() for x in bs], kds), {str(i): (x,) for i, x in enumerate(bs)}

from k_per2 import k_per2, PER_LDS
def full5(ffn_kw={}, front_kw={}):
    fk = dict(FFN_KW); fk.update(dict(pf=("per_seam", "per_end"), pfn=6, preA=10, preB=4)); fk.update(ffn_kw)
    fr = dict(zero=True, qpf=1, pf="per_end"); fr.update(front_kw)
    bs = [k_front("front_kernel", **fr), k_per2("per_kernel", **fk)]
    launches = [("front_kernel", 256, 512, FRONT_LDS), ("per_kernel", 256, 512, PER_LDS)]
    kds = [kd("front_kernel", 256, 96, 256), kd("per_kernel", 256, 96, 256)]
    return HDR + module(launches, [x.text() for x in bs], kds), {str(i): (x,) for i, x in enumerate(bs)}

if __name__ == "__main__":
    import tl
    tl.ON = "--tl" in sys.argv
    sys.argv = [a for a in sys.argv if a != "--tl"]
    txt, ks = full5()
    out = sys.argv[1] if len(sys.argv) > 1 else "interleave_layers__ssm_conv_h3__geglu_ffn__prompt.s"
    open(out, "w").write(txt)
    print(len(txt))
    for n, k in ks.items():
        print(n, k[0].stats)
```

```python
from ab import *
from lay import *
import tl
from k_ffn4 import *
from k_ffn4 import ffn_role, DEF

YS_LDS, XT = 0, 16384
LANE, CQ, DS, G, GL, GH = 5, 90, 91, 92, 93, 94
VP, VPX, VQ, VQE = 96, 97, 98, 99
PB = 100
RX, RE, RY = 136, 140, 144
A1, A2 = 148, 152
LACC = 156
X, Y, T = 168, 180, 192
XO, VXS, VXR, VXW, VXE = 208, 216, 217, 218, 219
VYD, YA0, YA1, YAE = 220, 221, 222, 223
PFD, PFA = 224, 228
VRE = 229
S_P, S_PXS, S_R, S_XFO, S_XFG, S_XS, S_TOK, S_A, S_B, S_LAY = 40, 41, 42, 43, 44, 45, 46, 47, 52, 53
S_LO = 57
IO = s(48, 4)
WS = s(8, 4)
VALID = 0x0F0F0F0F


def pf_code(b, name, first, last):
    b.raw(f"  s_getpc_b64 s[54:55]\n{name}_pc:")
    b.raw(f"  s_add_u32 s54, s54, {first}-{name}_pc\n  s_addc_u32 s55, s55, 0" if True else "")
    b.I("s_lshr_b32", s(56), s(2), 3)
    b.I("s_lshl_b32", s(56), s(56), 13)
    b.I("v_add_u32", v(PFA), s(56), v(PFA))
    b.raw(f"  v_min_u32 v{PFA}, {last}-{first}-16, v{PFA}")
    b.I("global_load_dwordx4", v(PFD, 4), v(PFA), s(54, 2))


def ffn_setup(b):
    b.I("v_add_u32", v(1), 0x10000, v(0))
    b.I("v_add_u32", v(2), 0x20000, v(0))
    b.I("v_and_b32", v(6), 15, v(5))
    b.I("v_lshrrev_b32", v(7), 4, v(5))
    b.I("v_lshl_add_u32", v(6), v(6), 2, v(7))
    b.I("v_lshlrev_b32", v(VS), 4, v(6))
    b.I("v_lshlrev_b32", v(VS2), 3, v(6))
    b.I("s_lshl_b32", s(13), s(4), 1)
    b.I("s_add_u32", s(13), s(13), s(12))
    b.I("s_xor_b32", s(14), s(13), 1)
    b.I("s_mul_i32", s(6), s(13), 9)
    b.I("s_add_u32", s(7), s(6), s(S_W))
    b.I("s_mul_i32", s(S_GU), s(7), 18 * 4096)
    b.I("s_add_u32", s(S_GU), s(S_GU), WGU)
    b.I("s_add_u32", s(7), s(6), 8)
    b.I("s_mul_i32", s(S_GUX), s(7), 18 * 4096)
    b.I("s_lshl_b32", s(7), s(S_W), 10)
    b.I("s_add_u32", s(S_GUX), s(S_GUX), s(7))
    b.I("s_add_u32", s(S_GUX), s(S_GUX), WGU)
    b.I("s_and_b32", s(19), s(S_W), 3)
    b.I("s_lshl_b32", s(S_XL), s(19), 11)
    b.I("s_lshl_b32", s(S_W8), s(19), 13)
    b.I("s_mul_i32", s(S_XG), s(5), 147456)
    b.I("s_add_u32", s(S_XG), s(S_XG), s(S_XL))
    b.I("s_add_u32", s(S_XG), s(S_XG), XN)
    b.I("s_add_u32", s(S_XG), s(S_XG), s(S_LO))
    b.I("s_mul_i32", s(15), s(12), 18 * 1024)
    b.I("s_add_u32", s(15), s(15), WD)
    b.I("s_lshl_b32", s(16), s(S_W), 11)
    b.I("s_and_b32", s(17), s(S_W), 1)
    b.I("s_lshl_b32", s(17), s(17), 10)
    b.I("s_add_u32", s(17), s(17), 16 * 1024)
    for (sm, sx, f) in ((S_DO, S_DOX, 13), (S_DP, S_DPX, 14)):
        b.I("s_mul_i32", s(7), s(f), 9 * 36 * 1024)
        b.I("s_add_u32", s(7), s(7), s(15))
        b.I("s_add_u32", s(sm), s(7), s(16))
        b.I("s_add_u32", s(sx), s(7), s(17))
    b.I("s_lshl_b32", s(7), s(5), 3)
    b.I("s_add_u32", s(7), s(7), s(4))
    b.I("s_mul_i32", s(7), s(7), 8 * 18432)
    b.I("s_mul_i32", s(15), s(12), 9 * 1024)
    b.I("s_add_u32", s(7), s(7), s(15))
    b.I("s_add_u32", s(7), s(7), PART)
    b.I("s_add_u32", s(7), s(7), s(S_LO))
    b.I("s_lshl_b32", s(15), s(S_W), 10)
    b.I("s_add_u32", s(S_PM), s(7), s(15))
    b.I("s_and_b32", s(15), s(S_W), 1)
    b.I("s_lshl_b32", s(15), s(15), 9)
    b.I("s_add_u32", s(S_PX), s(7), s(15))
    b.I("s_add_u32", s(S_PX), s(S_PX), 8192)
    b.I("s_cmp_ge_u32", s(S_W), 4)
    b.I("s_cselect_b32", s(17), 5 * 8192, 0)
    b.I("s_cselect_b32", s(16), 10 * 8192, 0)
    b.I("s_add_u32", s(17), s(17), s(S_W8))
    b.I("s_add_u32", s(16), s(16), s(S_W8))
    b.I("v_add_u32", v(V_HW), s(16), v(0))
    b.I("s_lshl_b32", s(7), s(5), 4)
    for (sh, shx, sf, f) in ((S_HO, S_HOX, S_FO, 13), (S_HP, S_HPX, S_FP, 14)):
        b.I("s_add_u32", s(15), s(7), s(f))
        b.I("s_lshl_b32", s(sf), s(15), 8)
        b.I("s_add_u32", s(sf), s(sf), s(S_LAY))
        b.I("s_lshl_b32", s(16), s(S_W if sf == S_FO else 19), 5)
        b.I("s_add_u32", s(sf), s(sf), s(16))
        b.I("s_mul_i32", s(15), s(15), 73728)
        b.I("s_add_u32", s(15), s(15), HX)
        b.I("s_add_u32", s(15), s(15), s(S_LO))
        b.I("s_add_u32", s(sh), s(15), s(17 if sh == S_HO else S_W8))
        b.I("s_add_u32", s(shx), s(15), s(S_XL))
        b.I("s_add_u32", s(shx), s(shx), 32768)
    b.I("s_lshl_b32", s(7), s(S_W), 2)
    b.I("s_add_u32", s(7), s(7), 4 * 8192)
    b.I("v_add_u32", v(V_HWX), s(7), v(0))
    b.I("v_and_b32", v(6), 3, v(5))
    b.I("v_lshlrev_b32", v(6), 8, v(6))
    b.I("v_add_u32", v(V_FR), LDS_FX, v(6))
    b.I("s_cmp_eq_u32", s(S_W), 2)
    b.I("s_cselect_b32", s(7), 1, 0)
    b.I("s_cmp_eq_u32", s(S_W), 3)
    b.I("s_cselect_b32", s(7), 1, s(7))
    b.I("s_lshl_b32", s(S_H4), s(7), 10)
    b.I("s_mul_i32", s(7), s(7), 18432)
    b.I("s_sub_u32", s(S_PMH), s(S_PM), s(7))
    b.I("s_add_u32", s(S_PM), s(S_PM), s(7))
    b.I("s_add_u32", s(S_PX), s(S_PX), s(7))


def xn_setup(b, layer, LO=0):
    b.I("s_mov_b32", s(S_LO), layer * LO)
    b.I("s_mov_b32", s(S_LAY), FLG + layer * FLG_L)
    b.I("s_lshl_b32", s(S_XFO), s(2), 7)
    b.I("s_add_u32", s(S_XFO), s(S_XFO), XF + layer * FLG_L)
    b.I("s_lshl_b32", s(S_XFG), s(5), 11)
    b.I("s_add_u32", s(S_XFG), s(S_XFG), XF + layer * FLG_L)
    b.I("s_mul_i32", s(S_XS), s(5), 147456)
    b.I("s_lshl_b32", s(7), s(4), 10)
    b.I("s_add_u32", s(S_XS), s(S_XS), s(7))
    b.I("s_lshl_b32", s(7), s(12), 7)
    b.I("s_add_u32", s(S_XS), s(S_XS), s(7))
    b.I("s_lshl_b32", s(7), s(S_W), 14)
    b.I("s_add_u32", s(S_XS), s(S_XS), s(7))
    b.I("s_add_u32", s(S_XS), s(S_XS), XN + layer * LO)
    t0, t1 = T, T + 1
    b.I("v_lshrrev_b32", v(t0), 3, v(LANE))
    b.I("v_and_b32", v(t1), 7, v(LANE))
    b.I("v_xor_b32", v(t1), v(t1), v(t0))
    b.I("v_lshlrev_b32", v(VXS), 4, v(t1))
    b.I("v_and_b32", v(t1), 3, v(t0))
    b.I("v_lshl_add_u32", v(VXS), v(t1), 8, v(VXS))
    b.I("v_lshl_add_u32", v(VXS), v(GH), 13, v(VXS))
    b.I("s_lshl_b32", s(7), s(S_W), 10)
    b.I("s_add_u32", s(7), s(7), XT)
    b.I("v_add_u32", v(VXR), s(7), v(0))
    b.I("v_and_b32", v(t0), 15, v(LANE))
    b.I("v_lshl_add_u32", v(t0), v(GH), 4, v(t0))
    b.I("v_mad_u32_u24", v(t0), v(GL), 36, v(t0))
    b.I("v_and_b32", v(t1), 7, v(t0))
    b.I("v_xor_b32", v(t1), s(S_W), v(t1))
    b.I("v_lshlrev_b32", v(t1), 4, v(t1))
    b.I("v_lshl_add_u32", v(VXW), v(t0), 7, v(t1))
    b.I("v_add_u32", v(VXW), XT, v(VXW))
    b.I("v_lshrrev_b32", v(t0), 1, v(DS))
    b.I("v_mad_u32_u24", v(t0), v(t0), 36, v(CQ))
    b.I("v_and_b32", v(t1), 7, v(t0))
    b.I("v_xor_b32", v(t1), s(S_W), v(t1))
    b.I("v_lshlrev_b32", v(t1), 4, v(t1))
    b.I("v_lshl_add_u32", v(VXE), v(t0), 7, v(t1))
    b.I("v_lshl_add_u32", v(VXE), v(GL), 3, v(VXE))
    b.I("v_add_u32", v(VXE), XT + 32 * 128, v(VXE))


def allreduce2(b, x0, x1, t0, t1):
    for m in ("quad_perm:[1,0,3,2]", "quad_perm:[2,3,0,1]", "row_half_mirror", "row_mirror"):
        for x in (x0, x1):
            b.I("v_add_f32_dpp", v(x), v(x), v(x), mods=m + " row_mask:0xf bank_mask:0xf")
    for op in ("v_permlane16_swap_b32", "v_permlane32_swap_b32"):
        b.I("v_mov_b32", v(t0), v(x0))
        b.I("v_mov_b32", v(t1), v(x1))
        b.I(op, v(t0), v(x0))
        b.I(op, v(t1), v(x1))
        b.I("v_add_f32", v(x0), v(x0), v(t0))
        b.I("v_add_f32", v(x1), v(x1), v(t1))


def rbf(b, x):
    b.I("v_cvt_pk_bf16_f32", v(x), v(x), v(x))
    b.I("v_lshlrev_b32", v(x), 16, v(x))


def stats(b, scale=None):
    p0, p1, q0, q1 = T, T + 2, T + 4, T + 6
    R, M = T + 8, T + 10
    b.I("v_pk_add_f32", v(p0, 2), v(X, 2), v(X + 2, 2))
    b.I("v_pk_mul_f32", v(q0, 2), v(X, 2), v(X, 2))
    b.I("v_pk_add_f32", v(p1, 2), v(X + 4, 2), v(X + 6, 2))
    b.I("v_pk_mul_f32", v(q1, 2), v(X + 2, 2), v(X + 2, 2))
    b.I("v_pk_add_f32", v(p0, 2), v(p0, 2), v(X + 8, 2))
    b.I("v_pk_fma_f32", v(q0, 2), v(X + 4, 2), v(X + 4, 2), v(q0, 2))
    b.I("v_pk_add_f32", v(p1, 2), v(p1, 2), v(X + 10, 2))
    b.I("v_pk_fma_f32", v(q1, 2), v(X + 6, 2), v(X + 6, 2), v(q1, 2))
    b.I("v_pk_fma_f32", v(q0, 2), v(X + 8, 2), v(X + 8, 2), v(q0, 2))
    b.I("v_pk_fma_f32", v(q1, 2), v(X + 10, 2), v(X + 10, 2), v(q1, 2))
    b.I("v_pk_add_f32", v(p0, 2), v(p0, 2), v(p1, 2))
    b.I("v_pk_add_f32", v(q0, 2), v(q0, 2), v(q1, 2))
    b.I("v_add_f32", v(M), v(p0), v(p0 + 1))
    b.I("v_add_f32", v(R), v(q0), v(q0 + 1))
    allreduce2(b, M, R, T, T + 1)
    b.I("v_mul_f32", v(M), fhex(-1.0 / 576), v(M))
    b.I("v_mul_f32", v(R), fhex(1.0 / 576), v(R))
    b.I("v_fma_f32", v(R), "-" + v(M), v(M), v(R))
    b.I("v_cvt_pk_bf16_f32", v(M), v(M), v(M))
    b.I("v_max_f32", v(R), 0, v(R))
    b.I("v_lshlrev_b32", v(M), 16, v(M))
    rbf(b, R)
    b.I("v_add_f32", v(R), fhex(1e-5), v(R))
    rbf(b, R)
    b.I("v_sqrt_f32", v(R), v(R))
    rbf(b, R)
    b.I("v_rcp_f32", v(R), v(R))
    if scale is not None:
        b.I("v_mul_f32", v(R), fhex(scale), v(R))
    b.I("v_mul_f32", v(M), v(M), v(R))
    return R, M


def unpack(b, dst, src):
    b.I("v_lshlrev_b32", v(dst), 16, v(src))
    b.I("v_and_b32", v(dst + 1), 0xffff0000, v(src))


def ln_phase(b, name, mode, P, endlab):
    st = Stamps(b, P["stamps"] and mode != 2, base=60)
    b.raw(f".globl {name}\n.p2align 8\n.type {name},@function\n{name}:")
    tl.start(b)
    b.I("s_load_dwordx2", s(8, 2), s(0, 2), 96)
    if mode != 1:
        b.I("s_load_dwordx2", s(48, 2), s(0, 2), 0 if mode == 0 else 80)
    b.I("s_cmp_ge_u32", s(2), 256)
    b.I("s_cbranch_scc1", endlab)
    st()
    if P.get("body"):
        st.on = False
    b.I("v_lshrrev_b32", v(4), 6, v(0))
    b.I("v_and_b32", v(LANE), 63, v(0))
    b.I("v_readfirstlane_b32", s(S_W), v(4))
    b.I("v_lshlrev_b32", v(PFA), 4, v(0))
    b.I("v_lshlrev_b32", v(6), 2, v(0))
    b.I("v_lshlrev_b32", v(0), 4, v(LANE))
    b.I("v_and_b32", v(CQ), 3, v(LANE))
    b.I("v_bfe_u32", v(DS), v(LANE), 2, 2)
    b.I("v_lshrrev_b32", v(G), 4, v(LANE))
    b.I("v_and_b32", v(GL), 1, v(G))
    b.I("v_lshrrev_b32", v(GH), 1, v(G))
    b.I("s_mov_b32", s(10), WS_BYTES)
    b.I("s_mov_b32", s(11), 0x20000)
    b.I("s_and_b32", s(4), s(2), 7)
    b.I("s_bfe_u32", s(12), s(2), 0x10003)
    b.I("s_lshr_b32", s(5), s(2), 4)
    b.I("s_lshl_b32", s(S_TOK), s(12), 3)
    b.I("s_add_u32", s(S_TOK), s(S_TOK), s(S_W))
    b.I("s_lshl_b32", s(S_R), s(2), 3)
    b.I("s_add_u32", s(S_R), s(S_R), s(S_W))
    b.I("s_mul_i32", s(S_R), s(S_R), 3072)
    b.I("s_add_u32", s(S_R), s(S_R), REC)
    t0, t1 = T, T + 1
    b.I("v_and_b32", v(t0), 0x24, v(LANE))
    b.I("v_lshrrev_b32", v(t1), 1, v(LANE))
    b.I("v_and_b32", v(t1), 12, v(t1))
    b.I("v_or_b32", v(t1), v(t1), v(CQ))
    b.I("v_lshlrev_b32", v(t1), 4, v(t1))
    b.I("v_lshl_add_u32", v(VRE), v(t0), 26, v(t1))
    if mode != 0:
        b.I("v_mul_u32_u24", v(VP), 147456, v(G))
        b.I("v_lshl_add_u32", v(VP), v(DS), 10, v(VP))
        b.I("v_lshl_add_u32", v(VP), v(CQ), 4, v(VP))
        b.I("s_lshl_b32", s(6), s(5), 6)
        b.I("s_add_u32", s(6), s(6), s(4))
        b.I("s_mul_i32", s(6), s(6), 18432)
        b.I("s_add_u32", s(6), s(6), PART)
        b.I("s_lshl_b32", s(7), s(S_TOK), 5)
        b.I("s_add_u32", s(S_PXS), s(6), s(7))
        b.I("s_add_u32", s(S_P), s(S_PXS), s(7))
        b.I("s_add_u32", s(S_PXS), s(S_PXS), 8192)
        b.I("v_and_b32", v(t0), 1, v(DS))
        b.I("v_lshl_add_u32", v(t1), v(t0), 2, v(G))
        b.I("v_mul_u32_u24", v(VPX), 147456, v(t1))
        b.I("v_mul_u32_u24", v(t0), 3, v(t0))
        b.I("v_xor_b32", v(t0), v(t0), v(CQ))
        b.I("v_lshl_add_u32", v(VPX), v(t0), 3, v(VPX))
        b.I("v_lshrrev_b32", v(t0), 1, v(DS))
        b.I("v_mul_u32_u24", v(t0), 9216, v(t0))
        b.I("v_add_u32", v(VPX), v(VPX), v(t0))
    if mode != 1:
        def qaddr():
            b.I("v_and_b32", v(t0), 15, v(LANE))
            b.I("v_lshlrev_b32", v(VQ), 4, v(t0))
            b.I("v_lshl_add_u32", v(VQ), v(GH), 8, v(VQ))
            b.I("v_mul_u32_u24", v(t0), 576, v(GL))
            b.I("v_add_u32", v(VQ), v(VQ), v(t0))
            b.I("v_lshrrev_b32", v(t0), 1, v(DS))
            b.I("v_mul_u32_u24", v(t0), 576, v(t0))
            b.I("v_lshl_add_u32", v(t0), v(CQ), 4, v(t0))
            b.I("v_lshl_add_u32", v(t0), v(GL), 3, v(t0))
            b.I("v_add_u32", v(t0), 512, v(t0))
            b.I("v_and_b32", v(t1), 0x24, v(LANE))
            b.I("v_lshl_add_u32", v(VQE), v(t1), 24, v(t0))
            b.I("s_mov_b32", s(50), S * D * 2)
            b.I("s_mov_b32", s(51), 0x20000)
            b.I("s_lshl_b32", s(S_A), s(5), 3)
            b.I("s_add_u32", s(S_A), s(S_A), s(4))
            b.I("s_lshl_b32", s(S_B), s(S_A), 4)
            b.I("s_add_u32", s(S_B), s(S_B), s(S_TOK))
            b.I("s_mul_i32", s(S_B), s(S_B), 1152)
        if mode == 0:
            qaddr()
            b.I("v_xor_b32", v(t0), v(CQ), v(G))
            b.I("v_lshlrev_b32", v(t0), 4, v(t0))
            b.I("v_lshrrev_b32", v(t1), 2, v(LANE))
            b.I("v_lshl_add_u32", v(VYD), v(t1), 7, v(t0))
            b.I("s_mul_i32", s(S_A), s(S_A), 18432)
            b.I("s_lshl_b32", s(7), s(12), 6)
            b.I("s_add_u32", s(S_A), s(S_A), s(7))
            b.I("s_add_u32", s(S_A), s(S_A), YB)
            b.I("s_lshl_b32", s(7), s(S_W), 11)
            b.I("s_add_u32", s(6), s(S_A), s(7))
            b.I("s_add_u32", s(S_A), s(S_A), 8 * 2048)
            b.I("s_lshl_b32", s(7), s(S_W), 10)
    b.wait(lgkm=0)
    st()
    la = P["laux"]
    if mode == 0:
        b.I("buffer_load_dwordx4", v(RX, 4), v(VQ), IO, s(S_B), mods="offen")
        b.I("buffer_load_dwordx2", v(RE, 2), v(VQE), IO, s(S_B), mods="offen")
        b.I("s_cmp_lg_u32", s(S_W), 0)
        b.I("s_cbranch_scc1", f"{name}_y8")
        b.raw(f"  s_mov_b32 m0, {YS_LDS + 8192}\n  s_nop 0\n  buffer_load_dwordx4 v{VYD}, s[8:11], s{S_A} offen lds")
        b.label(f"{name}_y8")
        b.I("s_add_u32", "m0", s(7), YS_LDS)
        b.I("buffer_load_dwordx4", v(VYD), WS, s(6), mods="offen lds", tag="y")
    elif P.get("exp"):
        b.I("v_lshrrev_b32", v(VP), 5, v(LANE))
        b.I("v_and_b32", v(VPX), 31, v(LANE))
        b.I("v_lshlrev_b32", v(VPX), 4, v(VPX))
        b.I("v_lshl_add_u32", v(VP), v(VP), 10, v(VPX))
        b.I("s_mul_i32", s(6), s(S_W), 147456 - 64)
        b.I("s_add_u32", s(S_P), s(S_P), s(6))
        b.I("s_mul_i32", s(7), s(S_W), 9216)
        for k in range(9):
            b.I("s_add_u32", s(6), s(S_P), k * 2048)
            if P["exp"] == 1:
                b.I("buffer_load_dwordx4", v(PB + 4 * k, 4), v(VP), WS, s(6), mods="offen " + la)
            else:
                b.I("s_add_u32", "m0", s(7), k * 1024)
                b.I("buffer_load_dwordx4", v(VP), WS, s(6), mods="offen " + la + " lds")
        b.I("buffer_load_dwordx4", v(RX, 4), v(0), WS, s(S_R), mods="offen")
        b.I("buffer_load_dwordx2", v(RE, 2), v(0), WS, s(S_R), mods="offen offset:1024")
    else:
        k = 0
        for a_ in range(2):
            for h in range(2):
                for jj in range(2):
                    c = jj * 589824 + a_ * 9216 + h * 4096
                    if c:
                        b.I("s_add_u32", s(6 + (k & 1)), s(S_P), c)
                    b.I("buffer_load_dwordx4", v(PB + 4 * k, 4), v(VP), WS, s(6 + (k & 1)) if c else s(S_P), mods="offen " + la)
                    k += 1
        for h in range(2):
            b.I("buffer_load_dwordx2", v(PB + 32 + 2 * h, 2), v(VPX), WS, s(S_PXS), mods=f"offen offset:{512 * h} " + la)
        b.I("buffer_load_dwordx4", v(RX, 4), v(0), WS, s(S_R), mods="offen")
        if mode == 1:
            b.I("buffer_load_dwordx4", v(RE, 4), v(VRE), WS, s(S_R), mods="offen offset:1024")
            b.I("buffer_load_dwordx4", v(RY, 4), v(0), WS, s(S_R), mods="offen offset:2048")
        else:
            b.I("buffer_load_dwordx2", v(RE, 2), v(VRE), WS, s(S_R), mods="offen offset:1024")
    if P.get("pf") and mode != 2:
        vq = list(b.vmq)
        b.raw(f"  s_cmp_ge_u32 s2, {P['pfn'] * 8}\n  s_cbranch_scc1 {name}_npf")
        pf_code(b, name, *P["pf"])
        b.vmq = vq
        b.label(f"{name}_npf")
    if mode != 2:
        b.I("v_mov_b32", v(7), 0)
        b.I("v_add_u32", v(V_FW), LDS_FX, v(6))
        b.I("ds_write_b32", v(V_FW), v(7))
        xn_setup(b, mode)
    if mode == 2:
        qaddr()
    if mode == 0:
        b.I("s_lshr_b32", s(6), s(S_W), 1)
        b.I("s_and_b32", s(7), s(S_W), 1)
        b.I("s_lshl_b32", s(7), s(7), 3)
        b.I("s_add_u32", s(7), s(7), YS_LDS)
        b.I("v_lshl_add_u32", v(t0), v(CQ), 1, v(GL))
        b.I("v_lshl_add_u32", v(t1), v(DS), 3, v(t0))
        b.I("v_lshl_add_u32", v(t1), v(GH), 5, v(t1))
        b.I("v_bfe_u32", v(YA1), v(t1), 2, 2)
        b.I("v_xor_b32", v(YA1), s(6), v(YA1))
        b.I("v_lshlrev_b32", v(YA1), 4, v(YA1))
        b.I("v_lshl_add_u32", v(YA0), v(t1), 6, v(YA1))
        b.I("v_add_u32", v(YA0), s(7), v(YA0))
        b.I("v_xor_b32", v(YA1), 32, v(YA0))
        b.I("v_lshrrev_b32", v(t1), 1, v(DS))
        b.I("v_mad_u32_u24", v(t1), v(t1), 36, v(CQ))
        b.I("v_lshl_add_u32", v(t1), v(t1), 1, v(GL))
        b.I("v_bfe_u32", v(YAE), v(t1), 2, 2)
        b.I("v_xor_b32", v(YAE), s(6), v(YAE))
        b.I("v_lshlrev_b32", v(YAE), 4, v(YAE))
        b.I("v_lshl_add_u32", v(YAE), v(t1), 6, v(YAE))
        b.I("v_add_u32", v(YAE), s(7), v(YAE))
        b.I("v_mov_b32", v(RE + 2), 0)
        b.I("v_mov_b32", v(RE + 3), 0)
    else:
        b.I("v_and_b32", v(t1), 15, v(LANE))
        b.I("v_mov_b32", v(T + 2), 0x3f80)
        b.I("v_mov_b32", v(T + 3), 0x3f800000)
        for r in range(4):
            for (AR, off) in ((A1, 0), (A2, 8)):
                b.I("v_cmp_eq_u32", "vcc", off + 2 * r, v(t1))
                b.I("v_cndmask_b32", v(AR + r), 0, v(T + 2), "vcc")
                b.I("v_cmp_eq_u32", "vcc", off + 2 * r + 1, v(t1))
                b.I("v_cndmask_b32", v(AR + r), v(AR + r), v(T + 3), "vcc")
        for r in range(4):
            b.I("v_mov_b32", v(T + 12 + r), 0)
        b.I("v_mov_b32", v(T + 10), fhex(OUTSCALE))
    if not P.get("sty"):
        st()
    if mode == 0:
        b.I("v_permlane16_swap_b32", v(RX), v(RX + 2))
        b.I("v_permlane16_swap_b32", v(RX + 1), v(RX + 3))
    else:
        k = 0
        for a_ in range(2):
            for h in range(2):
                for jj in range(2):
                    d = v(LACC + 4 * a_, 4)
                    b.I(MF, d, v(A1 if h == 0 else A2, 4), v(PB + 4 * k, 4), "0" if (h == 0 and jj == 0) else d)
                    k += 1
        b.I(MF, v(LACC + 8, 4), v(A1, 4), v(PB + 32, 4), "0")
    for i in range(4):
        unpack(b, X + 2 * i, RX + i)
    for i in range(2):
        unpack(b, X + 8 + 2 * i, RE + i)
    if mode == 1:
        for i in range(4):
            unpack(b, Y + 2 * i, RY + i)
        for i in range(2):
            unpack(b, Y + 8 + 2 * i, RE + 2 + i)
    if mode != 0:
        SC = T + 10
        for i in range(4):
            b.I("v_pk_fma_f32", v(X + 2 * i, 2), v(LACC + 2 * i, 2), v(SC, 2), v(X + 2 * i, 2), mods="op_sel_hi:[1,0,1]")
        for r in range(4):
            b.I("v_add_f32_dpp", v(T + 12 + r), v(LACC + 8 + r), v(LACC + 8 + r), mods="row_half_mirror row_mask:0x3 bank_mask:0x5")
        for i in range(2):
            b.I("v_pk_fma_f32", v(X + 8 + 2 * i, 2), v(T + 12 + 2 * i, 2), v(SC, 2), v(X + 8 + 2 * i, 2), mods="op_sel_hi:[1,0,1]")
    st()
    if mode == 2:
        for i in range(6):
            b.I("v_cvt_pk_bf16_f32", v(RX + i), v(X + 2 * i), v(X + 2 * i + 1))
        b.I("v_permlane16_swap_b32", v(RX), v(RX + 2))
        b.I("v_permlane16_swap_b32", v(RX + 1), v(RX + 3))
        b.I("buffer_store_dwordx4", v(RX, 4), v(VQ), IO, s(S_B), mods="offen")
        b.I("buffer_store_dwordx2", v(RE, 2), v(VQE), IO, s(S_B), mods="offen")
        b.wait_all()
        tl.end(b)
        return st
    ln_math(b, mode, P, st)
    return st


def ln_math(b, mode, P, st):
    R, B = stats(b)
    if P.get("sty") == 1:
        st()
    if mode == 0:
        b.wait_tag_vm("y")
    if P.get("sty") == 2:
        st()
    if mode == 0:
        b.barrier()
        b.I("ds_read_b64", v(RY, 2), v(YA0))
        b.I("ds_read_b64", v(RY + 2, 2), v(YA1), mods=f"offset:{72 * 64}")
        b.I("s_mov_b64", "exec", VALID)
        b.I("ds_read_b64", v(RE + 2, 2), v(YAE), mods=f"offset:{64 * 64}")
        b.I("s_mov_b64", "exec", -1)
    for i in range(6):
        b.I("v_pk_fma_f32", v(LACC + 2 * i, 2), v(X + 2 * i, 2), v(R, 2), v(B, 2), mods="op_sel_hi:[1,0,0]")
    if mode == 0:
        for i in range(4):
            unpack(b, Y + 2 * i, RY + i)
        for i in range(2):
            unpack(b, Y + 8 + 2 * i, RE + 2 + i)
    for i in range(6):
        b.I("v_pk_fma_f32", v(X + 2 * i, 2), v(LACC + 2 * i, 2), v(Y + 2 * i, 2), v(X + 2 * i, 2))
    for i in range(6):
        b.I("v_cvt_pk_bf16_f32", v(RX + i), v(X + 2 * i), v(X + 2 * i + 1))
    ra = P["raux"]
    if P["rec"] == 0:
        b.I("buffer_store_dwordx4", v(RX, 4), v(0), WS, s(S_R), mods="offen " + ra)
        b.I("buffer_store_dwordx4", v(RE, 4), v(VRE), WS, s(S_R), mods="offen offset:1024 " + ra)
    if mode == 0:
        b.I("buffer_store_dwordx4", v(RY, 4), v(0), WS, s(S_R), mods="offen offset:2048 " + ra)
    R, B = stats(b, scale=ALPHA)
    for i in range(6):
        b.I("v_pk_fma_f32", v(LACC + 2 * i, 2), v(X + 2 * i, 2), v(R, 2), v(B, 2), mods="op_sel_hi:[1,0,0]")
    for i in range(6):
        b.I("v_cvt_pk_bf16_f32", v(XO + i), v(LACC + 2 * i), v(LACC + 2 * i + 1))
    b.I("v_permlane16_swap_b32", v(XO), v(XO + 2))
    b.I("v_permlane16_swap_b32", v(XO + 1), v(XO + 3))
    b.I("s_mov_b64", "exec", VALID)
    b.I("ds_write_b64", v(VXE), v(XO + 4, 2))
    b.I("s_mov_b64", "exec", -1)
    b.I("ds_write_b128", v(VXW), v(XO, 4))
    b.wait(lgkm=0)
    st()


def publish(b, name, P):
    b.barrier()
    if P.get("zpub"):
        b.I("v_mov_b32", v(7), 0)
        b.I("ds_write_b32", v(V_FW), v(7))
        b.I("v_mov_b32", v(8), 0)
        b.I("v_mov_b32", v(9), 0)
        b.I("v_mov_b32", v(10), 0)
        b.I("v_mov_b32", v(11), 0)
        b.I("v_mov_b32", v(6), P["zpub"])
        b.I("ds_write_b128", v(6), v(8, 4))
    b.I("ds_read_b128", v(XO, 4), v(VXR))
    b.raw(f"""  s_cmp_lg_u32 s{S_W}, 0
  s_cbranch_scc1 {name}_n8
  ds_read_b128 v[{XO + 4}:{XO + 7}], v{VXR} offset:8192
  s_add_u32 s6, s{S_XS}, {8 * 16384}
  s_waitcnt lgkmcnt(0)
  buffer_store_dwordx4 v[{XO + 4}:{XO + 7}], v{VXS}, s[8:11], s6 offen sc1
{name}_n8:""")
    b.I("buffer_store_dwordx4", v(XO, 4), v(VXS), WS, s(S_XS), mods="offen sc1", tag="xn")
    if P["rec"] >= 1:
        ra = P["raux"]
        if P["rec"] == 2:
            b.barrier()
        b.I("buffer_store_dwordx4", v(RX, 4), v(0), WS, s(S_R), mods="offen " + ra)
        b.I("buffer_store_dwordx4", v(RE, 4), v(VRE), WS, s(S_R), mods="offen offset:1024 " + ra)
    b.wait_tag_vm("xn")
    if P["stamps"] and not P.get("body"):
        b.I("s_memtime", s(70, 2))
    b.barrier()
    b.raw(f"""  s_cmp_lg_u32 s{S_W}, 0
  s_cbranch_scc1 {name}_nf
  v_mov_b32 v{V_T}, 0
  v_mov_b32 v{V_Z}, 1
  s_mov_b64 exec, 1
  buffer_store_dword v{V_Z}, v{V_T}, s[8:11], s{S_XFO} offen sc1
  s_mov_b64 exec, -1
{name}_nf:""")
    ffn_setup(b)


class Tail:
    def __init__(self, name, P):
        self.name, self.P, self.k = name, P, 0


    def handoff(self, b, role, slow, P):
        nm = f"{self.name}_{role}_h"
        if role == "A":
            pass
        elif P["npoll"] > 1:
            NPL = P["npoll"]
            R0 = 232
            ld = lambda i: f"  buffer_load_dword v{R0 + i}, v{V_T}, s[8:11], s{S_XFG} offen sc1\n"
            txt = f"""  s_cmp_lg_u32 s{S_W}, 4
  s_cbranch_scc1 {nm}_np
  v_lshlrev_b32 v{V_T}, 3, v0
  s_mov_b64 exec, 0xffff
  s_mov_b32 s{S_CNT}, 0x20000
"""
            for i in range(NPL - 1):
                txt += ld(i) + f"  s_sleep {P['psl']}\n"
            txt += f"{nm}_pl:\n"
            for i in range(NPL):
                txt += ld((i + NPL - 1) % NPL) + f"""  s_waitcnt vmcnt({NPL - 1})
  v_cmp_eq_u32 vcc, 0, v{R0 + i}
  s_cbranch_vccz {nm}_pe
  s_sleep {P['psl']}
"""
            txt += f"""  s_sub_u32 s{S_CNT}, s{S_CNT}, 1
  s_cbranch_scc0 {nm}_pl
{nm}_pe:
  s_mov_b64 exec, -1
{nm}_np:"""
            b.raw(txt)
        else:
            b.raw(f"""  s_cmp_lg_u32 s{S_W}, 4
  s_cbranch_scc1 {nm}_np
  v_lshlrev_b32 v{V_T}, 3, v0
  s_mov_b64 exec, 0xffff
  s_mov_b32 s{S_CNT}, 0x40000
{nm}_pl:
  buffer_load_dword v{V_Z}, v{V_T}, s[8:11], s{S_XFG} offen sc1
  s_waitcnt vmcnt(0)
  v_cmp_eq_u32 vcc, 0, v{V_Z}
  s_cbranch_vccz {nm}_pe
  s_sleep {P["psl"]}
  s_sub_u32 s{S_CNT}, s{S_CNT}, 1
  s_cbranch_scc0 {nm}_pl
{nm}_pe:
  s_mov_b64 exec, -1
{nm}_np:""")
        b.barrier()


LDEF = dict(rec=2, npoll=1, laux="", raux="sc1", pf=None, pfn=9, stbase=60, stn0=6)


def k_ffl(n0, n1, **kw):
    P = dict(DEF)
    P.update(LDEF)
    P.update(kw)
    if P.get("body"):
        P["stn0"] = 1
    b = AB()
    name = "ffl"
    ln_phase(b, n0, 0, P, f"{name}_end")
    b.I("s_branch", f"{name}_pub")
    b.hist, b.vmq, b.lgq = [], [], []
    ln_phase(b, n1, 1, P, f"{name}_end")
    b.vmq, b.lgq = [], []
    b.label(f"{name}_pub")
    publish(b, name, P)
    b.I("s_cmp_ge_u32", s(S_W), 4)
    b.I("s_cbranch_scc1", f"{name}_B")
    b.label(f"{name}_A")
    snap = b.snapshot()
    tail = Tail(name, P)
    ffn_role(b, "A", P, name, tail)
    b.restore(snap)
    b.raw(".p2align 6")
    b.label(f"{name}_B")
    ffn_role(b, "B", P, name, tail)
    b.label(f"{name}_end")
    b.I("s_endpgm")
    return b


def k_lnz(name, **kw):
    P = dict(DEF)
    P.update(LDEF)
    P.update(kw)
    b = AB()
    ln_phase(b, name, 2, P, f"{name}_end")
    b.label(f"{name}_end")
    b.I("s_endpgm")
    return b
```

```python
from ab import *
from lay import *
import tl

MF = "v_mfma_f32_16x16x32_bf16"
LDS_FX = 147456
FFN3_LDS = LDS_FX + 2048

DEF = dict(
    xring=6, space=True, mergew=True,
    a0w=0, a0w2=0, a1w=0, xpre=1, pace0=4, wpg0=3, wpg=1, bwk=14, la0=lambda gi: 99,
    xfly0=3, xfly=1, xprio=3,
    xw=12, b0w=8,
    bx0=4, bxr=0,
    nprio=1, fprioB=0,
    xchk=list(range(2, 19)),
    gate=9,
    knm=4,
    stamps=False,
    stampsteps=[],
    aux="sc1",
    a_plan=[("k", "oA", 0, 8), ("k", "pM", 0, 4), ("k", "oB", 0, 4), ("k", "pM", 4, 8), ("k", "pQ", 0, 8),
            ("k", "oB", 4, 8), ("n", "pB", 0, 8)],
    d0=1, dper=3, nw0=4, ap0=5,
    ap1=7, b2=False, b3=False, ringA=2, ringB=4, aprio=2, gprioA=0, pprioA=0, bprio=1, laX=8,
    evB=[(14, "P1")],
    evA=[(-1, "qr"), (1, "qs"), (2, "d0"), (16, "P1"), (24, "w0"), (26, "p1"), (32, "d1"), (56, "w1"), (60, "p2"), (66, "d2"), (92, "w2"),
         (106, "p3"), (112, "D3"), (124, "w3")],
    b_plan=[("k", "oA pM pQ", 0, 8), ("n", "oB pB", 0, 8)],
    laA=12, laB=16,
    delay=3,
    gdelay=2,
    xaux="sc1", preA=5, preB=0, psl=1,
    gper=4,
    bp0=6,
    bp1=40,
)


class Stamps:
    def __init__(self, b, on, base=40):
        self.b, self.on, self.n, self.base = b, on, 0, base
        self.gmode = False

    def __call__(self, g=False):
        if self.on and (g or not self.gmode or self.n == 0) and self.base + 2 * self.n <= 80:
            self.b.I("s_memtime", s(self.base + 2 * self.n, 2))
            self.n += 1


def gelu_thunks(b, tiles, temps):
    out = []
    I = lambda *a: out.append(lambda: b.I(*a))
    G = 2
    for i in range(0, len(tiles), G):
        grp = tiles[i:i + G]
        vals = []
        for j, (ab_, dst) in enumerate(grp):
            vals.append((ab_, ab_ + 2, temps[(2 * j) % len(temps)]))
            vals.append((ab_ + 1, ab_ + 3, temps[(2 * j + 1) % len(temps)]))
        for g, u, t in vals:
            I("v_fmaak_f32", v(t), v(g), v(g), fhex(KP))
        for g, u, t in vals:
            I("v_mul_f32", v(u), v(g), v(u))
        for g, u, t in vals:
            I("v_mul_f32", v(g), v(t), v(g))
        for g, u, t in vals:
            I("v_exp_f32_e64", v(g), "-" + v(g))
        for g, u, t in vals:
            I("v_add_f32", v(g), "1.0", v(g))
        for g, u, t in vals:
            I("v_rcp_f32", v(g), v(g))
        for g, u, t in vals:
            I("v_mul_f32", v(u), v(u), v(g))
        for (ab_, dst) in grp:
            I("v_cvt_pk_bf16_f32", v(dst), v(ab_ + 2), v(ab_ + 3))
    return out


S_W = 3
S_GU, S_GUX = 20, 21
S_DO, S_DOX, S_DP, S_DPX = 22, 23, 32, 33
S_XG, S_XL = 24, 25
S_PM, S_PX = 26, 27
S_T0, S_T1, S_T2 = 28, 29, 30
S_HO, S_HP = 34, 35
S_HOX, S_HPX = 36, 37
S_FO, S_FP = 38, 39
S_CNT = 31
S_PMH, S_H4 = 16, 17
S_W8 = 18
VL = [0, 1, 2]
VS, VS2 = 3, 255
V_HW, V_HWX = 252, 253
V_FR, V_FW = 254, 251
V_F = 250
V_Z = 249
V_T = 248

KS = {"oA": [("o", k) for k in (0, 1, 2, 3, 8)], "pM": [("p", k) for k in (0, 1, 2, 3)], "pQ": [("p", 8)],
      "oB": [("o", k) for k in (4, 5, 6, 7)], "pB": [("p", k) for k in (4, 5, 6, 7)]}


def slot_of(side, k):
    if k < 4 or k == 8:
        return (0 if side == "o" else 5) + (k if k < 4 else 4)
    return (6 if side == "o" else 10) + k


def ffn_role(b, role, P, name, late_setup):
    A = role == "A"
    NT = 5 if A else 4
    XR = 4
    NX = P["xring"]
    WR = XR + 4 * NX
    NW = 15
    ACC = WR + 4 * NW
    assert ACC + 160 <= 248, ACC
    acc = lambda t, n: ACC + (t * 8 + n) * 4
    temps = [XR, XR + 1, XR + 2, XR + 3] if A else [acc(4, 7) + i for i in range(4)]
    st = Stamps(b, P["stamps"], base=P.get("stbase", 40))
    st.n = P.get("stn0", 0)
    st.gmode = bool(P.get("sg"))
    SRD = s(8, 4)
    aux = P["aux"]
    slow = []
    KNM = P["knm"]
    K0 = 18 - KNM
    assert K0 >= 14
    psig = sorted(set([4, 9, 13, P["gate"]]))
    bval = {k: 19 + i for i, k in enumerate(psig)}
    B_H = [19 + len(psig), 20 + len(psig)]
    def req_of(cls, n):
        return {"oA": ("A", 3), "pM": ("A", 4 + n // 4), "pQ": ("A", 5), "oB": ("B", B_H[n // 4]),
                "pB": (("B", B_H[1] + 1) if P["b2"] else ("A", 6)) if n < 4 else (("B", B_H[1] + 2) if P["b3"] else ("A", 7))}[cls]

    groups = []
    wdef = {}
    cover = lambda ks: min(x for x in P["xchk"] if x >= ks + 1)
    for ks in range(18):
        for t in range(4):
            wdef[("g", ks, t)] = (S_GU, ks * 4096, t * 1024)
        if A:
            wdef[("g", ks, 4)] = (S_GUX, ks * 4096, 0)

    def p1_group(ks, n):
        return dict(b=(ks * 8 + n) * 1024, req=("A", 1) if ks == 0 else ("B", cover(ks) if A else (4 if ks < 4 else 18)), p2=False,
                    mf=[(acc(t, n), ("g", ks, t), ks == 0) for t in range(NT)], tag=("p1", ks, n))
    if A:
        for ks in range(18):
            for n in range(8):
                groups.append(p1_group(ks, n))
    else:
        for ks in range(K0):
            for n in range(8):
                groups.append(p1_group(ks, n))
        for n in range(8):
            for ks in range(K0, 18):
                groups.append(p1_group(ks, n))
    NP1 = len(groups)

    VP2 = acc(3, 6)

    def p2_w(side, kp):
        sm, sx = (S_DO, S_DOX) if side == "o" else (S_DP, S_DPX)
        for h in range(2):
            wdef[("d", side, kp, h)] = (sm, kp * 36 * 1024, h * 1024)
        if A:
            wdef[("d", side, kp, 2)] = (sx, kp * 36 * 1024, 0)

    cnt = {n: 0 for n in range(8)}
    marks = {}

    def p2_group(cls, side, kp, n):
        first = cnt[n] == 0
        cnt[n] += 1
        mf = [(acc(h, n), ("d", side, kp, h), first) for h in range(2)]
        if A and n % 2 == 0:
            mf.append((acc(2, n // 2), ("d", side, kp, 2), first))
        groups.append(dict(b=(slot_of(side, kp) * 8 + n) * 1024, req=req_of(cls, n), p2=True, mf=mf,
                           tag=("p2", n, cnt[n] == 18), n=n))

    for c in KS:
        for (sd, k) in KS[c]:
            p2_w(sd, k)
    for seg in P["a_plan" if A else "b_plan"]:
        if isinstance(seg, str):
            marks.setdefault(len(groups), []).append(seg)
            continue
        mode, cl, n0, n1 = seg
        ks_ = [(c, sd, k) for c in cl.split() for (sd, k) in KS[c]]
        if mode == "k":
            for (c, sd, k) in ks_:
                for n in range(n0, n1):
                    p2_group(c, sd, k, n)
        else:
            for n in range(n0, n1):
                for (c, sd, k) in ks_:
                    p2_group(c, sd, k, n)
    assert all(c == 18 for c in cnt.values())

    wseq, last_use = [], {}
    for gi, g in enumerate(groups):
        for mi, (_, wk, _) in enumerate(g["mf"]):
            if wk not in last_use:
                wseq.append(wk)
            last_use[wk] = (gi, mi)
    wslot, bslot = {}, {}
    wfree = [WR + 4 * i for i in range(NW)]
    if not A:
        wfree += [acc(4, n) for n in range(7)]
    bfree = [XR + 4 * i for i in range(NX)]
    stt = dict(wi=0, bi=0, gi=0, lastsb=None, stmp=0, flagrd=None, nslow=0, own=0, blim=NP1, la=99)
    passed = {"A": 0, "B": 0}
    deferred = []
    pend = []
    events = {}
    bextra = []

    used = set()

    def issue_w(force=False):
        if stt["wi"] >= len(wseq) or not wfree:
            return False
        if not force and stt["wi"] - len(used) >= stt["la"]:
            return False
        wk = wseq[stt["wi"]]
        sb, c, imm = wdef[wk]
        if stt["lastsb"] != (sb, c):
            stt["stmp"] ^= 1
            b.I("s_add_u32", s(S_T0 + stt["stmp"]), s(sb), c)
            stt["lastsb"] = (sb, c)
        r = wfree.pop(0)
        wslot[wk] = r
        if role in P.get("ablW", "") and wk[0] == "g" and wk[1] >= 4:
            stt["wi"] += 1
            return True
        b.I("buffer_load_dwordx4", v(r, 4), v(VL[0]), SRD, s(S_T0 + stt["stmp"]), mods=f"offen offset:{imm}")
        stt["wi"] += 1
        return True

    def issue_x(ks):
        if ks > 17:
            return
        b.I("s_add_u32", "m0", s(S_XL), ks * 8192)
        b.I("s_add_u32", s(S_T2), s(S_XG), ks * 8192)
        b.I("buffer_load_dwordx4", v(VL[0]), SRD, s(S_T2), mods=f"offen {P['xaux']} lds", tag=("x", ks))
        b.I("buffer_load_dwordx4", v(VL[0]), SRD, s(S_T2), mods=f"offen offset:1024 {P['xaux']} lds", tag=("x", ks))

    def signal(val):
        b.I("v_mov_b32", v(V_T), val)
        b.I("ds_write_b32", v(V_FW), v(V_T))
        stt["own"] = val

    def read_flag(grp):
        b.I("ds_read_b32", v(V_F), v(V_FR), mods=f"offset:{0 if grp == 'A' else 1024}")
        stt["flagrd"] = grp

    def ensure(grp, thr, sleep=0):
        if passed[grp] >= thr:
            return
        if grp == role:
            assert stt["own"] >= thr, (role, grp, thr, stt["own"])
        if stt["flagrd"] != grp:
            read_flag(grp)
        stt["flagrd"] = None
        i = stt["nslow"]
        stt["nslow"] += 1
        lab = f"{name}_{role}_x{i}"
        off = 0 if grp == "A" else 1024
        b.I("v_cmp_gt_u32", "vcc", thr, v(V_F))
        b.I("s_cbranch_vccnz", lab + "s")
        b.label(lab + "r")
        sl = f"  s_sleep {sleep}\n" if sleep else ""
        slow.append(f"{lab}s:\n  s_mov_b32 s{S_CNT}, 0x100000\n{lab}l:\n{sl}  ds_read_b32 v{V_F}, v{V_FR} offset:{off}\n  s_waitcnt lgkmcnt(0)\n"
                    f"  v_cmp_gt_u32 vcc, {thr}, v{V_F}\n  s_cbranch_vccz {lab}r\n  s_sub_u32 s{S_CNT}, s{S_CNT}, 1\n"
                    f"  s_cbranch_scc0 {lab}l\n  s_branch {lab}r")
        passed[grp] = thr

    def lim():
        return min([stt["blim"]] + [g for g in marks if g > stt["gi"] or (g == stt["gi"] and not stt.get("evdone") == g)])

    def issue_b():
        if stt["bi"] >= lim() or not bfree:
            return False
        g = groups[stt["bi"]]
        ensure(*g["req"], sleep=1 if g["p2"] else 0)
        sl = bfree.pop(0)
        bslot[stt["bi"]] = sl
        addr = g["b"]
        base = VL[addr >> 16]
        if A and g["p2"]:
            base = VP2 + (addr >> 16) + (3 if g["n"] % 2 else 0)
        if not (role in P.get("ablB", "") and not g["p2"] and g["tag"][1] >= 4):
            b.I("ds_read_b128", v(sl, 4), v(base), mods=f"offset:{addr & 0xffff}")
        stt["bi"] += 1
        if stt["bi"] < lim():
            gr, th = groups[stt["bi"]]["req"]
            if passed[gr] < th:
                read_flag(gr)
        return True

    def tick():
        for d in deferred:
            d[0] -= 1
        while deferred and deferred[0][0] <= 0:
            deferred.pop(0)[1]()
        tg = P.get("tog") and not A and pend
        if tg:
            b.I("s_setprio", P["tog"][0])
        for i in range(P["gper"]):
            if pend:
                pend.pop(0)()
        if tg:
            b.I("s_setprio", P["tog"][1])

    def flush_deferred():
        while deferred or pend:
            while pend:
                pend.pop(0)()
            if deferred:
                deferred.pop(0)[1]()

    def out_n(n):
        def fn():
            b.I("s_add_u32", s(S_T2), s(S_PM if n % 2 == 0 else S_PMH), n * 18432)
            e, o = acc(0, n), acc(1, n)
            b.I("v_cvt_pk_bf16_f32", v(e), v(e), v(e + 1))
            b.I("v_cvt_pk_bf16_f32", v(e + 1), v(e + 2), v(e + 3))
            b.I("v_cvt_pk_bf16_f32", v(e + 2), v(o), v(o + 1))
            b.I("v_cvt_pk_bf16_f32", v(e + 3), v(o + 2), v(o + 3))
            b.I("buffer_store_dwordx4", v(e, 4), v(VS), SRD, s(S_T2), mods=f"offen {aux}")
            if A and n % 2 == 0:
                e = acc(2, n // 2)
                b.I("s_add_u32", s(S_T2), s(S_PX), n * 18432)
                b.I("v_cvt_pk_bf16_f32", v(e), v(e), v(e + 1))
                b.I("v_cvt_pk_bf16_f32", v(e + 1), v(e + 2), v(e + 3))
                b.I("buffer_store_dwordx2", v(e, 2), v(VS2), SRD, s(S_T2), mods=f"offen {aux}")
        return fn

    def hstore(n):
        if P.get("nohst"):
            return
        b.I("s_add_u32", s(S_T2), s(S_HO), (n // 4) * 4096)
        b.I("buffer_store_dwordx4", v(acc(0, n), 4), v(VL[0]), SRD, s(S_T2), mods=f"offen offset:{(n % 4) * 1024} sc1", tag=("h", n // 4))

    def b_gelu(n):
        def fn():
            pend.extend(gelu_thunks(b, [(acc(t, n), acc(0, n) + t) for t in range(4)], temps))
            pend.append(lambda: hstore(n))

            def wr():
                ensure("A", 2)
                ensure("B", bval[13])
                b.I("ds_write_b128", v(V_HW), v(acc(0, n), 4), mods=f"offset:{n * 1024}")
                if 2 * (7 - n) < P["ringB"]:
                    bextra.extend([acc(2, n), acc(3, n)])
                else:
                    wfree.extend([acc(2, n), acc(3, n)])
                if n == 3:
                    signal(B_H[0])
                if n == P["bp0"]:
                    st()
                    publish(0)
                    st()
                if n in (0, 3):
                    st()
            pend.append(wr)
        return fn

    def run_groups(end):
        while stt["gi"] < end:
            gi = stt["gi"]
            g = groups[gi]
            tag = g["tag"]
            if P.get("sg") and gi >= NP1 - (0 if A else 32) and (gi - NP1) % P["sg"] == 0:
                st(True)
            for fn in events.get(gi, []):
                fn()
            if gi in marks:
                stt["evdone"] = gi
                while issue_b():
                    pass
            while gi not in bslot:
                assert issue_b(), (role, gi, tag)
            nm = len(g["mf"])
            wcnt = 0
            if A and gi < NP1:
                stt["la"] = P["la0"](gi)
            if P["mergew"] and gi > 0 and all(wk in wslot for _, wk, _ in g["mf"]):
                regs = {("v", wslot[wk] + i) for _, wk, _ in g["mf"] for i in range(4)} | {("v", bslot[gi] + i) for i in range(4)}
                b.wait_regs(regs)
            for mi, (ar, wk, first) in enumerate(g["mf"]):
                while wk not in wslot:
                    assert issue_w(True), (role, gi, wk)
                d = v(ar, 4)
                b.I(MF, d, v(wslot[wk], 4), v(bslot[gi], 4), "0" if first else d)
                used.add(wk)
                if last_use[wk] == (gi, mi):
                    wfree.append(wslot[wk])
                if mi == nm - 1:
                    bfree.append(bslot[gi])
                if P["space"]:
                    wok = wcnt < (P["wpg0"] if gi < P["pace0"] else P["wpg"]) and mi >= 1
                    if (mi < nm - 1 or len(bfree) >= 2) and issue_b():
                        pass
                    elif wok and (mi < nm - 1 or nm < 4) and issue_w():
                        wcnt += 1
                else:
                    if last_use[wk] == (gi, mi):
                        issue_w()
                tick()
            if not P["space"]:
                while issue_b():
                    pass
                issue_w()
            if tag[0] == "p1":
                if not A and tag[2] == 7 and tag[1] in bval:
                    signal(bval[tag[1]])
                if not A and tag[2] == 7 and tag[1] == K0 - 1:
                    b.I("s_setprio", P["nprio"])
                    stt["la"] = P["laB"]
                if not A and tag[1] == 17:
                    deferred.append([P["gdelay"], b_gelu(tag[2])])
                if tag[2] == 7 and tag[1] in P["stampsteps"]:
                    st()
            if dq and gi % P["dper"] == 0:
                dq.pop(0)[1]()
            if tag[0] == "p2" and tag[2]:
                deferred.append([P["delay"], out_n(tag[1])])
            stt["gi"] = gi + 1

    def publish(half):
        b.wait_tag_vm(("h", half))
        b.I("v_mov_b32", v(V_T), 0)
        b.I("v_mov_b32", v(V_Z), 1)
        b.I("buffer_store_dword", v(V_Z), v(V_T), SRD, s(S_FO), mods=f"offen offset:{4 * half} sc1")

    FOFF = [0, 4, 128, 132]

    def poll_issue(which):
        b.I("v_mov_b32", v(V_T), 0)
        b.I("buffer_load_dword", v(V_Z), v(V_T), SRD, s(S_FP), mods=f"offen offset:{FOFF[which]} sc1")

    def poll_check(which):
        lab = f"{name}_{role}_poll{which}"
        b.I("v_cmp_eq_u32", "vcc", 0, v(V_Z))
        b.I("s_cbranch_vccnz", lab + "s")
        b.label(lab + "r")
        slow.append(f"{lab}s:\n  s_mov_b32 s{S_CNT}, 0x100000\n  v_mov_b32 v{V_T}, 0\n{lab}l:\n"
                    f"  buffer_load_dword v{V_Z}, v{V_T}, s[8:11], s{S_FP} offen offset:{FOFF[which]} sc1\n  s_waitcnt vmcnt(0)\n"
                    f"  v_cmp_eq_u32 vcc, 0, v{V_Z}\n  s_cbranch_vccz {lab}r\n  s_sleep 1\n  s_sub_u32 s{S_CNT}, s{S_CNT}, 1\n"
                    f"  s_cbranch_scc0 {lab}l\n  s_branch {lab}r")

    dq = []

    def dma_batch(bt):
        lb, gb = (5 * 8192, 0) if bt < 2 else (14 * 8192, 5 * 8192)
        q = bt % 2
        tag = ("hp", bt)

        def one(i):
            b.I("s_add_u32", "m0", s(S_W8), lb + q * 4096)
            b.I("s_add_u32", s(S_T2), s(S_HP), gb + q * 4096)
            b.I("buffer_load_dwordx4", v(VL[0]), SRD, s(S_T2), mods=f"offen offset:{i * 1024} sc1 lds", tag=tag)

        def quad(i):
            b.I("s_add_u32", "m0", s(S_XL), 9 * 8192)
            b.I("buffer_load_dwordx4", v(VL[0]), SRD, s(S_HPX), mods=f"offen offset:{i * 1024} sc1 lds", tag=tag)
        for i in range(4):
            dq.append((bt, lambda i=i: one(i)))
        if bt == 1:
            for i in range(2):
                dq.append((bt, lambda i=i: quad(i)))

    def dma_partner(bt, now=None):
        ensure("B", [bval[9], bval[9], B_H[0], B_H[1]][bt], sleep=1)
        dma_batch(bt)
        for i in range(P["d0"] if now is None else now):
            if dq:
                dq.pop(0)[1]()

    def lim_for(thr):
        return next((i for i in range(NP1, len(groups)) if groups[i]["req"][0] == "A" and groups[i]["req"][1] >= thr), len(groups))

    def limB(thr):
        return next((i for i in range(NP1, len(groups)) if groups[i]["req"][0] == "B" and groups[i]["req"][1] >= thr), len(groups))

    def dma_done(bt):
        while dq and dq[0][0] <= bt:
            dq.pop(0)[1]()
        b.wait_tag_vm(("hp", bt))
        if A:
            signal(4 + bt)
            stt["blim"] = lim_for(5 + bt)
        else:
            signal(B_H[1] + bt - 1)
            stt["blim"] = limB(B_H[1] + bt)
        st()

    tail = late_setup
    if A:
        for j in range(P["preA"]):
            issue_w()
    else:
        stt["la"] = P["laX"]
        for j in range(P["preB"]):
            issue_w(True)
    st()
    if A:
        b.I("s_setprio", 3)
    tail.handoff(b, role, slow, P)
    st()
    if hasattr(tail, "after"):
        tail.after()
    if A:
        issue_x(0)
        b.I("s_setprio", P["aprio"])
        for j in range(P["a0w"]):
            issue_w()
        b.wait_tag_vm(("x", 0))
        if P.get("st0"):
            st()
        signal(1)
        while issue_b():
            pass
        for j in range(P["a1w"]):
            issue_w()
    else:
        xsig = sorted(set(x - 1 for x in P["xchk"]) | {3})
        nx = 1 + P["xfly0"]
        for k in range(1, nx):
            issue_x(k)
            if k == 1:
                b.I("s_setprio", P["xprio"])
        stt["blim"] = 32
        stt["la"] = P["laX"]
        for k in range(1, 18):
            b.wait_tag_vm(("x", k))
            if P.get("st0") and k < 6:
                st()
            if k in xsig:
                signal(k + 1)
            for j in range(2):
                if nx < min(18, k + 1 + P["xfly"]):
                    issue_x(nx)
                    nx += 1
            if k >= P["bwk"]:
                issue_w(True)
            if k >= P["bx0"]:
                run_groups(min(30, int((k + 1 - P["bx0"]) * P["bxr"])))
        b.I("s_setprio", P["bprio"])
        stt["la"] = 99
        stt["blim"] = NP1
        st()
        while issue_b():
            pass
    st()
    run_groups(NP1)
    if A:
        signal(2)
        b.I("s_setprio", P["gprioA"])
        stt["la"] = P["laA"]
        st()
        while issue_w():
            pass
        wrn = 0
        for n in range(8):
            tiles = [(acc(t, n), acc(0, n) + t) for t in range(4)] + [(acc(4, n), acc(4, 4 * (n // 4)) + n % 4)]
            th = gelu_thunks(b, tiles, temps)
            for i, f in enumerate(th):
                if n == P["nw0"] and i == 20:
                    read_flag("A")
                if n == P["nw0"] and i == 40:
                    ensure("A", 2)
                    read_flag("B")
                f()
            if n == P["ap1"]:
                poll_issue(0)
            hstore(n)
            if n >= P["nw0"]:
                ensure("B", bval[4], sleep=1)
                while wrn <= n:
                    b.I("ds_write_b32", v(V_HWX), v(acc(4, 4 * (wrn // 4)) + wrn % 4), mods=f"offset:{wrn * 1024}")
                    b.I("ds_write_b128", v(V_HW), v(acc(0, wrn), 4), mods=f"offset:{wrn * 1024}")
                    wrn += 1
            if n == P["ap0"]:
                publish(0)
        signal(3)
        st()
        for i in range(3):
            b.I("v_add_u32", v(VP2 + i), s(S_H4), v(VL[i]))
            b.I("v_subrev_u32", v(VP2 + 3 + i), s(S_H4), v(VL[i]))
        b.I("v_add_u32", v(VP2 + 6), s(S_XL), v(VL[0]))
        ex = [acc(2, 4) + 4 * i for i in range(10)] + [acc(4, n) for n in range(6)]
        bfree.extend(ex[:P["ringA"]])
        wfree.extend(ex[P["ringA"]:])

        def q_read():
            ensure("A", 3)
            for i in range(2):
                b.I("ds_read_b128", v(acc(4, 6 + i), 4), v(VP2 + 6), mods=f"offset:{4 * 8192 + i * 1024}")

        def q_store():
            for i in range(2):
                b.I("buffer_store_dwordx4", v(acc(4, 6 + i), 4), v(VL[0]), SRD, s(S_HOX), mods=f"offen offset:{i * 1024} sc1", tag=("h", 1))
            wfree.extend([acc(4, 6), acc(4, 7)])
        mk = {"P1": lambda: publish(1), "qr": q_read, "qs": q_store}
        for pr in range(4):
            mk[f"r{pr}"] = lambda pr=pr: b.I("s_setprio", pr)
        for bt in range(4):
            mk[f"p{bt}"] = lambda bt=bt: poll_issue(bt)
            mk[f"d{bt}"] = lambda bt=bt: (poll_check(bt), dma_partner(bt), st())
            mk[f"D{bt}"] = lambda bt=bt: (poll_check(bt), dma_partner(bt, 6), st())
            mk[f"w{bt}"] = lambda bt=bt: dma_done(bt)
        for e, m in P["evA"]:
            if e == -1:
                mk[m]()
            else:
                events.setdefault(NP1 + e, []).append(mk[m])
        for gi, ms in marks.items():
            for m in ms:
                events.setdefault(gi, []).append(mk[m])
        ensure("B", bval[P["gate"]], sleep=2)
        st()
        stt["blim"] = lim_for(4)
        b.I("s_setprio", P["pprioA"])
    else:
        st()
        if P.get("flprio") is not None:
            b.I("s_setprio", P["flprio"])
        flush_deferred()
        signal(B_H[1])
        bfree.extend(bextra + [acc(4, 7)])
        b.I("s_setprio", P["fprioB"])
        st()
        stt["blim"] = limB(B_H[1] + 1)
        mk = {"P1": lambda: (publish(1), st())}
        for bt in (2, 3):
            mk[f"p{bt}"] = lambda bt=bt: poll_issue(bt)
            mk[f"d{bt}"] = lambda bt=bt: (poll_check(bt), dma_partner(bt), st())
            mk[f"w{bt}"] = lambda bt=bt: dma_done(bt)
        for pr in range(4):
            mk[f"r{pr}"] = lambda pr=pr: b.I("s_setprio", pr)
        for e, m in P["evB"]:
            events.setdefault(NP1 + e, []).append(mk[m])
    while issue_b():
        pass
    run_groups(len(groups))
    flush_deferred()
    if hasattr(tail, "finish"):
        tail.finish(b, role)
        for t in slow:
            b.raw(t)
        return
    if P["stamps"]:
        st(True)
        b.wait_all()
        st(True)
        b.wait_all()
        b.I("s_lshl_b32", s(28), s(2), 3)
        b.I("s_add_u32", s(28), s(28), s(3))
        b.I("s_lshl_b32", s(28), s(28), 7)
        b.I("s_add_u32", s(28), s(28), STAMP)
        b.I("v_mov_b32", v(4), 0)
        for i in range(st.n):
            b.I("v_mov_b32", v(8), s(st.base + 2 * i))
            b.I("buffer_store_dword", v(8), v(4), SRD, s(28), mods=f"offen offset:{4 * i}")
    b.wait_all()
    tl.end(b)
    b.I("s_endpgm")
    for t in slow:
        b.raw(t)
```

```python
from ab import *
from lay import *
import tl
from k_front import St, conv_order
MF = "v_mfma_f32_16x16x32_bf16"

HS = 4416
UB = 4 * HS
WSZ = UB + 4672
YL = 4 * WSZ
HLB = YL + 16640
SY = HLB + 4 * 9216
FRONT_LDS = SY + 64
NCONV = 144


class RL:
    GL, DL, GW, GR, DW, DR = 207, 208, 209, 210, 211, 212
    GW2 = [209, 213, 214, 215]
    LN = 216
    US = 48

    def __init__(self, b, P, units, st, name):
        self.b, self.P, self.units, self.st, self.name, self.nl = b, P, units, st, name, 0

    def setup(self, idx, ldsbase):
        b = self.b
        T = 217
        b.I("v_and_b32", v(T), 63, v(0))
        b.I("v_lshlrev_b32", v(self.LN), 4, v(T))
        b.I("v_lshrrev_b32", v(T + 1), 3, v(T))
        b.I("v_and_b32", v(T + 2), 7, v(T))
        b.I("v_lshrrev_b32", v(T + 3), 4, v(T))
        b.I("v_bfe_u32", v(T + 4), v(T), 2, 2)
        b.I("v_lshl_add_u32", v(T + 3), v(T + 3), 3, v(T + 4))
        b.I("v_and_b32", v(T + 4), 3, v(T))
        tys = {u[0] for u in self.units}
        def mk(dst, m, r1, r2, sh, base):
            b.I("v_mul_u32_u24", v(dst), m, v(r1))
            b.I("v_lshl_add_u32", v(dst), v(r2), sh, v(dst))
            if base:
                b.I("v_add_u32", v(dst), s(ldsbase), v(dst))
        if "g" in tys:
            mk(self.GL, 9216, T + 1, T + 2, 4, 0)
            mk(self.GW, 264, T + 1, T + 2, 5, 1)
            mk(self.GR, 264, T + 3, T + 4, 5, 1)
            for i in range(1, 4):
                b.I("v_add_u32", v(self.GW2[i]), i * 8 * 264, v(self.GW))
        if "d" in tys:
            mk(self.DL, 1152, T + 1, T + 2, 4, 0)
            mk(self.DW, 144, T + 1, T + 2, 4, 1)
            mk(self.DR, 144, T + 3, T + 4, 4, 1)
        b.I("s_and_b32", s(24), s(2), 7)
        b.I("s_mul_i32", s(24), s(24), 9)
        for r, (ty, first, cnt, full) in enumerate(self.units):
            so, do = self.US + 2 * r, self.US + 1 + 2 * r
            b.I("s_add_u32", s(27), s(idx), first)
            b.I("s_mul_i32", s(25), s(27), 7282)
            b.I("s_lshr_b32", s(25), s(25), 16)
            b.I("s_mul_i32", s(26), s(25), 9)
            b.I("s_sub_u32", s(26), s(27), s(26))
            if ty == "g":
                b.I("s_add_u32", s(26), s(26), s(24))
                b.I("s_mul_i32", s(so), s(25), 32 * 9216)
                b.I("s_lshl_b32", s(27), s(26), 7)
                b.I("s_add_u32", s(so), s(so), s(27))
                b.I("s_mul_i32", s(27), s(26), 36)
                b.I("s_add_u32", s(27), s(27), s(25))
                b.I("s_lshl_b32", s(27), s(27), 12)
                b.I("s_add_u32", s(do), s(27), WGU)
            else:
                b.I("s_add_u32", s(25), s(25), s(24))
                b.I("s_mul_i32", s(so), s(25), 64 * 1152)
                b.I("s_lshl_b32", s(27), s(26), 7)
                b.I("s_add_u32", s(so), s(so), s(27))
                b.I("s_mul_i32", s(27), s(25), 18)
                b.I("s_add_u32", s(27), s(27), s(26))
                b.I("s_lshl_b32", s(27), s(27), 12)
                b.I("s_add_u32", s(do), s(27), WD)

    def srds(self):
        b = self.b
        b.I("s_mov_b32", s(16), s(14))
        b.I("s_mov_b32", s(17), s(15))
        b.I("s_mov_b32", s(18), F * D * 2)
        b.I("s_mov_b32", s(19), 0x20000)
        b.I("s_mov_b32", s(14), F * D * 2)
        b.I("s_mov_b32", s(15), 0x20000)
        b.I("s_mov_b32", s(22), F * D * 2)
        b.I("s_mov_b32", s(23), 0x20000)

    def masked(self, r, fn):
        fn()

    def loads(self, r, RB=16):
        b, laux = self.b, self.P["rlaux"]
        ty = self.units[r][0]
        R = RB + 32 * r
        so = self.US + 2 * r

        def fn():
            if ty == "g":
                for i in range(4):
                    b.I("s_add_u32", s(28 + (i & 1)), s(so), i * 8 * 9216)
                    b.I("buffer_load_dwordx4", v(R + 4 * i, 4), v(self.GL), s(12, 4), s(28 + (i & 1)), mods="offen " + laux)
                    b.I("buffer_load_dwordx4", v(R + 16 + 4 * i, 4), v(self.GL), s(16, 4), s(28 + (i & 1)), mods="offen " + laux)
            else:
                for i in range(8):
                    b.I("s_add_u32", s(28 + (i & 1)), s(so), i * 8 * 1152)
                    b.I("buffer_load_dwordx4", v(R + 4 * i, 4), v(self.DL), s(20, 4), s(28 + (i & 1)), mods="offen " + laux)
        self.masked(r, fn)

    def proc(self, r, RB=16):
        b, aux = self.b, self.P["raux"]
        ty = self.units[r][0]
        R = RB + 32 * r
        O = RB + 32 * len(self.units) + 32 * (r % 2)
        assert O + 32 <= 207
        do = self.US + 1 + 2 * r
        if ty == "g":
            for i in range(4):
                for k in range(4):
                    b.I("ds_write2_b32", v(self.GW2[i]), v(R + 4 * i + k), v(R + 16 + 4 * i + k), mods=f"offset0:{2 * k} offset1:{2 * k + 1}")
        else:
            for i in range(8):
                b.I("ds_write_b128", v(self.DW), v(R + 4 * i, 4), mods=f"offset:{i * 8 * 144}")
        for kl in range(2):
            for t in range(4):
                o = O + (kl * 4 + t) * 4
                for h in range(2):
                    if ty == "g":
                        b.I("ds_read_b64_tr_b16", v(o + 2 * h, 2), v(self.GR), mods=f"offset:{kl * 128 + t * 8 + h * 4 * 264}")
                    else:
                        b.I("ds_read_b64_tr_b16", v(o + 2 * h, 2), v(self.DR), mods=f"offset:{(kl * 32 + h * 4) * 144 + (t >> 1) * 64 + (t & 1) * 8}")
        b.I("s_add_u32", s(30), s(do), 18 * 4096 if ty == "g" else 36 * 1024)

        def fn():
            for kl in range(2):
                for t in range(4):
                    o = O + (kl * 4 + t) * 4
                    b.I("buffer_store_dwordx4", v(o, 4), v(self.LN), s(8, 4), s(do) if kl == 0 else s(30), mods=f"offen offset:{t * 1024} {aux}")
        self.masked(r, fn)

    def qpf(self):
        b = self.b
        b.I("s_load_dwordx2", s(32, 2), s(0, 2), 0)
        b.I("s_and_b32", s(24), s(2), 0xf0)
        b.I("s_and_b32", s(25), s(2), 7)
        b.I("s_lshl_b32", s(25), s(25), 1)
        b.I("s_add_u32", s(24), s(24), s(25))
        b.I("s_bfe_u32", s(25), s(2), 0x10003)
        b.I("s_add_u32", s(24), s(24), s(25))
        b.I("s_mul_i32", s(24), s(24), 9216)
        b.I("s_and_b32", s(25), s(3), 3)
        b.I("s_mul_i32", s(25), s(25), 2304)
        b.I("s_add_u32", s(24), s(24), s(25))
        b.I("v_add_u32", v(220), s(24), v(self.LN))
        b.I("s_mov_b32", s(34), S * D * 2)
        b.I("s_mov_b32", s(35), 0x20000)
        for i in range(3):
            b.I("buffer_load_dwordx4", v(224 + 4 * i, 4), v(220), s(32, 4), 0, mods=f"offen offset:{min(1024 * i, 1280)}")

    def run(self, idx):
        b, st = self.b, self.st
        ths = sorted({u[2] for u in self.units if not u[3]})
        n0 = st.n
        for vi, lo in enumerate([0] + ths):
            if vi < len(ths):
                b.I("s_cmp_ge_u32", s(idx), ths[vi])
                b.I("s_cbranch_scc1", f"{self.name}_v{vi + 1}")
                snap = b.snapshot()
            st.n = n0
            rs = [r for r, u in enumerate(self.units) if u[3] or lo < u[2]]
            for r in rs:
                self.loads(r)
            st()
            if self.P["qpf"] == 1:
                self.qpf()
            for r in range(len(self.units)):
                if r in rs:
                    self.proc(r)
                st()
            if self.P["qpf"] == 2:
                self.qpf()
            b.wait_all()
            st()
            st.dump(s(8, 4), 3)
            tl.end(b)
            b.I("s_endpgm")
            if vi < len(ths):
                b.restore(snap)
                b.label(f"{self.name}_v{vi + 1}")


def emit_conv(b, name, P):
    st = St(b, P["stamps"], base=60)
    st()
    b.I("s_load_dwordx2", s(24, 2), s(0, 2), 40)
    b.I("s_load_dwordx4", s(44, 4), s(0, 2), 88)
    b.I("v_lshrrev_b32", v(1), 6, v(0))
    b.I("v_and_b32", v(2), 63, v(0))
    b.I("v_readfirstlane_b32", s(3), v(1))
    KT, VT, WT = 0, 136 * 128, 264 * 128
    b.I("s_mul_i32", s(33), s(2), 7282)
    b.I("s_lshr_b32", s(33), s(33), 16)
    b.I("s_mul_i32", s(34), s(33), 9)
    b.I("s_sub_u32", s(34), s(2), s(34))
    b.I("s_mul_i32", s(6), s(33), 128 * 1152)
    b.I("s_lshl_b32", s(7), s(34), 7)
    b.I("s_add_u32", s(6), s(6), s(7))
    GA, GH, GW = 6, 7, 10
    b.I("v_lshrrev_b32", v(GA), 3, v(0))
    b.I("v_and_b32", v(GW), 7, v(0))
    b.I("v_mul_u32_u24", v(GA), 1152, v(GA))
    b.I("v_lshl_add_u32", v(GA), v(GW), 4, v(GA))
    b.I("v_add_u32", v(GA), s(6), v(GA))
    b.I("s_lshl_b32", s(5), s(3), 10)
    b.I("s_mov_b32", s(4), 64 * 1152)
    b.I("s_mov_b32", s(30), S * D * 2)
    b.I("s_mov_b32", s(31), 0x20000)
    b.I("s_add_u32", "m0", s(5), KT + 1024)
    b.wait(lgkm=0)
    st()
    b.I("s_mov_b32", s(28), s(14))
    b.I("s_mov_b32", s(29), s(15))
    b.I("s_mov_b32", s(14), S * D * 2)
    b.I("s_mov_b32", s(15), 0x20000)
    ga = P["gaux"]
    b.I("buffer_load_dwordx4", v(GA), s(12, 4), 0, mods=f"offen {ga} lds")
    b.I("s_add_u32", "m0", s(5), KT + 1024 + 8192)
    b.I("buffer_load_dwordx4", v(GA), s(12, 4), s(4), mods=f"offen {ga} lds")
    b.I("s_add_u32", "m0", s(5), VT)
    b.I("buffer_load_dwordx4", v(GA), s(28, 4), 0, mods=f"offen {ga} lds")
    b.I("s_add_u32", "m0", s(5), VT + 8192)
    b.I("buffer_load_dwordx4", v(GA), s(28, 4), s(4), mods=f"offen {ga} lds")
    b.I("s_cmp_gt_u32", s(3), 1)
    b.I("s_cbranch_scc1", f"{name}_nx")
    b.I("s_cmp_eq_u32", s(3), 0)
    b.I("s_cbranch_scc0", f"{name}_w1")
    b.I("v_subrev_u32", v(GH), 8 * 1152, v(GA))
    b.I("s_mov_b32", "m0", KT)
    b.I("buffer_load_dwordx4", v(GH), s(12, 4), 0, mods=f"offen {ga} lds")
    b.I("s_branch", f"{name}_nx")
    b.label(f"{name}_w1")
    b.I("s_lshl_b32", s(7), s(34), 9)
    b.I("s_mov_b32", s(40), s(16))
    b.I("s_mov_b32", s(41), s(17))
    b.I("s_mov_b32", s(42), 576 * 8)
    b.I("s_mov_b32", s(43), 0x20000)
    b.I("v_lshlrev_b32", v(GH), 4, v(2))
    b.I("v_add_u32", v(GH), s(7), v(GH))
    b.I("s_mov_b32", "m0", WT)
    b.I("buffer_load_dwordx4", v(GH), s(40, 4), 0, mods="offen lds")
    b.label(f"{name}_nx")
    H = 64
    b.I("v_lshlrev_b32", v(3), 4, v(2))
    b.barrier()
    b.I("s_cmp_ge_u32", s(3), 4)
    b.I("s_cbranch_scc1", f"{name}_nh")
    b.I("s_lshl_b32", s(4), s(2), 2)
    b.I("s_add_u32", s(4), s(4), s(3))
    b.I("s_lshl_b32", s(6), s(4), 12)
    b.I("s_add_u32", s(20), s(18), s(6))
    b.I("s_addc_u32", s(21), s(19), 0)
    b.I("s_mov_b32", s(22), 4096)
    b.I("s_mov_b32", s(23), 0x20000)
    b.I("s_mov_b32", s(26), 1152)
    b.I("s_mov_b32", s(27), 0x20000)
    b.I("v_add_u32", v(11), 16, v(3))
    b.I("s_lshl_b32", s(7), s(4), 1)
    b.I("v_mov_b32", v(12), s(7))
    ha = P["haux"]
    vq = list(b.vmq)
    for r in range(4):
        b.I("buffer_load_dwordx4", v(H + 8 * r, 4), v(3), s(20, 4), 0, mods=f"offen offset:{1024 * r} {ha}")
    for r in range(4):
        b.I("buffer_load_dword", v(H + 8 * r + 4), v(11), s(20, 4), 0, mods=f"offen offset:{1024 * r} {ha}")
    b.I("buffer_load_ushort", v(8), v(12), s(24, 4), 0, mods="offen")
    b.vmq = vq
    if P["touch"]:
        b.I("s_branch", f"{name}_nh2")
    b.label(f"{name}_nh")
    if P["touch"]:
        G = P["touch"]
        b.I("s_mov_b32", s(8), s(46))
        b.I("s_mov_b32", s(9), s(47))
        b.I("s_mov_b32", s(10), WS_BYTES)
        b.I("s_mov_b32", s(11), 0x20000)
        b.I("s_sub_u32", s(7), s(3), 5)
        b.I("s_mul_i32", s(7), s(7), 12 * 65536)
        b.I("s_add_u32", s(7), s(7), YB)
        b.I("v_min_u32", v(12), 11, v(2))
        b.I("v_lshlrev_b32", v(12), 16, v(12))
        b.I("s_cmp_eq_u32", s(3), 4)
        b.I("s_cbranch_scc0", f"{name}_t1")
        b.I("s_lshl_b32", s(7), s(34), 18)
        b.I("v_min_u32", v(12), 3, v(2))
        b.I("v_lshlrev_b32", v(12), 16, v(12))
        b.I("v_add_u32", v(12), s(7), v(12))
        b.I("s_lshl_b32", s(7), s(2), 14)
        b.I("v_mov_b32", v(13), s(7))
        b.I("v_cmp_eq_u32", "vcc", 4, v(2))
        b.I("v_cndmask_b32", v(12), v(12), v(13), "vcc")
        b.I("v_mov_b32", v(13), KFL + 144 * 128)
        b.I("v_cmp_eq_u32", "vcc", 5, v(2))
        b.I("v_cndmask_b32", v(12), v(12), v(13), "vcc")
        b.I("s_mov_b32", s(7), 0)
        b.label(f"{name}_t1")
        b.I("buffer_load_dword", v(59), v(12), s(8, 4), s(7), mods="offen sc1")
        b.vmq = vq
        b.label(f"{name}_nh2")
    NV = 60
    TP, I_ = 1, 4
    K, V, W = 100, 116, 124
    b.I("v_lshrrev_b32", v(TP), 4, v(0))
    b.I("v_and_b32", v(I_), 15, v(0))
    b.I("s_mov_b32", s(8), s(46))
    b.I("s_mov_b32", s(9), s(47))
    b.I("s_mov_b32", s(46), 256)
    b.I("s_mov_b32", s(47), 0x20000)
    b.I("s_mov_b32", s(10), WS_BYTES)
    b.I("s_mov_b32", s(11), 0x20000)
    b.I("v_lshlrev_b32", v(GA), 9, v(TP))
    b.I("v_lshl_add_u32", v(GA), v(I_), 3, v(GA))
    b.I("v_lshlrev_b32", v(GW), 5, v(I_))
    TW, TR, TR2, TS = 18, 19, 20, 23
    b.I("v_lshrrev_b32", v(TW), 1, v(TP))
    b.I("v_sub_u32", v(TW), 15, v(TW))
    b.I("v_xor_b32", v(TW), v(TW), v(I_))
    b.I("v_lshlrev_b32", v(TW), 4, v(TW))
    b.I("v_lshl_add_u32", v(TW), v(I_), 10, v(TW))
    b.I("v_and_b32", v(11), 1, v(TP))
    b.I("v_lshlrev_b32", v(11), 3, v(11))
    b.I("v_sub_u32", v(TW), v(TW), v(11))
    b.I("v_add_u32", v(TW), YL + 8, v(TW))
    b.I("v_xor_b32", v(TR), s(3), v(I_))
    b.I("v_lshlrev_b32", v(TR), 4, v(TR))
    b.I("v_lshl_add_u32", v(TR), v(TP), 8, v(TR))
    b.I("v_xor_b32", v(TR2), 128, v(TR))
    b.I("v_add_u32", v(TR), YL, v(TR))
    b.I("v_add_u32", v(TR2), YL + 8192, v(TR2))
    b.I("v_lshlrev_b32", v(TS), 12, v(TP))
    b.I("v_lshl_add_u32", v(TS), v(I_), 4, v(TS))
    b.I("s_lshl_b32", s(35), s(34), 18)
    b.I("s_lshl_b32", s(7), s(33), 8)
    b.I("s_sub_u32", s(35), s(35), s(7))
    b.I("s_add_u32", s(35), s(35), KVT + 3840)
    b.I("s_add_u32", s(36), s(35), 32 * 4096)
    b.I("s_mov_b32", s(38), 0x05040100)
    b.I("s_mov_b32", s(39), 0x07060302)
    st()
    NA = 58
    b.I("v_mov_b32", v(NA), 0)
    b.I("s_and_b32", s(43), s(3), 6)
    b.raw(f"""  s_cmp_ge_u32 s3, 4
  s_cbranch_scc1 {name}_w0
  s_waitcnt vmcnt(9)
  s_branch {name}_w9
{name}_w0:
  s_waitcnt vmcnt({1 if P["touch"] else 0})
{name}_w9:""")
    b.vmq = []
    b.barrier()
    b.I("s_cmp_eq_u32", s(43), 4)
    b.I("s_cbranch_scc0", f"{name}_nt")
    b.raw(f"  buffer_load_dwordx2 v[{NV}:{NV + 1}], v{NA}, s[44:47], 0 offen sc1")
    b.label(f"{name}_nt")
    for i in range(7):
        b.I("ds_read_b64", v(K + 2 * i, 2), v(GA), mods=f"offset:{KT + (5 + i) * 128}")
    for i in range(2):
        b.I("ds_read_b128", v(W + 4 * i, 4), v(GW), mods=f"offset:{WT + 16 * i}")
    for i in range(4):
        b.I("ds_read_b64", v(V + 2 * i, 2), v(GA), mods=f"offset:{VT + i * 128}")
    PP, T, O = 132, 148, 164
    for ch in range(4):
        dw, h = ch >> 1, ch & 1
        pp = PP + 8 * (ch & 1)
        t = T + 8 * (ch & 1)
        for r in range(1, 7):
            b.I("v_perm_b32", v(pp + r), v(K + 2 * (r - 1) + dw), v(K + 2 * r + dw), s(38 + h))
        if ch == 0:
            st()
        for i in range(4):
            b.I("v_dot2_f32_bf16", v(t + i), v(pp + i + 1), v(W + 2 * ch + 1), 0)
        for i in range(4):
            if h == 0:
                b.I("v_lshlrev_b32", v(t + 4 + i), 16, v(V + 2 * i + dw))
            else:
                b.I("v_and_b32", v(t + 4 + i), 0xffff0000, v(V + 2 * i + dw))
        for i in range(4):
            b.I("v_dot2_f32_bf16", v(t + i), v(pp + i + 3), v(W + 2 * ch), v(t + i))
        if ch > 0:
            b.I("ds_write_b64", v(TW), v(O + 2 * (ch - 1), 2), mods=f"offset:{(ch - 1) * 256}")
        for i in range(4):
            b.I("v_mul_f32", v(t + i), v(t + i), v(t + 4 + i))
        for q in range(2):
            b.I("v_cvt_pk_bf16_f32", v(O + 2 * ch + q), v(t + 3 - 2 * q), v(t + 2 - 2 * q))
    b.I("ds_write_b64", v(TW), v(O + 6, 2), mods=f"offset:{3 * 256}")
    b.wait(lgkm=0)
    st()
    b.barrier()
    b.I("ds_read_b128", v(K, 4), v(TR))
    b.I("ds_read_b128", v(K + 4, 4), v(TR2))
    b.I("buffer_store_dwordx4", v(K, 4), v(TS), s(8, 4), s(35), mods="offen sc1")
    b.I("buffer_store_dwordx4", v(K + 4, 4), v(TS), s(8, 4), s(36), mods="offen sc1", tag="kv")
    st()
    b.I("s_cmp_lt_u32", s(3), 4)
    b.I("s_cbranch_scc1", f"{name}_cv")
    snap = b.snapshot()
    b.I("s_load_dwordx4", s(12, 4), s(0, 2), 56)
    b.I("s_load_dwordx2", s(20, 2), s(0, 2), 72)
    CO, CN = 56, 57
    b.I("s_lshl_b32", s(7), s(2), 7)
    b.I("v_mov_b32", v(CO), s(7))
    b.I("s_lshr_b32", s(7), s(2), 4)
    b.I("s_lshl_b32", s(7), s(7), 7)
    b.I("v_mul_u32_u24", v(CN), 9 * 128, v(I_))
    b.I("v_add_u32", v(CN), s(7), v(CN))
    b.I("s_mov_b32", s(42), KFL)
    b.wait(vm=0)
    b.raw(f"""  s_cmp_eq_u32 s43, 4
  s_cbranch_scc0 {name}_tge
  s_mov_b32 s43, 0x40000
{name}_tg:
  v_cmp_eq_u32 vcc, 0, v{NV + 1}
  s_cbranch_vccz {name}_tge
  buffer_load_dwordx2 v[{NV}:{NV + 1}], v{NA}, s[44:47], 0 offen sc1
  s_waitcnt vmcnt(0)
  s_sub_u32 s43, s43, 1
  s_cbranch_scc0 {name}_tg
{name}_tge:""")
    st()
    b.barrier()
    b.I("s_cmp_lg_u32", s(3), 4)
    b.I("s_cbranch_scc1", f"{name}_nf")
    b.I("s_mov_b64", "exec", 1)
    b.I("buffer_store_dwordx2", v(NV, 2), v(CO), s(8, 4), s(42), mods="offen sc1")
    b.I("s_mov_b64", "exec", -1)
    b.label(f"{name}_nf")
    b.I("s_cmp_lg_u32", s(3), 5)
    b.I("s_cbranch_scc1", f"{name}_np")
    b.raw(f"""  s_mov_b64 exec, 0xffff
  s_mov_b32 s43, 0x40000
{name}_poll:
  buffer_load_dwordx2 v[{NV + 2}:{NV + 3}], v{CN}, s[8:11], s42 offen sc1
  s_waitcnt vmcnt(0)
  v_cmp_ne_u64 vcc, v[{NV}:{NV + 1}], v[{NV + 2}:{NV + 3}]
  s_cbranch_vccz {name}_pe
  s_sleep {P["psleep"]}
  s_sub_u32 s43, s43, 1
  s_cbranch_scc0 {name}_poll
{name}_pe:
  s_mov_b64 exec, -1""")
    b.barrier()
    b.label(f"{name}_np")
    rl = RL(b, P, P["hl"], st, name + "_h")
    b.I("s_sub_u32", s(6), s(3), 4)
    b.I("s_mul_i32", s(37), s(6), 9216)
    b.I("s_add_u32", s(37), s(37), HLB)
    b.I("s_mul_i32", s(6), s(6), 18)
    b.I("s_lshr_b32", s(7), s(2), 3)
    b.I("s_add_u32", s(6), s(6), s(7))
    rl.setup(6, 37)
    rl.srds()
    b.I("s_cmp_eq_u32", s(3), 5)
    b.I("s_cbranch_scc1", f"{name}_pd")
    b.barrier()
    b.label(f"{name}_pd")
    st()
    rl.run(6)
    b.restore(snap)
    st.n = 6
    b.raw(".p2align 6")
    b.label(f"{name}_cv")
    b.I("s_lshl_b32", s(6), s(4), 12)
    b.I("s_mul_i32", s(5), s(3), WSZ)
    G_ = 5
    b.I("v_lshrrev_b32", v(G_), 4, v(2))
    for k in range(4):
        b.I("v_mov_b32", v(12 + k), 0)
    b.I("v_add_u32", v(9), s(5), v(3))
    b.I("s_mov_b32", "exec_hi", 0)
    b.I("ds_write_b128", v(9), v(12, 4), mods=f"offset:{UB + 32 + 4096}")
    b.I("s_mov_b64", "exec", 31)
    for c in range(4):
        b.I("ds_write_b128", v(9), v(12, 4), mods=f"offset:{c * HS}")
        b.I("ds_write_b128", v(9), v(12, 4), mods=f"offset:{c * HS + 4144}")
    b.I("s_mov_b64", "exec", 3)
    b.I("ds_write_b128", v(9), v(12, 4), mods=f"offset:{UB}")
    b.I("s_mov_b64", "exec", -1)
    SW, SR = 21, 22
    b.I("s_lshl_b32", s(7), s(3), 2)
    b.I("s_add_u32", s(7), s(7), SY)
    b.I("v_mov_b32", v(SW), s(7))
    b.I("ds_write_b32", v(SW), v(12))
    b.I("s_add_u32", "m0", s(5), UB + 32)
    b.I("s_add_u32", s(7), s(6), KVT)
    b.I("v_and_b32", v(SR), 3, v(2))
    b.I("v_lshlrev_b32", v(SR), 2, v(SR))
    b.I("v_add_u32", v(SR), SY, v(SR))
    AA, BA = 16, 17
    b.I("v_add_u32", v(11), 1, v(I_))
    b.I("v_and_b32", v(AA), 3, v(11))
    b.I("v_mul_u32_u24", v(AA), HS, v(AA))
    b.I("v_lshrrev_b32", v(11), 2, v(11))
    b.I("v_lshl_add_u32", v(AA), v(11), 3, v(AA))
    b.I("v_lshl_add_u32", v(AA), v(G_), 4, v(AA))
    b.I("v_add_u32", v(AA), s(5), v(AA))
    b.I("v_lshlrev_b32", v(11), 5, v(I_))
    b.I("v_lshlrev_b32", v(BA), 4, v(G_))
    b.I("v_sub_u32", v(BA), v(BA), v(11))
    b.I("s_add_u32", s(24), s(5), UB + 480)
    b.I("v_add_u32", v(BA), s(24), v(BA))
    YW, YR, YS = 96, 97, 98
    b.I("s_mul_i32", s(24), s(3), 4160)
    b.I("s_add_u32", s(24), s(24), YL)
    b.I("v_lshlrev_b32", v(YW), 5, v(I_))
    b.I("v_lshl_add_u32", v(YW), v(G_), 3, v(YW))
    b.I("v_add_u32", v(YW), s(24), v(YW))
    b.I("v_bfe_u32", v(11), v(2), 2, 2)
    b.I("v_mul_u32_u24", v(YR), 4160, v(11))
    b.I("v_lshl_add_u32", v(YR), v(G_), 5, v(YR))
    b.I("v_and_b32", v(11), 3, v(2))
    b.I("v_lshl_add_u32", v(YR), v(11), 3, v(YR))
    b.I("s_lshl_b32", s(24), s(3), 10)
    b.I("s_add_u32", s(24), s(24), YL)
    b.I("v_add_u32", v(YR), s(24), v(YR))
    b.I("v_mul_u32_u24", v(YS), 18432, v(G_))
    b.I("v_lshl_add_u32", v(YS), v(I_), 3, v(YS))
    b.I("s_mul_i32", s(32), s(3), 32 * 18432)
    b.I("s_lshl_b32", s(24), s(2), 7)
    b.I("s_add_u32", s(32), s(32), s(24))
    b.I("s_add_u32", s(32), s(32), YB)
    b.wait_tag_vm("kv")
    st()
    b.barrier()
    b.I("v_lshlrev_b32", v(11), 16, v(H))
    for par in range(2):
        for r in range(4):
            hr = H + 8 * r
            if par:
                for k in range(4):
                    b.I("v_alignbyte_b32", v(hr + k), v(hr + k + 1), v(hr + k), 2)
            else:
                b.I("v_add_u32", v(116 + r), 2 * HS + 1024 * r, v(9))
                b.I("v_add_u32", v(120 + r), 3 * HS + 1024 * r, v(9))
            b.I("ds_write_b128", v(9), v(hr, 4), mods=f"offset:{par * HS + 64 + 1024 * r}")
            ad = 116 + 4 * par + r
            b.I("ds_write2_b32", v(ad), v(hr), v(hr + 1), mods="offset0:15 offset1:16")
            b.I("ds_write2_b32", v(ad), v(hr + 2), v(hr + 3), mods="offset0:17 offset1:18")
    b.I("s_mov_b64", "exec", 1)
    b.I("ds_write_b32", v(9), v(11), mods=f"offset:{HS + 60}")
    b.I("ds_write_b32", v(9), v(11), mods=f"offset:{3 * HS + 56}")
    b.I("s_mov_b64", "exec", -1)
    DA = 24
    b.I("v_lshlrev_b32", v(10), 3, v(G_))
    b.I("v_add_u32", v(10), v(10), v(I_))
    b.I("v_sub_u32", v(10), 31, v(10))
    b.I("v_lshlrev_b32", v(11), 16, v(8))
    for r in range(4):
        b.I("v_cmp_eq_u32", "vcc", 2 * r, v(10))
        b.I("v_cndmask_b32", v(DA + r), 0, v(8), "vcc")
        b.I("v_cmp_eq_u32", "vcc", 2 * r + 1, v(10))
        b.I("v_cndmask_b32", v(DA + r), v(DA + r), v(11), "vcc")
    ACC = 28
    seq = conv_order()
    free = [100 + 4 * i for i in range(P["nfr"])]
    last = {}
    need = []
    for p, (ak, bk, ct) in enumerate(seq):
        for key in (("a", ak), ("b", bk)):
            if key == ("a", "D"):
                continue
            if key not in last:
                need.append((key, p))
            last[key] = p
    slot = {}
    q = []
    ni = [0]

    def refill(p):
        while ni[0] < len(need) and need[ni[0]][1] <= p + P["cla"] and free:
            key = need[ni[0]][0]
            ni[0] += 1
            r = free.pop(0)
            slot[key] = r
            if key[0] == "a":
                q.append((key, lambda r=r, mu=key[1]: b.I("ds_read_b64", v(r, 2), v(AA), mods=f"offset:{64 * mu}")))
                q.append((key, lambda r=r, mu=key[1]: b.I("ds_read_b64", v(r + 2, 2), v(AA), mods=f"offset:{64 * mu + 8}")))
            else:
                q.append((key, lambda r=r, be=key[1]: b.I("ds_read_b128", v(r, 4), v(BA), mods=f"offset:{(56 - be) * 64}")))
    refill(0)
    for it in [x for x in q if x[0][0] == "a"][:10]:
        q.remove(it)
        it[1]()
    b.wait(lgkm=0)
    b.barrier()
    st()
    for r in range(4):
        b.I("buffer_load_dwordx4", v(3), s(8, 4), s(7), mods=f"offen offset:{1024 * r} sc1 lds", tag="u")
    b.I("s_setprio", 2)
    b.wait_tag_vm("u")
    st()
    for i in range(7):
        if q:
            q.pop(0)[1]()
    started = set()
    for p, (ak, bk, ct) in enumerate(seq):
        refill(p)
        while any(k in (("a", ak), ("b", bk)) for k, _ in q):
            q.pop(0)[1]()
        d = v(ACC + 4 * ct, 4)
        b.I(MF, d, v(DA, 4) if ak == "D" else v(slot[("a", ak)], 4), v(slot[("b", bk)], 4), d if ct in started else "0")
        started.add(ct)
        for key in (("a", ak), ("b", bk)):
            if last.get(key) == p:
                free.append(slot[key])
        if q and len(b.lgq) < 15:
            q.pop(0)[1]()
    st()
    for ct in range(8):
        r = ACC + 4 * ct
        b.I("v_cvt_pk_bf16_f32", v(r), v(r), v(r + 1))
        b.I("v_cvt_pk_bf16_f32", v(r + 1), v(r + 2), v(r + 3))
        b.I("ds_write_b64", v(YW), v(r, 2), mods=f"offset:{512 * ct}")
    b.I("v_mov_b32", v(11), 1)
    b.I("ds_write_b32", v(SW), v(11))
    b.raw(f"""  s_mov_b32 s37, 0x100000
{name}_ep:
  ds_read_b32 v10, v{SR}
  s_waitcnt lgkmcnt(0)
  v_cmp_ne_u32 vcc, 1, v10
  s_cbranch_vccz {name}_epd
  s_sub_u32 s37, s37, 1
  s_cbranch_scc0 {name}_ep
{name}_epd:""")
    b.lgq = []
    st()
    for k in range(8):
        b.I("ds_read_b64_tr_b16", v(64 + 2 * k, 2), v(YR), mods=f"offset:{128 * k}")
    for k in range(8):
        b.I("s_add_u32", s(24 + (k & 1)), s(32), 4 * k * 18432)
        b.I("buffer_store_dwordx2", v(64 + 2 * k, 2), v(YS), s(8, 4), s(24 + (k & 1)), mods="offen " + P["yaux"])
    b.wait_all()
    st()
    st.dump(s(8, 4), 3)
    tl.end(b)
    b.I("s_endpgm")


def emit_rl(b, name, P, wg0, nwg):
    st = St(b, P["stamps"], base=60)
    st()
    b.I("s_load_dwordx4", s(44, 4), s(0, 2), 88)
    b.I("s_memrealtime", s(40, 2))
    b.wait(lgkm=0)
    b.I("s_load_dwordx4", s(12, 4), s(0, 2), 56)
    b.I("s_load_dwordx2", s(20, 2), s(0, 2), 72)
    b.I("s_mov_b32", s(8), s(46))
    b.I("s_mov_b32", s(9), s(47))
    b.I("s_cmp_lg_u32", s(2), wg0)
    b.I("s_cbranch_scc1", f"{name}_nl")
    b.I("s_mov_b32", s(46), 256)
    b.I("s_mov_b32", s(47), 0x20000)
    b.I("s_or_b32", s(41), s(41), 0x40000000)
    b.I("v_mov_b32", v(2), s(40))
    b.I("v_mov_b32", v(3), s(41))
    b.I("v_mov_b32", v(4), 0)
    b.I("v_cmp_eq_u32", "vcc", 0, v(0))
    b.I("s_and_saveexec_b64", s(42, 2), "vcc")
    b.I("s_cbranch_execz", f"{name}_nl2")
    b.I("buffer_store_dwordx2", v(2, 2), v(4), s(44, 4), 0, mods="offen sc1")
    b.label(f"{name}_nl2")
    b.I("s_mov_b64", "exec", -1)
    b.label(f"{name}_nl")
    b.I("v_lshrrev_b32", v(1), 6, v(0))
    b.I("v_readfirstlane_b32", s(3), v(1))
    b.I("s_sub_u32", s(4), s(2), wg0)
    b.I("s_lshr_b32", s(4), s(4), 3)
    b.I("s_mov_b32", s(10), WS_BYTES)
    b.I("s_mov_b32", s(11), 0x20000)
    if P["zero"]:
        b.raw(f"""  s_sub_u32 s6, s2, {wg0}
  s_cmp_ge_u32 s6, {ZERO_BYTES // 8192}
  s_cbranch_scc1 {name}_nz
  s_lshl_b32 s6, s6, 13
  s_add_u32 s6, s6, {FLG}
  v_lshlrev_b32 v8, 4, v0
  v_mov_b32 v4, 0
  v_mov_b32 v5, 0
  v_mov_b32 v6, 0
  v_mov_b32 v7, 0
  buffer_store_dwordx4 v[4:7], v8, s[8:11], s6 offen sc1
{name}_nz:""")
    b.I("s_mul_i32", s(6), s(3), nwg // 8)
    b.I("s_add_u32", s(6), s(6), s(4))
    b.I("s_mul_i32", s(5), s(3), 9216)
    rl = RL(b, P, P["rl"], st, name + "_r")
    rl.setup(6, 5)
    b.wait(lgkm=0)
    st()
    rl.srds()
    rl.run(6)


DEFF = dict(stamps=False, gaux="nt", psleep=1, nfr=36, cla=24, pf="ln2_kernel_end", haux="nt", yaux="", raux="sc1", rlaux="nt",
            ilv=True, hdelay=0, touch=0, zero=False, qpf=0,
            rl=[("g", 0, 112, True), ("g", 112, 50, False)], hl=[("d", 0, 72, True), ("d", 72, 9, False)], nrl=112)


def k_front(name, **kw):
    P = dict(DEFF)
    P.update(kw)
    b = AB()
    b.raw(f".globl {name}\n.p2align 8\n.type {name},@function\n{name}:")
    tl.start(b)
    b.I("s_load_dwordx8", s(12, 8), s(0, 2), 8)
    if P["pf"]:
        b.raw(f"  s_getpc_b64 s[36:37]\n{name}_pc:")
        b.I("s_lshr_b32", s(38), s(2), 3)
        b.I("s_lshl_b32", s(38), s(38), 13)
        b.I("v_lshlrev_b32", v(240), 4, v(0))
        b.I("v_add_u32", v(240), s(38), v(240))
        b.raw(f"  v_min_u32 v240, {P['pf']}-{name}_pc-16, v240")
        b.I("global_load_dwordx4", v(244, 4), v(240), s(36, 2))
    b.I("s_cmp_ge_u32", s(2), NCONV)
    b.I("s_cbranch_scc1", f"{name}_rl")
    snap = b.snapshot()
    emit_conv(b, name, P)
    b.restore(snap)
    b.raw(".p2align 6")
    b.label(f"{name}_rl")
    b.I("s_cmp_ge_u32", s(2), NCONV + P["nrl"])
    b.I("s_cbranch_scc1", f"{name}_end")
    if P["nrl"]:
        emit_rl(b, name, P, NCONV, P["nrl"])
    b.label(f"{name}_end")
    b.raw("  s_waitcnt vmcnt(0) lgkmcnt(0)")
    b.I("s_endpgm")
    return b
```

```python
from k_ffl import *
import k_ffl

PB1, LACC1, RX1, RE1 = 40, 76, 8, 12
PZ, PA = 230, 232
HO = 32768


class PSt:
    def __init__(self, b, on):
        self.b, self.on = b, on

    def at(self, i):
        if self.on:
            self.b.I("s_memrealtime" if self.on == 2 else "s_memtime", s(60 + 2 * i, 2))

    def dump(self):
        b = self.b
        if not self.on:
            return
        b.wait_all()
        b.I("s_lshl_b32", s(28), s(2), 3)
        b.I("s_add_u32", s(28), s(28), s(3))
        b.I("s_lshl_b32", s(28), s(28), 7)
        b.I("s_add_u32", s(28), s(28), STAMP)
        b.I("v_mov_b32", v(4), 0)
        for i in range(11):
            b.I("v_mov_b32", v(8), s(60 + 2 * i))
            b.I("buffer_store_dword", v(8), v(4), WS, s(28), mods=f"offen offset:{4 * i}")
        b.wait_all()


def lanes(b):
    t0, t1 = T, T + 1
    b.I("v_lshrrev_b32", v(LANE), 4, v(0))
    b.I("v_and_b32", v(CQ), 3, v(LANE))
    b.I("v_bfe_u32", v(DS), v(LANE), 2, 2)
    b.I("v_lshrrev_b32", v(G), 4, v(LANE))
    b.I("v_and_b32", v(GL), 1, v(G))
    b.I("v_lshrrev_b32", v(GH), 1, v(G))
    b.I("v_and_b32", v(t0), 0x24, v(LANE))
    b.I("v_lshrrev_b32", v(t1), 1, v(LANE))
    b.I("v_and_b32", v(t1), 12, v(t1))
    b.I("v_or_b32", v(t1), v(t1), v(CQ))
    b.I("v_lshlrev_b32", v(t1), 4, v(t1))
    b.I("v_lshl_add_u32", v(VRE), v(t0), 26, v(t1))


def part_flag(b, name):
    b.I("s_lshl_b32", s(6), s(2), 7)
    b.I("s_lshl_b32", s(7), s(S_W), 2)
    b.I("s_add_u32", s(6), s(6), s(7))
    b.I("s_add_u32", s(6), s(6), s(S_LAY))
    b.I("s_add_u32", s(6), s(6), PF - FLG)
    b.I("v_mov_b32", v(V_T), 0)
    b.I("v_mov_b32", v(V_Z), 1)
    b.wait(vm=0)
    b.I("s_mov_b64", "exec", 1)
    b.I("buffer_store_dword", v(V_Z), v(V_T), WS, s(6), mods="offen sc1")
    b.I("s_mov_b64", "exec", -1)


def gather(b, name, mode, P, ps):
    t0, t1 = T, T + 1
    L = mode - 1
    lanes(b)
    ra = "sc1"
    b.I("buffer_load_dwordx4", v(RX, 4), v(0), WS, s(S_R), mods="offen " + ra)
    if mode == 1:
        b.I("buffer_load_dwordx4", v(RE, 4), v(VRE), WS, s(S_R), mods="offen offset:1024 " + ra)
        b.I("buffer_load_dwordx4", v(RY, 4), v(0), WS, s(S_R), mods="offen offset:2048 " + ra)
    else:
        b.I("s_load_dwordx2", s(48, 2), s(0, 2), 80)
        b.I("buffer_load_dwordx2", v(RE, 2), v(VRE), WS, s(S_R), mods="offen offset:1024 " + ra)
        b.I("s_add_u32", s(6), s(S_R), 4 * 3072)
        b.I("buffer_load_dwordx4", v(RX1, 4), v(0), WS, s(6), mods="offen " + ra)
        b.I("buffer_load_dwordx2", v(RE1, 2), v(VRE), WS, s(6), mods="offen offset:1024 " + ra)
    b.I("v_lshrrev_b32", v(PA), 2, v(LANE))
    b.I("v_lshlrev_b32", v(PA), 7, v(PA))
    b.I("v_lshl_add_u32", v(PA), v(CQ), 3, v(PA))
    b.I("s_lshl_b32", s(S_A), s(5), 11)
    b.I("s_add_u32", s(S_A), s(S_A), PF + L * FLG_L)
    b.I("v_mul_u32_u24", v(VP), 147456, v(G))
    b.I("v_lshl_add_u32", v(VP), v(DS), 10, v(VP))
    b.I("v_lshl_add_u32", v(VP), v(CQ), 4, v(VP))
    b.I("s_lshl_b32", s(6), s(5), 6)
    b.I("s_add_u32", s(6), s(6), s(4))
    b.I("s_mul_i32", s(6), s(6), 18432)
    b.I("s_add_u32", s(6), s(6), PART + L * LOFF)
    b.I("s_lshl_b32", s(7), s(S_TOK), 5)
    b.I("s_add_u32", s(S_PXS), s(6), s(7))
    b.I("s_add_u32", s(S_P), s(S_PXS), s(7))
    b.I("s_add_u32", s(S_PXS), s(S_PXS), 8192)
    b.I("v_and_b32", v(t0), 1, v(DS))
    b.I("v_lshl_add_u32", v(t1), v(t0), 2, v(G))
    b.I("v_mul_u32_u24", v(VPX), 147456, v(t1))
    b.I("v_mul_u32_u24", v(t0), 3, v(t0))
    b.I("v_xor_b32", v(t0), v(t0), v(CQ))
    b.I("v_lshl_add_u32", v(VPX), v(t0), 3, v(VPX))
    b.I("v_lshrrev_b32", v(t0), 1, v(DS))
    b.I("v_mul_u32_u24", v(t0), 9216, v(t0))
    b.I("v_add_u32", v(VPX), v(VPX), v(t0))
    pl = f"  buffer_load_dwordx2 v[{PZ}:{PZ + 1}], v{PA}, s[8:11], s{S_A} offen sc1"
    b.raw(pl)
    b.I("v_and_b32", v(t1), 15, v(LANE))
    b.I("v_mov_b32", v(T + 2), 0x3f80)
    b.I("v_mov_b32", v(T + 3), 0x3f800000)
    for r in range(4):
        for (AR, off) in ((A1, 0), (A2, 8)):
            b.I("v_cmp_eq_u32", "vcc", off + 2 * r, v(t1))
            b.I("v_cndmask_b32", v(AR + r), 0, v(T + 2), "vcc")
            b.I("v_cmp_eq_u32", "vcc", off + 2 * r + 1, v(t1))
            b.I("v_cndmask_b32", v(AR + r), v(AR + r), v(T + 3), "vcc")
    if mode == 1:
        xn_setup(b, 1, LOFF)
        b.I("s_mul_i32", s(6), s(S_W), 3072)
        b.I("s_add_u32", s(6), s(6), HO)
        b.I("v_add_u32", v(VQ), s(6), v(0))
    else:
        b.I("v_and_b32", v(t0), 15, v(LANE))
        b.I("v_lshlrev_b32", v(VQ), 4, v(t0))
        b.I("v_lshl_add_u32", v(VQ), v(GH), 8, v(VQ))
        b.I("v_mul_u32_u24", v(t0), 576, v(GL))
        b.I("v_add_u32", v(VQ), v(VQ), v(t0))
        b.I("v_lshrrev_b32", v(t0), 1, v(DS))
        b.I("v_mul_u32_u24", v(t0), 576, v(t0))
        b.I("v_lshl_add_u32", v(t0), v(CQ), 4, v(t0))
        b.I("v_lshl_add_u32", v(t0), v(GL), 3, v(t0))
        b.I("v_add_u32", v(t0), 512, v(t0))
        b.I("v_and_b32", v(t1), 0x24, v(LANE))
        b.I("v_lshl_add_u32", v(VQE), v(t1), 24, v(t0))
    for r in range(4):
        b.I("v_mov_b32", v(T + 12 + r), 0)
        b.I("v_mov_b32", v(Y + r), 0)
    b.I("v_mov_b32", v(T + 10), fhex(OUTSCALE))
    b.wait(lgkm=0)
    nm = f"{name}_g{mode}"
    txt = f"""  s_mov_b32 s56, 0x1ff
  s_mov_b32 s{S_CNT}, 0x20000
  s_branch {nm}_chk
{nm}_lp:
  s_sleep {P["gsl"]}
{pl}
{nm}_chk:
  s_waitcnt vmcnt(0)
  v_and_b32 v{PZ}, v{PZ}, v{PZ + 1}
  v_cmp_ne_u32 vcc, 0, v{PZ}
  s_nop 1
  s_mov_b64 s[54:55], vcc
"""
    u = 0
    for h in range(2):
        for a_ in range(2):
            for jj in range(2):
                k = a_ * 4 + h * 2 + jj
                pat = (0x3333 << (2 * h)) << (16 * jj)
                c = jj * 589824 + a_ * 9216 + h * 4096
                txt += f"""  s_bitcmp1_b32 s56, {u}
  s_cbranch_scc0 {nm}_u{u}
  s_and_b32 s6, s{54 + a_}, {pat}
  s_cmp_eq_u32 s6, {pat}
  s_cbranch_scc0 {nm}_u{u}
  s_add_u32 s6, s{S_P}, {c}
  s_bitset0_b32 s56, {u}
  buffer_load_dwordx4 v[{PB + 4 * k}:{PB + 4 * k + 3}], v{VP}, s[8:11], s6 offen sc1
  buffer_load_dwordx4 v[{PB1 + 4 * k}:{PB1 + 4 * k + 3}], v{VP}, s[8:11], s6 offen offset:256 sc1
{nm}_u{u}:
"""
                u += 1
        if h == 0:
            txt += f"""  s_bitcmp1_b32 s56, {u}
  s_cbranch_scc0 {nm}_u{u}
  s_and_b32 s6, s54, s55
  s_and_b32 s6, s6, 0x33333333
  s_cmp_eq_u32 s6, 0x33333333
  s_cbranch_scc0 {nm}_u{u}
  s_bitset0_b32 s56, {u}
"""
            if P["pst"] and mode == 1:
                txt += ("  s_memrealtime" if P["pst"] == 2 else "  s_memtime") + " s[66:67]\n"
            for hh in range(2):
                txt += f"  buffer_load_dwordx2 v[{PB + 32 + 2 * hh}:{PB + 33 + 2 * hh}], v{VPX}, s[8:11], s{S_PXS} offen offset:{512 * hh} sc1\n"
                txt += f"  buffer_load_dwordx2 v[{PB1 + 32 + 2 * hh}:{PB1 + 33 + 2 * hh}], v{VPX}, s[8:11], s{S_PXS} offen offset:{512 * hh + 128} sc1\n"
            txt += f"{nm}_u{u}:\n"
            u += 1
    txt += f"""  s_cmp_eq_u32 s56, 0
  s_cbranch_scc1 {nm}_dn
  s_sub_u32 s{S_CNT}, s{S_CNT}, 1
  s_cbranch_scc0 {nm}_lp
{nm}_dn:"""
    b.raw(txt)
    b.vmq = []
    ps.at(2 if mode == 1 else 9)
    b.force_wait("vmcnt(0)")
    for (pb, la) in ((PB1, LACC1), (PB, LACC)):
        k = 0
        for a_ in range(2):
            for h in range(2):
                for jj in range(2):
                    d = v(la + 4 * a_, 4)
                    b.I(MF, d, v(A1 if h == 0 else A2, 4), v(pb + 4 * k, 4), "0" if (h == 0 and jj == 0) else d)
                    k += 1
        b.I(MF, v(la + 8, 4), v(A1, 4), v(pb + 32, 4), "0")
    dpp = "row_half_mirror row_mask:0x3 bank_mask:0x5"
    if mode == 1:
        b.I("ds_write_b128", v(VQ), v(LACC1, 4))
        b.I("ds_write_b128", v(VQ), v(LACC1 + 4, 4), mods="offset:1024")
        for r in range(4):
            b.I("v_add_f32_dpp", v(Y + r), v(LACC1 + 8 + r), v(LACC1 + 8 + r), mods=dpp)
        b.I("ds_write_b128", v(VQ), v(Y, 4), mods="offset:2048")
        for r in range(4):
            b.I("v_add_f32_dpp", v(T + 12 + r), v(LACC + 8 + r), v(LACC + 8 + r), mods=dpp)
        b.wait(lgkm=0)
        b.barrier()
        return
    b.I("s_mov_b32", s(50), S * D * 2)
    b.I("s_mov_b32", s(51), 0x20000)
    b.I("s_add_u32", s(6), s(S_B), 4 * 1152)
    SC = T + 10
    for (la, e, rx, re, so) in ((LACC1, Y, RX1, RE1, 6), (LACC, T + 12, RX, RE, S_B)):
        for r in range(4):
            b.I("v_add_f32_dpp", v(e + r), v(la + 8 + r), v(la + 8 + r), mods=dpp)
        for i in range(4):
            unpack(b, X + 2 * i, rx + i)
        for i in range(2):
            unpack(b, X + 8 + 2 * i, re + i)
        for i in range(4):
            b.I("v_pk_fma_f32", v(X + 2 * i, 2), v(la + 2 * i, 2), v(SC, 2), v(X + 2 * i, 2), mods="op_sel_hi:[1,0,1]")
        for i in range(2):
            b.I("v_pk_fma_f32", v(X + 8 + 2 * i, 2), v(e + 2 * i, 2), v(SC, 2), v(X + 8 + 2 * i, 2), mods="op_sel_hi:[1,0,1]")
        for i in range(4):
            b.I("v_cvt_pk_bf16_f32", v(rx + i), v(X + 2 * i), v(X + 2 * i + 1))
        for i in range(2):
            b.I("v_cvt_pk_bf16_f32", v(re + i), v(X + 8 + 2 * i), v(X + 8 + 2 * i + 1))
        b.I("v_permlane16_swap_b32", v(rx), v(rx + 2))
        b.I("v_permlane16_swap_b32", v(rx + 1), v(rx + 3))
        b.I("buffer_store_dwordx4", v(rx, 4), v(VQ), IO, s(so), mods="offen " + P["oaux"])
        b.I("buffer_store_dwordx2", v(re, 2), v(VQE), IO, s(so), mods="offen " + P["oaux"])
    b.wait_all()
    ps.at(10)
    ps.dump()
    tl.end(b)
    b.I("s_endpgm")


class PTail(Tail):
    def finish(self, b, role):
        nm, ps = self.name, self.ps
        b.I("s_setprio", 0)
        b.I("s_cmp_lg_u32", s(S_LO), 0)
        b.I("s_cbranch_scc1", f"{nm}_{role}_fin")
        snap = b.snapshot()
        ps.at(0)
        part_flag(b, nm)
        ps.at(1)
        if role == "A":
            gather(b, nm, 1, self.P, ps)
        else:
            lanes(b)
            b.I("buffer_load_dwordx4", v(RX, 4), v(0), WS, s(S_R), mods="offen sc1")
            b.I("buffer_load_dwordx4", v(RE, 4), v(VRE), WS, s(S_R), mods="offen offset:1024 sc1")
            b.I("buffer_load_dwordx4", v(RY, 4), v(0), WS, s(S_R), mods="offen offset:2048 sc1")
            xn_setup(b, 1, LOFF)
            b.I("s_mul_i32", s(6), s(S_W), 3072)
            b.I("s_add_u32", s(6), s(6), HO - 4 * 3072)
            b.I("v_add_u32", v(VQ), s(6), v(0))
            b.I("v_mov_b32", v(T + 10), fhex(OUTSCALE))
            b.wait(vm=0)
            b.barrier()
            b.I("ds_read_b128", v(LACC, 4), v(VQ))
            b.I("ds_read_b128", v(LACC + 4, 4), v(VQ), mods="offset:1024")
            b.I("ds_read_b128", v(T + 12, 4), v(VQ), mods="offset:2048")
            b.wait(lgkm=0)
        b.I("s_branch", f"{nm}_ln1")
        b.restore(snap)
        b.label(f"{nm}_{role}_fin")
        ps.at(8)
        part_flag(b, nm)
        if role == "A":
            gather(b, nm, 2, self.P, ps)
        else:
            b.wait_all()
            ps.dump()
            tl.end(b)
            b.I("s_endpgm")


def ln1(b, name, P, ps):
    b.hist, b.vmq, b.lgq = [], [], []
    b.label(f"{name}_ln1")
    b.nop(2)
    ps.at(4)
    b.I("v_mov_b32", v(7), 0)
    b.I("ds_write_b32", v(V_FW), v(7))
    for i in range(4):
        unpack(b, X + 2 * i, RX + i)
    for i in range(2):
        unpack(b, X + 8 + 2 * i, RE + i)
    SC = T + 10
    for i in range(4):
        b.I("v_pk_fma_f32", v(X + 2 * i, 2), v(LACC + 2 * i, 2), v(SC, 2), v(X + 2 * i, 2), mods="op_sel_hi:[1,0,1]")
    for i in range(2):
        b.I("v_pk_fma_f32", v(X + 8 + 2 * i, 2), v(T + 12 + 2 * i, 2), v(SC, 2), v(X + 8 + 2 * i, 2), mods="op_sel_hi:[1,0,1]")
    for i in range(4):
        unpack(b, Y + 2 * i, RY + i)
    for i in range(2):
        unpack(b, Y + 8 + 2 * i, RE + 2 + i)
    ln_math(b, 1, P, Stamps(b, False))
    ps.at(5)


def k_per(n0, **kw):
    P = dict(DEF)
    P.update(LDEF)
    P.update(dict(gsl=1, oaux="", pst=False))
    P.update(kw)
    b = AB()
    name = "per"
    ps = PSt(b, P["pst"])
    ln_phase(b, n0, 0, P, f"{name}_end")
    b.I("s_branch", f"{name}_pub")
    ln1(b, name, P, ps)
    b.vmq, b.lgq = [], []
    b.label(f"{name}_pub")
    publish(b, name, P)
    ps.at(6)
    b.I("s_cmp_ge_u32", s(S_W), 4)
    b.I("s_cbranch_scc1", f"{name}_B")
    snap = b.snapshot()
    tail = PTail(name, P)
    tail.ps = ps
    tail.after = lambda: ps.at(7)
    ffn_role(b, "A", P, name, tail)
    b.restore(snap)
    b.raw(".p2align 6")
    b.label(f"{name}_B")
    ffn_role(b, "B", P, name, tail)
    b.label(f"{name}_end")
    b.I("s_endpgm")
    return b
```

```python
from k_ffl import *
from k_per import PSt, lanes

PB1, LACC1 = 40, 76
PZ, PA, VHO, VMW = 230, 232, 233, 234
HO = FFN3_LDS
CNT = HO + 4 * 3072
PER_LDS = CNT + 64
S_FIN, S_MASK, S_PEND = 59, 58, 56
S_EX, S_TM, S_OR, S_RDY, S_N, S_W3 = 20, 22, 24, 25, 26, 27
ABITS, BBITS = 0x8888, 0x88880000
S_HOB = 22


def at2(b, ps, i0, i1, k, ret=False):
    if not ps.on:
        return ""
    op = "s_memrealtime" if ps.on == 2 else "s_memtime"
    t = f"  s_cmp_lg_u32 s{S_FIN}, 0\n  s_cbranch_scc1 st{k}_a\n"
    if i0 is not None:
        t += f"  {op} s[{60 + 2 * i0}:{61 + 2 * i0}]\n"
    t += f"  s_branch st{k}_b\nst{k}_a:\n"
    if i1 is not None:
        t += f"  {op} s[{60 + 2 * i1}:{61 + 2 * i1}]\n"
    t += f"st{k}_b:\n  s_waitcnt lgkmcnt(0)"
    if ret:
        return t + "\n"
    b.raw(t)


POLL = f"""  s_waitcnt vmcnt(0)
  v_cmp_ne_u32 vcc, 0, v{PZ}
  s_nop 1
  s_andn2_b32 s{S_EX}, s{S_EX}, vcc_lo
  s_lshr_b32 s54, vcc_lo, 1
  s_and_b32 s54, s54, vcc_lo
  s_lshr_b32 s55, s54, 2
  s_and_b32 s54, s54, s55
  s_and_b32 s54, s54, 0x11111111
  s_lshl_b32 s54, s54, 3
  v_mov_b32 v{V_T}, s54
  s_mov_b64 exec, 1
  ds_or_rtn_b32 v{V_F}, v{VMW}, v{V_T}
  s_mov_b64 exec, -1
  s_waitcnt lgkmcnt(0)
  v_readfirstlane_b32 s{S_MASK}, v{V_F}
  s_nop 1
  s_or_b32 s{S_MASK}, s{S_MASK}, s54
"""
READ = f"""  ds_read_b32 v{V_F}, v{VMW}
  s_waitcnt lgkmcnt(0)
  v_readfirstlane_b32 s{S_MASK}, v{V_F}
  s_nop 1
"""


def pissue(lab):
    return f"""  s_cmp_eq_u32 s{S_EX}, 0
  s_cbranch_scc1 {lab}
  s_mov_b64 exec, s[{S_EX}:{S_EX + 1}]
  buffer_load_dword v{PZ}, v{PA}, s[8:11], s{S_A} offen sc1
  s_mov_b64 exec, -1
{lab}:
"""


def seam(b, name, P, ps):
    t0, t1 = T, T + 1
    nm = f"{name}_s"
    b.hist, b.vmq, b.lgq = [], [], []
    b.label(f"{name}_seam")
    b.I("s_setprio", P["sprio"])
    b.I("s_mov_b32", s(S_FIN), s(S_LO))
    at2(b, ps, 0, 8, 0)
    b.I("s_lshl_b32", s(6), s(2), 7)
    b.I("s_and_b32", s(14), s(S_W), 4)
    b.I("s_add_u32", s(6), s(6), s(14))
    b.I("s_mov_b32", s(15), s(14))
    b.I("s_add_u32", s(14), s(14), CNT)
    b.I("s_add_u32", s(7), s(S_LAY), PF - FLG)
    b.I("s_add_u32", s(6), s(6), s(7))
    b.I("s_lshl_b32", s(S_A), s(5), 11)
    b.I("s_add_u32", s(S_A), s(S_A), s(7))
    b.I("v_mov_b32", v(V_T), 0)
    b.I("v_mov_b32", v(V_Z), 1)
    b.I("v_mov_b32", v(V_F), s(14))
    b.I("s_lshl_b32", s(13), s(5), 6)
    b.I("s_add_u32", s(13), s(13), s(4))
    b.I("s_mul_i32", s(13), s(13), 18432)
    b.I("s_add_u32", s(13), s(13), PART)
    b.I("s_add_u32", s(13), s(13), s(S_LO))
    b.I("s_lshl_b32", s(7), s(S_TOK), 5)
    b.I("s_add_u32", s(S_PXS), s(13), s(7))
    b.I("s_add_u32", s(S_P), s(S_PXS), s(7))
    b.I("s_add_u32", s(S_PXS), s(S_PXS), 8192)
    b.I("s_and_b32", s(S_W3), s(S_W), 3)
    b.I("s_lshl_b32", s(S_HOB), s(S_W3), 2)
    b.I("s_lshl_b32", s(S_HOB), 1, s(S_HOB))
    b.I("s_cmp_eq_u32", s(S_W), 0)
    b.I("s_cselect_b32", s(S_EX), 0xffff, 0)
    b.I("s_cmp_eq_u32", s(S_W), 4)
    b.I("s_cselect_b32", s(S_EX), -1, s(S_EX))
    b.I("s_mov_b32", s(S_EX + 1), 0)
    b.I("s_mov_b64", "exec", 1)
    b.force_wait("vmcnt(0)")
    b.raw(f"""  ds_add_rtn_u32 v{V_F}, v{V_F}, v{V_Z}
  s_waitcnt lgkmcnt(0)
  v_cmp_eq_u32 vcc, 3, v{V_F}
  s_cbranch_vccz {nm}_nf
  buffer_store_dword v{V_Z}, v{V_T}, s[8:11], s6 offen sc1
  v_mov_b32 v{V_F}, {CNT + 8}
  v_mov_b32 v{V_T}, s15
  ds_or_b32 v{V_F}, v{V_T}
{nm}_nf:""")
    b.I("s_mov_b64", "exec", -1)
    at2(b, ps, 1, None, 1)
    lanes(b)
    b.I("v_and_b32", v(PA), 15, v(LANE))
    b.I("v_lshlrev_b32", v(PA), 7, v(PA))
    b.I("v_lshl_add_u32", v(PA), v(GL), 2, v(PA))
    b.I("v_mov_b32", v(PZ), 0)
    b.I("v_mov_b32", v(VMW), CNT + 8)
    b.raw(pissue(nm + "_p0"))
    ra = "sc1"
    b.I("buffer_load_dwordx4", v(RX, 4), v(0), WS, s(S_R), mods="offen " + ra)
    b.I("buffer_load_dwordx4", v(RE, 4), v(VRE), WS, s(S_R), mods="offen offset:1024 " + ra)
    b.I("v_mul_u32_u24", v(VP), 147456, v(G))
    b.I("v_lshl_add_u32", v(VP), v(DS), 10, v(VP))
    b.I("v_lshl_add_u32", v(VP), v(CQ), 4, v(VP))
    b.I("v_and_b32", v(t0), 1, v(DS))
    b.I("v_lshl_add_u32", v(t1), v(t0), 2, v(G))
    b.I("v_mul_u32_u24", v(VPX), 147456, v(t1))
    b.I("v_mul_u32_u24", v(t0), 3, v(t0))
    b.I("v_xor_b32", v(t0), v(t0), v(CQ))
    b.I("v_lshl_add_u32", v(VPX), v(t0), 3, v(VPX))
    b.I("v_lshrrev_b32", v(t0), 1, v(DS))
    b.I("v_mul_u32_u24", v(t0), 9216, v(t0))
    b.I("v_add_u32", v(VPX), v(VPX), v(t0))
    b.I("v_and_b32", v(t1), 15, v(LANE))
    b.I("v_and_b32", v(t0), 1, v(LANE))
    b.I("v_lshlrev_b32", v(t0), 4, v(t0))
    b.I("v_mov_b32", v(T + 2), 0x3f80)
    b.I("v_lshlrev_b32", v(T + 2), v(t0), v(T + 2))
    b.I("v_lshrrev_b32", v(t1), 1, v(t1))
    for r in range(8):
        b.I("v_cmp_eq_u32_e64", s(28 if r % 2 == 0 else 32, 2), r, v(t1))
        if r > 0:
            b.I("v_cndmask_b32_e64", v(A1 + r - 1), 0, v(T + 2), s(28 if (r - 1) % 2 == 0 else 32, 2))
    b.I("v_cndmask_b32_e64", v(A1 + 7), 0, v(T + 2), s(32, 2))
    b.I("s_mul_i32", s(6), s(S_W3), 3072)
    b.I("s_add_u32", s(6), s(6), HO)
    b.I("v_add_u32", v(VHO), s(6), v(0))
    for r in range(4):
        b.I("v_mov_b32", v(T + 12 + r), 0)
        b.I("v_mov_b32", v(Y + r), 0)
    b.I("v_mov_b32", v(T + 10), fhex(OUTSCALE))
    b.I("s_cmp_lg_u32", s(S_FIN), 0)
    b.I("s_cbranch_scc1", f"{nm}_f1")
    snap = b.snapshot()
    b.I("buffer_load_dwordx4", v(RY, 4), v(0), WS, s(S_R), mods="offen offset:2048 " + ra)
    xn_setup(b, 1, LOFF)
    b.I("s_branch", f"{nm}_f2")
    b.restore(snap)
    b.label(f"{nm}_f1")
    b.I("s_load_dwordx2", s(48, 2), s(0, 2), 80)
    b.I("v_and_b32", v(t0), 15, v(LANE))
    b.I("v_lshlrev_b32", v(VQ), 4, v(t0))
    b.I("v_lshl_add_u32", v(VQ), v(GH), 8, v(VQ))
    b.I("v_mul_u32_u24", v(t0), 576, v(GL))
    b.I("v_add_u32", v(VQ), v(VQ), v(t0))
    b.I("v_lshrrev_b32", v(t0), 1, v(DS))
    b.I("v_mul_u32_u24", v(t0), 576, v(t0))
    b.I("v_lshl_add_u32", v(t0), v(CQ), 4, v(t0))
    b.I("v_lshl_add_u32", v(t0), v(GL), 3, v(t0))
    b.I("v_add_u32", v(t0), 512, v(t0))
    b.I("v_and_b32", v(t1), 0x24, v(LANE))
    b.I("v_lshl_add_u32", v(VQE), v(t1), 24, v(t0))
    b.I("s_mov_b32", s(50), S * D * 2)
    b.I("s_mov_b32", s(51), 0x20000)
    b.wait(lgkm=0)
    b.label(f"{nm}_f2")
    b.vmq, b.lgq = [], []
    b.I("s_cmp_ge_u32", s(S_W), 4)
    b.I("s_cbranch_scc1", f"{nm}_B0")

    def kc(a_, h, jj):
        return a_ * 4 + h * 2 + jj, jj * 589824 + a_ * 9216 + h * 4096, 3 + 16 * h + 8 * a_ + 4 * jj

    if P["psta"]:
        at2(b, ps, 6, None, 6)
    gate = f"  s_bitcmp1_b32 s{S_MASK}, 2\n  s_cbranch_scc0 {nm}_A3\n" if P["gateb"] else ""
    txt = f"""  s_mov_b32 s{S_PEND}, {ABITS | 2}
  s_mov_b32 s{S_CNT}, 0x20000
{nm}_Al:
  s_cmp_eq_u32 s{S_EX}, 0
  s_cbranch_scc1 {nm}_Ar
{POLL}  s_branch {nm}_Ag
{nm}_Ar:
{READ}{nm}_Ag:
{gate}  s_and_b32 s{S_RDY}, s{S_MASK}, s{S_PEND}
  s_cbranch_scc0 {nm}_A3
  s_andn2_b32 s{S_PEND}, s{S_PEND}, s{S_RDY}
"""
    u = 0
    for jj in range(2):
        for a_ in range(2):
            k, c, bit = kc(a_, 0, jj)
            txt += f"""  s_bitcmp1_b32 s{S_RDY}, {bit}
  s_cbranch_scc0 {nm}_A{u}
  s_add_u32 s6, s{S_P}, {c}
  buffer_load_dwordx4 v[{PB + 4 * k}:{PB + 4 * k + 3}], v{VP}, s[8:11], s6 offen sc1
  buffer_load_dwordx4 v[{PB1 + 4 * k}:{PB1 + 4 * k + 3}], v{VP}, s[8:11], s6 offen offset:256 sc1
{nm}_A{u}:
"""
            u += 1
    txt += f"""  s_cmp_eq_u32 s{S_PEND}, 2
  s_cbranch_scc1 {nm}_Ad
  s_sleep {P["gsl"]}
{pissue(nm + "_Ap")}  s_sub_u32 s{S_CNT}, s{S_CNT}, 1
  s_cbranch_scc0 {nm}_Al
{nm}_Ad:
"""
    if P["psta"]:
        txt += at2(b, ps, 5, None, 5, True)
    for hh in range(2):
        txt += f"  buffer_load_dwordx2 v[{PB + 32 + 2 * hh}:{PB + 33 + 2 * hh}], v{VPX}, s[8:11], s{S_PXS} offen offset:{512 * hh} sc1\n"
        txt += f"  buffer_load_dwordx2 v[{PB1 + 32 + 2 * hh}:{PB1 + 33 + 2 * hh}], v{VPX}, s[8:11], s{S_PXS} offen offset:{512 * hh + 128} sc1\n"
    txt += f"""  s_mov_b32 s{S_EX}, 0
  s_waitcnt vmcnt(0)"""
    b.raw(txt)
    at2(b, ps, 3, None, 3)
    for (pb, la) in ((PB1, LACC1), (PB, LACC)):
        b.I(MF, v(la + 8, 4), v(A1, 4), v(pb + 32, 4), "0")
        for jj in range(2):
            for a_ in range(2):
                d = v(la + 4 * a_, 4)
                b.I(MF, d, v(A1, 4), v(pb + 4 * kc(a_, 0, jj)[0], 4), "0" if jj == 0 else d)
    dpp = "row_half_mirror row_mask:0x3 bank_mask:0x5"
    for r in range(4):
        b.I("v_add_f32_dpp", v(Y + r), v(LACC1 + 8 + r), v(LACC1 + 8 + r), mods=dpp)
    b.I("ds_write_b128", v(VHO), v(LACC1, 4))
    b.I("ds_write_b128", v(VHO), v(LACC1 + 4, 4), mods="offset:1024")
    b.I("ds_write_b128", v(VHO), v(Y, 4), mods="offset:2048")
    b.I("v_mov_b32", v(V_T), s(S_HOB))
    b.I("s_mov_b64", "exec", 1)
    b.I("ds_or_b32", v(VMW), v(V_T))
    b.I("s_mov_b64", "exec", -1)
    for r in range(4):
        b.I("v_add_f32_dpp", v(T + 12 + r), v(LACC + 8 + r), v(LACC + 8 + r), mods=dpp)
    b.I("s_mov_b32", s(S_PEND), BBITS)
    b.I("s_branch", f"{nm}_B1")
    b.label(f"{nm}_B0")
    b.I("s_or_b32", s(S_PEND), s(S_HOB), BBITS)
    b.label(f"{nm}_B1")
    txt = f"""  s_mov_b32 s{S_CNT}, 0x20000
{nm}_Bl:
  s_cmp_eq_u32 s{S_EX}, 0
  s_cbranch_scc1 {nm}_Br
{POLL}  s_cmp_eq_u32 s{S_EX}, 0
  s_cbranch_scc1 {nm}_Bg
  s_sleep {P["gslb"]}
{pissue(nm + "_Bp")}  s_branch {nm}_Bn
{nm}_Br:
{READ}{nm}_Bg:
  s_and_b32 s{S_RDY}, s{S_MASK}, s{S_PEND}
  s_cbranch_scc0 {nm}_Bs
"""
    u = 0
    for jj in range(2):
        for a_ in range(2):
            k, c, bit = kc(a_, 1, jj)
            txt += f"""  s_bitcmp1_b32 s{S_RDY}, {bit}
  s_cbranch_scc0 {nm}_Bu{u}
  s_add_u32 s6, s{S_P}, {c}
  buffer_load_dwordx4 v[{PB + 4 * k}:{PB + 4 * k + 3}], v{VP}, s[8:11], s6 offen sc1
{nm}_Bu{u}:
"""
            u += 1
    txt += f"""  s_and_b32 s6, s{S_RDY}, 0xffff
  s_cbranch_scc0 {nm}_Bh
  ds_read_b128 v[{LACC}:{LACC + 3}], v{VHO}
  ds_read_b128 v[{LACC + 4}:{LACC + 7}], v{VHO} offset:1024
  ds_read_b128 v[{T + 12}:{T + 15}], v{VHO} offset:2048
{nm}_Bh:
  s_andn2_b32 s{S_PEND}, s{S_PEND}, s{S_RDY}
  s_cbranch_scc0 {nm}_Bd
{nm}_Bs:
  s_sleep {P["lsl"]}
{nm}_Bn:
  s_sub_u32 s{S_CNT}, s{S_CNT}, 1
  s_cbranch_scc0 {nm}_Bl
{nm}_Bd:"""
    b.raw(txt)
    b.hist, b.vmq, b.lgq = [], [], []
    at2(b, ps, 2, 9, 2)
    b.force_wait("vmcnt(4)")
    for i in range(4):
        unpack(b, X + 2 * i, RX + i)
    for i in range(2):
        unpack(b, X + 8 + 2 * i, RE + i)
    for i in range(4):
        unpack(b, Y + 2 * i, RY + i)
    for i in range(2):
        unpack(b, Y + 8 + 2 * i, RE + 2 + i)
    b.force_wait("lgkmcnt(0)")
    SC = T + 10
    for i in range(2):
        b.I("v_pk_fma_f32", v(X + 8 + 2 * i, 2), v(T + 12 + 2 * i, 2), v(SC, 2), v(X + 8 + 2 * i, 2), mods="op_sel_hi:[1,0,1]")
    b.force_wait("vmcnt(0)")
    for jj in range(2):
        for a_ in range(2):
            d = v(LACC + 4 * a_, 4)
            b.I(MF, d, v(A2, 4), v(PB + 4 * kc(a_, 1, jj)[0], 4), d)
    at2(b, ps, 4, None, 4)
    for i in range(4):
        b.I("v_pk_fma_f32", v(X + 2 * i, 2), v(LACC + 2 * i, 2), v(SC, 2), v(X + 2 * i, 2), mods="op_sel_hi:[1,0,1]")
    b.I("s_cmp_lg_u32", s(S_FIN), 0)
    b.I("s_cbranch_scc0", f"{name}_ln1")
    snap = b.snapshot()
    for i in range(6):
        b.I("v_cvt_pk_bf16_f32", v(RX + i), v(X + 2 * i), v(X + 2 * i + 1))
    b.I("v_permlane16_swap_b32", v(RX), v(RX + 2))
    b.I("v_permlane16_swap_b32", v(RX + 1), v(RX + 3))
    b.I("buffer_store_dwordx4", v(RX, 4), v(VQ), IO, s(S_B), mods="offen " + P["oaux"])
    b.I("buffer_store_dwordx2", v(RE, 2), v(VQE), IO, s(S_B), mods="offen " + P["oaux"])
    b.wait_all()
    ps.at(10)
    ps.dump()
    tl.end(b)
    b.I("s_endpgm")
    b.restore(snap)
    b.label(f"{name}_ln1")
    ln_math(b, 1, P, Stamps(b, False))
    if not P["psta"]:
        ps.at(5)


class PTail(Tail):
    def finish(self, b, role):
        b.I("s_branch", f"{self.name}_seam")


def k_per2(n0, **kw):
    P = dict(DEF)
    P.update(LDEF)
    P.update(dict(gsl=2, gslb=1, lsl=1, thr=2, sprio=0, oaux="", pst=False, zpub=CNT, psta=False, gateb=True))
    P.update(kw)
    b = AB()
    name = "per"
    ps = PSt(b, P["pst"])
    ln_phase(b, n0, 0, P, f"{name}_end")
    b.I("s_branch", f"{name}_pub")
    seam(b, name, P, ps)
    b.vmq, b.lgq = [], []
    b.label(f"{name}_pub")
    publish(b, name, P)
    if not P["psta"]:
        ps.at(6)
    b.I("s_cmp_ge_u32", s(S_W), 4)
    b.I("s_cbranch_scc1", f"{name}_B")
    snap = b.snapshot()
    tail = PTail(name, P)
    tail.after = lambda: ps.at(7)
    ffn_role(b, "A", P, name, tail)
    b.restore(snap)
    b.raw(".p2align 6")
    b.label(f"{name}_B")
    ffn_role(b, "B", P, name, tail)
    b.label(f"{name}_end")
    b.I("s_endpgm")
    return b
```

```python
S, D, F = 2048, 576, 4608
KVT  = 0x0
YB   = 0x240000
X1   = 0x480000
X3   = 0x6C0000
XN   = 0x900000
WGU  = 0xC00000
WD   = WGU + 144*18*4*1024
PART = 0x1C00000
HX   = 0x3000000
FLG  = 0x4200000
KFL  = 0x4280000
FLG_L = 0x20000
XF   = FLG + 0x10000
PF   = FLG + 0x18000
LOFF = 0x6000000
ZERO_BYTES = 0x40000
REC  = 0x4400000
STAMP= 0x4300000
WS_BYTES = 0x10000000
import math
C2 = -2.0*math.log2(math.e)*math.sqrt(2.0/math.pi)
C1 = 0.044715*C2
ALPHA = (-C1)**(1.0/3.0)
KP = (1.0/0.044715)*ALPHA*ALPHA
OUTSCALE = 1.0/(ALPHA*ALPHA)
import struct
def f2u(x): return struct.unpack("<I", struct.pack("<f", x))[0]
def fhex(x): return hex(f2u(x))
```

```python
import sys
sys.path.insert(0, "dev")
import tl
tl.ON = "--tl" in sys.argv
from gen import *
for a in sys.argv[1:]:
    if a == "--tl": continue
    nm, _, js = a.partition("=")
    kw = eval("dict(" + js + ")") if js else {}
    f = kw.pop('f', {}); z = kw.pop('z', {})
    txt, ks = full5(front_kw=kw, ffn_kw=f)
    open(f"dev/{nm}{'_tl' if tl.ON else ''}.s", "w").write(txt)
```

```python
from ab import *
from lay import *
import tl
from k_ffn4 import *
from k_ffn4 import ffn_role, DEF

YS_LDS, XT = 0, 16384
LANE, CQ, DS, G, GL, GH = 5, 90, 91, 92, 93, 94
VP, VPX, VQ, VQE = 96, 97, 98, 99
PB = 100
RX, RE, RY = 136, 140, 144
A1, A2 = 148, 152
LACC = 156
X, Y, T = 168, 180, 192
XO, VXS, VXR, VXW, VXE = 208, 216, 217, 218, 219
VYD, YA0, YA1, YAE = 220, 221, 222, 223
PFD, PFA = 224, 228
VRE = 229
S_P, S_PXS, S_R, S_XFO, S_XFG, S_XS, S_TOK, S_A, S_B, S_LAY = 40, 41, 42, 43, 44, 45, 46, 47, 52, 53
S_LO = 57
IO = s(48, 4)
WS = s(8, 4)
VALID = 0x0F0F0F0F


def pf_code(b, name, first, last):
    b.raw(f"  s_getpc_b64 s[54:55]\n{name}_pc:")
    b.raw(f"  s_add_u32 s54, s54, {first}-{name}_pc\n  s_addc_u32 s55, s55, 0" if True else "")
    b.I("s_lshr_b32", s(56), s(2), 3)
    b.I("s_lshl_b32", s(56), s(56), 13)
    b.I("v_add_u32", v(PFA), s(56), v(PFA))
    b.raw(f"  v_min_u32 v{PFA}, {last}-{first}-16, v{PFA}")
    b.I("global_load_dwordx4", v(PFD, 4), v(PFA), s(54, 2))


def ffn_setup(b):
    b.I("v_add_u32", v(1), 0x10000, v(0))
    b.I("v_add_u32", v(2), 0x20000, v(0))
    b.I("v_and_b32", v(6), 15, v(5))
    b.I("v_lshrrev_b32", v(7), 4, v(5))
    b.I("v_lshl_add_u32", v(6), v(6), 2, v(7))
    b.I("v_lshlrev_b32", v(VS), 4, v(6))
    b.I("v_lshlrev_b32", v(VS2), 3, v(6))
    b.I("s_lshl_b32", s(13), s(4), 1)
    b.I("s_add_u32", s(13), s(13), s(12))
    b.I("s_xor_b32", s(14), s(13), 1)
    b.I("s_mul_i32", s(6), s(13), 9)
    b.I("s_add_u32", s(7), s(6), s(S_W))
    b.I("s_mul_i32", s(S_GU), s(7), 18 * 4096)
    b.I("s_add_u32", s(S_GU), s(S_GU), WGU)
    b.I("s_add_u32", s(7), s(6), 8)
    b.I("s_mul_i32", s(S_GUX), s(7), 18 * 4096)
    b.I("s_lshl_b32", s(7), s(S_W), 10)
    b.I("s_add_u32", s(S_GUX), s(S_GUX), s(7))
    b.I("s_add_u32", s(S_GUX), s(S_GUX), WGU)
    b.I("s_and_b32", s(19), s(S_W), 3)
    b.I("s_lshl_b32", s(S_XL), s(19), 11)
    b.I("s_lshl_b32", s(S_W8), s(19), 13)
    b.I("s_mul_i32", s(S_XG), s(5), 147456)
    b.I("s_add_u32", s(S_XG), s(S_XG), s(S_XL))
    b.I("s_add_u32", s(S_XG), s(S_XG), XN)
    b.I("s_add_u32", s(S_XG), s(S_XG), s(S_LO))
    b.I("s_mul_i32", s(15), s(12), 18 * 1024)
    b.I("s_add_u32", s(15), s(15), WD)
    b.I("s_lshl_b32", s(16), s(S_W), 11)
    b.I("s_and_b32", s(17), s(S_W), 1)
    b.I("s_lshl_b32", s(17), s(17), 10)
    b.I("s_add_u32", s(17), s(17), 16 * 1024)
    for (sm, sx, f) in ((S_DO, S_DOX, 13), (S_DP, S_DPX, 14)):
        b.I("s_mul_i32", s(7), s(f), 9 * 36 * 1024)
        b.I("s_add_u32", s(7), s(7), s(15))
        b.I("s_add_u32", s(sm), s(7), s(16))
        b.I("s_add_u32", s(sx), s(7), s(17))
    b.I("s_lshl_b32", s(7), s(5), 3)
    b.I("s_add_u32", s(7), s(7), s(4))
    b.I("s_mul_i32", s(7), s(7), 8 * 18432)
    b.I("s_mul_i32", s(15), s(12), 9 * 1024)
    b.I("s_add_u32", s(7), s(7), s(15))
    b.I("s_add_u32", s(7), s(7), PART)
    b.I("s_add_u32", s(7), s(7), s(S_LO))
    b.I("s_lshl_b32", s(15), s(S_W), 10)
    b.I("s_add_u32", s(S_PM), s(7), s(15))
    b.I("s_and_b32", s(15), s(S_W), 1)
    b.I("s_lshl_b32", s(15), s(15), 9)
    b.I("s_add_u32", s(S_PX), s(7), s(15))
    b.I("s_add_u32", s(S_PX), s(S_PX), 8192)
    b.I("s_cmp_ge_u32", s(S_W), 4)
    b.I("s_cselect_b32", s(17), 5 * 8192, 0)
    b.I("s_cselect_b32", s(16), 10 * 8192, 0)
    b.I("s_add_u32", s(17), s(17), s(S_W8))
    b.I("s_add_u32", s(16), s(16), s(S_W8))
    b.I("v_add_u32", v(V_HW), s(16), v(0))
    b.I("s_lshl_b32", s(7), s(5), 4)
    for (sh, shx, sf, f) in ((S_HO, S_HOX, S_FO, 13), (S_HP, S_HPX, S_FP, 14)):
        b.I("s_add_u32", s(15), s(7), s(f))
        b.I("s_lshl_b32", s(sf), s(15), 8)
        b.I("s_add_u32", s(sf), s(sf), s(S_LAY))
        b.I("s_lshl_b32", s(16), s(S_W if sf == S_FO else 19), 5)
        b.I("s_add_u32", s(sf), s(sf), s(16))
        b.I("s_mul_i32", s(15), s(15), 73728)
        b.I("s_add_u32", s(15), s(15), HX)
        b.I("s_add_u32", s(15), s(15), s(S_LO))
        b.I("s_add_u32", s(sh), s(15), s(17 if sh == S_HO else S_W8))
        b.I("s_add_u32", s(shx), s(15), s(S_XL))
        b.I("s_add_u32", s(shx), s(shx), 32768)
    b.I("s_lshl_b32", s(7), s(S_W), 2)
    b.I("s_add_u32", s(7), s(7), 4 * 8192)
    b.I("v_add_u32", v(V_HWX), s(7), v(0))
    b.I("v_and_b32", v(6), 3, v(5))
    b.I("v_lshlrev_b32", v(6), 8, v(6))
    b.I("v_add_u32", v(V_FR), LDS_FX, v(6))
    b.I("s_cmp_eq_u32", s(S_W), 2)
    b.I("s_cselect_b32", s(7), 1, 0)
    b.I("s_cmp_eq_u32", s(S_W), 3)
    b.I("s_cselect_b32", s(7), 1, s(7))
    b.I("s_lshl_b32", s(S_H4), s(7), 10)
    b.I("s_mul_i32", s(7), s(7), 18432)
    b.I("s_sub_u32", s(S_PMH), s(S_PM), s(7))
    b.I("s_add_u32", s(S_PM), s(S_PM), s(7))
    b.I("s_add_u32", s(S_PX), s(S_PX), s(7))


def xn_setup(b, layer, LO=0):
    b.I("s_mov_b32", s(S_LO), layer * LO)
    b.I("s_mov_b32", s(S_LAY), FLG + layer * FLG_L)
    b.I("s_lshl_b32", s(S_XFO), s(2), 7)
    b.I("s_add_u32", s(S_XFO), s(S_XFO), XF + layer * FLG_L)
    b.I("s_lshl_b32", s(S_XFG), s(5), 11)
    b.I("s_add_u32", s(S_XFG), s(S_XFG), XF + layer * FLG_L)
    b.I("s_mul_i32", s(S_XS), s(5), 147456)
    b.I("s_lshl_b32", s(7), s(4), 10)
    b.I("s_add_u32", s(S_XS), s(S_XS), s(7))
    b.I("s_lshl_b32", s(7), s(12), 7)
    b.I("s_add_u32", s(S_XS), s(S_XS), s(7))
    b.I("s_lshl_b32", s(7), s(S_W), 14)
    b.I("s_add_u32", s(S_XS), s(S_XS), s(7))
    b.I("s_add_u32", s(S_XS), s(S_XS), XN + layer * LO)
    t0, t1 = T, T + 1
    b.I("v_lshrrev_b32", v(t0), 3, v(LANE))
    b.I("v_and_b32", v(t1), 7, v(LANE))
    b.I("v_xor_b32", v(t1), v(t1), v(t0))
    b.I("v_lshlrev_b32", v(VXS), 4, v(t1))
    b.I("v_and_b32", v(t1), 3, v(t0))
    b.I("v_lshl_add_u32", v(VXS), v(t1), 8, v(VXS))
    b.I("v_lshl_add_u32", v(VXS), v(GH), 13, v(VXS))
    b.I("s_lshl_b32", s(7), s(S_W), 10)
    b.I("s_add_u32", s(7), s(7), XT)
    b.I("v_add_u32", v(VXR), s(7), v(0))
    b.I("v_and_b32", v(t0), 15, v(LANE))
    b.I("v_lshl_add_u32", v(t0), v(GH), 4, v(t0))
    b.I("v_mad_u32_u24", v(t0), v(GL), 36, v(t0))
    b.I("v_and_b32", v(t1), 7, v(t0))
    b.I("v_xor_b32", v(t1), s(S_W), v(t1))
    b.I("v_lshlrev_b32", v(t1), 4, v(t1))
    b.I("v_lshl_add_u32", v(VXW), v(t0), 7, v(t1))
    b.I("v_add_u32", v(VXW), XT, v(VXW))
    b.I("v_lshrrev_b32", v(t0), 1, v(DS))
    b.I("v_mad_u32_u24", v(t0), v(t0), 36, v(CQ))
    b.I("v_and_b32", v(t1), 7, v(t0))
    b.I("v_xor_b32", v(t1), s(S_W), v(t1))
    b.I("v_lshlrev_b32", v(t1), 4, v(t1))
    b.I("v_lshl_add_u32", v(VXE), v(t0), 7, v(t1))
    b.I("v_lshl_add_u32", v(VXE), v(GL), 3, v(VXE))
    b.I("v_add_u32", v(VXE), XT + 32 * 128, v(VXE))


def allreduce2(b, x0, x1, t0, t1):
    for m in ("quad_perm:[1,0,3,2]", "quad_perm:[2,3,0,1]", "row_half_mirror", "row_mirror"):
        for x in (x0, x1):
            b.I("v_add_f32_dpp", v(x), v(x), v(x), mods=m + " row_mask:0xf bank_mask:0xf")
    for op in ("v_permlane16_swap_b32", "v_permlane32_swap_b32"):
        b.I("v_mov_b32", v(t0), v(x0))
        b.I("v_mov_b32", v(t1), v(x1))
        b.I(op, v(t0), v(x0))
        b.I(op, v(t1), v(x1))
        b.I("v_add_f32", v(x0), v(x0), v(t0))
        b.I("v_add_f32", v(x1), v(x1), v(t1))


def rbf(b, x):
    b.I("v_cvt_pk_bf16_f32", v(x), v(x), v(x))
    b.I("v_lshlrev_b32", v(x), 16, v(x))


def stats(b, scale=None):
    p0, p1, q0, q1 = T, T + 2, T + 4, T + 6
    R, M = T + 8, T + 10
    b.I("v_pk_add_f32", v(p0, 2), v(X, 2), v(X + 2, 2))
    b.I("v_pk_mul_f32", v(q0, 2), v(X, 2), v(X, 2))
    b.I("v_pk_add_f32", v(p1, 2), v(X + 4, 2), v(X + 6, 2))
    b.I("v_pk_mul_f32", v(q1, 2), v(X + 2, 2), v(X + 2, 2))
    b.I("v_pk_add_f32", v(p0, 2), v(p0, 2), v(X + 8, 2))
    b.I("v_pk_fma_f32", v(q0, 2), v(X + 4, 2), v(X + 4, 2), v(q0, 2))
    b.I("v_pk_add_f32", v(p1, 2), v(p1, 2), v(X + 10, 2))
    b.I("v_pk_fma_f32", v(q1, 2), v(X + 6, 2), v(X + 6, 2), v(q1, 2))
    b.I("v_pk_fma_f32", v(q0, 2), v(X + 8, 2), v(X + 8, 2), v(q0, 2))
    b.I("v_pk_fma_f32", v(q1, 2), v(X + 10, 2), v(X + 10, 2), v(q1, 2))
    b.I("v_pk_add_f32", v(p0, 2), v(p0, 2), v(p1, 2))
    b.I("v_pk_add_f32", v(q0, 2), v(q0, 2), v(q1, 2))
    b.I("v_add_f32", v(M), v(p0), v(p0 + 1))
    b.I("v_add_f32", v(R), v(q0), v(q0 + 1))
    allreduce2(b, M, R, T, T + 1)
    b.I("v_mul_f32", v(M), fhex(-1.0 / 576), v(M))
    b.I("v_mul_f32", v(R), fhex(1.0 / 576), v(R))
    b.I("v_fma_f32", v(R), "-" + v(M), v(M), v(R))
    b.I("v_cvt_pk_bf16_f32", v(M), v(M), v(M))
    b.I("v_max_f32", v(R), 0, v(R))
    b.I("v_lshlrev_b32", v(M), 16, v(M))
    rbf(b, R)
    b.I("v_add_f32", v(R), fhex(1e-5), v(R))
    rbf(b, R)
    b.I("v_sqrt_f32", v(R), v(R))
    rbf(b, R)
    b.I("v_rcp_f32", v(R), v(R))
    if scale is not None:
        b.I("v_mul_f32", v(R), fhex(scale), v(R))
    b.I("v_mul_f32", v(M), v(M), v(R))
    return R, M


def unpack(b, dst, src):
    b.I("v_lshlrev_b32", v(dst), 16, v(src))
    b.I("v_and_b32", v(dst + 1), 0xffff0000, v(src))


def ln_phase(b, name, mode, P, endlab):
    st = Stamps(b, P["stamps"] and mode != 2, base=60)
    b.raw(f".globl {name}\n.p2align 8\n.type {name},@function\n{name}:")
    tl.start(b)
    b.I("s_load_dwordx2", s(8, 2), s(0, 2), 96)
    if mode != 1:
        b.I("s_load_dwordx2", s(48, 2), s(0, 2), 0 if mode == 0 else 80)
    b.I("s_cmp_ge_u32", s(2), 256)
    b.I("s_cbranch_scc1", endlab)
    st()
    if P.get("hook0"):
        P["hook0"]()
    if P.get("body"):
        st.on = False
    b.I("v_lshrrev_b32", v(4), 6, v(0))
    b.I("v_and_b32", v(LANE), 63, v(0))
    b.I("v_readfirstlane_b32", s(S_W), v(4))
    b.I("v_lshlrev_b32", v(PFA), 4, v(0))
    b.I("v_lshlrev_b32", v(6), 2, v(0))
    b.I("v_lshlrev_b32", v(0), 4, v(LANE))
    b.I("v_and_b32", v(CQ), 3, v(LANE))
    b.I("v_bfe_u32", v(DS), v(LANE), 2, 2)
    b.I("v_lshrrev_b32", v(G), 4, v(LANE))
    b.I("v_and_b32", v(GL), 1, v(G))
    b.I("v_lshrrev_b32", v(GH), 1, v(G))
    b.I("s_mov_b32", s(10), WS_BYTES)
    b.I("s_mov_b32", s(11), 0x20000)
    b.I("s_and_b32", s(4), s(2), 7)
    b.I("s_bfe_u32", s(12), s(2), 0x10003)
    b.I("s_lshr_b32", s(5), s(2), 4)
    b.I("s_lshl_b32", s(S_TOK), s(12), 3)
    b.I("s_add_u32", s(S_TOK), s(S_TOK), s(S_W))
    b.I("s_lshl_b32", s(S_R), s(2), 3)
    b.I("s_add_u32", s(S_R), s(S_R), s(S_W))
    b.I("s_mul_i32", s(S_R), s(S_R), 3072)
    b.I("s_add_u32", s(S_R), s(S_R), REC)
    t0, t1 = T, T + 1
    b.I("v_and_b32", v(t0), 0x24, v(LANE))
    b.I("v_lshrrev_b32", v(t1), 1, v(LANE))
    b.I("v_and_b32", v(t1), 12, v(t1))
    b.I("v_or_b32", v(t1), v(t1), v(CQ))
    b.I("v_lshlrev_b32", v(t1), 4, v(t1))
    b.I("v_lshl_add_u32", v(VRE), v(t0), 26, v(t1))
    if mode != 0:
        b.I("v_mul_u32_u24", v(VP), 147456, v(G))
        b.I("v_lshl_add_u32", v(VP), v(DS), 10, v(VP))
        b.I("v_lshl_add_u32", v(VP), v(CQ), 4, v(VP))
        b.I("s_lshl_b32", s(6), s(5), 6)
        b.I("s_add_u32", s(6), s(6), s(4))
        b.I("s_mul_i32", s(6), s(6), 18432)
        b.I("s_add_u32", s(6), s(6), PART)
        b.I("s_lshl_b32", s(7), s(S_TOK), 5)
        b.I("s_add_u32", s(S_PXS), s(6), s(7))
        b.I("s_add_u32", s(S_P), s(S_PXS), s(7))
        b.I("s_add_u32", s(S_PXS), s(S_PXS), 8192)
        b.I("v_and_b32", v(t0), 1, v(DS))
        b.I("v_lshl_add_u32", v(t1), v(t0), 2, v(G))
        b.I("v_mul_u32_u24", v(VPX), 147456, v(t1))
        b.I("v_mul_u32_u24", v(t0), 3, v(t0))
        b.I("v_xor_b32", v(t0), v(t0), v(CQ))
        b.I("v_lshl_add_u32", v(VPX), v(t0), 3, v(VPX))
        b.I("v_lshrrev_b32", v(t0), 1, v(DS))
        b.I("v_mul_u32_u24", v(t0), 9216, v(t0))
        b.I("v_add_u32", v(VPX), v(VPX), v(t0))
    if mode != 1:
        def qaddr():
            b.I("v_and_b32", v(t0), 15, v(LANE))
            b.I("v_lshlrev_b32", v(VQ), 4, v(t0))
            b.I("v_lshl_add_u32", v(VQ), v(GH), 8, v(VQ))
            b.I("v_mul_u32_u24", v(t0), 576, v(GL))
            b.I("v_add_u32", v(VQ), v(VQ), v(t0))
            b.I("v_lshrrev_b32", v(t0), 1, v(DS))
            b.I("v_mul_u32_u24", v(t0), 576, v(t0))
            b.I("v_lshl_add_u32", v(t0), v(CQ), 4, v(t0))
            b.I("v_lshl_add_u32", v(t0), v(GL), 3, v(t0))
            b.I("v_add_u32", v(t0), 512, v(t0))
            b.I("v_and_b32", v(t1), 0x24, v(LANE))
            b.I("v_lshl_add_u32", v(VQE), v(t1), 24, v(t0))
            b.I("s_mov_b32", s(50), S * D * 2)
            b.I("s_mov_b32", s(51), 0x20000)
            b.I("s_lshl_b32", s(S_A), s(5), 3)
            b.I("s_add_u32", s(S_A), s(S_A), s(4))
            b.I("s_lshl_b32", s(S_B), s(S_A), 4)
            b.I("s_add_u32", s(S_B), s(S_B), s(S_TOK))
            b.I("s_mul_i32", s(S_B), s(S_B), 1152)
        if mode == 0:
            qaddr()
            b.I("v_xor_b32", v(t0), v(CQ), v(G))
            b.I("v_lshlrev_b32", v(t0), 4, v(t0))
            b.I("v_lshrrev_b32", v(t1), 2, v(LANE))
            b.I("v_lshl_add_u32", v(VYD), v(t1), 7, v(t0))
            b.I("s_mul_i32", s(S_A), s(S_A), 18432)
            b.I("s_lshl_b32", s(7), s(12), 6)
            b.I("s_add_u32", s(S_A), s(S_A), s(7))
            b.I("s_add_u32", s(S_A), s(S_A), YB)
            b.I("s_lshl_b32", s(7), s(S_W), 11)
            b.I("s_add_u32", s(6), s(S_A), s(7))
            b.I("s_add_u32", s(S_A), s(S_A), 8 * 2048)
            b.I("s_lshl_b32", s(7), s(S_W), 10)
    b.wait(lgkm=0)
    st()
    la = P["laux"]
    if mode == 0:
        b.I("buffer_load_dwordx4", v(RX, 4), v(VQ), IO, s(S_B), mods="offen")
        b.I("buffer_load_dwordx2", v(RE, 2), v(VQE), IO, s(S_B), mods="offen")
        b.I("s_cmp_lg_u32", s(S_W), 0)
        b.I("s_cbranch_scc1", f"{name}_y8")
        b.raw(f"  s_mov_b32 m0, {YS_LDS + 8192}\n  s_nop 0\n  buffer_load_dwordx4 v{VYD}, s[8:11], s{S_A} offen lds")
        b.label(f"{name}_y8")
        b.I("s_add_u32", "m0", s(7), YS_LDS)
        b.I("buffer_load_dwordx4", v(VYD), WS, s(6), mods="offen lds", tag="y")
    elif P.get("exp"):
        b.I("v_lshrrev_b32", v(VP), 5, v(LANE))
        b.I("v_and_b32", v(VPX), 31, v(LANE))
        b.I("v_lshlrev_b32", v(VPX), 4, v(VPX))
        b.I("v_lshl_add_u32", v(VP), v(VP), 10, v(VPX))
        b.I("s_mul_i32", s(6), s(S_W), 147456 - 64)
        b.I("s_add_u32", s(S_P), s(S_P), s(6))
        b.I("s_mul_i32", s(7), s(S_W), 9216)
        for k in range(9):
            b.I("s_add_u32", s(6), s(S_P), k * 2048)
            if P["exp"] == 1:
                b.I("buffer_load_dwordx4", v(PB + 4 * k, 4), v(VP), WS, s(6), mods="offen " + la)
            else:
                b.I("s_add_u32", "m0", s(7), k * 1024)
                b.I("buffer_load_dwordx4", v(VP), WS, s(6), mods="offen " + la + " lds")
        b.I("buffer_load_dwordx4", v(RX, 4), v(0), WS, s(S_R), mods="offen")
        b.I("buffer_load_dwordx2", v(RE, 2), v(0), WS, s(S_R), mods="offen offset:1024")
    else:
        k = 0
        for a_ in range(2):
            for h in range(2):
                for jj in range(2):
                    c = jj * 589824 + a_ * 9216 + h * 4096
                    if c:
                        b.I("s_add_u32", s(6 + (k & 1)), s(S_P), c)
                    b.I("buffer_load_dwordx4", v(PB + 4 * k, 4), v(VP), WS, s(6 + (k & 1)) if c else s(S_P), mods="offen " + la)
                    k += 1
        for h in range(2):
            b.I("buffer_load_dwordx2", v(PB + 32 + 2 * h, 2), v(VPX), WS, s(S_PXS), mods=f"offen offset:{512 * h} " + la)
        b.I("buffer_load_dwordx4", v(RX, 4), v(0), WS, s(S_R), mods="offen")
        if mode == 1:
            b.I("buffer_load_dwordx4", v(RE, 4), v(VRE), WS, s(S_R), mods="offen offset:1024")
            b.I("buffer_load_dwordx4", v(RY, 4), v(0), WS, s(S_R), mods="offen offset:2048")
        else:
            b.I("buffer_load_dwordx2", v(RE, 2), v(VRE), WS, s(S_R), mods="offen offset:1024")
    if P.get("pf") and mode != 2:
        vq = list(b.vmq)
        b.raw(f"  s_cmp_ge_u32 s2, {P['pfn'] * 8}\n  s_cbranch_scc1 {name}_npf")
        pf_code(b, name, *P["pf"])
        b.vmq = vq
        b.label(f"{name}_npf")
    if mode != 2:
        b.I("v_mov_b32", v(7), 0)
        b.I("v_add_u32", v(V_FW), LDS_FX, v(6))
        b.I("ds_write_b32", v(V_FW), v(7))
        xn_setup(b, mode)
    if mode == 2:
        qaddr()
    if mode == 0:
        b.I("s_lshr_b32", s(6), s(S_W), 1)
        b.I("s_and_b32", s(7), s(S_W), 1)
        b.I("s_lshl_b32", s(7), s(7), 3)
        b.I("s_add_u32", s(7), s(7), YS_LDS)
        b.I("v_lshl_add_u32", v(t0), v(CQ), 1, v(GL))
        b.I("v_lshl_add_u32", v(t1), v(DS), 3, v(t0))
        b.I("v_lshl_add_u32", v(t1), v(GH), 5, v(t1))
        b.I("v_bfe_u32", v(YA1), v(t1), 2, 2)
        b.I("v_xor_b32", v(YA1), s(6), v(YA1))
        b.I("v_lshlrev_b32", v(YA1), 4, v(YA1))
        b.I("v_lshl_add_u32", v(YA0), v(t1), 6, v(YA1))
        b.I("v_add_u32", v(YA0), s(7), v(YA0))
        b.I("v_xor_b32", v(YA1), 32, v(YA0))
        b.I("v_lshrrev_b32", v(t1), 1, v(DS))
        b.I("v_mad_u32_u24", v(t1), v(t1), 36, v(CQ))
        b.I("v_lshl_add_u32", v(t1), v(t1), 1, v(GL))
        b.I("v_bfe_u32", v(YAE), v(t1), 2, 2)
        b.I("v_xor_b32", v(YAE), s(6), v(YAE))
        b.I("v_lshlrev_b32", v(YAE), 4, v(YAE))
        b.I("v_lshl_add_u32", v(YAE), v(t1), 6, v(YAE))
        b.I("v_add_u32", v(YAE), s(7), v(YAE))
        b.I("v_mov_b32", v(RE + 2), 0)
        b.I("v_mov_b32", v(RE + 3), 0)
    else:
        b.I("v_and_b32", v(t1), 15, v(LANE))
        b.I("v_mov_b32", v(T + 2), 0x3f80)
        b.I("v_mov_b32", v(T + 3), 0x3f800000)
        for r in range(4):
            for (AR, off) in ((A1, 0), (A2, 8)):
                b.I("v_cmp_eq_u32", "vcc", off + 2 * r, v(t1))
                b.I("v_cndmask_b32", v(AR + r), 0, v(T + 2), "vcc")
                b.I("v_cmp_eq_u32", "vcc", off + 2 * r + 1, v(t1))
                b.I("v_cndmask_b32", v(AR + r), v(AR + r), v(T + 3), "vcc")
        for r in range(4):
            b.I("v_mov_b32", v(T + 12 + r), 0)
        b.I("v_mov_b32", v(T + 10), fhex(OUTSCALE))
    if not P.get("sty"):
        st()
    if mode == 0:
        b.I("v_permlane16_swap_b32", v(RX), v(RX + 2))
        b.I("v_permlane16_swap_b32", v(RX + 1), v(RX + 3))
    else:
        k = 0
        for a_ in range(2):
            for h in range(2):
                for jj in range(2):
                    d = v(LACC + 4 * a_, 4)
                    b.I(MF, d, v(A1 if h == 0 else A2, 4), v(PB + 4 * k, 4), "0" if (h == 0 and jj == 0) else d)
                    k += 1
        b.I(MF, v(LACC + 8, 4), v(A1, 4), v(PB + 32, 4), "0")
    for i in range(4):
        unpack(b, X + 2 * i, RX + i)
    for i in range(2):
        unpack(b, X + 8 + 2 * i, RE + i)
    if mode == 1:
        for i in range(4):
            unpack(b, Y + 2 * i, RY + i)
        for i in range(2):
            unpack(b, Y + 8 + 2 * i, RE + 2 + i)
    if mode != 0:
        SC = T + 10
        for i in range(4):
            b.I("v_pk_fma_f32", v(X + 2 * i, 2), v(LACC + 2 * i, 2), v(SC, 2), v(X + 2 * i, 2), mods="op_sel_hi:[1,0,1]")
        for r in range(4):
            b.I("v_add_f32_dpp", v(T + 12 + r), v(LACC + 8 + r), v(LACC + 8 + r), mods="row_half_mirror row_mask:0x3 bank_mask:0x5")
        for i in range(2):
            b.I("v_pk_fma_f32", v(X + 8 + 2 * i, 2), v(T + 12 + 2 * i, 2), v(SC, 2), v(X + 8 + 2 * i, 2), mods="op_sel_hi:[1,0,1]")
    st()
    if mode == 2:
        for i in range(6):
            b.I("v_cvt_pk_bf16_f32", v(RX + i), v(X + 2 * i), v(X + 2 * i + 1))
        b.I("v_permlane16_swap_b32", v(RX), v(RX + 2))
        b.I("v_permlane16_swap_b32", v(RX + 1), v(RX + 3))
        b.I("buffer_store_dwordx4", v(RX, 4), v(VQ), IO, s(S_B), mods="offen")
        b.I("buffer_store_dwordx2", v(RE, 2), v(VQE), IO, s(S_B), mods="offen")
        b.wait_all()
        tl.end(b)
        return st
    ln_math(b, mode, P, st)
    return st


def ln_math(b, mode, P, st):
    R, B = stats(b)
    if P.get("sty") == 1:
        st()
    if mode == 0:
        b.wait_tag_vm("y")
    if P.get("sty") == 2:
        st()
    if mode == 0:
        b.barrier()
        b.I("ds_read_b64", v(RY, 2), v(YA0))
        b.I("ds_read_b64", v(RY + 2, 2), v(YA1), mods=f"offset:{72 * 64}")
        b.I("s_mov_b64", "exec", VALID)
        b.I("ds_read_b64", v(RE + 2, 2), v(YAE), mods=f"offset:{64 * 64}")
        b.I("s_mov_b64", "exec", -1)
    for i in range(6):
        b.I("v_pk_fma_f32", v(LACC + 2 * i, 2), v(X + 2 * i, 2), v(R, 2), v(B, 2), mods="op_sel_hi:[1,0,0]")
    if mode == 0:
        for i in range(4):
            unpack(b, Y + 2 * i, RY + i)
        for i in range(2):
            unpack(b, Y + 8 + 2 * i, RE + 2 + i)
    for i in range(6):
        b.I("v_pk_fma_f32", v(X + 2 * i, 2), v(LACC + 2 * i, 2), v(Y + 2 * i, 2), v(X + 2 * i, 2))
    for i in range(6):
        b.I("v_cvt_pk_bf16_f32", v(RX + i), v(X + 2 * i), v(X + 2 * i + 1))
    ra = P["raux"]
    if P["rec"] == 0:
        b.I("buffer_store_dwordx4", v(RX, 4), v(0), WS, s(S_R), mods="offen " + ra)
        b.I("buffer_store_dwordx4", v(RE, 4), v(VRE), WS, s(S_R), mods="offen offset:1024 " + ra)
    if mode == 0:
        b.I("buffer_store_dwordx4", v(RY, 4), v(0), WS, s(S_R), mods="offen offset:2048 " + ra)
    R, B = stats(b, scale=ALPHA)
    for i in range(6):
        b.I("v_pk_fma_f32", v(LACC + 2 * i, 2), v(X + 2 * i, 2), v(R, 2), v(B, 2), mods="op_sel_hi:[1,0,0]")
    for i in range(6):
        b.I("v_cvt_pk_bf16_f32", v(XO + i), v(LACC + 2 * i), v(LACC + 2 * i + 1))
    b.I("v_permlane16_swap_b32", v(XO), v(XO + 2))
    b.I("v_permlane16_swap_b32", v(XO + 1), v(XO + 3))
    b.I("s_mov_b64", "exec", VALID)
    b.I("ds_write_b64", v(VXE), v(XO + 4, 2))
    b.I("s_mov_b64", "exec", -1)
    b.I("ds_write_b128", v(VXW), v(XO, 4))
    b.wait(lgkm=0)
    st()


def publish(b, name, P):
    b.barrier()
    if P.get("zpub"):
        b.I("v_mov_b32", v(7), 0)
        b.I("ds_write_b32", v(V_FW), v(7))
        b.I("v_mov_b32", v(8), 0)
        b.I("v_mov_b32", v(9), 0)
        b.I("v_mov_b32", v(10), 0)
        b.I("v_mov_b32", v(11), 0)
        b.I("v_mov_b32", v(6), P["zpub"])
        b.I("ds_write_b128", v(6), v(8, 4))
    b.I("ds_read_b128", v(XO, 4), v(VXR))
    b.raw(f"""  s_cmp_lg_u32 s{S_W}, 0
  s_cbranch_scc1 {name}_n8
  ds_read_b128 v[{XO + 4}:{XO + 7}], v{VXR} offset:8192
  s_add_u32 s6, s{S_XS}, {8 * 16384}
  s_waitcnt lgkmcnt(0)
  buffer_store_dwordx4 v[{XO + 4}:{XO + 7}], v{VXS}, s[8:11], s6 offen sc1
{name}_n8:""")
    b.I("buffer_store_dwordx4", v(XO, 4), v(VXS), WS, s(S_XS), mods="offen sc1", tag="xn")
    if P["rec"] >= 1:
        ra = P["raux"]
        if P["rec"] == 2:
            b.barrier()
        b.I("buffer_store_dwordx4", v(RX, 4), v(0), WS, s(S_R), mods="offen " + ra)
        b.I("buffer_store_dwordx4", v(RE, 4), v(VRE), WS, s(S_R), mods="offen offset:1024 " + ra)
    b.wait_tag_vm("xn")
    if P["stamps"] and not P.get("body"):
        b.I("s_memtime", s(70, 2))
    b.barrier()
    b.raw(f"""  s_cmp_lg_u32 s{S_W}, 0
  s_cbranch_scc1 {name}_nf
  v_mov_b32 v{V_T}, 0
  v_mov_b32 v{V_Z}, 1
  s_mov_b64 exec, 1
  buffer_store_dword v{V_Z}, v{V_T}, s[8:11], s{S_XFO} offen sc1
  s_mov_b64 exec, -1
{name}_nf:""")
    ffn_setup(b)


class Tail:
    def __init__(self, name, P):
        self.name, self.P, self.k = name, P, 0


    def handoff(self, b, role, slow, P):
        nm = f"{self.name}_{role}_h"
        if role == "A":
            pass
        elif P["npoll"] > 1:
            NPL = P["npoll"]
            R0 = 232
            ld = lambda i: f"  buffer_load_dword v{R0 + i}, v{V_T}, s[8:11], s{S_XFG} offen sc1\n"
            txt = f"""  s_cmp_lg_u32 s{S_W}, 4
  s_cbranch_scc1 {nm}_np
  v_lshlrev_b32 v{V_T}, 3, v0
  s_mov_b64 exec, 0xffff
  s_mov_b32 s{S_CNT}, 0x20000
"""
            for i in range(NPL - 1):
                txt += ld(i) + f"  s_sleep {P['psl']}\n"
            txt += f"{nm}_pl:\n"
            for i in range(NPL):
                txt += ld((i + NPL - 1) % NPL) + f"""  s_waitcnt vmcnt({NPL - 1})
  v_cmp_eq_u32 vcc, 0, v{R0 + i}
  s_cbranch_vccz {nm}_pe
  s_sleep {P['psl']}
"""
            txt += f"""  s_sub_u32 s{S_CNT}, s{S_CNT}, 1
  s_cbranch_scc0 {nm}_pl
{nm}_pe:
  s_mov_b64 exec, -1
{nm}_np:"""
            b.raw(txt)
        else:
            b.raw(f"""  s_cmp_lg_u32 s{S_W}, 4
  s_cbranch_scc1 {nm}_np
  v_lshlrev_b32 v{V_T}, 3, v0
  s_mov_b64 exec, 0xffff
  s_mov_b32 s{S_CNT}, 0x40000
{nm}_pl:
  buffer_load_dword v{V_Z}, v{V_T}, s[8:11], s{S_XFG} offen sc1
  s_waitcnt vmcnt(0)
  v_cmp_eq_u32 vcc, 0, v{V_Z}
  s_cbranch_vccz {nm}_pe
  s_sleep {P["psl"]}
  s_sub_u32 s{S_CNT}, s{S_CNT}, 1
  s_cbranch_scc0 {nm}_pl
{nm}_pe:
  s_mov_b64 exec, -1
{nm}_np:""")
        b.barrier()


LDEF = dict(rec=2, npoll=1, laux="", raux="sc1", pf=None, pfn=9, stbase=60, stn0=6)


def k_ffl(n0, n1, **kw):
    P = dict(DEF)
    P.update(LDEF)
    P.update(kw)
    if P.get("body"):
        P["stn0"] = 1
    b = AB()
    name = "ffl"
    ln_phase(b, n0, 0, P, f"{name}_end")
    b.I("s_branch", f"{name}_pub")
    b.hist, b.vmq, b.lgq = [], [], []
    ln_phase(b, n1, 1, P, f"{name}_end")
    b.vmq, b.lgq = [], []
    b.label(f"{name}_pub")
    publish(b, name, P)
    b.I("s_cmp_ge_u32", s(S_W), 4)
    b.I("s_cbranch_scc1", f"{name}_B")
    b.label(f"{name}_A")
    snap = b.snapshot()
    tail = Tail(name, P)
    ffn_role(b, "A", P, name, tail)
    b.restore(snap)
    b.raw(".p2align 6")
    b.label(f"{name}_B")
    ffn_role(b, "B", P, name, tail)
    b.label(f"{name}_end")
    b.I("s_endpgm")
    return b


def k_lnz(name, **kw):
    P = dict(DEF)
    P.update(LDEF)
    P.update(kw)
    b = AB()
    ln_phase(b, name, 2, P, f"{name}_end")
    b.label(f"{name}_end")
    b.I("s_endpgm")
    return b
```

```python
from ab import *
from lay import *
import tl

MF = "v_mfma_f32_16x16x32_bf16"
LDS_FX = 147456
FFN3_LDS = LDS_FX + 2048

DEF = dict(
    xring=6, space=True, mergew=True,
    a0w=0, a0w2=0, a1w=0, xpre=1, pace0=4, wpg0=3, wpg=1, bwk=14, la0=lambda gi: 99,
    xfly0=3, xfly=1, xprio=3,
    xw=12, b0w=8,
    bx0=4, bxr=0,
    nprio=1, fprioB=0,
    xchk=list(range(2, 19)),
    gate=9,
    knm=4,
    stamps=False,
    stampsteps=[],
    aux="sc1",
    a_plan=[("k", "oA", 0, 8), ("k", "pM", 0, 4), ("k", "oB", 0, 4), ("k", "pM", 4, 8), ("k", "pQ", 0, 8),
            ("k", "oB", 4, 8), ("n", "pB", 0, 8)],
    d0=1, dper=3, nw0=4, ap0=5,
    ap1=7, b2=False, b3=False, ringA=2, ringB=4, aprio=2, gprioA=0, pprioA=0, bprio=1, laX=8,
    evB=[(14, "P1")],
    evA=[(-1, "qr"), (1, "qs"), (2, "d0"), (16, "P1"), (24, "w0"), (26, "p1"), (32, "d1"), (56, "w1"), (60, "p2"), (66, "d2"), (92, "w2"),
         (106, "p3"), (112, "D3"), (124, "w3")],
    b_plan=[("k", "oA pM pQ", 0, 8), ("n", "oB pB", 0, 8)],
    laA=12, laB=16,
    delay=3,
    gdelay=2,
    xaux="sc1", preA=5, preB=0, psl=1,
    gper=4,
    bp0=6,
    bp1=40,
)


class Stamps:
    def __init__(self, b, on, base=40):
        self.b, self.on, self.n, self.base = b, on, 0, base
        self.gmode = False

    def __call__(self, g=False):
        if self.on and (g or not self.gmode or self.n == 0) and self.base + 2 * self.n <= 80:
            self.b.I("s_memtime", s(self.base + 2 * self.n, 2))
            self.n += 1


def gelu_thunks(b, tiles, temps):
    out = []
    I = lambda *a: out.append(lambda: b.I(*a))
    G = 2
    for i in range(0, len(tiles), G):
        grp = tiles[i:i + G]
        vals = []
        for j, (ab_, dst) in enumerate(grp):
            vals.append((ab_, ab_ + 2, temps[(2 * j) % len(temps)]))
            vals.append((ab_ + 1, ab_ + 3, temps[(2 * j + 1) % len(temps)]))
        for g, u, t in vals:
            I("v_fmaak_f32", v(t), v(g), v(g), fhex(KP))
        for g, u, t in vals:
            I("v_mul_f32", v(u), v(g), v(u))
        for g, u, t in vals:
            I("v_mul_f32", v(g), v(t), v(g))
        for g, u, t in vals:
            I("v_exp_f32_e64", v(g), "-" + v(g))
        for g, u, t in vals:
            I("v_add_f32", v(g), "1.0", v(g))
        for g, u, t in vals:
            I("v_rcp_f32", v(g), v(g))
        for g, u, t in vals:
            I("v_mul_f32", v(u), v(u), v(g))
        for (ab_, dst) in grp:
            I("v_cvt_pk_bf16_f32", v(dst), v(ab_ + 2), v(ab_ + 3))
    return out


S_W = 3
S_GU, S_GUX = 20, 21
S_DO, S_DOX, S_DP, S_DPX = 22, 23, 32, 33
S_XG, S_XL = 24, 25
S_PM, S_PX = 26, 27
S_T0, S_T1, S_T2 = 28, 29, 30
S_HO, S_HP = 34, 35
S_HOX, S_HPX = 36, 37
S_FO, S_FP = 38, 39
S_CNT = 31
S_PMH, S_H4 = 16, 17
S_W8 = 18
VL = [0, 1, 2]
VS, VS2 = 3, 255
V_HW, V_HWX = 252, 253
V_FR, V_FW = 254, 251
V_F = 250
V_Z = 249
V_T = 248

KS = {"oA": [("o", k) for k in (0, 1, 2, 3, 8)], "pM": [("p", k) for k in (0, 1, 2, 3)], "pQ": [("p", 8)],
      "oB": [("o", k) for k in (4, 5, 6, 7)], "pB": [("p", k) for k in (4, 5, 6, 7)]}


def slot_of(side, k):
    if k < 4 or k == 8:
        return (0 if side == "o" else 5) + (k if k < 4 else 4)
    return (6 if side == "o" else 10) + k


def ffn_role(b, role, P, name, late_setup):
    A = role == "A"
    NT = 5 if A else 4
    XR = 4
    NX = P["xring"]
    WR = XR + 4 * NX
    NW = 15
    ACC = WR + 4 * NW
    assert ACC + 160 <= 248, ACC
    acc = lambda t, n: ACC + (t * 8 + n) * 4
    temps = [XR, XR + 1, XR + 2, XR + 3] if A else [acc(4, 7) + i for i in range(4)]
    st = Stamps(b, P["stamps"], base=P.get("stbase", 40))
    st.n = P.get("stn0", 0)
    st.gmode = bool(P.get("sg"))
    SRD = s(8, 4)
    aux = P["aux"]
    slow = []
    KNM = P["knm"]
    K0 = 18 - KNM
    assert K0 >= 14
    psig = sorted(set([4, 9, 13, P["gate"]]))
    bval = {k: 19 + i for i, k in enumerate(psig)}
    B_H = [19 + len(psig), 20 + len(psig)]
    def req_of(cls, n):
        return {"oA": ("A", 3), "pM": ("A", 4 + n // 4), "pQ": ("A", 5), "oB": ("B", B_H[n // 4]),
                "pB": (("B", B_H[1] + 1) if P["b2"] else ("A", 6)) if n < 4 else (("B", B_H[1] + 2) if P["b3"] else ("A", 7))}[cls]

    groups = []
    wdef = {}
    cover = lambda ks: min(x for x in P["xchk"] if x >= ks + 1)
    for ks in range(18):
        for t in range(4):
            wdef[("g", ks, t)] = (S_GU, ks * 4096, t * 1024)
        if A:
            wdef[("g", ks, 4)] = (S_GUX, ks * 4096, 0)

    def p1_group(ks, n):
        return dict(b=(ks * 8 + n) * 1024, req=("A", 1) if ks == 0 else ("B", cover(ks) if A else (4 if ks < 4 else 18)), p2=False,
                    mf=[(acc(t, n), ("g", ks, t), ks == 0) for t in range(NT)], tag=("p1", ks, n))
    if A:
        for ks in range(18):
            for n in range(8):
                groups.append(p1_group(ks, n))
    else:
        for ks in range(K0):
            for n in range(8):
                groups.append(p1_group(ks, n))
        for n in range(8):
            for ks in range(K0, 18):
                groups.append(p1_group(ks, n))
    NP1 = len(groups)

    VP2 = acc(3, 6)

    def p2_w(side, kp):
        sm, sx = (S_DO, S_DOX) if side == "o" else (S_DP, S_DPX)
        for h in range(2):
            wdef[("d", side, kp, h)] = (sm, kp * 36 * 1024, h * 1024)
        if A:
            wdef[("d", side, kp, 2)] = (sx, kp * 36 * 1024, 0)

    cnt = {n: 0 for n in range(8)}
    marks = {}

    def p2_group(cls, side, kp, n):
        first = cnt[n] == 0
        cnt[n] += 1
        mf = [(acc(h, n), ("d", side, kp, h), first) for h in range(2)]
        if A and n % 2 == 0:
            mf.append((acc(2, n // 2), ("d", side, kp, 2), first))
        groups.append(dict(b=(slot_of(side, kp) * 8 + n) * 1024, req=req_of(cls, n), p2=True, mf=mf,
                           tag=("p2", n, cnt[n] == 18), n=n))

    for c in KS:
        for (sd, k) in KS[c]:
            p2_w(sd, k)
    for seg in P["a_plan" if A else "b_plan"]:
        if isinstance(seg, str):
            marks.setdefault(len(groups), []).append(seg)
            continue
        mode, cl, n0, n1 = seg
        ks_ = [(c, sd, k) for c in cl.split() for (sd, k) in KS[c]]
        if mode == "k":
            for (c, sd, k) in ks_:
                for n in range(n0, n1):
                    p2_group(c, sd, k, n)
        else:
            for n in range(n0, n1):
                for (c, sd, k) in ks_:
                    p2_group(c, sd, k, n)
    assert all(c == 18 for c in cnt.values())

    wseq, last_use = [], {}
    for gi, g in enumerate(groups):
        for mi, (_, wk, _) in enumerate(g["mf"]):
            if wk not in last_use:
                wseq.append(wk)
            last_use[wk] = (gi, mi)
    wslot, bslot = {}, {}
    wfree = [WR + 4 * i for i in range(NW)]
    if not A:
        wfree += [acc(4, n) for n in range(7)]
    bfree = [XR + 4 * i for i in range(NX)]
    stt = dict(wi=0, bi=0, gi=0, lastsb=None, stmp=0, flagrd=None, nslow=0, own=0, blim=NP1, la=99)
    passed = {"A": 0, "B": 0}
    deferred = []
    pend = []
    events = {}
    bextra = []

    used = set()

    def issue_w(force=False):
        if stt["wi"] >= len(wseq) or not wfree:
            return False
        if not force and stt["wi"] - len(used) >= stt["la"]:
            return False
        wk = wseq[stt["wi"]]
        sb, c, imm = wdef[wk]
        if stt["lastsb"] != (sb, c):
            stt["stmp"] ^= 1
            b.I("s_add_u32", s(S_T0 + stt["stmp"]), s(sb), c)
            stt["lastsb"] = (sb, c)
        r = wfree.pop(0)
        wslot[wk] = r
        if role in P.get("ablW", "") and wk[0] == "g" and wk[1] >= 4:
            stt["wi"] += 1
            return True
        b.I("buffer_load_dwordx4", v(r, 4), v(VL[0]), SRD, s(S_T0 + stt["stmp"]), mods=f"offen offset:{imm}")
        stt["wi"] += 1
        return True

    def issue_x(ks):
        if ks > 17:
            return
        b.I("s_add_u32", "m0", s(S_XL), ks * 8192)
        b.I("s_add_u32", s(S_T2), s(S_XG), ks * 8192)
        b.I("buffer_load_dwordx4", v(VL[0]), SRD, s(S_T2), mods=f"offen {P['xaux']} lds", tag=("x", ks))
        b.I("buffer_load_dwordx4", v(VL[0]), SRD, s(S_T2), mods=f"offen offset:1024 {P['xaux']} lds", tag=("x", ks))

    pfi = [0]

    def l2_prefetch():
        i = pfi[0]
        if not P.get("wpf") or i >= 15:
            return
        pfi[0] += 1
        q0 = P["wpf"]
        if i < 9:
            b.I("s_add_u32", s(6), s(5), q0 + 16 * i)
            if q0 + 15 + 16 * i > 161:
                b.I("s_min_u32", s(6), s(6), 161)
            b.I("s_mul_i32", s(7), s(6), 7282)
            b.I("s_lshr_b32", s(7), s(7), 16)
            b.I("s_mul_i32", s(6), s(6), 73728)
            b.I("s_mul_i32", s(7), s(7), 9 * 73728 - 4096)
            b.I("s_sub_u32", s(6), s(6), s(7))
            b.I("s_add_u32", s(6), s(6), s(14))
        else:
            b.I("s_add_u32", s(6), s(15), 64 * (i - 9))
            if i == 14:
                b.I("s_min_u32", s(6), s(6), 323)
            b.I("s_mul_i32", s(7), s(6), 3641)
            b.I("s_lshr_b32", s(7), s(7), 16)
            b.I("s_mul_i32", s(7), s(7), 18)
            b.I("s_add_u32", s(6), s(6), s(7))
            b.I("s_lshl_b32", s(6), s(6), 10)
            b.I("s_add_u32", s(6), s(6), s(13))
        b.I("buffer_load_dwordx4", v(acc(2 + i // 8, i % 8), 4), v(VL[0]), SRD, s(6), mods="offen")

    def signal(val):
        b.I("v_mov_b32", v(V_T), val)
        b.I("ds_write_b32", v(V_FW), v(V_T))
        stt["own"] = val

    def read_flag(grp):
        b.I("ds_read_b32", v(V_F), v(V_FR), mods=f"offset:{0 if grp == 'A' else 1024}")
        stt["flagrd"] = grp

    def ensure(grp, thr, sleep=0):
        if passed[grp] >= thr:
            return
        if grp == role:
            assert stt["own"] >= thr, (role, grp, thr, stt["own"])
        if stt["flagrd"] != grp:
            read_flag(grp)
        stt["flagrd"] = None
        i = stt["nslow"]
        stt["nslow"] += 1
        lab = f"{name}_{role}_x{i}"
        off = 0 if grp == "A" else 1024
        b.I("v_cmp_gt_u32", "vcc", thr, v(V_F))
        b.I("s_cbranch_vccnz", lab + "s")
        b.label(lab + "r")
        sl = f"  s_sleep {sleep}\n" if sleep else ""
        slow.append(f"{lab}s:\n  s_mov_b32 s{S_CNT}, 0x100000\n{lab}l:\n{sl}  ds_read_b32 v{V_F}, v{V_FR} offset:{off}\n  s_waitcnt lgkmcnt(0)\n"
                    f"  v_cmp_gt_u32 vcc, {thr}, v{V_F}\n  s_cbranch_vccz {lab}r\n  s_sub_u32 s{S_CNT}, s{S_CNT}, 1\n"
                    f"  s_cbranch_scc0 {lab}l\n  s_branch {lab}r")
        passed[grp] = thr

    def lim():
        return min([stt["blim"]] + [g for g in marks if g > stt["gi"] or (g == stt["gi"] and not stt.get("evdone") == g)])

    def issue_b():
        if stt["bi"] >= lim() or not bfree:
            return False
        g = groups[stt["bi"]]
        ensure(*g["req"], sleep=1 if g["p2"] else 0)
        sl = bfree.pop(0)
        bslot[stt["bi"]] = sl
        addr = g["b"]
        base = VL[addr >> 16]
        if A and g["p2"]:
            base = VP2 + (addr >> 16) + (3 if g["n"] % 2 else 0)
        if not (role in P.get("ablB", "") and not g["p2"] and g["tag"][1] >= 4):
            b.I("ds_read_b128", v(sl, 4), v(base), mods=f"offset:{addr & 0xffff}")
        stt["bi"] += 1
        if stt["bi"] < lim():
            gr, th = groups[stt["bi"]]["req"]
            if passed[gr] < th:
                read_flag(gr)
        return True

    def tick():
        for d in deferred:
            d[0] -= 1
        while deferred and deferred[0][0] <= 0:
            deferred.pop(0)[1]()
        tg = P.get("tog") and not A and pend
        if tg:
            b.I("s_setprio", P["tog"][0])
        for i in range(P["gper"]):
            if pend:
                pend.pop(0)()
        if tg:
            b.I("s_setprio", P["tog"][1])

    def flush_deferred():
        while deferred or pend:
            while pend:
                pend.pop(0)()
            if deferred:
                deferred.pop(0)[1]()

    def out_n(n):
        def fn():
            if P.get("pern") and not A and n >= P["pern"]:
                b.wait_tag_vm(("o", n - P["pern"]))
                signal(B_H[1] + 1 + n - P["pern"])
            b.I("s_add_u32", s(S_T2), s(S_PM if n % 2 == 0 else S_PMH), n * 18432)
            e, o = acc(0, n), acc(1, n)
            b.I("v_cvt_pk_bf16_f32", v(e), v(e), v(e + 1))
            b.I("v_cvt_pk_bf16_f32", v(e + 1), v(e + 2), v(e + 3))
            b.I("v_cvt_pk_bf16_f32", v(e + 2), v(o), v(o + 1))
            b.I("v_cvt_pk_bf16_f32", v(e + 3), v(o + 2), v(o + 3))
            b.I("buffer_store_dwordx4", v(e, 4), v(VS), SRD, s(S_T2), mods=f"offen {aux}", tag=("o", n))
            if A and n % 2 == 0:
                e = acc(2, n // 2)
                b.I("s_add_u32", s(S_T2), s(S_PX), n * 18432)
                b.I("v_cvt_pk_bf16_f32", v(e), v(e), v(e + 1))
                b.I("v_cvt_pk_bf16_f32", v(e + 1), v(e + 2), v(e + 3))
                b.I("buffer_store_dwordx2", v(e, 2), v(VS2), SRD, s(S_T2), mods=f"offen {aux}")
        return fn

    def hstore(n):
        if P.get("nohst"):
            return
        b.I("s_add_u32", s(S_T2), s(S_HO), (n // 4) * 4096)
        b.I("buffer_store_dwordx4", v(acc(0, n), 4), v(VL[0]), SRD, s(S_T2), mods=f"offen offset:{(n % 4) * 1024} sc1", tag=("h", n // 4))

    def b_gelu(n):
        def fn():
            pend.extend(gelu_thunks(b, [(acc(t, n), acc(0, n) + t) for t in range(4)], temps))
            pend.append(lambda: hstore(n))

            def wr():
                ensure("A", 2)
                ensure("B", bval[13])
                b.I("ds_write_b128", v(V_HW), v(acc(0, n), 4), mods=f"offset:{n * 1024}")
                if 2 * (7 - n) < P["ringB"]:
                    bextra.extend([acc(2, n), acc(3, n)])
                else:
                    wfree.extend([acc(2, n), acc(3, n)])
                if n == 3:
                    signal(B_H[0])
                if n == P["bp0"]:
                    st()
                    publish(0)
                    st()
                if n in (0, 3):
                    st()
            pend.append(wr)
        return fn

    def run_groups(end):
        while stt["gi"] < end:
            gi = stt["gi"]
            g = groups[gi]
            tag = g["tag"]
            if P.get("sg") and gi >= NP1 - (0 if A else 32) and (gi - NP1) % P["sg"] == 0:
                st(True)
            for fn in events.get(gi, []):
                fn()
            if gi in marks:
                stt["evdone"] = gi
                while issue_b():
                    pass
            while gi not in bslot:
                assert issue_b(), (role, gi, tag)
            nm = len(g["mf"])
            wcnt = 0
            if A and gi < NP1:
                stt["la"] = P["la0"](gi)
            if P["mergew"] and gi > 0 and all(wk in wslot for _, wk, _ in g["mf"]):
                regs = {("v", wslot[wk] + i) for _, wk, _ in g["mf"] for i in range(4)} | {("v", bslot[gi] + i) for i in range(4)}
                b.wait_regs(regs)
            for mi, (ar, wk, first) in enumerate(g["mf"]):
                while wk not in wslot:
                    assert issue_w(True), (role, gi, wk)
                d = v(ar, 4)
                b.I(MF, d, v(wslot[wk], 4), v(bslot[gi], 4), "0" if first else d)
                used.add(wk)
                if last_use[wk] == (gi, mi):
                    wfree.append(wslot[wk])
                if mi == nm - 1:
                    bfree.append(bslot[gi])
                if P["space"]:
                    wok = wcnt < (P["wpg0"] if gi < P["pace0"] else P["wpg"]) and mi >= 1
                    if (mi < nm - 1 or len(bfree) >= 2) and issue_b():
                        pass
                    elif wok and (mi < nm - 1 or nm < 4) and issue_w():
                        wcnt += 1
                else:
                    if last_use[wk] == (gi, mi):
                        issue_w()
                tick()
            if not P["space"]:
                while issue_b():
                    pass
                issue_w()
            if tag[0] == "p1":
                if not A and tag[2] == 7 and tag[1] in bval:
                    signal(bval[tag[1]])
                if not A and tag[2] == 7 and tag[1] == K0 - 1:
                    b.I("s_setprio", P["nprio"])
                    stt["la"] = P["laB"]
                if not A and tag[1] == 17:
                    deferred.append([P["gdelay"], b_gelu(tag[2])])
                if tag[2] == 7 and tag[1] in P["stampsteps"]:
                    st()
            if dq and gi % P["dper"] == 0:
                dq.pop(0)[1]()
            if tag[0] == "p2" and tag[2]:
                deferred.append([P["delay"], out_n(tag[1])])
            stt["gi"] = gi + 1

    def publish(half):
        b.wait_tag_vm(("h", half))
        b.I("v_mov_b32", v(V_T), 0)
        b.I("v_mov_b32", v(V_Z), 1)
        b.I("buffer_store_dword", v(V_Z), v(V_T), SRD, s(S_FO), mods=f"offen offset:{4 * half} sc1")

    FOFF = [0, 4, 128, 132]

    def poll_issue(which):
        b.I("v_mov_b32", v(V_T), 0)
        b.I("buffer_load_dword", v(V_Z), v(V_T), SRD, s(S_FP), mods=f"offen offset:{FOFF[which]} sc1")

    def poll_check(which):
        lab = f"{name}_{role}_poll{which}"
        b.I("v_cmp_eq_u32", "vcc", 0, v(V_Z))
        b.I("s_cbranch_vccnz", lab + "s")
        b.label(lab + "r")
        slow.append(f"{lab}s:\n  s_mov_b32 s{S_CNT}, 0x100000\n  v_mov_b32 v{V_T}, 0\n{lab}l:\n"
                    f"  buffer_load_dword v{V_Z}, v{V_T}, s[8:11], s{S_FP} offen offset:{FOFF[which]} sc1\n  s_waitcnt vmcnt(0)\n"
                    f"  v_cmp_eq_u32 vcc, 0, v{V_Z}\n  s_cbranch_vccz {lab}r\n  s_sleep 1\n  s_sub_u32 s{S_CNT}, s{S_CNT}, 1\n"
                    f"  s_cbranch_scc0 {lab}l\n  s_branch {lab}r")

    dq = []

    def dma_batch(bt):
        lb, gb = (5 * 8192, 0) if bt < 2 else (14 * 8192, 5 * 8192)
        q = bt % 2
        tag = ("hp", bt)

        def one(i):
            b.I("s_add_u32", "m0", s(S_W8), lb + q * 4096)
            b.I("s_add_u32", s(S_T2), s(S_HP), gb + q * 4096)
            b.I("buffer_load_dwordx4", v(VL[0]), SRD, s(S_T2), mods=f"offen offset:{i * 1024} sc1 lds", tag=tag)

        def quad(i):
            b.I("s_add_u32", "m0", s(S_XL), 9 * 8192)
            b.I("buffer_load_dwordx4", v(VL[0]), SRD, s(S_HPX), mods=f"offen offset:{i * 1024} sc1 lds", tag=tag)
        for i in range(4):
            dq.append((bt, lambda i=i: one(i)))
        if bt == 1:
            for i in range(2):
                dq.append((bt, lambda i=i: quad(i)))

    def dma_partner(bt, now=None):
        ensure("B", [bval[9], bval[9], B_H[0], B_H[1]][bt], sleep=1)
        dma_batch(bt)
        for i in range(P["d0"] if now is None else now):
            if dq:
                dq.pop(0)[1]()

    def lim_for(thr):
        return next((i for i in range(NP1, len(groups)) if groups[i]["req"][0] == "A" and groups[i]["req"][1] >= thr), len(groups))

    def limB(thr):
        return next((i for i in range(NP1, len(groups)) if groups[i]["req"][0] == "B" and groups[i]["req"][1] >= thr), len(groups))

    def dma_done(bt):
        while dq and dq[0][0] <= bt:
            dq.pop(0)[1]()
        b.wait_tag_vm(("hp", bt))
        if A:
            signal(4 + bt)
            stt["blim"] = lim_for(5 + bt)
        else:
            signal(B_H[1] + bt - 1)
            stt["blim"] = limB(B_H[1] + bt)
        st()

    tail = late_setup
    if A:
        for j in range(P["preA"]):
            issue_w()
    else:
        stt["la"] = P["laX"]
        for j in range(P["preB"]):
            issue_w(True)
    st()
    if A:
        b.I("s_setprio", 3)
    tail.handoff(b, role, slow, P)
    st()
    if hasattr(tail, "after"):
        tail.after()
    if A:
        issue_x(0)
        b.I("s_setprio", P["aprio"])
        for j in range(P["a0w"]):
            issue_w()
        b.wait_tag_vm(("x", 0))
        if P.get("st0"):
            st()
        signal(1)
        while issue_b():
            pass
        for j in range(P["a1w"]):
            issue_w()
    else:
        xsig = sorted(set(x - 1 for x in P["xchk"]) | {3})
        nx = 1 + P["xfly0"]
        if P.get("wpf"):
            b.I("s_mul_i32", s(14), s(13), 9 * 73728)
            b.I("s_lshl_b32", s(7), s(19), 10)
            b.I("s_add_u32", s(14), s(14), s(7))
            b.I("s_add_u32", s(14), s(14), WGU)
            b.I("s_lshl2_add_u32", s(15), s(5), s(19))
            b.I("s_mul_i32", s(13), s(4), 18 * 36)
            b.I("s_mul_i32", s(7), s(12), 18)
            b.I("s_add_u32", s(13), s(13), s(7))
            b.I("s_lshl_b32", s(13), s(13), 10)
            b.I("s_add_u32", s(13), s(13), WD)
        for k in range(1, nx):
            issue_x(k)
            if k == 1:
                b.I("s_setprio", P["xprio"])
        stt["blim"] = 32
        stt["la"] = P["laX"]
        for k in range(1, 18):
            b.wait_tag_vm(("x", k))
            if P.get("st0") and k < 6:
                st()
            if k in xsig:
                signal(k + 1)
            for j in range(2):
                if nx < min(18, k + 1 + P["xfly"]):
                    issue_x(nx)
                    nx += 1
            if k >= P.get("wpf0", 1):
                for j in range(P.get("wpfn", 1)):
                    l2_prefetch()
            if k >= P["bwk"]:
                issue_w(True)
            if k >= P["bx0"]:
                run_groups(min(30, int((k + 1 - P["bx0"]) * P["bxr"])))
        b.I("s_setprio", P["bprio"])
        stt["la"] = 99
        stt["blim"] = NP1
        st()
        while issue_b():
            pass
    st()
    run_groups(NP1)
    if A:
        signal(2)
        b.I("s_setprio", P["gprioA"])
        stt["la"] = P["laA"]
        st()
        while issue_w():
            pass
        wrn = 0
        for n in range(8):
            tiles = [(acc(t, n), acc(0, n) + t) for t in range(4)] + [(acc(4, n), acc(4, 4 * (n // 4)) + n % 4)]
            th = gelu_thunks(b, tiles, temps)
            for i, f in enumerate(th):
                if n == P["nw0"] and i == 20:
                    read_flag("A")
                if n == P["nw0"] and i == 40:
                    ensure("A", 2)
                    read_flag("B")
                f()
            if n == P["ap1"]:
                poll_issue(0)
            hstore(n)
            if n >= P["nw0"]:
                ensure("B", bval[4], sleep=1)
                while wrn <= n:
                    b.I("ds_write_b32", v(V_HWX), v(acc(4, 4 * (wrn // 4)) + wrn % 4), mods=f"offset:{wrn * 1024}")
                    b.I("ds_write_b128", v(V_HW), v(acc(0, wrn), 4), mods=f"offset:{wrn * 1024}")
                    wrn += 1
            if n == P["ap0"]:
                publish(0)
        signal(3)
        st()
        for i in range(3):
            b.I("v_add_u32", v(VP2 + i), s(S_H4), v(VL[i]))
            b.I("v_subrev_u32", v(VP2 + 3 + i), s(S_H4), v(VL[i]))
        b.I("v_add_u32", v(VP2 + 6), s(S_XL), v(VL[0]))
        ex = [acc(2, 4) + 4 * i for i in range(10)] + [acc(4, n) for n in range(6)]
        bfree.extend(ex[:P["ringA"]])
        wfree.extend(ex[P["ringA"]:])

        def q_read():
            ensure("A", 3)
            for i in range(2):
                b.I("ds_read_b128", v(acc(4, 6 + i), 4), v(VP2 + 6), mods=f"offset:{4 * 8192 + i * 1024}")

        def q_store():
            for i in range(2):
                b.I("buffer_store_dwordx4", v(acc(4, 6 + i), 4), v(VL[0]), SRD, s(S_HOX), mods=f"offen offset:{i * 1024} sc1", tag=("h", 1))
            wfree.extend([acc(4, 6), acc(4, 7)])
        mk = {"P1": lambda: publish(1), "qr": q_read, "qs": q_store}
        for pr in range(4):
            mk[f"r{pr}"] = lambda pr=pr: b.I("s_setprio", pr)
        for bt in range(4):
            mk[f"p{bt}"] = lambda bt=bt: poll_issue(bt)
            mk[f"d{bt}"] = lambda bt=bt: (poll_check(bt), dma_partner(bt), st())
            mk[f"D{bt}"] = lambda bt=bt: (poll_check(bt), dma_partner(bt, 6), st())
            mk[f"w{bt}"] = lambda bt=bt: dma_done(bt)
        for e, m in P["evA"]:
            if e == -1:
                mk[m]()
            else:
                events.setdefault(NP1 + e, []).append(mk[m])
        for gi, ms in marks.items():
            for m in ms:
                events.setdefault(gi, []).append(mk[m])
        ensure("B", bval[P["gate"]], sleep=2)
        st()
        stt["blim"] = lim_for(4)
        b.I("s_setprio", P["pprioA"])
    else:
        st()
        if P.get("flprio") is not None:
            b.I("s_setprio", P["flprio"])
        flush_deferred()
        signal(B_H[1])
        bfree.extend(bextra + [acc(4, 7)])
        b.I("s_setprio", P["fprioB"])
        st()
        stt["blim"] = limB(B_H[1] + 1)
        mk = {"P1": lambda: (publish(1), st())}
        for bt in (2, 3):
            mk[f"p{bt}"] = lambda bt=bt: poll_issue(bt)
            mk[f"d{bt}"] = lambda bt=bt: (poll_check(bt), dma_partner(bt), st())
            mk[f"w{bt}"] = lambda bt=bt: dma_done(bt)
        for pr in range(4):
            mk[f"r{pr}"] = lambda pr=pr: b.I("s_setprio", pr)
        for e, m in P["evB"]:
            events.setdefault(NP1 + e, []).append(mk[m])
    while issue_b():
        pass
    run_groups(len(groups))
    flush_deferred()
    if hasattr(tail, "finish"):
        if P.get("pern") and not A:
            assert B_H[1] == P["bh1"], B_H
            for n in range(8 - P["pern"], 7):
                b.wait_tag_vm(("o", n))
                signal(B_H[1] + 1 + n)
        tail.finish(b, role)
        for t in slow:
            b.raw(t)
        return
    if P["stamps"]:
        st(True)
        b.wait_all()
        st(True)
        b.wait_all()
        b.I("s_lshl_b32", s(28), s(2), 3)
        b.I("s_add_u32", s(28), s(28), s(3))
        b.I("s_lshl_b32", s(28), s(28), 7)
        b.I("s_add_u32", s(28), s(28), STAMP)
        b.I("v_mov_b32", v(4), 0)
        for i in range(st.n):
            b.I("v_mov_b32", v(8), s(st.base + 2 * i))
            b.I("buffer_store_dword", v(8), v(4), SRD, s(28), mods=f"offen offset:{4 * i}")
    b.wait_all()
    tl.end(b)
    b.I("s_endpgm")
    for t in slow:
        b.raw(t)
```

```python
from k_ffl import *
from k_per import PSt, lanes

PB1, LACC1 = 40, 76
PZ, PA, VHO, VMW = 230, 232, 233, 234
HO = FFN3_LDS
CNT = HO + 4 * 3072
PER_LDS = CNT + 64
S_FIN, S_MASK, S_PEND = 59, 58, 56
S_EX, S_TM, S_OR, S_RDY, S_N, S_W3 = 20, 22, 24, 25, 26, 27
ABITS, BBITS = 0x8888, 0x88880000
S_HOB, S_FL, S_TH = 22, 23, 24


SKIP = set()


def at2(b, ps, i0, i1, k, ret=False):
    if not ps.on or i0 in SKIP:
        return ""
    op = "s_memrealtime" if ps.on == 2 else "s_memtime"
    t = f"  s_cmp_lg_u32 s{S_FIN}, 0\n  s_cbranch_scc1 st{k}_a\n"
    if i0 is not None:
        t += f"  {op} s[{60 + 2 * i0}:{61 + 2 * i0}]\n"
    t += f"  s_branch st{k}_b\nst{k}_a:\n"
    if i1 is not None:
        t += f"  {op} s[{60 + 2 * i1}:{61 + 2 * i1}]\n"
    t += f"st{k}_b:\n  s_waitcnt lgkmcnt(0)"
    if ret:
        return t + "\n"
    b.raw(t)


POLL = f"""  s_waitcnt vmcnt(0)
  v_cmp_ne_u32 vcc, 0, v{PZ}
  s_nop 1
  s_andn2_b32 s{S_EX}, s{S_EX}, vcc_lo
  s_lshr_b32 s54, vcc_lo, 1
  s_and_b32 s54, s54, vcc_lo
  s_lshr_b32 s55, s54, 2
  s_and_b32 s54, s54, s55
  s_and_b32 s54, s54, 0x11111111
  s_lshl_b32 s54, s54, 3
  v_mov_b32 v{V_T}, s54
  s_mov_b64 exec, 1
  ds_or_rtn_b32 v{V_F}, v{VMW}, v{V_T}
  s_mov_b64 exec, -1
  s_waitcnt lgkmcnt(0)
  v_readfirstlane_b32 s{S_MASK}, v{V_F}
  s_nop 1
  s_or_b32 s{S_MASK}, s{S_MASK}, s54
"""
READ = f"""  ds_read_b32 v{V_F}, v{VMW}
  s_waitcnt lgkmcnt(0)
  v_readfirstlane_b32 s{S_MASK}, v{V_F}
  s_nop 1
"""


def pissue(lab):
    return f"""  s_cmp_eq_u32 s{S_EX}, 0
  s_cbranch_scc1 {lab}
  s_mov_b64 exec, s[{S_EX}:{S_EX + 1}]
  buffer_load_dword v{PZ}, v{PA}, s[8:11], s{S_A} offen sc1
  s_mov_b64 exec, -1
{lab}:
"""


def seam(b, name, P, ps):
    t0, t1 = T, T + 1
    nm = f"{name}_s"
    b.hist, b.vmq, b.lgq = [], [], []
    b.label(f"{name}_seam")
    b.I("s_setprio", P["sprio"])
    b.I("s_mov_b32", s(S_FIN), s(S_LO))
    at2(b, ps, 0, 8, 0)
    b.I("s_sub_u32", s(7), s(S_LAY), FLG)
    b.I("s_lshl_b32", s(7), s(7), 1)
    b.I("s_lshl_b32", s(6), s(5), 14)
    b.I("s_add_u32", s(7), s(7), s(6))
    b.I("s_add_u32", s(7), s(7), PF2)
    b.I("s_lshl_b32", s(S_A), s(4), 11)
    b.I("s_add_u32", s(S_A), s(S_A), s(7))
    b.I("s_and_b32", s(S_FL), s(2), 15)
    b.I("s_lshl_b32", s(S_FL), s(S_FL), 7)
    b.I("s_add_u32", s(S_FL), s(S_FL), s(7))
    b.I("s_lshl_b32", s(13), s(5), 6)
    b.I("s_add_u32", s(13), s(13), s(4))
    b.I("s_mul_i32", s(13), s(13), 18432)
    b.I("s_add_u32", s(13), s(13), PART)
    b.I("s_add_u32", s(13), s(13), s(S_LO))
    b.I("s_lshl_b32", s(7), s(S_TOK), 5)
    b.I("s_add_u32", s(S_PXS), s(13), s(7))
    b.I("s_add_u32", s(S_P), s(S_PXS), s(7))
    b.I("s_add_u32", s(S_PXS), s(S_PXS), 8192)
    b.I("s_and_b32", s(S_W3), s(S_W), 3)
    b.I("s_lshl_b32", s(S_HOB), s(S_W3), 2)
    b.I("s_lshl_b32", s(S_HOB), 1, s(S_HOB))
    b.I("s_cmp_eq_u32", s(S_W3), 0)
    b.I("s_cselect_b32", s(S_EX), -1, 0)
    b.I("s_mov_b32", s(S_EX + 1), 0)
    lanes(b)
    b.I("v_and_b32", v(PA), 15, v(LANE))
    b.I("v_lshlrev_b32", v(PA), 7, v(PA))
    b.I("v_lshl_add_u32", v(PA), v(GL), 2, v(PA))
    b.I("v_mov_b32", v(PZ), 0)
    b.I("v_mov_b32", v(VMW), CNT + 8)
    b.I("v_mov_b32", v(V_Z), 1)
    b.I("v_mul_u32_u24", v(VP), 147456, v(G))
    b.I("v_lshl_add_u32", v(VP), v(DS), 10, v(VP))
    b.I("v_lshl_add_u32", v(VP), v(CQ), 4, v(VP))
    b.I("v_and_b32", v(t0), 1, v(DS))
    b.I("v_lshl_add_u32", v(t1), v(t0), 2, v(G))
    b.I("v_mul_u32_u24", v(VPX), 147456, v(t1))
    b.I("v_mul_u32_u24", v(t0), 3, v(t0))
    b.I("v_xor_b32", v(t0), v(t0), v(CQ))
    b.I("v_lshl_add_u32", v(VPX), v(t0), 3, v(VPX))
    b.I("v_lshrrev_b32", v(t0), 1, v(DS))
    b.I("v_mul_u32_u24", v(t0), 9216, v(t0))
    b.I("v_add_u32", v(VPX), v(VPX), v(t0))
    b.I("v_lshlrev_b32", v(PZ + 1), 11, v(LANE))
    b.I("v_mov_b32", v(V_F), CNT)
    b.I("v_mov_b32", v(V_T), P["bh1"] + 8)
    b.raw(f"""  s_cmp_ge_u32 s{S_W}, 4
  s_cbranch_scc0 {nm}_aa
  s_waitcnt vmcnt(0)
  ds_write_b32 v{V_FW}, v{V_T}
  s_branch {nm}_nf
{nm}_aa:
  s_mov_b64 exec, 1
  s_waitcnt vmcnt(0)
  ds_add_rtn_u32 v{V_F}, v{V_F}, v{V_Z}
  s_waitcnt lgkmcnt(0)
  v_cmp_eq_u32 vcc, 3, v{V_F}
  s_mov_b64 exec, 0xff
  s_cbranch_vccz {nm}_ab
  buffer_store_dword v{V_Z}, v{PZ + 1}, s[8:11], s{S_FL} offen sc1
{nm}_ab:
  s_mov_b64 exec, -1
{nm}_nf:""")
    at2(b, ps, 1, None, 1)
    b.raw(pissue(nm + "_p0"))
    ra = "sc1"
    b.I("buffer_load_dwordx4", v(RX, 4), v(0), WS, s(S_R), mods="offen " + ra)
    b.I("buffer_load_dwordx4", v(RE, 4), v(VRE), WS, s(S_R), mods="offen offset:1024 " + ra)
    b.I("v_and_b32", v(t1), 15, v(LANE))
    b.I("v_and_b32", v(t0), 1, v(LANE))
    b.I("v_lshlrev_b32", v(t0), 4, v(t0))
    b.I("v_mov_b32", v(T + 2), 0x3f80)
    b.I("v_lshlrev_b32", v(T + 2), v(t0), v(T + 2))
    b.I("v_lshrrev_b32", v(t1), 1, v(t1))
    for r in range(8):
        b.I("v_cmp_eq_u32_e64", s(28 if r % 2 == 0 else 32, 2), r, v(t1))
        if r > 0:
            b.I("v_cndmask_b32_e64", v(A1 + r - 1), 0, v(T + 2), s(28 if (r - 1) % 2 == 0 else 32, 2))
    b.I("v_cndmask_b32_e64", v(A1 + 7), 0, v(T + 2), s(32, 2))
    b.I("s_mul_i32", s(6), s(S_W3), 3072)
    b.I("s_add_u32", s(6), s(6), HO)
    b.I("v_add_u32", v(VHO), s(6), v(0))
    for r in range(4):
        b.I("v_mov_b32", v(T + 12 + r), 0)
        b.I("v_mov_b32", v(Y + r), 0)
    b.I("v_mov_b32", v(T + 10), fhex(OUTSCALE))
    b.I("s_cmp_lg_u32", s(S_FIN), 0)
    b.I("s_cbranch_scc1", f"{nm}_f1")
    snap = b.snapshot()
    b.I("buffer_load_dwordx4", v(RY, 4), v(0), WS, s(S_R), mods="offen offset:2048 " + ra)
    xn_setup(b, 1, LOFF)
    b.I("s_branch", f"{nm}_f2")
    b.restore(snap)
    b.label(f"{nm}_f1")
    b.I("s_load_dwordx2", s(48, 2), s(0, 2), 80)
    b.I("v_and_b32", v(t0), 15, v(LANE))
    b.I("v_lshlrev_b32", v(VQ), 4, v(t0))
    b.I("v_lshl_add_u32", v(VQ), v(GH), 8, v(VQ))
    b.I("v_mul_u32_u24", v(t0), 576, v(GL))
    b.I("v_add_u32", v(VQ), v(VQ), v(t0))
    b.I("v_lshrrev_b32", v(t0), 1, v(DS))
    b.I("v_mul_u32_u24", v(t0), 576, v(t0))
    b.I("v_lshl_add_u32", v(t0), v(CQ), 4, v(t0))
    b.I("v_lshl_add_u32", v(t0), v(GL), 3, v(t0))
    b.I("v_add_u32", v(t0), 512, v(t0))
    b.I("v_and_b32", v(t1), 0x24, v(LANE))
    b.I("v_lshl_add_u32", v(VQE), v(t1), 24, v(t0))
    b.I("s_mov_b32", s(50), S * D * 2)
    b.I("s_mov_b32", s(51), 0x20000)
    b.wait(lgkm=0)
    b.label(f"{nm}_f2")
    b.vmq, b.lgq = [], []
    b.I("s_cmp_ge_u32", s(S_W), 4)
    b.I("s_cbranch_scc1", f"{nm}_B0")

    def kc(a_, h, jj):
        return a_ * 4 + h * 2 + jj, jj * 589824 + a_ * 9216 + h * 4096, 3 + 16 * h + 8 * a_ + 4 * jj

    if P["psta"]:
        at2(b, ps, 6, None, 6)
    b.raw(f"""  s_cmp_lg_u32 s{S_W}, 1
  s_cbranch_scc1 {nm}_Pe
  s_mov_b32 s{S_TH}, {P["bh1"] + 1}
  s_mov_b32 s{S_CNT}, 0x40000
  v_mov_b32 v{V_T}, 4
{nm}_Pl:
  ds_read_b32 v{V_F}, v{V_FR} offset:1024
  s_waitcnt lgkmcnt(0)
{nm}_Pc:
  v_cmp_gt_u32 vcc, s{S_TH}, v{V_F}
  s_cbranch_vccnz {nm}_Pw
  s_mov_b64 exec, 1
  buffer_store_dword v{V_Z}, v{V_T}, s[8:11], s{S_FL} offen sc1
  s_mov_b64 exec, -1
  s_add_u32 s{S_FL}, s{S_FL}, 2048
  s_add_u32 s{S_TH}, s{S_TH}, 1
  s_cmp_le_u32 s{S_TH}, {P["bh1"] + 8}
  s_cbranch_scc1 {nm}_Pc
  s_branch {nm}_Pd
{nm}_Pw:
  s_sleep {P["psl2"]}
  s_sub_u32 s{S_CNT}, s{S_CNT}, 1
  s_cbranch_scc0 {nm}_Pl
{nm}_Pd:
  s_mov_b64 exec, 1
  ds_or_b32 v{VMW}, v{V_T}
  s_mov_b64 exec, -1
{at2(b, ps, 1, None, 7, True)}{nm}_Pe:""")
    gate = f"  s_bitcmp1_b32 s{S_MASK}, 2\n  s_cbranch_scc0 {nm}_A3\n" if P["gateb"] else ""
    txt = f"""  s_mov_b32 s{S_PEND}, {ABITS | 2}
  s_mov_b32 s{S_CNT}, 0x20000
{nm}_Al:
  s_cmp_eq_u32 s{S_EX}, 0
  s_cbranch_scc1 {nm}_Ar
{POLL}  s_branch {nm}_Ag
{nm}_Ar:
{READ}{nm}_Ag:
{gate}  s_and_b32 s{S_RDY}, s{S_MASK}, s{S_PEND}
  s_cbranch_scc0 {nm}_A3
  s_andn2_b32 s{S_PEND}, s{S_PEND}, s{S_RDY}
"""
    u = 0
    for jj in range(2):
        for a_ in range(2):
            k, c, bit = kc(a_, 0, jj)
            txt += f"""  s_bitcmp1_b32 s{S_RDY}, {bit}
  s_cbranch_scc0 {nm}_A{u}
  s_add_u32 s6, s{S_P}, {c}
  buffer_load_dwordx4 v[{PB + 4 * k}:{PB + 4 * k + 3}], v{VP}, s[8:11], s6 offen sc1
  buffer_load_dwordx4 v[{PB1 + 4 * k}:{PB1 + 4 * k + 3}], v{VP}, s[8:11], s6 offen offset:256 sc1
{nm}_A{u}:
"""
            u += 1
    txt += f"""  s_cmp_eq_u32 s{S_PEND}, 2
  s_cbranch_scc1 {nm}_Ad
  s_sleep {P["gsl"]}
{pissue(nm + "_Ap")}  s_sub_u32 s{S_CNT}, s{S_CNT}, 1
  s_cbranch_scc0 {nm}_Al
{nm}_Ad:
"""
    if P["psta"]:
        txt += at2(b, ps, 5, None, 5, True)
    for hh in range(2):
        txt += f"  buffer_load_dwordx2 v[{PB + 32 + 2 * hh}:{PB + 33 + 2 * hh}], v{VPX}, s[8:11], s{S_PXS} offen offset:{512 * hh} sc1\n"
        txt += f"  buffer_load_dwordx2 v[{PB1 + 32 + 2 * hh}:{PB1 + 33 + 2 * hh}], v{VPX}, s[8:11], s{S_PXS} offen offset:{512 * hh + 128} sc1\n"
    txt += f"""  s_mov_b32 s{S_EX}, 0
  s_waitcnt vmcnt(0)"""
    b.raw(txt)
    at2(b, ps, 3, None, 3)
    for (pb, la) in ((PB1, LACC1), (PB, LACC)):
        b.I(MF, v(la + 8, 4), v(A1, 4), v(pb + 32, 4), "0")
        for jj in range(2):
            for a_ in range(2):
                d = v(la + 4 * a_, 4)
                b.I(MF, d, v(A1, 4), v(pb + 4 * kc(a_, 0, jj)[0], 4), "0" if jj == 0 else d)
    dpp = "row_half_mirror row_mask:0x3 bank_mask:0x5"
    for r in range(4):
        b.I("v_add_f32_dpp", v(Y + r), v(LACC1 + 8 + r), v(LACC1 + 8 + r), mods=dpp)
    b.I("ds_write_b128", v(VHO), v(LACC1, 4))
    b.I("ds_write_b128", v(VHO), v(LACC1 + 4, 4), mods="offset:1024")
    b.I("ds_write_b128", v(VHO), v(Y, 4), mods="offset:2048")
    b.I("v_mov_b32", v(V_T), s(S_HOB))
    b.I("s_mov_b64", "exec", 1)
    b.I("ds_or_b32", v(VMW), v(V_T))
    b.I("s_mov_b64", "exec", -1)
    for r in range(4):
        b.I("v_add_f32_dpp", v(T + 12 + r), v(LACC + 8 + r), v(LACC + 8 + r), mods=dpp)
    b.I("s_mov_b32", s(S_PEND), BBITS)
    b.I("s_branch", f"{nm}_B1")
    b.label(f"{nm}_B0")
    b.I("s_or_b32", s(S_PEND), s(S_HOB), BBITS)
    b.label(f"{nm}_B1")
    txt = f"""  s_mov_b32 s{S_CNT}, 0x20000
{nm}_Bl:
  s_cmp_eq_u32 s{S_EX}, 0
  s_cbranch_scc1 {nm}_Br
{POLL}  s_cmp_eq_u32 s{S_EX}, 0
  s_cbranch_scc1 {nm}_Bg
  s_sleep {P["gslb"]}
{pissue(nm + "_Bp")}  s_branch {nm}_Bn
{nm}_Br:
{READ}{nm}_Bg:
  s_and_b32 s{S_RDY}, s{S_MASK}, s{S_PEND}
  s_cbranch_scc0 {nm}_Bs
"""
    u = 0
    for jj in range(2):
        for a_ in range(2):
            k, c, bit = kc(a_, 1, jj)
            txt += f"""  s_bitcmp1_b32 s{S_RDY}, {bit}
  s_cbranch_scc0 {nm}_Bu{u}
  s_add_u32 s6, s{S_P}, {c}
  buffer_load_dwordx4 v[{PB + 4 * k}:{PB + 4 * k + 3}], v{VP}, s[8:11], s6 offen sc1
{nm}_Bu{u}:
"""
            u += 1
    txt += f"""  s_and_b32 s6, s{S_RDY}, 0xffff
  s_cbranch_scc0 {nm}_Bh
  ds_read_b128 v[{LACC}:{LACC + 3}], v{VHO}
  ds_read_b128 v[{LACC + 4}:{LACC + 7}], v{VHO} offset:1024
  ds_read_b128 v[{T + 12}:{T + 15}], v{VHO} offset:2048
{nm}_Bh:
  s_andn2_b32 s{S_PEND}, s{S_PEND}, s{S_RDY}
  s_cbranch_scc0 {nm}_Bd
{nm}_Bs:
  s_sleep {P["lsl"]}
{nm}_Bn:
  s_sub_u32 s{S_CNT}, s{S_CNT}, 1
  s_cbranch_scc0 {nm}_Bl
{nm}_Bd:"""
    b.raw(txt)
    b.hist, b.vmq, b.lgq = [], [], []
    at2(b, ps, 2, 9, 2)
    b.force_wait("vmcnt(4)")
    for i in range(4):
        unpack(b, X + 2 * i, RX + i)
    for i in range(2):
        unpack(b, X + 8 + 2 * i, RE + i)
    for i in range(4):
        unpack(b, Y + 2 * i, RY + i)
    for i in range(2):
        unpack(b, Y + 8 + 2 * i, RE + 2 + i)
    b.force_wait("lgkmcnt(0)")
    SC = T + 10
    for i in range(2):
        b.I("v_pk_fma_f32", v(X + 8 + 2 * i, 2), v(T + 12 + 2 * i, 2), v(SC, 2), v(X + 8 + 2 * i, 2), mods="op_sel_hi:[1,0,1]")
    b.force_wait("vmcnt(0)")
    for jj in range(2):
        for a_ in range(2):
            d = v(LACC + 4 * a_, 4)
            b.I(MF, d, v(A2, 4), v(PB + 4 * kc(a_, 1, jj)[0], 4), d)
    at2(b, ps, 4, None, 4)
    for i in range(4):
        b.I("v_pk_fma_f32", v(X + 2 * i, 2), v(LACC + 2 * i, 2), v(SC, 2), v(X + 2 * i, 2), mods="op_sel_hi:[1,0,1]")
    b.I("s_cmp_lg_u32", s(S_FIN), 0)
    b.I("s_cbranch_scc0", f"{name}_ln1")
    snap = b.snapshot()
    for i in range(6):
        b.I("v_cvt_pk_bf16_f32", v(RX + i), v(X + 2 * i), v(X + 2 * i + 1))
    b.I("v_permlane16_swap_b32", v(RX), v(RX + 2))
    b.I("v_permlane16_swap_b32", v(RX + 1), v(RX + 3))
    b.I("buffer_store_dwordx4", v(RX, 4), v(VQ), IO, s(S_B), mods="offen " + P["oaux"])
    b.I("buffer_store_dwordx2", v(RE, 2), v(VQE), IO, s(S_B), mods="offen " + P["oaux"])
    b.wait_all()
    ps.at(10)
    ps.dump()
    tl.end(b)
    b.I("s_endpgm")
    b.restore(snap)
    b.label(f"{name}_ln1")
    ln_math(b, 1, P, Stamps(b, False))
    if not P["psta"] and not P.get("pl0"):
        ps.at(5)


class PTail(Tail):
    def finish(self, b, role):
        b.I("s_branch", f"{self.name}_seam")


def k_per2(n0, **kw):
    P = dict(DEF)
    P.update(LDEF)
    P.update(dict(gsl=2, gslb=1, lsl=1, thr=2, sprio=0, oaux="", pst=False, zpub=CNT, psta=False, pern=3, bh1=23, psl2=1, gateb=False))
    P.update(kw)
    b = AB()
    name = "per"
    ps = PSt(b, P["pst"])
    SKIP.clear()
    if P.get("pl0"):
        SKIP.update({1, 3})
    if P.get("pl0"):
        P["hook0"] = lambda: ps.at(5)
    ln_phase(b, n0, 0, P, f"{name}_end")
    if P.get("pl0"):
        ps.at(3)
    b.I("s_branch", f"{name}_pub")
    seam(b, name, P, ps)
    b.vmq, b.lgq = [], []
    b.label(f"{name}_pub")
    publish(b, name, P)
    def l0(i, k):
        b.raw(f"  s_cmp_lg_u32 s{S_LO}, 0\n  s_cbranch_scc1 l0_{k}\n  s_memrealtime s[{60 + 2 * i}:{61 + 2 * i}]\n  s_waitcnt lgkmcnt(0)\nl0_{k}:")
    if P.get("pl0"):
        l0(6, 0)
    elif not P["psta"]:
        ps.at(6)
    b.I("s_cmp_ge_u32", s(S_W), 4)
    b.I("s_cbranch_scc1", f"{name}_B")
    snap = b.snapshot()
    tail = PTail(name, P)
    cnt = [0]

    def after():
        ps.at(7)
        if P.get("pl0"):
            cnt[0] += 1
            l0(1, cnt[0])
    tail.after = after
    ffn_role(b, "A", P, name, tail)
    b.restore(snap)
    b.raw(".p2align 6")
    b.label(f"{name}_B")
    ffn_role(b, "B", P, name, tail)
    b.label(f"{name}_end")
    b.I("s_endpgm")
    return b
```

```python
S, D, F = 2048, 576, 4608
KVT  = 0x0
YB   = 0x240000
X1   = 0x480000
X3   = 0x6C0000
XN   = 0x900000
WGU  = 0xC00000
WD   = WGU + 144*18*4*1024
PART = 0x1C00000
HX   = 0x3000000
FLG  = 0x4200000
KFL  = 0x42F0000
FLG_L = 0x20000
XF   = FLG + 0x10000
PF   = FLG + 0x18000
LOFF = 0x6000000
PF2  = FLG + 0x40000
ZERO_BYTES = 0xC0000
REC  = 0x4400000
STAMP= 0x4300000
WS_BYTES = 0x10000000
import math
C2 = -2.0*math.log2(math.e)*math.sqrt(2.0/math.pi)
C1 = 0.044715*C2
ALPHA = (-C1)**(1.0/3.0)
KP = (1.0/0.044715)*ALPHA*ALPHA
OUTSCALE = 1.0/(ALPHA*ALPHA)
import struct
def f2u(x): return struct.unpack("<I", struct.pack("<f", x))[0]
def fhex(x): return hex(f2u(x))
```

```python
import sys
sys.path.insert(0, "dev")
from asmlib import kd, module
from k_ffn import k_ffn
from k_ffn2 import k_ffn2, FFN2_LDS
from k_ffn3 import k_ffn3, FFN3_LDS
from k_ln import k_ln
from k_prep import k_prep
from k_conv import k_conv, CONV_LDS
from k_front2 import k_front, FRONT_LDS

HDR = open("interleave_layers__ssm_conv_h3__geglu_ffn__prompt.s.ref").read().split("; Override")[0]

def build(launches, kernels):
    return HDR + module(launches, [k[0].text() for k in kernels.values()], [kd(n, k[1], k[2], k[3]) for n, k in kernels.items()])

def full(ffn_kw={}):
    ks = {
        "prep_kernel": (k_prep("prep_kernel", laux="nt", aux="sc1", kvl="nt"), 84, 96, 84),
        "conv_kernel": (k_conv("conv_kernel"), 512, 96, 256),
        "ln0_kernel": (k_ln("ln0_kernel", 0), 208, 96, 208),
        "ffn_kernel": (k_ffn3("ffn_kernel", **ffn_kw), 256, 96, 256),
        "ln1_kernel": (k_ln("ln1_kernel", 1, 8), 512, 96, 256),
        "ln2_kernel": (k_ln("ln2_kernel", 2, 8), 512, 96, 256),
    }
    launches = [("prep_kernel", 774, 256, 36864), ("conv_kernel", 144, 256, CONV_LDS), ("ln0_kernel", 256, 128, 0),
                ("ffn_kernel", 256, 512, FFN3_LDS), ("ln1_kernel", 256, 128, 0), ("ffn_kernel", 256, 512, FFN3_LDS),
                ("ln2_kernel", 256, 128, 0)]
    return build(launches, ks), ks

FFN_KW = dict(b_plan=[('k','oA',0,8),('n','pM pQ oB pB',0,8)], laB=26)
def full2(ffn_kw=FFN_KW, front_kw={}, ln0_kw={}):
    ks = {
        "front_kernel": (k_front("front_kernel", **front_kw), 256, 96, 256),
        "ln0_kernel": (k_ln("ln0_kernel", 0, **ln0_kw), 208, 96, 208),
        "ffn_kernel": (k_ffn3("ffn_kernel", **ffn_kw), 256, 96, 256),
        "ln1_kernel": (k_ln("ln1_kernel", 1, 8), 512, 96, 256),
        "ln2_kernel": (k_ln("ln2_kernel", 2, 8), 512, 96, 256),
    }
    launches = [("front_kernel", 256, 512, FRONT_LDS), ("ln0_kernel", 256, 128, 0),
                ("ffn_kernel", 256, 512, FFN3_LDS), ("ln1_kernel", 256, 128, 0), ("ffn_kernel", 256, 512, FFN3_LDS),
                ("ln2_kernel", 256, 128, 0)]
    return build(launches, ks), ks

from k_ffl import k_ffl, k_lnz
def full3(ffn_kw={}, front_kw={}, lnz_kw={}):
    fk = dict(FFN_KW); fk.update(dict(pf=("ffl_pub", "ffl_end"), preA=10, preB=4)); fk.update(ffn_kw)
    fr = dict(zero=True, qpf=1, pf="lnz_kernel_end"); fr.update(front_kw)
    bs = [k_front("front_kernel", **fr), k_ffl("ffa_kernel", "ffb_kernel", **fk), k_lnz("lnz_kernel", **lnz_kw)]
    launches = [("front_kernel", 256, 512, FRONT_LDS), ("ffa_kernel", 256, 512, FFN3_LDS), ("ffb_kernel", 256, 512, FFN3_LDS),
                ("lnz_kernel", 256, 512, 81920)]
    kds = [kd("front_kernel", 256, 96, 256), kd("ffa_kernel", 256, 96, 256), kd("ffb_kernel", 256, 96, 256), kd("lnz_kernel", 232, 96, 232)]
    return HDR + module(launches, [x.text() for x in bs], kds), {str(i): (x,) for i, x in enumerate(bs)}

from k_per import k_per
def full4(ffn_kw={}, front_kw={}):
    fk = dict(FFN_KW); fk.update(dict(pf=("per_ln1", "per_end"), pfn=6, preA=10, preB=4)); fk.update(ffn_kw)
    fr = dict(zero=True, qpf=1, pf="per_end"); fr.update(front_kw)
    bs = [k_front("front_kernel", **fr), k_per("per_kernel", **fk)]
    launches = [("front_kernel", 256, 512, FRONT_LDS), ("per_kernel", 256, 512, FFN3_LDS)]
    kds = [kd("front_kernel", 256, 96, 256), kd("per_kernel", 256, 102, 256)]
    return HDR + module(launches, [x.text() for x in bs], kds), {str(i): (x,) for i, x in enumerate(bs)}

from k_per2 import k_per2, PER_LDS
import k_front3
def full5(ffn_kw={}, front_kw={}):
    fk = dict(FFN_KW); fk.update(dict(pf=("per_seam", "per_end"), pfn=6, preA=10, preB=4)); fk.update(ffn_kw)
    fr = dict(zero=True, qpf=1, pf="per_end"); fr.update(front_kw)
    kf = k_front3.k_front if fr.pop("dg", False) else k_front
    bs = [kf("front_kernel", **fr), k_per2("per_kernel", **fk)]
    launches = [("front_kernel", 256, 512, FRONT_LDS), ("per_kernel", 256, 512, PER_LDS)]
    kds = [kd("front_kernel", 256, 96, 256), kd("per_kernel", 256, 102, 256)]
    return HDR + module(launches, [x.text() for x in bs], kds), {str(i): (x,) for i, x in enumerate(bs)}

from k_per2 import CNT
KN = "interleave_layers__ssm_conv_h3__geglu_ffn__prompt_kernel"
def full6(ffn_kw={}, front_kw={}):
    fk = dict(FFN_KW); fk.update(dict(pf=None, preA=10, preB=4, fuse=True, tag=96, gcnt=CNT + 32, wdef=True, ncp=4, wsl=0, wak=4, rlne=True, qw=1, lo='')); fk.update(ffn_kw)
    fr = dict(zero="ld", qpf=1, pf="per_end", fuse="per_entry", gcnt=CNT + 32, yaux="sc1", wdef=True, touch=2, rdly=-1, rlne=True, early=0); fr.update(front_kw)
    b = k_front(KN, **fr)
    k_per2("per_entry", b=b, **fk)
    txt = HDR + f"; @launch grid=(256,1,1) block=(512,1,1) lds={PER_LDS}\n" + module([], [b.text()], [kd(KN, 256, 102, 256)])
    return txt, {"0": (b,)}

if __name__ == "__main__":
    import tl
    tl.ON = "--tl" in sys.argv
    sys.argv = [a for a in sys.argv if a != "--tl"]
    txt, ks = full6()
    out = sys.argv[1] if len(sys.argv) > 1 else "interleave_layers__ssm_conv_h3__geglu_ffn__prompt.s"
    open(out, "w").write(txt)
    print(len(txt))
    for n, k in ks.items():
        print(n, k[0].stats)
```

```python
from ab import *
from lay import *
import tl
from k_ffn4 import *
from k_ffn4 import ffn_role, DEF

YS_LDS, XT = 0, 16384
LANE, CQ, DS, G, GL, GH = 5, 90, 91, 92, 93, 94
VP, VPX, VQ, VQE = 96, 97, 98, 99
PB = 100
RX, RE, RY = 136, 140, 144
A1, A2 = 148, 152
LACC = 156
X, Y, T = 168, 180, 192
XO, VXS, VXR, VXW, VXE = 208, 216, 217, 218, 219
VYD, YA0, YA1, YAE = 220, 221, 222, 223
PFD, PFA = 224, 228
VRE = 229
S_P, S_PXS, S_R, S_XFO, S_XFG, S_XS, S_TOK, S_A, S_B, S_LAY = 40, 41, 42, 43, 44, 45, 46, 47, 52, 53
S_LO = 57
IO = s(48, 4)
WS = s(8, 4)
VALID = 0x0F0F0F0F


def pf_code(b, name, first, last):
    b.raw(f"  s_getpc_b64 s[54:55]\n{name}_pc:")
    b.raw(f"  s_add_u32 s54, s54, {first}-{name}_pc\n  s_addc_u32 s55, s55, 0" if True else "")
    b.I("s_lshr_b32", s(56), s(2), 3)
    b.I("s_lshl_b32", s(56), s(56), 13)
    b.I("v_add_u32", v(PFA), s(56), v(PFA))
    b.raw(f"  v_min_u32 v{PFA}, {last}-{first}-16, v{PFA}")
    b.I("global_load_dwordx4", v(PFD, 4), v(PFA), s(54, 2))


def ffn_setup(b):
    b.I("v_add_u32", v(1), 0x10000, v(0))
    b.I("v_add_u32", v(2), 0x20000, v(0))
    b.I("v_and_b32", v(6), 15, v(5))
    b.I("v_lshrrev_b32", v(7), 4, v(5))
    b.I("v_lshl_add_u32", v(6), v(6), 2, v(7))
    b.I("v_lshlrev_b32", v(VS), 4, v(6))
    b.I("v_lshlrev_b32", v(VS2), 3, v(6))
    b.I("s_lshl_b32", s(13), s(4), 1)
    b.I("s_add_u32", s(13), s(13), s(12))
    b.I("s_xor_b32", s(14), s(13), 1)
    b.I("s_mul_i32", s(6), s(13), 9)
    b.I("s_add_u32", s(7), s(6), s(S_W))
    b.I("s_mul_i32", s(S_GU), s(7), 18 * 4096)
    b.I("s_add_u32", s(S_GU), s(S_GU), WGU)
    b.I("s_add_u32", s(7), s(6), 8)
    b.I("s_mul_i32", s(S_GUX), s(7), 18 * 4096)
    b.I("s_lshl_b32", s(7), s(S_W), 10)
    b.I("s_add_u32", s(S_GUX), s(S_GUX), s(7))
    b.I("s_add_u32", s(S_GUX), s(S_GUX), WGU)
    b.I("s_and_b32", s(19), s(S_W), 3)
    b.I("s_lshl_b32", s(S_XL), s(19), 11)
    b.I("s_lshl_b32", s(S_W8), s(19), 13)
    b.I("s_mul_i32", s(S_XG), s(5), 147456)
    b.I("s_add_u32", s(S_XG), s(S_XG), s(S_XL))
    b.I("s_add_u32", s(S_XG), s(S_XG), XN)
    b.I("s_add_u32", s(S_XG), s(S_XG), s(S_LO))
    b.I("s_mul_i32", s(15), s(12), 18 * 1024)
    b.I("s_add_u32", s(15), s(15), WD)
    b.I("s_lshl_b32", s(16), s(S_W), 11)
    b.I("s_and_b32", s(17), s(S_W), 1)
    b.I("s_lshl_b32", s(17), s(17), 10)
    b.I("s_add_u32", s(17), s(17), 16 * 1024)
    for (sm, sx, f) in ((S_DO, S_DOX, 13), (S_DP, S_DPX, 14)):
        b.I("s_mul_i32", s(7), s(f), 9 * 36 * 1024)
        b.I("s_add_u32", s(7), s(7), s(15))
        b.I("s_add_u32", s(sm), s(7), s(16))
        b.I("s_add_u32", s(sx), s(7), s(17))
    b.I("s_lshl_b32", s(7), s(5), 3)
    b.I("s_add_u32", s(7), s(7), s(4))
    b.I("s_mul_i32", s(7), s(7), 8 * 18432)
    b.I("s_mul_i32", s(15), s(12), 9 * 1024)
    b.I("s_add_u32", s(7), s(7), s(15))
    b.I("s_add_u32", s(7), s(7), PART)
    b.I("s_add_u32", s(7), s(7), s(S_LO))
    b.I("s_lshl_b32", s(15), s(S_W), 10)
    b.I("s_add_u32", s(S_PM), s(7), s(15))
    b.I("s_and_b32", s(15), s(S_W), 1)
    b.I("s_lshl_b32", s(15), s(15), 9)
    b.I("s_add_u32", s(S_PX), s(7), s(15))
    b.I("s_add_u32", s(S_PX), s(S_PX), 8192)
    b.I("s_cmp_ge_u32", s(S_W), 4)
    b.I("s_cselect_b32", s(17), 5 * 8192, 0)
    b.I("s_cselect_b32", s(16), 10 * 8192, 0)
    b.I("s_add_u32", s(17), s(17), s(S_W8))
    b.I("s_add_u32", s(16), s(16), s(S_W8))
    b.I("v_add_u32", v(V_HW), s(16), v(0))
    b.I("s_lshl_b32", s(7), s(5), 4)
    for (sh, shx, sf, f) in ((S_HO, S_HOX, S_FO, 13), (S_HP, S_HPX, S_FP, 14)):
        b.I("s_add_u32", s(15), s(7), s(f))
        b.I("s_lshl_b32", s(sf), s(15), 8)
        b.I("s_add_u32", s(sf), s(sf), s(S_LAY))
        b.I("s_lshl_b32", s(16), s(S_W if sf == S_FO else 19), 5)
        b.I("s_add_u32", s(sf), s(sf), s(16))
        b.I("s_mul_i32", s(15), s(15), 73728)
        b.I("s_add_u32", s(15), s(15), HX)
        b.I("s_add_u32", s(15), s(15), s(S_LO))
        b.I("s_add_u32", s(sh), s(15), s(17 if sh == S_HO else S_W8))
        b.I("s_add_u32", s(shx), s(15), s(S_XL))
        b.I("s_add_u32", s(shx), s(shx), 32768)
    b.I("s_lshl_b32", s(7), s(S_W), 2)
    b.I("s_add_u32", s(7), s(7), 4 * 8192)
    b.I("v_add_u32", v(V_HWX), s(7), v(0))
    b.I("v_and_b32", v(6), 3, v(5))
    b.I("v_lshlrev_b32", v(6), 8, v(6))
    b.I("v_add_u32", v(V_FR), LDS_FX, v(6))
    b.I("s_cmp_eq_u32", s(S_W), 2)
    b.I("s_cselect_b32", s(7), 1, 0)
    b.I("s_cmp_eq_u32", s(S_W), 3)
    b.I("s_cselect_b32", s(7), 1, s(7))
    b.I("s_lshl_b32", s(S_H4), s(7), 10)
    b.I("s_mul_i32", s(7), s(7), 18432)
    b.I("s_sub_u32", s(S_PMH), s(S_PM), s(7))
    b.I("s_add_u32", s(S_PM), s(S_PM), s(7))
    b.I("s_add_u32", s(S_PX), s(S_PX), s(7))


def xn_setup(b, layer, LO=0):
    b.I("s_mov_b32", s(S_LO), layer * LO)
    b.I("s_mov_b32", s(S_LAY), FLG + layer * FLG_L)
    b.I("s_lshl_b32", s(S_XFO), s(2), 7)
    b.I("s_add_u32", s(S_XFO), s(S_XFO), XF + layer * FLG_L)
    b.I("s_lshl_b32", s(S_XFG), s(5), 11)
    b.I("s_add_u32", s(S_XFG), s(S_XFG), XF + layer * FLG_L)
    b.I("s_mul_i32", s(S_XS), s(5), 147456)
    b.I("s_lshl_b32", s(7), s(4), 10)
    b.I("s_add_u32", s(S_XS), s(S_XS), s(7))
    b.I("s_lshl_b32", s(7), s(12), 7)
    b.I("s_add_u32", s(S_XS), s(S_XS), s(7))
    b.I("s_lshl_b32", s(7), s(S_W), 14)
    b.I("s_add_u32", s(S_XS), s(S_XS), s(7))
    b.I("s_add_u32", s(S_XS), s(S_XS), XN + layer * LO)
    t0, t1 = T, T + 1
    b.I("v_lshrrev_b32", v(t0), 3, v(LANE))
    b.I("v_and_b32", v(t1), 7, v(LANE))
    b.I("v_xor_b32", v(t1), v(t1), v(t0))
    b.I("v_lshlrev_b32", v(VXS), 4, v(t1))
    b.I("v_and_b32", v(t1), 3, v(t0))
    b.I("v_lshl_add_u32", v(VXS), v(t1), 8, v(VXS))
    b.I("v_lshl_add_u32", v(VXS), v(GH), 13, v(VXS))
    b.I("s_lshl_b32", s(7), s(S_W), 10)
    b.I("s_add_u32", s(7), s(7), XT)
    b.I("v_add_u32", v(VXR), s(7), v(0))
    b.I("v_and_b32", v(t0), 15, v(LANE))
    b.I("v_lshl_add_u32", v(t0), v(GH), 4, v(t0))
    b.I("v_mad_u32_u24", v(t0), v(GL), 36, v(t0))
    b.I("v_and_b32", v(t1), 7, v(t0))
    b.I("v_xor_b32", v(t1), s(S_W), v(t1))
    b.I("v_lshlrev_b32", v(t1), 4, v(t1))
    b.I("v_lshl_add_u32", v(VXW), v(t0), 7, v(t1))
    b.I("v_add_u32", v(VXW), XT, v(VXW))
    b.I("v_lshrrev_b32", v(t0), 1, v(DS))
    b.I("v_mad_u32_u24", v(t0), v(t0), 36, v(CQ))
    b.I("v_and_b32", v(t1), 7, v(t0))
    b.I("v_xor_b32", v(t1), s(S_W), v(t1))
    b.I("v_lshlrev_b32", v(t1), 4, v(t1))
    b.I("v_lshl_add_u32", v(VXE), v(t0), 7, v(t1))
    b.I("v_lshl_add_u32", v(VXE), v(GL), 3, v(VXE))
    b.I("v_add_u32", v(VXE), XT + 32 * 128, v(VXE))


def allreduce2(b, x0, x1, t0, t1):
    for m in ("quad_perm:[1,0,3,2]", "quad_perm:[2,3,0,1]", "row_half_mirror", "row_mirror"):
        for x in (x0, x1):
            b.I("v_add_f32_dpp", v(x), v(x), v(x), mods=m + " row_mask:0xf bank_mask:0xf")
    for op in ("v_permlane16_swap_b32", "v_permlane32_swap_b32"):
        b.I("v_mov_b32", v(t0), v(x0))
        b.I("v_mov_b32", v(t1), v(x1))
        b.I(op, v(t0), v(x0))
        b.I(op, v(t1), v(x1))
        b.I("v_add_f32", v(x0), v(x0), v(t0))
        b.I("v_add_f32", v(x1), v(x1), v(t1))


def rbf(b, x):
    b.I("v_cvt_pk_bf16_f32", v(x), v(x), v(x))
    b.I("v_lshlrev_b32", v(x), 16, v(x))


def stats(b, scale=None):
    p0, p1, q0, q1 = T, T + 2, T + 4, T + 6
    R, M = T + 8, T + 10
    b.I("v_pk_add_f32", v(p0, 2), v(X, 2), v(X + 2, 2))
    b.I("v_pk_mul_f32", v(q0, 2), v(X, 2), v(X, 2))
    b.I("v_pk_add_f32", v(p1, 2), v(X + 4, 2), v(X + 6, 2))
    b.I("v_pk_mul_f32", v(q1, 2), v(X + 2, 2), v(X + 2, 2))
    b.I("v_pk_add_f32", v(p0, 2), v(p0, 2), v(X + 8, 2))
    b.I("v_pk_fma_f32", v(q0, 2), v(X + 4, 2), v(X + 4, 2), v(q0, 2))
    b.I("v_pk_add_f32", v(p1, 2), v(p1, 2), v(X + 10, 2))
    b.I("v_pk_fma_f32", v(q1, 2), v(X + 6, 2), v(X + 6, 2), v(q1, 2))
    b.I("v_pk_fma_f32", v(q0, 2), v(X + 8, 2), v(X + 8, 2), v(q0, 2))
    b.I("v_pk_fma_f32", v(q1, 2), v(X + 10, 2), v(X + 10, 2), v(q1, 2))
    b.I("v_pk_add_f32", v(p0, 2), v(p0, 2), v(p1, 2))
    b.I("v_pk_add_f32", v(q0, 2), v(q0, 2), v(q1, 2))
    b.I("v_add_f32", v(M), v(p0), v(p0 + 1))
    b.I("v_add_f32", v(R), v(q0), v(q0 + 1))
    allreduce2(b, M, R, T, T + 1)
    b.I("v_mul_f32", v(M), fhex(-1.0 / 576), v(M))
    b.I("v_mul_f32", v(R), fhex(1.0 / 576), v(R))
    b.I("v_fma_f32", v(R), "-" + v(M), v(M), v(R))
    b.I("v_cvt_pk_bf16_f32", v(M), v(M), v(M))
    b.I("v_max_f32", v(R), 0, v(R))
    b.I("v_lshlrev_b32", v(M), 16, v(M))
    rbf(b, R)
    b.I("v_add_f32", v(R), fhex(1e-5), v(R))
    rbf(b, R)
    b.I("v_sqrt_f32", v(R), v(R))
    rbf(b, R)
    b.I("v_rcp_f32", v(R), v(R))
    if scale is not None:
        b.I("v_mul_f32", v(R), fhex(scale), v(R))
    b.I("v_mul_f32", v(M), v(M), v(R))
    return R, M


def unpack(b, dst, src):
    b.I("v_lshlrev_b32", v(dst), 16, v(src))
    b.I("v_and_b32", v(dst + 1), 0xffff0000, v(src))


def ln_phase(b, name, mode, P, endlab):
    st = Stamps(b, P["stamps"] and mode != 2, base=60)
    fuse = P.get("fuse")
    if fuse:
        b.hist, b.vmq, b.lgq = [], [], []
        b.label(name)
        b.I("s_setprio", 0)
        b.I("s_load_dwordx2", s(48, 2), s(0, 2), 0)
        b.I("v_mov_b32", v(7), P["gcnt"] + 8)
        b.I("ds_read_b64", v(8, 2), v(7))
        b.I("v_mbcnt_lo_u32_b32", v(0), -1, 0)
        b.I("v_mbcnt_hi_u32_b32", v(0), -1, v(0))
        b.I("s_lshl_b32", s(6), s(S_W), 6)
        b.I("v_add_u32", v(0), s(6), v(0))
    else:
        b.raw(f".globl {name}\n.p2align 8\n.type {name},@function\n{name}:")
        tl.start(b)
        b.I("s_load_dwordx2", s(8, 2), s(0, 2), 96)
        if mode != 1:
            b.I("s_load_dwordx2", s(48, 2), s(0, 2), 0 if mode == 0 else 80)
        b.I("s_cmp_ge_u32", s(2), 256)
        b.I("s_cbranch_scc1", endlab)
    st()
    if P.get("hook0"):
        P["hook0"]()
    if P.get("body"):
        st.on = False
    b.I("v_lshrrev_b32", v(4), 6, v(0))
    b.I("v_and_b32", v(LANE), 63, v(0))
    if not fuse:
        b.I("v_readfirstlane_b32", s(S_W), v(4))
    b.I("v_lshlrev_b32", v(PFA), 4, v(0))
    b.I("v_lshlrev_b32", v(6), 2, v(0))
    b.I("v_lshlrev_b32", v(0), 4, v(LANE))
    b.I("v_and_b32", v(CQ), 3, v(LANE))
    b.I("v_bfe_u32", v(DS), v(LANE), 2, 2)
    b.I("v_lshrrev_b32", v(G), 4, v(LANE))
    b.I("v_and_b32", v(GL), 1, v(G))
    b.I("v_lshrrev_b32", v(GH), 1, v(G))
    b.I("s_mov_b32", s(10), WS_BYTES)
    b.I("s_mov_b32", s(11), 0x20000)
    b.I("s_and_b32", s(4), s(2), 7)
    b.I("s_bfe_u32", s(12), s(2), 0x10003)
    b.I("s_lshr_b32", s(5), s(2), 4)
    b.I("s_lshl_b32", s(S_TOK), s(12), 3)
    b.I("s_add_u32", s(S_TOK), s(S_TOK), s(S_W))
    b.I("s_lshl_b32", s(S_R), s(2), 3)
    b.I("s_add_u32", s(S_R), s(S_R), s(S_W))
    b.I("s_mul_i32", s(S_R), s(S_R), 3072)
    b.I("s_add_u32", s(S_R), s(S_R), REC)
    t0, t1 = T, T + 1
    b.I("v_and_b32", v(t0), 0x24, v(LANE))
    b.I("v_lshrrev_b32", v(t1), 1, v(LANE))
    b.I("v_and_b32", v(t1), 12, v(t1))
    b.I("v_or_b32", v(t1), v(t1), v(CQ))
    b.I("v_lshlrev_b32", v(t1), 4, v(t1))
    b.I("v_lshl_add_u32", v(VRE), v(t0), 26, v(t1))
    if mode != 0:
        b.I("v_mul_u32_u24", v(VP), 147456, v(G))
        b.I("v_lshl_add_u32", v(VP), v(DS), 10, v(VP))
        b.I("v_lshl_add_u32", v(VP), v(CQ), 4, v(VP))
        b.I("s_lshl_b32", s(6), s(5), 6)
        b.I("s_add_u32", s(6), s(6), s(4))
        b.I("s_mul_i32", s(6), s(6), 18432)
        b.I("s_add_u32", s(6), s(6), PART)
        b.I("s_lshl_b32", s(7), s(S_TOK), 5)
        b.I("s_add_u32", s(S_PXS), s(6), s(7))
        b.I("s_add_u32", s(S_P), s(S_PXS), s(7))
        b.I("s_add_u32", s(S_PXS), s(S_PXS), 8192)
        b.I("v_and_b32", v(t0), 1, v(DS))
        b.I("v_lshl_add_u32", v(t1), v(t0), 2, v(G))
        b.I("v_mul_u32_u24", v(VPX), 147456, v(t1))
        b.I("v_mul_u32_u24", v(t0), 3, v(t0))
        b.I("v_xor_b32", v(t0), v(t0), v(CQ))
        b.I("v_lshl_add_u32", v(VPX), v(t0), 3, v(VPX))
        b.I("v_lshrrev_b32", v(t0), 1, v(DS))
        b.I("v_mul_u32_u24", v(t0), 9216, v(t0))
        b.I("v_add_u32", v(VPX), v(VPX), v(t0))
    if mode != 1:
        def qaddr():
            b.I("v_and_b32", v(t0), 15, v(LANE))
            b.I("v_lshlrev_b32", v(VQ), 4, v(t0))
            b.I("v_lshl_add_u32", v(VQ), v(GH), 8, v(VQ))
            b.I("v_mul_u32_u24", v(t0), 576, v(GL))
            b.I("v_add_u32", v(VQ), v(VQ), v(t0))
            b.I("v_lshrrev_b32", v(t0), 1, v(DS))
            b.I("v_mul_u32_u24", v(t0), 576, v(t0))
            b.I("v_lshl_add_u32", v(t0), v(CQ), 4, v(t0))
            b.I("v_lshl_add_u32", v(t0), v(GL), 3, v(t0))
            b.I("v_add_u32", v(t0), 512, v(t0))
            b.I("v_and_b32", v(t1), 0x24, v(LANE))
            b.I("v_lshl_add_u32", v(VQE), v(t1), 24, v(t0))
            b.I("s_mov_b32", s(50), S * D * 2)
            b.I("s_mov_b32", s(51), 0x20000)
            b.I("s_lshl_b32", s(S_A), s(5), 3)
            b.I("s_add_u32", s(S_A), s(S_A), s(4))
            b.I("s_lshl_b32", s(S_B), s(S_A), 4)
            b.I("s_add_u32", s(S_B), s(S_B), s(S_TOK))
            b.I("s_mul_i32", s(S_B), s(S_B), 1152)
        if mode == 0:
            qaddr()
        if mode == 0 and P.get("ytag"):
            b.I("s_lshl_b32", s(S_A), s(S_A), 8)
            b.I("s_lshl_b32", s(7), s(12), 7)
            b.I("s_add_u32", s(S_A), s(S_A), s(7))
            b.I("s_add_u32", s(S_A), s(S_A), YB)
        elif mode == 0:
            b.I("v_xor_b32", v(t0), v(CQ), v(G))
            b.I("v_lshlrev_b32", v(t0), 4, v(t0))
            b.I("v_lshrrev_b32", v(t1), 2, v(LANE))
            BS, PS = (128, P["ystr"]) if P.get("ystr") else (18432, 128)
            if P.get("ystr"):
                b.I("v_mul_u32_u24", v(VYD), PS, v(t1))
                b.I("v_add_u32", v(VYD), v(VYD), v(t0))
            else:
                b.I("v_lshl_add_u32", v(VYD), v(t1), 7, v(t0))
            b.I("s_mul_i32", s(S_A), s(S_A), BS)
            b.I("s_lshl_b32", s(7), s(12), 6)
            b.I("s_add_u32", s(S_A), s(S_A), s(7))
            b.I("s_add_u32", s(S_A), s(S_A), YB)
            if P.get("ystr"):
                b.I("s_mul_i32", s(7), s(S_W), 16 * PS)
            else:
                b.I("s_lshl_b32", s(7), s(S_W), 11)
            b.I("s_add_u32", s(6), s(S_A), s(7))
            b.I("s_add_u32", s(S_A), s(S_A), 128 * PS)
            b.I("s_lshl_b32", s(7), s(S_W), 10)
    b.wait(lgkm=0)
    if fuse:
        b.I("v_readfirstlane_b32", s(P["tag"]), v(8))
        b.I("v_readfirstlane_b32", s(P["tag"] + 1), v(9))
    st()
    la = P["laux"]
    if mode == 0:
        b.I("buffer_load_dwordx4", v(RX, 4), v(VQ), IO, s(S_B), mods="offen")
        b.I("buffer_load_dwordx2", v(RE, 2), v(VQE), IO, s(S_B), mods="offen")

        def ydma(sa, sb):
            ya = " sc1" if fuse else ""
            b.I("s_cmp_lg_u32", s(S_W), 0)
            b.I("s_cbranch_scc1", f"{name}_y8")
            b.raw(f"  s_mov_b32 m0, {YS_LDS + 8192}\n  s_nop 0\n  buffer_load_dwordx4 v{VYD}, s[8:11], s{S_A} offen{ya} lds")
            b.label(f"{name}_y8")
            b.I("s_add_u32", "m0", s(sb), YS_LDS)
            b.I("buffer_load_dwordx4", v(VYD), WS, s(sa), mods=f"offen{ya} lds", tag="y")
        if fuse and P.get("ytag"):
            tg = f"s[{P['tag']}:{P['tag'] + 1}]"
            MK, OF = [18, 20, 22, 24, 26], [15, 16, 17, 28, 29]
            PS = P["ystr"]
            a0, a1, fa, FZ = PB + 20, PB + 21, PB + 24, PB + 25
            b.I("s_and_b32", s(7), s(S_W), 3)
            b.I("s_mul_i32", s(13), s(7), 8 * PS)
            b.I("v_lshrrev_b32", v(a0), 3, v(LANE))
            b.I("v_and_b32", v(a1), 7, v(LANE))
            b.I("v_lshl_add_u32", v(fa), v(a0), 5, v(a1))
            b.I("v_lshlrev_b32", v(fa), 7, v(fa))
            b.I("s_and_b32", s(6), s(2), P["ycp"] - 1)
            b.I("s_mul_i32", s(14), s(6), 18432)
            b.I("s_lshl_b32", s(6), s(7), 10)
            b.I("s_add_u32", s(14), s(14), s(6))
            b.I("s_add_u32", s(14), s(14), GFY)
            b.I("s_cmp_lt_u32", s(7), 2)
            b.I("s_cselect_b64", s(MK[4], 2), -1, 0)
            b.I("s_mov_b64", s(32, 2), s(MK[4], 2))
            b.raw(f"""  s_cmp_ge_u32 s{S_W}, 4
  s_cbranch_scc1 {name}_y0
  s_and_b32 exec_hi, s26, 0xff
  buffer_load_dword v{FZ}, v{fa}, s[8:11], s14 offen sc1
  s_mov_b64 exec, -1
{name}_y0:""")
            b.I("s_add_u32", s(OF[0]), s(S_A), s(13))
            for m in range(1, 5):
                b.I("s_add_u32", s(OF[m]), s(OF[0]), m * 32 * PS)
            for m in range(4):
                b.I("s_mov_b64", s(MK[m], 2), -1)
            b.I("v_mul_u32_u24", v(VYD), PS, v(a0))
            b.I("v_lshl_add_u32", v(VYD), v(a1), 4, v(VYD))
            b.I("s_lshl_b32", s(6), s(7), 1)
            b.I("v_add_u32", v(a1 + 1), s(6), v(GH))
            b.I("v_and_b32", v(a1 + 1), 3, v(a1 + 1))
            b.I("v_lshrrev_b32", v(a1 + 2), 1, v(a1))
            b.I("v_xor_b32", v(a1 + 1), v(a1 + 1), v(a1 + 2))
            b.I("v_lshlrev_b32", v(a1 + 1), 4, v(a1 + 1))
            b.I("v_lshl_add_u32", v(a1 + 1), v(a0), 6, v(a1 + 1))
            b.I("v_and_b32", v(a1), 1, v(a1))
            b.I("v_lshl_add_u32", v(a1), v(a1), 3, v(a1 + 1))
            b.I("s_lshl_b32", s(6), s(7), 9)
            b.I("s_add_u32", s(6), s(6), P["ys"])
            b.I("v_add_u32", v(a1), s(6), v(a1))

            def yloads(k):
                txt = ""
                for m in range(5):
                    txt += f"""  s_mov_b64 exec, s[{MK[m]}:{MK[m] + 1}]
  s_cbranch_execz {name}_ys{k}{m}
  buffer_load_dwordx4 v[{PB + 4 * m}:{PB + 4 * m + 3}], v{VYD}, s[8:11], s{OF[m]} offen sc1
{name}_ys{k}{m}:
"""
                return txt + "  s_mov_b64 exec, -1\n"

            def ypre():
                skip = f"  s_cmp_lt_u32 s2, 144\n  s_cbranch_scc1 {name}_y2\n" if P["yspec"] else ""
                b.raw(f"""  s_cmp_ge_u32 s{S_W}, 4
  s_cbranch_scc1 {name}_y3
{skip}  s_and_b32 exec_hi, s26, 0xff
  s_mov_b32 s{S_CNT}, 0x20000
{name}_y1:
  v_cmp_ne_u32 vcc, s{P["tag"]}, v{FZ}
  s_cbranch_vccz {name}_y2
  s_mov_b64 exec, vcc
  s_sleep {P["ysl"]}
  buffer_load_dword v{FZ}, v{fa}, s[8:11], s14 offen sc1
  s_waitcnt vmcnt(0)
  s_sub_u32 s{S_CNT}, s{S_CNT}, 1
  s_cbranch_scc0 {name}_y1
{name}_y2:
{P.get("hook3", "")}{yloads(0)}{name}_y3:""")
            P["ypre"] = ypre

            def ywait():
                txt = f"""  s_cmp_ge_u32 s{S_W}, 4
  s_cbranch_scc1 {name}_yh
  s_mov_b32 s{S_CNT}, 0x20000
{name}_yl:
  s_waitcnt vmcnt(0)
"""
                for m in range(5):
                    txt += f"""  s_mov_b64 exec, s[{MK[m]}:{MK[m] + 1}]
  v_cmp_ne_u64 s[{MK[m]}:{MK[m] + 1}], {tg}, v[{PB + 4 * m + 2}:{PB + 4 * m + 3}]
"""
                txt += f"""  s_mov_b64 exec, -1
  s_nop 1
  s_or_b64 vcc, s[18:19], s[20:21]
  s_or_b64 vcc, vcc, s[22:23]
  s_or_b64 vcc, vcc, s[24:25]
  s_or_b64 vcc, vcc, s[26:27]
  s_cbranch_scc0 {name}_yd
  s_sleep {P["ysl2"]}
{yloads(1)}  s_sub_u32 s{S_CNT}, s{S_CNT}, 1
  s_cbranch_scc0 {name}_yl
  s_waitcnt vmcnt(0)
{name}_yd:"""
                b.raw(txt)
                if P.get("hook2"):
                    P["hook2"]()
                for m in range(4):
                    b.I("ds_write_b64", v(a1), v(PB + 4 * m, 2), mods=f"offset:{2048 * m}")
                b.I("s_mov_b64", "exec", s(32, 2))
                b.I("ds_write_b64", v(a1), v(PB + 16, 2), mods=f"offset:{2048 * 4}")
                b.I("s_mov_b64", "exec", -1)
                b.wait(lgkm=0)
                b.I("s_branch", f"{name}_yn")
                txt = f"{name}_yh:\n"
                if P.get("wdef"):
                    txt += f"""  s_cmp_eq_u32 s39, 0
  s_cbranch_scc1 {name}_yn
  v_mov_b32 v{a0}, {P["gcnt"]}
  s_mov_b32 s{S_CNT}, 0x40000
{name}_wt:
  ds_read_b32 v{a1}, v{a0}
  s_waitcnt lgkmcnt(0)
  v_cmp_gt_u32 vcc, 4, v{a1}
  s_cbranch_vccz {name}_wu
  s_sleep 2
  s_sub_u32 s{S_CNT}, s{S_CNT}, 1
  s_cbranch_scc0 {name}_wt
{name}_wu:
"""
                    if P.get("hook2"):
                        txt += "  s_memrealtime s[98:99]\n  s_waitcnt lgkmcnt(0)\n"
                    for r in range(2):
                        if r:
                            txt += f"  s_cmp_eq_u32 s39, 1\n  s_cbranch_scc1 {name}_yn\n"
                        txt += f"  s_add_u32 s6, s{37 + r}, {36 * 1024}\n"
                        for kl in range(2):
                            for t in range(4):
                                o = 16 + 32 * r + (kl * 4 + t) * 4
                                txt += f"  buffer_store_dwordx4 v[{o}:{o + 3}], v0, s[8:11], s{6 if kl else 37 + r} offen offset:{t * 1024} sc1\n"
                b.raw(txt + f"{name}_yn:")
            P["ywait"] = ywait
        elif fuse:
            b.I("s_mov_b32", s(13), s(6))
            b.I("s_mov_b32", s(14), s(7))

            def wout(a0, a1):
                txt = f"""  s_cmp_eq_u32 s39, 0
  s_cbranch_scc1 {name}_yn
  v_mov_b32 v{a0}, {P["gcnt"]}
  s_mov_b32 s{S_CNT}, 0x40000
{name}_wt:
  ds_read_b32 v{a1}, v{a0}
  s_waitcnt lgkmcnt(0)
  v_cmp_gt_u32 vcc, 4, v{a1}
  s_cbranch_vccz {name}_wu
  s_sleep 2
  s_sub_u32 s{S_CNT}, s{S_CNT}, 1
  s_cbranch_scc0 {name}_wt
{name}_wu:
"""
                if P.get("wsl"):
                    txt += f"  s_sleep {P['wsl']}\n"
                if P.get("hook3"):
                    txt += P["hook3"]
                for r in range(2):
                    if r:
                        txt += f"  s_cmp_eq_u32 s39, 1\n  s_cbranch_scc1 {name}_yn\n"
                    txt += f"  s_add_u32 s6, s{37 + r}, {36 * 1024}\n"
                    for kl in range(2):
                        for t in range(4):
                            o = 16 + 32 * r + (kl * 4 + t) * 4
                            txt += f"  buffer_store_dwordx4 v[{o}:{o + 3}], v0, s[8:11], s{6 if kl else 37 + r} offen offset:{t * 1024} sc1\n"
                return txt

            def ywait():
                Z = PFD
                F0, FS = (YB + 16384, P["ystr"]) if P.get("ystr") else (GFL, 128)
                txt = ""
                if P.get("wdef"):
                    txt += f"  s_cmp_lt_u32 s{S_W}, 4\n  s_cbranch_scc1 {name}_yp\n{wout(Z, Z + 1)}  s_branch {name}_yn\n{name}_yp:\n"
                txt += f"""  s_cmp_lg_u32 s{S_W}, {P["ypw"]}
  s_cbranch_scc1 {name}_yn
  v_mul_u32_u24 v{PFA}, {FS}, v{LANE}
  s_mov_b32 s15, {F0}
  s_mov_b32 s16, {F0 + 64 * FS}
  s_mov_b32 s17, {F0 + 128 * FS}
  s_mov_b64 s[18:19], -1
  s_mov_b64 s[20:21], -1
  s_mov_b64 s[22:23], 0xffff
  s_mov_b32 s{S_CNT}, 0x20000
{name}_yl:
"""
                for i in range(3):
                    txt += f"""  s_mov_b64 exec, s[{18 + 2 * i}:{19 + 2 * i}]
  s_cbranch_execz {name}_ys{i}
  buffer_load_dword v{Z + i}, v{PFA}, s[8:11], s{15 + i} offen sc1
{name}_ys{i}:
"""
                txt += "  s_waitcnt vmcnt(0)\n"
                for i in range(3):
                    txt += f"""  s_mov_b64 exec, s[{18 + 2 * i}:{19 + 2 * i}]
  v_cmp_ne_u32 s[{18 + 2 * i}:{19 + 2 * i}], s{P["tag"]}, v{Z + i}
"""
                txt += f"""  s_mov_b64 exec, -1
  s_nop 1
  s_or_b64 vcc, s[18:19], s[20:21]
  s_or_b64 vcc, vcc, s[22:23]
  s_cbranch_scc0 {name}_yn
  s_sleep {P["ysl"]}
  s_sub_u32 s{S_CNT}, s{S_CNT}, 1
  s_cbranch_scc0 {name}_yl
{name}_yn:"""
                b.raw(txt)
                b.barrier()
                if P.get("hook2"):
                    P["hook2"]()
                if P.get("wdef"):
                    PS = P.get("ystr") or 128
                    b.raw(f"""  s_cmp_ge_u32 s{S_W}, 4
  s_cbranch_scc1 {name}_y9
  s_cmp_lg_u32 s{S_W}, 0
  s_cbranch_scc1 {name}_y8
  s_mov_b32 m0, {YS_LDS + 8192}
  s_nop 0
  buffer_load_dwordx4 v{VYD}, s[8:11], s{S_A} offen sc1 lds
{name}_y8:
  s_add_u32 m0, s14, {YS_LDS}
  s_add_u32 s6, s13, {64 * PS}
  buffer_load_dwordx4 v{VYD}, s[8:11], s13 offen sc1 lds
  s_add_u32 m0, s14, {YS_LDS + 4096}
  s_nop 0
  buffer_load_dwordx4 v{VYD}, s[8:11], s6 offen sc1 lds
  s_waitcnt vmcnt(0)
{name}_y9:""")
                else:
                    ydma(13, 14)
            P["ywait"] = ywait
        else:
            ydma(6, 7)
    elif P.get("exp"):
        b.I("v_lshrrev_b32", v(VP), 5, v(LANE))
        b.I("v_and_b32", v(VPX), 31, v(LANE))
        b.I("v_lshlrev_b32", v(VPX), 4, v(VPX))
        b.I("v_lshl_add_u32", v(VP), v(VP), 10, v(VPX))
        b.I("s_mul_i32", s(6), s(S_W), 147456 - 64)
        b.I("s_add_u32", s(S_P), s(S_P), s(6))
        b.I("s_mul_i32", s(7), s(S_W), 9216)
        for k in range(9):
            b.I("s_add_u32", s(6), s(S_P), k * 2048)
            if P["exp"] == 1:
                b.I("buffer_load_dwordx4", v(PB + 4 * k, 4), v(VP), WS, s(6), mods="offen " + la)
            else:
                b.I("s_add_u32", "m0", s(7), k * 1024)
                b.I("buffer_load_dwordx4", v(VP), WS, s(6), mods="offen " + la + " lds")
        b.I("buffer_load_dwordx4", v(RX, 4), v(0), WS, s(S_R), mods="offen")
        b.I("buffer_load_dwordx2", v(RE, 2), v(0), WS, s(S_R), mods="offen offset:1024")
    else:
        k = 0
        for a_ in range(2):
            for h in range(2):
                for jj in range(2):
                    c = jj * 589824 + a_ * 9216 + h * 4096
                    if c:
                        b.I("s_add_u32", s(6 + (k & 1)), s(S_P), c)
                    b.I("buffer_load_dwordx4", v(PB + 4 * k, 4), v(VP), WS, s(6 + (k & 1)) if c else s(S_P), mods="offen " + la)
                    k += 1
        for h in range(2):
            b.I("buffer_load_dwordx2", v(PB + 32 + 2 * h, 2), v(VPX), WS, s(S_PXS), mods=f"offen offset:{512 * h} " + la)
        b.I("buffer_load_dwordx4", v(RX, 4), v(0), WS, s(S_R), mods="offen")
        if mode == 1:
            b.I("buffer_load_dwordx4", v(RE, 4), v(VRE), WS, s(S_R), mods="offen offset:1024")
            b.I("buffer_load_dwordx4", v(RY, 4), v(0), WS, s(S_R), mods="offen offset:2048")
        else:
            b.I("buffer_load_dwordx2", v(RE, 2), v(VRE), WS, s(S_R), mods="offen offset:1024")
    if P.get("pf") and mode != 2:
        vq = list(b.vmq)
        b.raw(f"  s_cmp_ge_u32 s2, {P['pfn'] * 8}\n  s_cbranch_scc1 {name}_npf")
        pf_code(b, name, *P["pf"])
        b.vmq = vq
        b.label(f"{name}_npf")
    if mode != 2:
        b.I("v_mov_b32", v(7), 0)
        b.I("v_add_u32", v(V_FW), LDS_FX, v(6))
        b.I("ds_write_b32", v(V_FW), v(7))
        xn_setup(b, mode)
    if mode == 2:
        qaddr()
    if mode == 0:
        b.I("s_lshr_b32", s(6), s(S_W), 1)
        b.I("s_and_b32", s(7), s(S_W), 1)
        b.I("s_lshl_b32", s(7), s(7), 3)
        b.I("s_add_u32", s(7), s(7), P.get("ys", YS_LDS))
        b.I("v_lshl_add_u32", v(t0), v(CQ), 1, v(GL))
        b.I("v_lshl_add_u32", v(t1), v(DS), 3, v(t0))
        b.I("v_lshl_add_u32", v(t1), v(GH), 5, v(t1))
        b.I("v_bfe_u32", v(YA1), v(t1), 2, 2)
        b.I("v_xor_b32", v(YA1), s(6), v(YA1))
        b.I("v_lshlrev_b32", v(YA1), 4, v(YA1))
        b.I("v_lshl_add_u32", v(YA0), v(t1), 6, v(YA1))
        b.I("v_add_u32", v(YA0), s(7), v(YA0))
        b.I("v_xor_b32", v(YA1), 32, v(YA0))
        b.I("v_lshrrev_b32", v(t1), 1, v(DS))
        b.I("v_mad_u32_u24", v(t1), v(t1), 36, v(CQ))
        b.I("v_lshl_add_u32", v(t1), v(t1), 1, v(GL))
        b.I("v_bfe_u32", v(YAE), v(t1), 2, 2)
        b.I("v_xor_b32", v(YAE), s(6), v(YAE))
        b.I("v_lshlrev_b32", v(YAE), 4, v(YAE))
        b.I("v_lshl_add_u32", v(YAE), v(t1), 6, v(YAE))
        b.I("v_add_u32", v(YAE), s(7), v(YAE))
        b.I("v_mov_b32", v(RE + 2), 0)
        b.I("v_mov_b32", v(RE + 3), 0)
    else:
        b.I("v_and_b32", v(t1), 15, v(LANE))
        b.I("v_mov_b32", v(T + 2), 0x3f80)
        b.I("v_mov_b32", v(T + 3), 0x3f800000)
        for r in range(4):
            for (AR, off) in ((A1, 0), (A2, 8)):
                b.I("v_cmp_eq_u32", "vcc", off + 2 * r, v(t1))
                b.I("v_cndmask_b32", v(AR + r), 0, v(T + 2), "vcc")
                b.I("v_cmp_eq_u32", "vcc", off + 2 * r + 1, v(t1))
                b.I("v_cndmask_b32", v(AR + r), v(AR + r), v(T + 3), "vcc")
        for r in range(4):
            b.I("v_mov_b32", v(T + 12 + r), 0)
        b.I("v_mov_b32", v(T + 10), fhex(OUTSCALE))
    if not P.get("sty"):
        st()
    if mode == 0 and fuse:
        b.I("s_and_b32", s(6), s(S_W), 4)
        b.I("s_add_u32", s(7), s(6), P["gcnt"])
        b.I("v_mov_b32", v(8), s(7))
        b.I("v_mov_b32", v(9), 1)
        b.I("v_mov_b32", v(10), s(P["tag"]))
        b.I("v_mov_b32", v(11), 0)
        b.I("s_lshl_b32", s(6), s(6), 13)
        b.I("s_lshl_b32", s(7), s(2), 7)
        b.I("s_add_u32", s(6), s(6), s(7))
        b.I("s_add_u32", s(6), s(6), GFL)
        if P.get("ystr") and not P.get("ytag"):
            b.I("s_mul_i32", s(7), s(2), P["ystr"])
            b.I("s_add_u32", s(7), s(7), YB + 16384)
            b.I("s_cmp_lt_u32", s(S_W), 4)
            b.I("s_cselect_b32", s(6), s(7), s(6))
        b.wait(vm=0, lgkm=0)
        b.force_wait("vmcnt(0)")
        if P.get("wdef") and P.get("ytag"):
            if not P.get("wtrig"):
                b.raw(f"""  s_cmp_ge_u32 s{S_W}, 4
  s_cbranch_scc1 {name}_g1
  s_mov_b64 exec, 1
  ds_add_u32 v8, v9
  s_mov_b64 exec, -1
{name}_g1:""")
        else:
            if P.get("ytag"):
                b.raw(f"  s_cmp_lt_u32 s{S_W}, 4\n  s_cbranch_scc1 {name}_g1")
            elif P.get("wdef"):
                b.raw(f"  s_cmp_ge_u32 s{S_W}, 4\n  s_cbranch_scc1 {name}_g1")
            b.raw(f"""  s_cmp_ge_u32 s2, 144
  s_cbranch_scc1 {name}_g1
  s_mov_b64 exec, 1
  ds_add_rtn_u32 v8, v8, v9
  s_waitcnt lgkmcnt(0)
  v_cmp_eq_u32 vcc, 3, v8
  s_cbranch_vccz {name}_g0
  buffer_store_dword v10, v11, s[8:11], s6 offen sc1
{name}_g0:
  s_mov_b64 exec, -1
{name}_g1:""")
        if P.get("hook1"):
            P["hook1"]()
        if P.get("ytag"):
            P["ypre"]()
    if mode == 0:
        b.I("v_permlane16_swap_b32", v(RX), v(RX + 2))
        b.I("v_permlane16_swap_b32", v(RX + 1), v(RX + 3))
    else:
        k = 0
        for a_ in range(2):
            for h in range(2):
                for jj in range(2):
                    d = v(LACC + 4 * a_, 4)
                    b.I(MF, d, v(A1 if h == 0 else A2, 4), v(PB + 4 * k, 4), "0" if (h == 0 and jj == 0) else d)
                    k += 1
        b.I(MF, v(LACC + 8, 4), v(A1, 4), v(PB + 32, 4), "0")
    for i in range(4):
        unpack(b, X + 2 * i, RX + i)
    for i in range(2):
        unpack(b, X + 8 + 2 * i, RE + i)
    if mode == 1:
        for i in range(4):
            unpack(b, Y + 2 * i, RY + i)
        for i in range(2):
            unpack(b, Y + 8 + 2 * i, RE + 2 + i)
    if mode != 0:
        SC = T + 10
        for i in range(4):
            b.I("v_pk_fma_f32", v(X + 2 * i, 2), v(LACC + 2 * i, 2), v(SC, 2), v(X + 2 * i, 2), mods="op_sel_hi:[1,0,1]")
        for r in range(4):
            b.I("v_add_f32_dpp", v(T + 12 + r), v(LACC + 8 + r), v(LACC + 8 + r), mods="row_half_mirror row_mask:0x3 bank_mask:0x5")
        for i in range(2):
            b.I("v_pk_fma_f32", v(X + 8 + 2 * i, 2), v(T + 12 + 2 * i, 2), v(SC, 2), v(X + 8 + 2 * i, 2), mods="op_sel_hi:[1,0,1]")
    st()
    if mode == 2:
        for i in range(6):
            b.I("v_cvt_pk_bf16_f32", v(RX + i), v(X + 2 * i), v(X + 2 * i + 1))
        b.I("v_permlane16_swap_b32", v(RX), v(RX + 2))
        b.I("v_permlane16_swap_b32", v(RX + 1), v(RX + 3))
        b.I("buffer_store_dwordx4", v(RX, 4), v(VQ), IO, s(S_B), mods="offen")
        b.I("buffer_store_dwordx2", v(RE, 2), v(VQE), IO, s(S_B), mods="offen")
        b.wait_all()
        tl.end(b)
        return st
    ln_math(b, mode, P, st)
    return st


def ln_math(b, mode, P, st):
    R, B = stats(b)
    if P.get("sty") == 1:
        st()
    if mode == 0 and P.get("fuse"):
        P["ywait"]()
    if mode == 0:
        b.wait_tag_vm("y")
    if P.get("sty") == 2:
        st()
    if mode == 0:
        b.barrier()
        b.I("ds_read_b64", v(RY, 2), v(YA0))
        b.I("ds_read_b64", v(RY + 2, 2), v(YA1), mods=f"offset:{72 * 64}")
        b.I("s_mov_b64", "exec", VALID)
        b.I("ds_read_b64", v(RE + 2, 2), v(YAE), mods=f"offset:{64 * 64}")
        b.I("s_mov_b64", "exec", -1)
    for i in range(6):
        b.I("v_pk_fma_f32", v(LACC + 2 * i, 2), v(X + 2 * i, 2), v(R, 2), v(B, 2), mods="op_sel_hi:[1,0,0]")
    if mode == 0:
        for i in range(4):
            unpack(b, Y + 2 * i, RY + i)
        for i in range(2):
            unpack(b, Y + 8 + 2 * i, RE + 2 + i)
    for i in range(6):
        b.I("v_pk_fma_f32", v(X + 2 * i, 2), v(LACC + 2 * i, 2), v(Y + 2 * i, 2), v(X + 2 * i, 2))
    for i in range(6):
        b.I("v_cvt_pk_bf16_f32", v(RX + i), v(X + 2 * i), v(X + 2 * i + 1))
    ra = P["raux"]
    if P["rec"] == 0:
        b.I("buffer_store_dwordx4", v(RX, 4), v(0), WS, s(S_R), mods="offen " + ra)
        b.I("buffer_store_dwordx4", v(RE, 4), v(VRE), WS, s(S_R), mods="offen offset:1024 " + ra)
    if mode == 0:
        b.I("buffer_store_dwordx4", v(RY, 4), v(0), WS, s(S_R), mods="offen offset:2048 " + ra)
    R, B = stats(b, scale=ALPHA)
    for i in range(6):
        b.I("v_pk_fma_f32", v(LACC + 2 * i, 2), v(X + 2 * i, 2), v(R, 2), v(B, 2), mods="op_sel_hi:[1,0,0]")
    for i in range(6):
        b.I("v_cvt_pk_bf16_f32", v(XO + i), v(LACC + 2 * i), v(LACC + 2 * i + 1))
    b.I("v_permlane16_swap_b32", v(XO), v(XO + 2))
    b.I("v_permlane16_swap_b32", v(XO + 1), v(XO + 3))
    b.I("s_mov_b64", "exec", VALID)
    b.I("ds_write_b64", v(VXE), v(XO + 4, 2))
    b.I("s_mov_b64", "exec", -1)
    b.I("ds_write_b128", v(VXW), v(XO, 4))
    b.wait(lgkm=0)
    st()


def publish(b, name, P):
    b.barrier()
    if P.get("zpub"):
        b.I("v_mov_b32", v(7), 0)
        b.I("ds_write_b32", v(V_FW), v(7))
        b.I("v_mov_b32", v(8), 0)
        b.I("v_mov_b32", v(9), 0)
        b.I("v_mov_b32", v(10), 0)
        b.I("v_mov_b32", v(11), 0)
        b.I("v_mov_b32", v(6), P["zpub"])
        b.I("ds_write_b128", v(6), v(8, 4))
    if P.get("fuse"):
        b.raw(f"""  v_lshlrev_b32 v{V_T}, 6, v0
  s_lshl_b32 s15, s4, 7
  s_add_u32 s15, s15, {GFL + 0x8000}
  s_cmp_lg_u32 s{S_W}, 5
  s_cbranch_scc1 {name}_wn
  s_cmp_lg_u32 s{S_LO}, 0
  s_cbranch_scc1 {name}_wn
  s_mov_b64 exec, {0xfffc0000 if P.get("wdef") else 0xffffffff}
  buffer_load_dword v{V_Z}, v{V_T}, s[8:11], s15 offen sc1
  s_mov_b64 exec, -1
{name}_wn:""")
    b.I("ds_read_b128", v(XO, 4), v(VXR))
    b.raw(f"""  s_cmp_lg_u32 s{S_W}, 0
  s_cbranch_scc1 {name}_n8
  ds_read_b128 v[{XO + 4}:{XO + 7}], v{VXR} offset:8192
  s_add_u32 s6, s{S_XS}, {8 * 16384}
  s_waitcnt lgkmcnt(0)
  buffer_store_dwordx4 v[{XO + 4}:{XO + 7}], v{VXS}, s[8:11], s6 offen sc1
{name}_n8:""")
    b.I("buffer_store_dwordx4", v(XO, 4), v(VXS), WS, s(S_XS), mods="offen sc1", tag="xn")
    if P["rec"] >= 1:
        ra = P["raux"]
        if P["rec"] == 2:
            b.barrier()
        b.I("buffer_store_dwordx4", v(RX, 4), v(0), WS, s(S_R), mods="offen " + ra)
        b.I("buffer_store_dwordx4", v(RE, 4), v(VRE), WS, s(S_R), mods="offen offset:1024 " + ra)
    b.wait_tag_vm("xn")
    if P.get("fuse"):
        b.raw(f"""  s_cmp_lg_u32 s{S_W}, 5
  s_cbranch_scc1 {name}_wm
  s_cmp_lg_u32 s{S_LO}, 0
  s_cbranch_scc1 {name}_wm
  s_mov_b64 exec, {0xfffc0000 if P.get("wdef") else 0xffffffff}
  s_mov_b32 s{S_CNT}, 0x20000
{name}_wl:
  {notset_t(P, V_Z)}
  s_cbranch_vccz {name}_we
  buffer_load_dword v{V_Z}, v{V_T}, s[8:11], s15 offen sc1
  s_waitcnt vmcnt(0)
  s_sub_u32 s{S_CNT}, s{S_CNT}, 1
  s_cbranch_scc0 {name}_wl
{name}_we:
  s_mov_b64 exec, -1
{name}_wm:""")
    if P["stamps"] and not P.get("body"):
        b.I("s_memtime", s(70, 2))
    b.barrier()
    b.raw(f"""  s_cmp_lg_u32 s{S_W}, 0
  s_cbranch_scc1 {name}_nf
  v_mov_b32 v{V_T}, 0
  v_mov_b32 v{V_Z}, {fval(P)}
  s_mov_b64 exec, 1
  buffer_store_dword v{V_Z}, v{V_T}, s[8:11], s{S_XFO} offen sc1
  s_mov_b64 exec, -1
{name}_nf:""")
    if P.get("wdef"):
        b.raw(f"""  s_cmp_lg_u32 s{S_W}, 1
  s_cbranch_scc1 {name}_nd
  s_cmp_lg_u32 s{S_LO}, 0
  s_cbranch_scc1 {name}_nd
  s_cmp_ge_u32 s2, 144
  s_cbranch_scc1 {name}_nd
  v_mov_b32 v{V_T}, 0
  v_mov_b32 v{V_Z}, {fval(P)}
  s_lshl_b32 s6, s2, 7
  s_add_u32 s6, s6, {GFL + 0x8000}
  s_mov_b64 exec, 1
  buffer_store_dword v{V_Z}, v{V_T}, s[8:11], s6 offen sc1
  s_mov_b64 exec, -1
{name}_nd:""")
    ffn_setup(b)


class Tail:
    def __init__(self, name, P):
        self.name, self.P, self.k = name, P, 0


    def handoff(self, b, role, slow, P):
        nm = f"{self.name}_{role}_h"
        if role == "A":
            pass
        elif P["npoll"] > 1:
            NPL = P["npoll"]
            R0 = 232
            ld = lambda i: f"  buffer_load_dword v{R0 + i}, v{V_T}, s[8:11], s{S_XFG} offen sc1\n"
            txt = f"""  s_cmp_lg_u32 s{S_W}, 4
  s_cbranch_scc1 {nm}_np
  v_lshlrev_b32 v{V_T}, 3, v0
  s_mov_b64 exec, 0xffff
  s_mov_b32 s{S_CNT}, 0x20000
"""
            for i in range(NPL - 1):
                txt += ld(i) + f"  s_sleep {P['psl']}\n"
            txt += f"{nm}_pl:\n"
            for i in range(NPL):
                txt += ld((i + NPL - 1) % NPL) + f"""  s_waitcnt vmcnt({NPL - 1})
  v_cmp_eq_u32 vcc, 0, v{R0 + i}
  s_cbranch_vccz {nm}_pe
  s_sleep {P['psl']}
"""
            txt += f"""  s_sub_u32 s{S_CNT}, s{S_CNT}, 1
  s_cbranch_scc0 {nm}_pl
{nm}_pe:
  s_mov_b64 exec, -1
{nm}_np:"""
            b.raw(txt)
        else:
            b.raw(f"""  s_cmp_lg_u32 s{S_W}, 4
  s_cbranch_scc1 {nm}_np
  v_lshlrev_b32 v{V_T}, 3, v0
  s_mov_b64 exec, 0xffff
  s_mov_b32 s{S_CNT}, 0x40000
{nm}_pl:
  buffer_load_dword v{V_Z}, v{V_T}, s[8:11], s{S_XFG} offen sc1
  s_waitcnt vmcnt(0)
  {notset_t(P, V_Z)}
  s_cbranch_vccz {nm}_pe
  s_sleep {P["psl"]}
  s_sub_u32 s{S_CNT}, s{S_CNT}, 1
  s_cbranch_scc0 {nm}_pl
{nm}_pe:
  s_mov_b64 exec, -1
{nm}_np:""")
        b.barrier()


LDEF = dict(rec=2, npoll=1, laux="", raux="sc1", pf=None, pfn=9, stbase=60, stn0=6)


def k_ffl(n0, n1, **kw):
    P = dict(DEF)
    P.update(LDEF)
    P.update(kw)
    if P.get("body"):
        P["stn0"] = 1
    b = AB()
    name = "ffl"
    ln_phase(b, n0, 0, P, f"{name}_end")
    b.I("s_branch", f"{name}_pub")
    b.hist, b.vmq, b.lgq = [], [], []
    ln_phase(b, n1, 1, P, f"{name}_end")
    b.vmq, b.lgq = [], []
    b.label(f"{name}_pub")
    publish(b, name, P)
    b.I("s_cmp_ge_u32", s(S_W), 4)
    b.I("s_cbranch_scc1", f"{name}_B")
    b.label(f"{name}_A")
    snap = b.snapshot()
    tail = Tail(name, P)
    ffn_role(b, "A", P, name, tail)
    b.restore(snap)
    b.raw(".p2align 6")
    b.label(f"{name}_B")
    ffn_role(b, "B", P, name, tail)
    b.label(f"{name}_end")
    b.I("s_endpgm")
    return b


def k_lnz(name, **kw):
    P = dict(DEF)
    P.update(LDEF)
    P.update(kw)
    b = AB()
    ln_phase(b, name, 2, P, f"{name}_end")
    b.label(f"{name}_end")
    b.I("s_endpgm")
    return b
```

```python
from ab import *
from lay import *
import tl

MF = "v_mfma_f32_16x16x32_bf16"
LDS_FX = 147456
FFN3_LDS = LDS_FX + 2048

DEF = dict(
    xring=6, space=True, mergew=True,
    a0w=0, a0w2=0, a1w=0, xpre=1, pace0=4, wpg0=3, wpg=1, bwk=14, la0=lambda gi: 99,
    xfly0=3, xfly=1, xprio=3,
    xw=12, b0w=8,
    bx0=4, bxr=0,
    nprio=1, fprioB=0,
    xchk=list(range(2, 19)),
    gate=9,
    knm=4,
    stamps=False,
    stampsteps=[],
    aux="sc1",
    a_plan=[("k", "oA", 0, 8), ("k", "pM", 0, 4), ("k", "oB", 0, 4), ("k", "pM", 4, 8), ("k", "pQ", 0, 8),
            ("k", "oB", 4, 8), ("n", "pB", 0, 8)],
    d0=1, dper=3, nw0=4, ap0=5,
    ap1=7, b2=False, b3=False, ringA=2, ringB=4, aprio=2, gprioA=0, pprioA=0, bprio=1, laX=8,
    evB=[(14, "P1")],
    evA=[(-1, "qr"), (1, "qs"), (2, "d0"), (16, "P1"), (24, "w0"), (26, "p1"), (32, "d1"), (56, "w1"), (60, "p2"), (66, "d2"), (92, "w2"),
         (106, "p3"), (112, "D3"), (124, "w3")],
    b_plan=[("k", "oA pM pQ", 0, 8), ("n", "oB pB", 0, 8)],
    laA=12, laB=16,
    delay=3,
    gdelay=2,
    xaux="sc1", preA=5, preB=0, psl=1,
    gper=4,
    bp0=6,
    bp1=40,
)


def fval(P):
    return s(P["tag"]) if P.get("tag") else 1


def notset(P, r):
    return ("v_cmp_ne_u32", "vcc", s(P["tag"]), v(r)) if P.get("tag") else ("v_cmp_eq_u32", "vcc", 0, v(r))


def notset_t(P, r):
    t = notset(P, r)
    return t[0] + " " + ", ".join(str(x) for x in t[1:])


class Stamps:
    def __init__(self, b, on, base=40):
        self.b, self.on, self.n, self.base = b, on, 0, base
        self.gmode = False

    def __call__(self, g=False):
        if self.on and (g or not self.gmode or self.n == 0) and self.base + 2 * self.n <= 80:
            self.b.I("s_memtime", s(self.base + 2 * self.n, 2))
            self.n += 1


def gelu_thunks(b, tiles, temps):
    out = []
    I = lambda *a: out.append(lambda: b.I(*a))
    G = 2
    for i in range(0, len(tiles), G):
        grp = tiles[i:i + G]
        vals = []
        for j, (ab_, dst) in enumerate(grp):
            vals.append((ab_, ab_ + 2, temps[(2 * j) % len(temps)]))
            vals.append((ab_ + 1, ab_ + 3, temps[(2 * j + 1) % len(temps)]))
        for g, u, t in vals:
            I("v_fmaak_f32", v(t), v(g), v(g), fhex(KP))
        for g, u, t in vals:
            I("v_mul_f32", v(u), v(g), v(u))
        for g, u, t in vals:
            I("v_mul_f32", v(g), v(t), v(g))
        for g, u, t in vals:
            I("v_exp_f32_e64", v(g), "-" + v(g))
        for g, u, t in vals:
            I("v_add_f32", v(g), "1.0", v(g))
        for g, u, t in vals:
            I("v_rcp_f32", v(g), v(g))
        for g, u, t in vals:
            I("v_mul_f32", v(u), v(u), v(g))
        for (ab_, dst) in grp:
            I("v_cvt_pk_bf16_f32", v(dst), v(ab_ + 2), v(ab_ + 3))
    return out


S_W = 3
S_GU, S_GUX = 20, 21
S_DO, S_DOX, S_DP, S_DPX = 22, 23, 32, 33
S_XG, S_XL = 24, 25
S_PM, S_PX = 26, 27
S_T0, S_T1, S_T2 = 28, 29, 30
S_HO, S_HP = 34, 35
S_HOX, S_HPX = 36, 37
S_FO, S_FP = 38, 39
S_CNT = 31
S_PMH, S_H4 = 16, 17
S_W8 = 18
VL = [0, 1, 2]
VS, VS2 = 3, 255
V_HW, V_HWX = 252, 253
V_FR, V_FW = 254, 251
V_F = 250
V_Z = 249
V_T = 248

KS = {"oA": [("o", k) for k in (0, 1, 2, 3, 8)], "pM": [("p", k) for k in (0, 1, 2, 3)], "pQ": [("p", 8)],
      "oB": [("o", k) for k in (4, 5, 6, 7)], "pB": [("p", k) for k in (4, 5, 6, 7)]}


def slot_of(side, k):
    if k < 4 or k == 8:
        return (0 if side == "o" else 5) + (k if k < 4 else 4)
    return (6 if side == "o" else 10) + k


def ffn_role(b, role, P, name, late_setup):
    A = role == "A"
    NT = 5 if A else 4
    XR = 4
    NX = P["xring"]
    WR = XR + 4 * NX
    NW = 15
    ACC = WR + 4 * NW
    assert ACC + 160 <= 248, ACC
    acc = lambda t, n: ACC + (t * 8 + n) * 4
    temps = [XR, XR + 1, XR + 2, XR + 3] if A else [acc(4, 7) + i for i in range(4)]
    st = Stamps(b, P["stamps"], base=P.get("stbase", 40))
    st.n = P.get("stn0", 0)
    st.gmode = bool(P.get("sg"))
    SRD = s(8, 4)
    aux = P["aux"]
    slow = []
    KNM = P["knm"]
    K0 = 18 - KNM
    assert K0 >= 14
    psig = sorted(set([4, 9, 13, P["gate"]]))
    bval = {k: 19 + i for i, k in enumerate(psig)}
    B_H = [19 + len(psig), 20 + len(psig)]
    def req_of(cls, n):
        return {"oA": ("A", 3), "pM": ("A", 4 + n // 4), "pQ": ("A", 5), "oB": ("B", B_H[n // 4]),
                "pB": (("B", B_H[1] + 1) if P["b2"] else ("A", 6)) if n < 4 else (("B", B_H[1] + 2) if P["b3"] else ("A", 7))}[cls]

    groups = []
    wdef = {}
    cover = lambda ks: min(x for x in P["xchk"] if x >= ks + 1)
    for ks in range(18):
        for t in range(4):
            wdef[("g", ks, t)] = (S_GU, ks * 4096, t * 1024)
        if A:
            wdef[("g", ks, 4)] = (S_GUX, ks * 4096, 0)

    def p1_group(ks, n):
        return dict(b=(ks * 8 + n) * 1024, req=("A", 1) if ks == 0 else ("B", cover(ks) if A else (4 if ks < 4 else 18)), p2=False,
                    mf=[(acc(t, n), ("g", ks, t), ks == 0) for t in range(NT)], tag=("p1", ks, n))
    if A:
        for ks in range(18):
            for n in range(8):
                groups.append(p1_group(ks, n))
    else:
        for ks in range(K0):
            for n in range(8):
                groups.append(p1_group(ks, n))
        for n in range(8):
            for ks in range(K0, 18):
                groups.append(p1_group(ks, n))
    NP1 = len(groups)

    VP2 = acc(3, 6)

    def p2_w(side, kp):
        sm, sx = (S_DO, S_DOX) if side == "o" else (S_DP, S_DPX)
        for h in range(2):
            wdef[("d", side, kp, h)] = (sm, kp * 36 * 1024, h * 1024)
        if A:
            wdef[("d", side, kp, 2)] = (sx, kp * 36 * 1024, 0)

    cnt = {n: 0 for n in range(8)}
    marks = {}

    def p2_group(cls, side, kp, n):
        first = cnt[n] == 0
        cnt[n] += 1
        mf = [(acc(h, n), ("d", side, kp, h), first) for h in range(2)]
        if A and n % 2 == 0:
            mf.append((acc(2, n // 2), ("d", side, kp, 2), first))
        groups.append(dict(b=(slot_of(side, kp) * 8 + n) * 1024, req=req_of(cls, n), p2=True, mf=mf,
                           tag=("p2", n, cnt[n] == 18), n=n))

    for c in KS:
        for (sd, k) in KS[c]:
            p2_w(sd, k)
    for seg in P["a_plan" if A else "b_plan"]:
        if isinstance(seg, str):
            marks.setdefault(len(groups), []).append(seg)
            continue
        mode, cl, n0, n1 = seg
        ks_ = [(c, sd, k) for c in cl.split() for (sd, k) in KS[c]]
        if mode == "k":
            for (c, sd, k) in ks_:
                for n in range(n0, n1):
                    p2_group(c, sd, k, n)
        else:
            for n in range(n0, n1):
                for (c, sd, k) in ks_:
                    p2_group(c, sd, k, n)
    assert all(c == 18 for c in cnt.values())

    wseq, last_use = [], {}
    for gi, g in enumerate(groups):
        for mi, (_, wk, _) in enumerate(g["mf"]):
            if wk not in last_use:
                wseq.append(wk)
            last_use[wk] = (gi, mi)
    wslot, bslot = {}, {}
    wfree = [WR + 4 * i for i in range(NW)]
    if not A:
        wfree += [acc(4, n) for n in range(7)]
    bfree = [XR + 4 * i for i in range(NX)]
    stt = dict(wi=0, bi=0, gi=0, lastsb=None, stmp=0, flagrd=None, nslow=0, own=0, blim=NP1, la=99)
    passed = {"A": 0, "B": 0}
    deferred = []
    pend = []
    events = {}
    bextra = []

    used = set()

    def issue_w(force=False):
        if stt["wi"] >= len(wseq) or not wfree:
            return False
        if not force and stt["wi"] - len(used) >= stt["la"]:
            return False
        wk = wseq[stt["wi"]]
        sb, c, imm = wdef[wk]
        if stt["lastsb"] != (sb, c):
            stt["stmp"] ^= 1
            b.I("s_add_u32", s(S_T0 + stt["stmp"]), s(sb), c)
            stt["lastsb"] = (sb, c)
        r = wfree.pop(0)
        wslot[wk] = r
        if role in P.get("ablW", "") and wk[0] == "g" and wk[1] >= 4:
            stt["wi"] += 1
            return True
        b.I("buffer_load_dwordx4", v(r, 4), v(VL[0]), SRD, s(S_T0 + stt["stmp"]), mods=f"offen offset:{imm}")
        stt["wi"] += 1
        return True

    def issue_x(ks):
        if ks > 17:
            return
        b.I("s_add_u32", "m0", s(S_XL), ks * 8192)
        b.I("s_add_u32", s(S_T2), s(S_XG), ks * 8192)
        b.I("buffer_load_dwordx4", v(VL[0]), SRD, s(S_T2), mods=f"offen {P['xaux']} lds", tag=("x", ks))
        b.I("buffer_load_dwordx4", v(VL[0]), SRD, s(S_T2), mods=f"offen offset:1024 {P['xaux']} lds", tag=("x", ks))

    pfi = [0]

    def l2_prefetch():
        i = pfi[0]
        if not P.get("wpf") or i >= 15:
            return
        pfi[0] += 1
        q0 = P["wpf"]
        if i < 9:
            b.I("s_add_u32", s(6), s(5), q0 + 16 * i)
            if q0 + 15 + 16 * i > 161:
                b.I("s_min_u32", s(6), s(6), 161)
            b.I("s_mul_i32", s(7), s(6), 7282)
            b.I("s_lshr_b32", s(7), s(7), 16)
            b.I("s_mul_i32", s(6), s(6), 73728)
            b.I("s_mul_i32", s(7), s(7), 9 * 73728 - 4096)
            b.I("s_sub_u32", s(6), s(6), s(7))
            b.I("s_add_u32", s(6), s(6), s(14))
        else:
            b.I("s_add_u32", s(6), s(15), 64 * (i - 9))
            if i == 14:
                b.I("s_min_u32", s(6), s(6), 323)
            b.I("s_mul_i32", s(7), s(6), 3641)
            b.I("s_lshr_b32", s(7), s(7), 16)
            b.I("s_mul_i32", s(7), s(7), 18)
            b.I("s_add_u32", s(6), s(6), s(7))
            b.I("s_lshl_b32", s(6), s(6), 10)
            b.I("s_add_u32", s(6), s(6), s(13))
        b.I("buffer_load_dwordx4", v(acc(2 + i // 8, i % 8), 4), v(VL[0]), SRD, s(6), mods="offen")

    def signal(val):
        b.I("v_mov_b32", v(V_T), val)
        b.I("ds_write_b32", v(V_FW), v(V_T))
        stt["own"] = val

    def read_flag(grp):
        b.I("ds_read_b32", v(V_F), v(V_FR), mods=f"offset:{0 if grp == 'A' else 1024}")
        stt["flagrd"] = grp

    def ensure(grp, thr, sleep=0):
        if passed[grp] >= thr:
            return
        if grp == role:
            assert stt["own"] >= thr, (role, grp, thr, stt["own"])
        if stt["flagrd"] != grp:
            read_flag(grp)
        stt["flagrd"] = None
        i = stt["nslow"]
        stt["nslow"] += 1
        lab = f"{name}_{role}_x{i}"
        off = 0 if grp == "A" else 1024
        b.I("v_cmp_gt_u32", "vcc", thr, v(V_F))
        b.I("s_cbranch_vccnz", lab + "s")
        b.label(lab + "r")
        sl = f"  s_sleep {sleep}\n" if sleep else ""
        slow.append(f"{lab}s:\n  s_mov_b32 s{S_CNT}, 0x100000\n{lab}l:\n{sl}  ds_read_b32 v{V_F}, v{V_FR} offset:{off}\n  s_waitcnt lgkmcnt(0)\n"
                    f"  v_cmp_gt_u32 vcc, {thr}, v{V_F}\n  s_cbranch_vccz {lab}r\n  s_sub_u32 s{S_CNT}, s{S_CNT}, 1\n"
                    f"  s_cbranch_scc0 {lab}l\n  s_branch {lab}r")
        passed[grp] = thr

    def lim():
        return min([stt["blim"]] + [g for g in marks if g > stt["gi"] or (g == stt["gi"] and not stt.get("evdone") == g)])

    def issue_b():
        if stt["bi"] >= lim() or not bfree:
            return False
        g = groups[stt["bi"]]
        ensure(*g["req"], sleep=1 if g["p2"] else 0)
        sl = bfree.pop(0)
        bslot[stt["bi"]] = sl
        addr = g["b"]
        base = VL[addr >> 16]
        if A and g["p2"]:
            base = VP2 + (addr >> 16) + (3 if g["n"] % 2 else 0)
        if not (role in P.get("ablB", "") and not g["p2"] and g["tag"][1] >= 4):
            b.I("ds_read_b128", v(sl, 4), v(base), mods=f"offset:{addr & 0xffff}")
        stt["bi"] += 1
        if stt["bi"] < lim():
            gr, th = groups[stt["bi"]]["req"]
            if passed[gr] < th:
                read_flag(gr)
        return True

    def tick():
        for d in deferred:
            d[0] -= 1
        while deferred and deferred[0][0] <= 0:
            deferred.pop(0)[1]()
        tg = P.get("tog") and not A and pend
        if tg:
            b.I("s_setprio", P["tog"][0])
        for i in range(P["gper"]):
            if pend:
                pend.pop(0)()
        if tg:
            b.I("s_setprio", P["tog"][1])

    def flush_deferred():
        while deferred or pend:
            while pend:
                pend.pop(0)()
            if deferred:
                deferred.pop(0)[1]()

    def out_n(n):
        def fn():
            if P.get("pern") and not A and n >= P["pern"]:
                b.wait_tag_vm(("o", n - P["pern"]))
                signal(B_H[1] + 1 + n - P["pern"])
            b.I("s_add_u32", s(S_T2), s(S_PM if n % 2 == 0 else S_PMH), n * P.get('pns', 18432))
            e, o = acc(0, n), acc(1, n)
            b.I("v_cvt_pk_bf16_f32", v(e), v(e), v(e + 1))
            b.I("v_cvt_pk_bf16_f32", v(e + 1), v(e + 2), v(e + 3))
            b.I("v_cvt_pk_bf16_f32", v(e + 2), v(o), v(o + 1))
            b.I("v_cvt_pk_bf16_f32", v(e + 3), v(o + 2), v(o + 3))
            b.I("buffer_store_dwordx4", v(e, 4), v(VS), SRD, s(S_T2), mods=f"offen {aux}", tag=("o", n))
            if A and n % 2 == 0:
                e = acc(2, n // 2)
                b.I("s_add_u32", s(S_T2), s(S_PX), n * P.get('pns', 18432))
                b.I("v_cvt_pk_bf16_f32", v(e), v(e), v(e + 1))
                b.I("v_cvt_pk_bf16_f32", v(e + 1), v(e + 2), v(e + 3))
                b.I("buffer_store_dwordx2", v(e, 2), v(VS2), SRD, s(S_T2), mods=f"offen {aux}")
        return fn

    def hstore(n):
        if P.get("nohst"):
            return
        b.I("s_add_u32", s(S_T2), s(S_HO), (n // 4) * 4096)
        b.I("buffer_store_dwordx4", v(acc(0, n), 4), v(VL[0]), SRD, s(S_T2), mods=f"offen offset:{(n % 4) * 1024} sc1", tag=("h", n // 4))

    def b_gelu(n):
        def fn():
            pend.extend(gelu_thunks(b, [(acc(t, n), acc(0, n) + t) for t in range(4)], temps))
            pend.append(lambda: hstore(n))

            def wr():
                ensure("A", 2)
                ensure("B", bval[13])
                b.I("ds_write_b128", v(V_HW), v(acc(0, n), 4), mods=f"offset:{n * 1024}")
                if 2 * (7 - n) < P["ringB"]:
                    bextra.extend([acc(2, n), acc(3, n)])
                else:
                    wfree.extend([acc(2, n), acc(3, n)])
                if n == 3:
                    signal(B_H[0])
                if n == P["bp0"]:
                    st()
                    publish(0)
                    st()
                if n in (0, 3):
                    st()
            pend.append(wr)
        return fn

    def run_groups(end):
        while stt["gi"] < end:
            gi = stt["gi"]
            g = groups[gi]
            tag = g["tag"]
            if P.get("sg") and gi >= NP1 - (0 if A else 32) and (gi - NP1) % P["sg"] == 0:
                st(True)
            for fn in events.get(gi, []):
                fn()
            if gi in marks:
                stt["evdone"] = gi
                while issue_b():
                    pass
            while gi not in bslot:
                assert issue_b(), (role, gi, tag)
            nm = len(g["mf"])
            wcnt = 0
            if A and gi < NP1:
                stt["la"] = P["la0"](gi)
            if P["mergew"] and gi > 0 and all(wk in wslot for _, wk, _ in g["mf"]):
                regs = {("v", wslot[wk] + i) for _, wk, _ in g["mf"] for i in range(4)} | {("v", bslot[gi] + i) for i in range(4)}
                b.wait_regs(regs)
            for mi, (ar, wk, first) in enumerate(g["mf"]):
                while wk not in wslot:
                    assert issue_w(True), (role, gi, wk)
                d = v(ar, 4)
                b.I(MF, d, v(wslot[wk], 4), v(bslot[gi], 4), "0" if first else d)
                used.add(wk)
                if last_use[wk] == (gi, mi):
                    wfree.append(wslot[wk])
                if mi == nm - 1:
                    bfree.append(bslot[gi])
                if P["space"]:
                    wok = wcnt < (P["wpg0"] if gi < P["pace0"] else P["wpg"]) and mi >= 1
                    if (mi < nm - 1 or len(bfree) >= 2) and issue_b():
                        pass
                    elif wok and (mi < nm - 1 or nm < 4) and issue_w():
                        wcnt += 1
                else:
                    if last_use[wk] == (gi, mi):
                        issue_w()
                tick()
            if not P["space"]:
                while issue_b():
                    pass
                issue_w()
            if tag[0] == "p1":
                if not A and tag[2] == 7 and tag[1] in bval:
                    signal(bval[tag[1]])
                if not A and tag[2] == 7 and tag[1] == K0 - 1:
                    b.I("s_setprio", P["nprio"])
                    stt["la"] = P["laB"]
                if not A and tag[1] == 17:
                    deferred.append([P["gdelay"], b_gelu(tag[2])])
                if tag[2] == 7 and tag[1] in P["stampsteps"]:
                    st()
            if dq and gi % P["dper"] == 0:
                dq.pop(0)[1]()
            if tag[0] == "p2" and tag[2]:
                deferred.append([P["delay"], out_n(tag[1])])
            stt["gi"] = gi + 1

    def publish(half):
        b.wait_tag_vm(("h", half))
        b.I("v_mov_b32", v(V_T), 0)
        b.I("v_mov_b32", v(V_Z), fval(P))
        b.I("buffer_store_dword", v(V_Z), v(V_T), SRD, s(S_FO), mods=f"offen offset:{4 * half} sc1")

    FOFF = [0, 4, 128, 132]

    def poll_issue(which):
        b.I("v_mov_b32", v(V_T), 0)
        b.I("buffer_load_dword", v(V_Z), v(V_T), SRD, s(S_FP), mods=f"offen offset:{FOFF[which]} sc1")

    def poll_check(which):
        lab = f"{name}_{role}_poll{which}"
        b.I(*notset(P, V_Z))
        b.I("s_cbranch_vccnz", lab + "s")
        b.label(lab + "r")
        slow.append(f"{lab}s:\n  s_mov_b32 s{S_CNT}, 0x100000\n  v_mov_b32 v{V_T}, 0\n{lab}l:\n"
                    f"  buffer_load_dword v{V_Z}, v{V_T}, s[8:11], s{S_FP} offen offset:{FOFF[which]} sc1\n  s_waitcnt vmcnt(0)\n"
                    f"  {notset_t(P, V_Z)}\n  s_cbranch_vccz {lab}r\n  s_sleep 1\n  s_sub_u32 s{S_CNT}, s{S_CNT}, 1\n"
                    f"  s_cbranch_scc0 {lab}l\n  s_branch {lab}r")

    dq = []

    def dma_batch(bt):
        lb, gb = (5 * 8192, 0) if bt < 2 else (14 * 8192, 5 * 8192)
        q = bt % 2
        tag = ("hp", bt)

        def one(i):
            b.I("s_add_u32", "m0", s(S_W8), lb + q * 4096)
            b.I("s_add_u32", s(S_T2), s(S_HP), gb + q * 4096)
            b.I("buffer_load_dwordx4", v(VL[0]), SRD, s(S_T2), mods=f"offen offset:{i * 1024} sc1 lds", tag=tag)

        def quad(i):
            b.I("s_add_u32", "m0", s(S_XL), 9 * 8192)
            b.I("buffer_load_dwordx4", v(VL[0]), SRD, s(S_HPX), mods=f"offen offset:{i * 1024} sc1 lds", tag=tag)
        for i in range(4):
            dq.append((bt, lambda i=i: one(i)))
        if bt == 1:
            for i in range(2):
                dq.append((bt, lambda i=i: quad(i)))

    def dma_partner(bt, now=None):
        ensure("B", [bval[9], bval[9], B_H[0], B_H[1]][bt], sleep=1)
        dma_batch(bt)
        for i in range(P["d0"] if now is None else now):
            if dq:
                dq.pop(0)[1]()

    def lim_for(thr):
        return next((i for i in range(NP1, len(groups)) if groups[i]["req"][0] == "A" and groups[i]["req"][1] >= thr), len(groups))

    def limB(thr):
        return next((i for i in range(NP1, len(groups)) if groups[i]["req"][0] == "B" and groups[i]["req"][1] >= thr), len(groups))

    def dma_done(bt):
        while dq and dq[0][0] <= bt:
            dq.pop(0)[1]()
        b.wait_tag_vm(("hp", bt))
        if A:
            signal(4 + bt)
            stt["blim"] = lim_for(5 + bt)
        else:
            signal(B_H[1] + bt - 1)
            stt["blim"] = limB(B_H[1] + bt)
        st()

    tail = late_setup
    if A:
        for j in range(P["preA"]):
            issue_w()
    else:
        stt["la"] = P["laX"]
        for j in range(P["preB"]):
            issue_w(True)
    st()
    if A:
        b.I("s_setprio", 3)
    tail.handoff(b, role, slow, P)
    st()
    if hasattr(tail, "after"):
        tail.after()
    if A:
        issue_x(0)
        b.I("s_setprio", P["aprio"])
        for j in range(P["a0w"]):
            issue_w()
        b.wait_tag_vm(("x", 0))
        if P.get("st0"):
            st()
        signal(1)
        while issue_b():
            pass
        for j in range(P["a1w"]):
            issue_w()
    else:
        xsig = sorted(set(x - 1 for x in P["xchk"]) | {3})
        nx = 1 + P["xfly0"]
        if P.get("wpf"):
            b.I("s_mul_i32", s(14), s(13), 9 * 73728)
            b.I("s_lshl_b32", s(7), s(19), 10)
            b.I("s_add_u32", s(14), s(14), s(7))
            b.I("s_add_u32", s(14), s(14), WGU)
            b.I("s_lshl2_add_u32", s(15), s(5), s(19))
            b.I("s_mul_i32", s(13), s(4), 18 * 36)
            b.I("s_mul_i32", s(7), s(12), 18)
            b.I("s_add_u32", s(13), s(13), s(7))
            b.I("s_lshl_b32", s(13), s(13), 10)
            b.I("s_add_u32", s(13), s(13), WD)
        for k in range(1, nx):
            issue_x(k)
            if k == 1:
                b.I("s_setprio", P["xprio"])
        stt["blim"] = 32
        stt["la"] = P["laX"]
        for k in range(1, 18):
            b.wait_tag_vm(("x", k))
            if P.get("st0") and k < 6:
                st()
            if P.get("wdef") and k == P["wdk"]:
                wa, wz = acc(0, 0), acc(0, 0) + 1
                b.I("v_min_u32", v(wa), 17 * 16, v(VL[0]))
                b.I("v_lshlrev_b32", v(wa), 6, v(wa))
                b.I("s_lshl_b32", s(6), s(4), 7)
                b.I("s_add_u32", s(6), s(6), GFL + 0x8000)
                b.I("buffer_load_dword", v(wz), v(wa), SRD, s(6), mods="offen sc1")
            if P.get("wdef") and k == P["wdk"] + 2:
                lab = f"{name}_wd"
                b.I(*notset(P, wz))
                b.I("s_cbranch_vccnz", lab + "s")
                b.label(lab + "r")
                slow.append(f"{lab}s:\n  s_mov_b32 s{S_CNT}, 0x40000\n{lab}l:\n"
                            f"  buffer_load_dword v{wz}, v{wa}, s[8:11], s6 offen sc1\n  s_waitcnt vmcnt(0)\n"
                            f"  {notset_t(P, wz)}\n  s_cbranch_vccz {lab}r\n  s_sleep 1\n  s_sub_u32 s{S_CNT}, s{S_CNT}, 1\n"
                            f"  s_cbranch_scc0 {lab}l\n  s_branch {lab}r")
            if k in xsig:
                signal(k + 1)
            for j in range(2):
                if nx < min(18, k + 1 + P["xfly"]):
                    issue_x(nx)
                    nx += 1
            if k >= P.get("wpf0", 1):
                for j in range(P.get("wpfn", 1)):
                    l2_prefetch()
            if k >= P["bwk"]:
                issue_w(True)
            if k >= P["bx0"]:
                run_groups(min(30, int((k + 1 - P["bx0"]) * P["bxr"])))
        b.I("s_setprio", P["bprio"])
        stt["la"] = 99
        stt["blim"] = NP1
        st()
        while issue_b():
            pass
    st()
    run_groups(NP1)
    if A:
        signal(2)
        b.I("s_setprio", P["gprioA"])
        stt["la"] = P["laA"]
        st()
        while issue_w():
            pass
        wrn = 0
        for n in range(8):
            tiles = [(acc(t, n), acc(0, n) + t) for t in range(4)] + [(acc(4, n), acc(4, 4 * (n // 4)) + n % 4)]
            th = gelu_thunks(b, tiles, temps)
            for i, f in enumerate(th):
                if n == P["nw0"] and i == 20:
                    read_flag("A")
                if n == P["nw0"] and i == 40:
                    ensure("A", 2)
                    read_flag("B")
                f()
            if n == P["ap1"]:
                poll_issue(0)
            hstore(n)
            if n >= P["nw0"]:
                ensure("B", bval[4], sleep=1)
                while wrn <= n:
                    b.I("ds_write_b32", v(V_HWX), v(acc(4, 4 * (wrn // 4)) + wrn % 4), mods=f"offset:{wrn * 1024}")
                    b.I("ds_write_b128", v(V_HW), v(acc(0, wrn), 4), mods=f"offset:{wrn * 1024}")
                    wrn += 1
            if n == P["ap0"]:
                publish(0)
        signal(3)
        st()
        for i in range(3):
            b.I("v_add_u32", v(VP2 + i), s(S_H4), v(VL[i]))
            b.I("v_subrev_u32", v(VP2 + 3 + i), s(S_H4), v(VL[i]))
        b.I("v_add_u32", v(VP2 + 6), s(S_XL), v(VL[0]))
        ex = [acc(2, 4) + 4 * i for i in range(10)] + [acc(4, n) for n in range(6)]
        bfree.extend(ex[:P["ringA"]])
        wfree.extend(ex[P["ringA"]:])

        def q_read():
            ensure("A", 3)
            for i in range(2):
                b.I("ds_read_b128", v(acc(4, 6 + i), 4), v(VP2 + 6), mods=f"offset:{4 * 8192 + i * 1024}")

        def q_store():
            for i in range(2):
                b.I("buffer_store_dwordx4", v(acc(4, 6 + i), 4), v(VL[0]), SRD, s(S_HOX), mods=f"offen offset:{i * 1024} sc1", tag=("h", 1))
            wfree.extend([acc(4, 6), acc(4, 7)])
        mk = {"P1": lambda: publish(1), "qr": q_read, "qs": q_store}
        for pr in range(4):
            mk[f"r{pr}"] = lambda pr=pr: b.I("s_setprio", pr)
        for bt in range(4):
            mk[f"p{bt}"] = lambda bt=bt: poll_issue(bt)
            mk[f"d{bt}"] = lambda bt=bt: (poll_check(bt), dma_partner(bt), st())
            mk[f"D{bt}"] = lambda bt=bt: (poll_check(bt), dma_partner(bt, 6), st())
            mk[f"w{bt}"] = lambda bt=bt: dma_done(bt)
        for e, m in P["evA"]:
            if e == -1:
                mk[m]()
            else:
                events.setdefault(NP1 + e, []).append(mk[m])
        for gi, ms in marks.items():
            for m in ms:
                events.setdefault(gi, []).append(mk[m])
        ensure("B", bval[P["gate"]], sleep=2)
        st()
        stt["blim"] = lim_for(4)
        b.I("s_setprio", P["pprioA"])
    else:
        st()
        if P.get("flprio") is not None:
            b.I("s_setprio", P["flprio"])
        flush_deferred()
        signal(B_H[1])
        bfree.extend(bextra + [acc(4, 7)])
        b.I("s_setprio", P["fprioB"])
        st()
        stt["blim"] = limB(B_H[1] + 1)
        mk = {"P1": lambda: (publish(1), st())}
        for bt in (2, 3):
            mk[f"p{bt}"] = lambda bt=bt: poll_issue(bt)
            mk[f"d{bt}"] = lambda bt=bt: (poll_check(bt), dma_partner(bt), st())
            mk[f"w{bt}"] = lambda bt=bt: dma_done(bt)
        for pr in range(4):
            mk[f"r{pr}"] = lambda pr=pr: b.I("s_setprio", pr)
        for e, m in P["evB"]:
            events.setdefault(NP1 + e, []).append(mk[m])
    while issue_b():
        pass
    run_groups(len(groups))
    flush_deferred()
    if hasattr(tail, "finish"):
        if P.get("pern") and not A:
            assert B_H[1] == P["bh1"], B_H
            for n in range(8 - P["pern"], 7):
                b.wait_tag_vm(("o", n))
                signal(B_H[1] + 1 + n)
        tail.finish(b, role)
        for t in slow:
            b.raw(t)
        return
    if P["stamps"]:
        st(True)
        b.wait_all()
        st(True)
        b.wait_all()
        b.I("s_lshl_b32", s(28), s(2), 3)
        b.I("s_add_u32", s(28), s(28), s(3))
        b.I("s_lshl_b32", s(28), s(28), 7)
        b.I("s_add_u32", s(28), s(28), STAMP)
        b.I("v_mov_b32", v(4), 0)
        for i in range(st.n):
            b.I("v_mov_b32", v(8), s(st.base + 2 * i))
            b.I("buffer_store_dword", v(8), v(4), SRD, s(28), mods=f"offen offset:{4 * i}")
    b.wait_all()
    tl.end(b)
    b.I("s_endpgm")
    for t in slow:
        b.raw(t)
```

```python
from ab import *
from lay import *
import tl
from k_front import St, conv_order
MF = "v_mfma_f32_16x16x32_bf16"

HS = 4416
UB = 4 * HS
WSZ = UB + 4672
YL = 4 * WSZ
HLB = YL + 16640
SY = HLB + 4 * 9216
FRONT_LDS = SY + 64
NCONV = 144


class RL:
    GL, DL, GW, GR, DW, DR = 207, 208, 209, 210, 211, 212
    GW2 = [209, 213, 214, 215]
    LN = 216
    US = 48

    def __init__(self, b, P, units, st, name):
        self.b, self.P, self.units, self.st, self.name, self.nl = b, P, units, st, name, 0
        self.exit = P["fuse"]
        self.touch = False
        self.defer = False

    def setup(self, idx, ldsbase):
        b = self.b
        T = 217
        b.I("v_and_b32", v(T), 63, v(0))
        b.I("v_lshlrev_b32", v(self.LN), 4, v(T))
        b.I("v_lshrrev_b32", v(T + 1), 3, v(T))
        b.I("v_and_b32", v(T + 2), 7, v(T))
        b.I("v_lshrrev_b32", v(T + 3), 4, v(T))
        b.I("v_bfe_u32", v(T + 4), v(T), 2, 2)
        b.I("v_lshl_add_u32", v(T + 3), v(T + 3), 3, v(T + 4))
        b.I("v_and_b32", v(T + 4), 3, v(T))
        tys = {u[0] for u in self.units}
        def mk(dst, m, r1, r2, sh, base):
            b.I("v_mul_u32_u24", v(dst), m, v(r1))
            b.I("v_lshl_add_u32", v(dst), v(r2), sh, v(dst))
            if base:
                b.I("v_add_u32", v(dst), s(ldsbase), v(dst))
        if "g" in tys:
            mk(self.GL, 9216, T + 1, T + 2, 4, 0)
            mk(self.GW, 264, T + 1, T + 2, 5, 1)
            mk(self.GR, 264, T + 3, T + 4, 5, 1)
            for i in range(1, 4):
                b.I("v_add_u32", v(self.GW2[i]), i * 8 * 264, v(self.GW))
        if "d" in tys:
            mk(self.DL, 1152, T + 1, T + 2, 4, 0)
            mk(self.DW, 144, T + 1, T + 2, 4, 1)
            mk(self.DR, 144, T + 3, T + 4, 4, 1)
        b.I("s_and_b32", s(24), s(2), 7)
        b.I("s_mul_i32", s(24), s(24), 9)
        for r, (ty, first, cnt, full) in enumerate(self.units):
            so, do = self.US + 2 * r, self.US + 1 + 2 * r
            b.I("s_add_u32", s(27), s(idx), first)
            b.I("s_mul_i32", s(25), s(27), 7282)
            b.I("s_lshr_b32", s(25), s(25), 16)
            b.I("s_mul_i32", s(26), s(25), 9)
            b.I("s_sub_u32", s(26), s(27), s(26))
            if ty == "g":
                b.I("s_add_u32", s(26), s(26), s(24))
                b.I("s_mul_i32", s(so), s(25), 32 * 9216)
                b.I("s_lshl_b32", s(27), s(26), 7)
                b.I("s_add_u32", s(so), s(so), s(27))
                b.I("s_mul_i32", s(27), s(26), 36)
                b.I("s_add_u32", s(27), s(27), s(25))
                b.I("s_lshl_b32", s(27), s(27), 12)
                b.I("s_add_u32", s(do), s(27), WGU)
            else:
                b.I("s_add_u32", s(25), s(25), s(24))
                b.I("s_mul_i32", s(so), s(25), 64 * 1152)
                b.I("s_lshl_b32", s(27), s(26), 7)
                b.I("s_add_u32", s(so), s(so), s(27))
                b.I("s_mul_i32", s(27), s(25), 18)
                b.I("s_add_u32", s(27), s(27), s(26))
                b.I("s_lshl_b32", s(27), s(27), 12)
                b.I("s_add_u32", s(do), s(27), WD)

    def srds(self):
        b = self.b
        b.I("s_mov_b32", s(16), s(14))
        b.I("s_mov_b32", s(17), s(15))
        b.I("s_mov_b32", s(18), F * D * 2)
        b.I("s_mov_b32", s(19), 0x20000)
        b.I("s_mov_b32", s(14), F * D * 2)
        b.I("s_mov_b32", s(15), 0x20000)
        b.I("s_mov_b32", s(22), F * D * 2)
        b.I("s_mov_b32", s(23), 0x20000)

    def masked(self, r, fn):
        fn()

    def loads(self, r, RB=16):
        b, laux = self.b, self.P["rlaux"]
        ty = self.units[r][0]
        R = RB + 32 * r
        so = self.US + 2 * r

        def fn():
            if ty == "g":
                for i in range(4):
                    b.I("s_add_u32", s(28 + (i & 1)), s(so), i * 8 * 9216)
                    b.I("buffer_load_dwordx4", v(R + 4 * i, 4), v(self.GL), s(12, 4), s(28 + (i & 1)), mods="offen " + laux)
                    b.I("buffer_load_dwordx4", v(R + 16 + 4 * i, 4), v(self.GL), s(16, 4), s(28 + (i & 1)), mods="offen " + laux)
            else:
                for i in range(8):
                    b.I("s_add_u32", s(28 + (i & 1)), s(so), i * 8 * 1152)
                    b.I("buffer_load_dwordx4", v(R + 4 * i, 4), v(self.DL), s(20, 4), s(28 + (i & 1)), mods="offen " + laux)
        self.masked(r, fn)

    def proc(self, r, RB=16):
        b, aux = self.b, self.P["raux"]
        ty = self.units[r][0]
        R = RB + 32 * r
        O = RB + 32 * len(self.units) + 32 * (r % 2)
        if self.defer:
            O = R
        assert O + 32 <= 207
        do = self.US + 1 + 2 * r
        if ty == "g":
            for i in range(4):
                for k in range(4):
                    b.I("ds_write2_b32", v(self.GW2[i]), v(R + 4 * i + k), v(R + 16 + 4 * i + k), mods=f"offset0:{2 * k} offset1:{2 * k + 1}")
        else:
            for i in range(8):
                b.I("ds_write_b128", v(self.DW), v(R + 4 * i, 4), mods=f"offset:{i * 8 * 144}")
        for kl in range(2):
            for t in range(4):
                o = O + (kl * 4 + t) * 4
                for h in range(2):
                    if ty == "g":
                        b.I("ds_read_b64_tr_b16", v(o + 2 * h, 2), v(self.GR), mods=f"offset:{kl * 128 + t * 8 + h * 4 * 264}")
                    else:
                        b.I("ds_read_b64_tr_b16", v(o + 2 * h, 2), v(self.DR), mods=f"offset:{(kl * 32 + h * 4) * 144 + (t >> 1) * 64 + (t & 1) * 8}")
        if self.defer:
            b.I("s_mov_b32", s(37 + r), s(do))
            return
        b.I("s_add_u32", s(30), s(do), 18 * 4096 if ty == "g" else 36 * 1024)

        def fn():
            for kl in range(2):
                for t in range(4):
                    o = O + (kl * 4 + t) * 4
                    b.I("buffer_store_dwordx4", v(o, 4), v(self.LN), s(8, 4), s(do) if kl == 0 else s(30), mods=f"offen offset:{t * 1024} {aux}")
        self.masked(r, fn)

    def qpf(self):
        b = self.b
        b.I("s_load_dwordx2", s(32, 2), s(0, 2), 0)
        b.I("s_and_b32", s(24), s(2), 0xf0)
        b.I("s_and_b32", s(25), s(2), 7)
        b.I("s_lshl_b32", s(25), s(25), 1)
        b.I("s_add_u32", s(24), s(24), s(25))
        b.I("s_bfe_u32", s(25), s(2), 0x10003)
        b.I("s_add_u32", s(24), s(24), s(25))
        b.I("s_mul_i32", s(24), s(24), 9216)
        b.I("s_and_b32", s(25), s(3), 3)
        b.I("s_mul_i32", s(25), s(25), 2304)
        b.I("s_add_u32", s(24), s(24), s(25))
        b.I("v_add_u32", v(220), s(24), v(self.LN))
        b.I("s_mov_b32", s(34), S * D * 2)
        b.I("s_mov_b32", s(35), 0x20000)
        for i in range(3):
            b.I("buffer_load_dwordx4", v(224 + 4 * i, 4), v(220), s(32, 4), 0, mods=f"offen offset:{min(1024 * i, 1280)}", tag="qpf")

    def run(self, idx):
        b, st = self.b, self.st
        ths = sorted({u[2] for u in self.units if not u[3]})
        n0 = st.n
        for vi, lo in enumerate([0] + ths):
            if vi < len(ths):
                b.I("s_cmp_ge_u32", s(idx), ths[vi])
                b.I("s_cbranch_scc1", f"{self.name}_v{vi + 1}")
                snap = b.snapshot()
            st.n = n0
            rs = [r for r, u in enumerate(self.units) if u[3] or lo < u[2]]
            for r in rs:
                self.loads(r)
            st()
            if self.P["qpf"] == 1:
                self.qpf()
            if self.touch:
                b.I("buffer_load_dwordx4", v(236, 4), v(8), s(8, 4), s(36), mods="offen sc1", tag="qpf")
            if not rs:
                st()
            for r in range(len(self.units)):
                if r in rs:
                    self.proc(r)
                st()
            if self.P["qpf"] == 2:
                self.qpf()
            if self.P["fuse"]:
                b.wait_tag_vm("qpf")
                if self.P["wdef"]:
                    b.I("s_mov_b32", s(39), len(rs) if self.defer else 0)
                    b.wait(lgkm=0)
                b.I("s_branch", self.exit)
            else:
                b.wait_all()
                st()
                st.dump(s(8, 4), 3)
                tl.end(b)
                b.I("s_endpgm")
            if vi < len(ths):
                b.restore(snap)
                b.label(f"{self.name}_v{vi + 1}")


def emit_conv(b, name, P):
    st = St(b, P["stamps"], base=60)
    st()
    b.I("s_load_dwordx2", s(24, 2), s(0, 2), 40)
    b.I("s_load_dwordx4", s(44, 4), s(0, 2), 88)
    b.I("v_lshrrev_b32", v(1), 6, v(0))
    b.I("v_and_b32", v(2), 63, v(0))
    b.I("v_readfirstlane_b32", s(3), v(1))
    KT, VT, WT = 0, 136 * 128, 264 * 128
    b.I("s_mul_i32", s(33), s(2), 7282)
    b.I("s_lshr_b32", s(33), s(33), 16)
    b.I("s_mul_i32", s(34), s(33), 9)
    b.I("s_sub_u32", s(34), s(2), s(34))
    b.I("s_mul_i32", s(6), s(33), 128 * 1152)
    b.I("s_lshl_b32", s(7), s(34), 7)
    b.I("s_add_u32", s(6), s(6), s(7))
    GA, GH, GW = 6, 7, 10
    b.I("v_lshrrev_b32", v(GA), 3, v(0))
    b.I("v_and_b32", v(GW), 7, v(0))
    b.I("v_mul_u32_u24", v(GA), 1152, v(GA))
    b.I("v_lshl_add_u32", v(GA), v(GW), 4, v(GA))
    b.I("v_add_u32", v(GA), s(6), v(GA))
    b.I("s_lshl_b32", s(5), s(3), 10)
    b.I("s_mov_b32", s(4), 64 * 1152)
    b.I("s_mov_b32", s(30), S * D * 2)
    b.I("s_mov_b32", s(31), 0x20000)
    b.I("s_add_u32", "m0", s(5), KT + 1024)
    b.wait(lgkm=0)
    st()
    b.I("s_mov_b32", s(28), s(14))
    b.I("s_mov_b32", s(29), s(15))
    b.I("s_mov_b32", s(14), S * D * 2)
    b.I("s_mov_b32", s(15), 0x20000)
    ga = P["gaux"]
    b.I("buffer_load_dwordx4", v(GA), s(12, 4), 0, mods=f"offen {ga} lds")
    b.I("s_add_u32", "m0", s(5), KT + 1024 + 8192)
    b.I("buffer_load_dwordx4", v(GA), s(12, 4), s(4), mods=f"offen {ga} lds")
    b.I("s_add_u32", "m0", s(5), VT)
    b.I("buffer_load_dwordx4", v(GA), s(28, 4), 0, mods=f"offen {ga} lds")
    b.I("s_add_u32", "m0", s(5), VT + 8192)
    b.I("buffer_load_dwordx4", v(GA), s(28, 4), s(4), mods=f"offen {ga} lds")
    b.I("s_cmp_gt_u32", s(3), 1)
    b.I("s_cbranch_scc1", f"{name}_nx")
    b.I("s_cmp_eq_u32", s(3), 0)
    b.I("s_cbranch_scc0", f"{name}_w1")
    b.I("v_subrev_u32", v(GH), 8 * 1152, v(GA))
    b.I("s_mov_b32", "m0", KT)
    b.I("buffer_load_dwordx4", v(GH), s(12, 4), 0, mods=f"offen {ga} lds")
    b.I("s_branch", f"{name}_nx")
    b.label(f"{name}_w1")
    b.I("s_lshl_b32", s(7), s(34), 9)
    b.I("s_mov_b32", s(40), s(16))
    b.I("s_mov_b32", s(41), s(17))
    b.I("s_mov_b32", s(42), 576 * 8)
    b.I("s_mov_b32", s(43), 0x20000)
    b.I("v_lshlrev_b32", v(GH), 4, v(2))
    b.I("v_add_u32", v(GH), s(7), v(GH))
    b.I("s_mov_b32", "m0", WT)
    b.I("buffer_load_dwordx4", v(GH), s(40, 4), 0, mods="offen lds")
    b.label(f"{name}_nx")
    H = 64
    b.I("v_lshlrev_b32", v(3), 4, v(2))
    if P["fuse"]:
        b.I("v_mov_b32", v(14), 0)
        b.I("v_mov_b32", v(15), 0)
        b.I("v_mov_b32", v(13), P["gcnt"])
        b.I("ds_write_b64", v(13), v(14, 2))
    b.barrier()
    b.I("s_cmp_ge_u32", s(3), 4)
    b.I("s_cbranch_scc1", f"{name}_nh")
    b.I("s_lshl_b32", s(4), s(2), 2)
    b.I("s_add_u32", s(4), s(4), s(3))
    b.I("s_lshl_b32", s(6), s(4), 12)
    b.I("s_add_u32", s(20), s(18), s(6))
    b.I("s_addc_u32", s(21), s(19), 0)
    b.I("s_mov_b32", s(22), 4096)
    b.I("s_mov_b32", s(23), 0x20000)
    b.I("s_mov_b32", s(26), 1152)
    b.I("s_mov_b32", s(27), 0x20000)
    b.I("v_add_u32", v(11), 16, v(3))
    b.I("s_lshl_b32", s(7), s(4), 1)
    b.I("v_mov_b32", v(12), s(7))
    ha = P["haux"]
    vq = list(b.vmq)
    for r in range(4):
        b.I("buffer_load_dwordx4", v(H + 8 * r, 4), v(3), s(20, 4), 0, mods=f"offen offset:{1024 * r} {ha}")
    for r in range(4):
        b.I("buffer_load_dword", v(H + 8 * r + 4), v(11), s(20, 4), 0, mods=f"offen offset:{1024 * r} {ha}")
    b.I("buffer_load_ushort", v(8), v(12), s(24, 4), 0, mods="offen")
    b.vmq = vq
    if P["touch"]:
        b.I("s_branch", f"{name}_nh2")
    b.label(f"{name}_nh")
    if P["touch"]:
        b.I("s_mov_b32", s(8), s(46))
        b.I("s_mov_b32", s(9), s(47))
        b.I("s_mov_b32", s(10), WS_BYTES)
        b.I("s_mov_b32", s(11), 0x20000)
        b.I("s_sub_u32", s(7), s(3), 5)
        b.I("s_mul_i32", s(7), s(7), 144)
        b.I("s_add_u32", s(7), s(7), s(2))
        b.I("s_cmp_ge_u32", s(3), 6)
        b.I("s_cselect_b32", s(6), 112, 0)
        b.I("s_add_u32", s(7), s(7), s(6))
        b.I("s_min_u32", s(7), s(7), 511)
        b.I("s_lshl_b32", s(7), s(7), 7)
        b.I("s_add_u32", s(7), s(7), GFL)
        b.I("v_mov_b32", v(12), 0)
        b.I("s_cmp_eq_u32", s(3), 4)
        b.I("s_cbranch_scc0", f"{name}_t1")
        b.I("s_lshr_b32", s(7), s(2), 4)
        b.I("s_lshl_b32", s(7), s(7), 7)
        b.I("s_add_u32", s(7), s(7), KFL if P["touch"] == 2 else GFL)
        b.I("v_and_b32", v(12), 15, v(0))
        b.I("v_mul_u32_u24", v(12), 9 * 128, v(12))
        b.label(f"{name}_t1")
        b.I("buffer_load_dword", v(59), v(12), s(8, 4), s(7), mods="offen sc1")
        b.vmq = vq
        b.label(f"{name}_nh2")
    NV = 60
    TP, I_ = 1, 4
    K, V, W = 100, 116, 124
    b.I("v_lshrrev_b32", v(TP), 4, v(0))
    b.I("v_and_b32", v(I_), 15, v(0))
    b.I("s_mov_b32", s(8), s(46))
    b.I("s_mov_b32", s(9), s(47))
    b.I("s_mov_b32", s(46), 256)
    b.I("s_mov_b32", s(47), 0x20000)
    b.I("s_mov_b32", s(10), WS_BYTES)
    b.I("s_mov_b32", s(11), 0x20000)
    b.I("v_lshlrev_b32", v(GA), 9, v(TP))
    b.I("v_lshl_add_u32", v(GA), v(I_), 3, v(GA))
    b.I("v_lshlrev_b32", v(GW), 5, v(I_))
    TW, TR, TR2, TS = 18, 19, 20, 23
    b.I("v_lshrrev_b32", v(TW), 1, v(TP))
    b.I("v_sub_u32", v(TW), 15, v(TW))
    b.I("v_xor_b32", v(TW), v(TW), v(I_))
    b.I("v_lshlrev_b32", v(TW), 4, v(TW))
    b.I("v_lshl_add_u32", v(TW), v(I_), 10, v(TW))
    b.I("v_and_b32", v(11), 1, v(TP))
    b.I("v_lshlrev_b32", v(11), 3, v(11))
    b.I("v_sub_u32", v(TW), v(TW), v(11))
    b.I("v_add_u32", v(TW), YL + 8, v(TW))
    b.I("v_xor_b32", v(TR), s(3), v(I_))
    b.I("v_lshlrev_b32", v(TR), 4, v(TR))
    b.I("v_lshl_add_u32", v(TR), v(TP), 8, v(TR))
    b.I("v_xor_b32", v(TR2), 128, v(TR))
    b.I("v_add_u32", v(TR), YL, v(TR))
    b.I("v_add_u32", v(TR2), YL + 8192, v(TR2))
    b.I("v_lshlrev_b32", v(TS), 12, v(TP))
    b.I("v_lshl_add_u32", v(TS), v(I_), 4, v(TS))
    b.I("s_lshl_b32", s(35), s(34), 18)
    b.I("s_lshl_b32", s(7), s(33), 8)
    b.I("s_sub_u32", s(35), s(35), s(7))
    b.I("s_add_u32", s(35), s(35), KVT + 3840)
    b.I("s_add_u32", s(36), s(35), 32 * 4096)
    b.I("s_mov_b32", s(38), 0x05040100)
    b.I("s_mov_b32", s(39), 0x07060302)
    st()
    NA = 58
    b.I("v_mov_b32", v(NA), 0)
    b.I("s_and_b32", s(43), s(3), 6)
    b.raw(f"""  s_cmp_ge_u32 s3, 4
  s_cbranch_scc1 {name}_w0
  s_waitcnt vmcnt(9)
  s_branch {name}_w9
{name}_w0:
  s_waitcnt vmcnt({1 if P["touch"] else 0})
{name}_w9:""")
    b.vmq = []
    b.barrier()
    b.I("s_cmp_eq_u32", s(43), 4)
    b.I("s_cbranch_scc0", f"{name}_nt")
    b.raw(f"  buffer_load_dwordx2 v[{NV}:{NV + 1}], v{NA}, s[44:47], 0 offen sc1")
    b.label(f"{name}_nt")
    for i in range(7):
        b.I("ds_read_b64", v(K + 2 * i, 2), v(GA), mods=f"offset:{KT + (5 + i) * 128}")
    for i in range(2):
        b.I("ds_read_b128", v(W + 4 * i, 4), v(GW), mods=f"offset:{WT + 16 * i}")
    for i in range(4):
        b.I("ds_read_b64", v(V + 2 * i, 2), v(GA), mods=f"offset:{VT + i * 128}")
    PP, T, O = 132, 148, 164
    for ch in range(4):
        dw, h = ch >> 1, ch & 1
        pp = PP + 8 * (ch & 1)
        t = T + 8 * (ch & 1)
        for r in range(1, 7):
            b.I("v_perm_b32", v(pp + r), v(K + 2 * (r - 1) + dw), v(K + 2 * r + dw), s(38 + h))
        if ch == 0:
            st()
        for i in range(4):
            b.I("v_dot2_f32_bf16", v(t + i), v(pp + i + 1), v(W + 2 * ch + 1), 0)
        for i in range(4):
            if h == 0:
                b.I("v_lshlrev_b32", v(t + 4 + i), 16, v(V + 2 * i + dw))
            else:
                b.I("v_and_b32", v(t + 4 + i), 0xffff0000, v(V + 2 * i + dw))
        for i in range(4):
            b.I("v_dot2_f32_bf16", v(t + i), v(pp + i + 3), v(W + 2 * ch), v(t + i))
        if ch > 0:
            b.I("ds_write_b64", v(TW), v(O + 2 * (ch - 1), 2), mods=f"offset:{(ch - 1) * 256}")
        for i in range(4):
            b.I("v_mul_f32", v(t + i), v(t + i), v(t + 4 + i))
        for q in range(2):
            b.I("v_cvt_pk_bf16_f32", v(O + 2 * ch + q), v(t + 3 - 2 * q), v(t + 2 - 2 * q))
    b.I("ds_write_b64", v(TW), v(O + 6, 2), mods=f"offset:{3 * 256}")
    b.wait(lgkm=0)
    st()
    b.barrier()
    b.I("ds_read_b128", v(K, 4), v(TR))
    b.I("ds_read_b128", v(K + 4, 4), v(TR2))
    b.I("buffer_store_dwordx4", v(K, 4), v(TS), s(8, 4), s(35), mods="offen sc1")
    b.I("buffer_store_dwordx4", v(K + 4, 4), v(TS), s(8, 4), s(36), mods="offen sc1", tag="kv")
    st()
    b.I("s_cmp_lt_u32", s(3), 4)
    b.I("s_cbranch_scc1", f"{name}_cv")
    snap = b.snapshot()
    b.I("s_load_dwordx4", s(12, 4), s(0, 2), 56)
    b.I("s_load_dwordx2", s(20, 2), s(0, 2), 72)
    CO, CN = 56, 57
    b.I("s_lshl_b32", s(7), s(2), 7)
    b.I("v_mov_b32", v(CO), s(7))
    b.I("s_lshr_b32", s(7), s(2), 4)
    b.I("s_lshl_b32", s(7), s(7), 7)
    b.I("v_mul_u32_u24", v(CN), 9 * 128, v(I_))
    b.I("v_add_u32", v(CN), s(7), v(CN))
    b.I("s_mov_b32", s(42), KFL)
    b.wait(vm=0)
    tagw = f"  v_mov_b32 v{NV + 2}, {P['gcnt'] + 8}\n  ds_write_b64 v{NV + 2}, v[{NV}:{NV + 1}]\n  s_waitcnt lgkmcnt(0)\n" if P["fuse"] else ""
    b.raw(f"""  s_cmp_eq_u32 s43, 4
  s_cbranch_scc0 {name}_tge
  s_mov_b32 s43, 0x40000
{name}_tg:
  v_cmp_eq_u32 vcc, 0, v{NV + 1}
  s_cbranch_vccz {name}_tgw
  buffer_load_dwordx2 v[{NV}:{NV + 1}], v{NA}, s[44:47], 0 offen sc1
  s_waitcnt vmcnt(0)
  s_sub_u32 s43, s43, 1
  s_cbranch_scc0 {name}_tg
{name}_tgw:
{tagw}{name}_tge:""")
    st()
    b.barrier()
    b.I("s_cmp_lg_u32", s(3), 4)
    b.I("s_cbranch_scc1", f"{name}_nf")
    b.I("s_mov_b64", "exec", 1)
    b.I("buffer_store_dwordx2", v(NV, 2), v(CO), s(8, 4), s(42), mods="offen sc1")
    b.I("s_mov_b64", "exec", -1)
    b.label(f"{name}_nf")
    b.I("s_cmp_lg_u32", s(3), 5)
    b.I("s_cbranch_scc1", f"{name}_np")
    b.raw(f"""  s_mov_b64 exec, 0xffff
  s_mov_b32 s43, 0x40000
{name}_poll:
  buffer_load_dwordx2 v[{NV + 2}:{NV + 3}], v{CN}, s[8:11], s42 offen sc1
  s_waitcnt vmcnt(0)
  v_cmp_ne_u64 vcc, v[{NV}:{NV + 1}], v[{NV + 2}:{NV + 3}]
  s_cbranch_vccz {name}_pe
  s_sleep {P["psleep"]}
  s_sub_u32 s43, s43, 1
  s_cbranch_scc0 {name}_poll
{name}_pe:
  s_mov_b64 exec, -1""")
    b.barrier()
    b.label(f"{name}_np")
    rl = RL(b, P, P["hl"], st, name + "_h")
    rl.defer = P["wdef"]
    b.I("s_sub_u32", s(6), s(3), 4)
    b.I("s_mul_i32", s(37), s(6), 9216)
    b.I("s_add_u32", s(37), s(37), HLB)
    b.I("s_mul_i32", s(6), s(6), 18)
    b.I("s_lshr_b32", s(7), s(2), 3)
    b.I("s_add_u32", s(6), s(6), s(7))
    rl.setup(6, 37)
    rl.srds()
    b.I("s_cmp_eq_u32", s(3), 5)
    b.I("s_cbranch_scc1", f"{name}_pd")
    b.barrier()
    b.label(f"{name}_pd")
    st()
    rl.run(6)
    b.restore(snap)
    st.n = 6
    b.raw(".p2align 6")
    b.label(f"{name}_cv")
    b.I("s_lshl_b32", s(6), s(4), 12)
    b.I("s_mul_i32", s(5), s(3), WSZ)
    G_ = 5
    b.I("v_lshrrev_b32", v(G_), 4, v(2))
    for k in range(4):
        b.I("v_mov_b32", v(12 + k), 0)
    b.I("v_add_u32", v(9), s(5), v(3))
    b.I("s_mov_b32", "exec_hi", 0)
    b.I("ds_write_b128", v(9), v(12, 4), mods=f"offset:{UB + 32 + 4096}")
    b.I("s_mov_b64", "exec", 31)
    for c in range(4):
        b.I("ds_write_b128", v(9), v(12, 4), mods=f"offset:{c * HS}")
        b.I("ds_write_b128", v(9), v(12, 4), mods=f"offset:{c * HS + 4144}")
    b.I("s_mov_b64", "exec", 3)
    b.I("ds_write_b128", v(9), v(12, 4), mods=f"offset:{UB}")
    b.I("s_mov_b64", "exec", -1)
    SW, SR = 21, 22
    b.I("s_lshl_b32", s(7), s(3), 2)
    b.I("s_add_u32", s(7), s(7), SY)
    b.I("v_mov_b32", v(SW), s(7))
    b.I("ds_write_b32", v(SW), v(12))
    b.I("s_add_u32", "m0", s(5), UB + 32)
    b.I("s_add_u32", s(7), s(6), KVT)
    b.I("v_and_b32", v(SR), 3, v(2))
    b.I("v_lshlrev_b32", v(SR), 2, v(SR))
    b.I("v_add_u32", v(SR), SY, v(SR))
    AA, BA = 16, 17
    b.I("v_add_u32", v(11), 1, v(I_))
    b.I("v_and_b32", v(AA), 3, v(11))
    b.I("v_mul_u32_u24", v(AA), HS, v(AA))
    b.I("v_lshrrev_b32", v(11), 2, v(11))
    b.I("v_lshl_add_u32", v(AA), v(11), 3, v(AA))
    b.I("v_lshl_add_u32", v(AA), v(G_), 4, v(AA))
    b.I("v_add_u32", v(AA), s(5), v(AA))
    b.I("v_lshlrev_b32", v(11), 5, v(I_))
    b.I("v_lshlrev_b32", v(BA), 4, v(G_))
    b.I("v_sub_u32", v(BA), v(BA), v(11))
    b.I("s_add_u32", s(24), s(5), UB + 480)
    b.I("v_add_u32", v(BA), s(24), v(BA))
    YW, YR, YS = 96, 97, 98
    b.I("s_mul_i32", s(24), s(3), 4160)
    b.I("s_add_u32", s(24), s(24), YL)
    b.I("v_lshlrev_b32", v(YW), 5, v(I_))
    b.I("v_lshl_add_u32", v(YW), v(G_), 3, v(YW))
    b.I("v_add_u32", v(YW), s(24), v(YW))
    b.I("v_bfe_u32", v(11), v(2), 2, 2)
    b.I("v_mul_u32_u24", v(YR), 4160, v(11))
    b.I("v_lshl_add_u32", v(YR), v(G_), 5, v(YR))
    b.I("v_and_b32", v(11), 3, v(2))
    b.I("v_lshl_add_u32", v(YR), v(11), 3, v(YR))
    b.I("s_lshl_b32", s(24), s(3), 10)
    b.I("s_add_u32", s(24), s(24), YL)
    b.I("v_add_u32", v(YR), s(24), v(YR))
    yt = 1 if P["ytag"] else 0
    BS, PS = ((128 << yt), P["ystr"]) if P["ystr"] else (18432 << yt, 128 << yt)
    b.I("v_mul_u32_u24", v(YS), BS, v(G_))
    b.I("v_lshl_add_u32", v(YS), v(I_), 3 + yt, v(YS))
    b.I("s_mul_i32", s(32), s(3), 32 * BS)
    b.I("s_mul_i32", s(24), s(2), PS)
    b.I("s_add_u32", s(32), s(32), s(24))
    b.I("s_add_u32", s(32), s(32), YB)
    b.wait_tag_vm("kv")
    st()
    b.barrier()
    b.I("v_lshlrev_b32", v(11), 16, v(H))
    for par in range(2):
        for r in range(4):
            hr = H + 8 * r
            if par:
                for k in range(4):
                    b.I("v_alignbyte_b32", v(hr + k), v(hr + k + 1), v(hr + k), 2)
            else:
                b.I("v_add_u32", v(116 + r), 2 * HS + 1024 * r, v(9))
                b.I("v_add_u32", v(120 + r), 3 * HS + 1024 * r, v(9))
            b.I("ds_write_b128", v(9), v(hr, 4), mods=f"offset:{par * HS + 64 + 1024 * r}")
            ad = 116 + 4 * par + r
            b.I("ds_write2_b32", v(ad), v(hr), v(hr + 1), mods="offset0:15 offset1:16")
            b.I("ds_write2_b32", v(ad), v(hr + 2), v(hr + 3), mods="offset0:17 offset1:18")
    b.I("s_mov_b64", "exec", 1)
    b.I("ds_write_b32", v(9), v(11), mods=f"offset:{HS + 60}")
    b.I("ds_write_b32", v(9), v(11), mods=f"offset:{3 * HS + 56}")
    b.I("s_mov_b64", "exec", -1)
    DA = 24
    b.I("v_lshlrev_b32", v(10), 3, v(G_))
    b.I("v_add_u32", v(10), v(10), v(I_))
    b.I("v_sub_u32", v(10), 31, v(10))
    b.I("v_lshlrev_b32", v(11), 16, v(8))
    for r in range(4):
        b.I("v_cmp_eq_u32", "vcc", 2 * r, v(10))
        b.I("v_cndmask_b32", v(DA + r), 0, v(8), "vcc")
        b.I("v_cmp_eq_u32", "vcc", 2 * r + 1, v(10))
        b.I("v_cndmask_b32", v(DA + r), v(DA + r), v(11), "vcc")
    ACC = 28
    seq = conv_order()
    free = [100 + 4 * i for i in range(P["nfr"])]
    last = {}
    need = []
    for p, (ak, bk, ct) in enumerate(seq):
        for key in (("a", ak), ("b", bk)):
            if key == ("a", "D"):
                continue
            if key not in last:
                need.append((key, p))
            last[key] = p
    slot = {}
    q = []
    ni = [0]

    def refill(p):
        while ni[0] < len(need) and need[ni[0]][1] <= p + P["cla"] and free:
            key = need[ni[0]][0]
            ni[0] += 1
            r = free.pop(0)
            slot[key] = r
            if key[0] == "a":
                q.append((key, lambda r=r, mu=key[1]: b.I("ds_read_b64", v(r, 2), v(AA), mods=f"offset:{64 * mu}")))
                q.append((key, lambda r=r, mu=key[1]: b.I("ds_read_b64", v(r + 2, 2), v(AA), mods=f"offset:{64 * mu + 8}")))
            else:
                q.append((key, lambda r=r, be=key[1]: b.I("ds_read_b128", v(r, 4), v(BA), mods=f"offset:{(56 - be) * 64}")))
    refill(0)
    for it in [x for x in q if x[0][0] == "a"][:10]:
        q.remove(it)
        it[1]()
    if yt:
        b.I("v_mov_b32", v(60), P["gcnt"] + 8)
        b.I("ds_read_b64", v(60, 2), v(60))
    b.wait(lgkm=0)
    b.barrier()
    st()
    for r in range(4):
        b.I("buffer_load_dwordx4", v(3), s(8, 4), s(7), mods=f"offen offset:{1024 * r} sc1 lds", tag="u")
    if yt:
        for k in range(8):
            b.I("v_mov_b32", v(66 + 4 * k), v(60))
            b.I("v_mov_b32", v(67 + 4 * k), v(61))
        b.I("v_mul_u32_u24", v(62), 18432, v(2))
        b.I("s_lshl_b32", s(33), s(2), 7)
        b.I("s_add_u32", s(33), s(33), GFY)

    def yflag():
        b.raw(f"""  s_cmp_lg_u32 s3, {P["yfw"]}
  s_cbranch_scc1 {name}_yf
  s_mov_b64 exec, {(1 << P["ycp"]) - 1}
  buffer_store_dword v60, v62, s[8:11], s33 offen sc1
  s_mov_b64 exec, -1
{name}_yf:""")
    b.I("s_setprio", 2)
    b.wait_tag_vm("u")
    st()
    rts = lambda r: b.raw(f"  s_memrealtime s[{r}:{r + 1}]") if P["fst"] else None
    rts(64)
    for i in range(7):
        if q:
            q.pop(0)[1]()
    started = set()
    for p, (ak, bk, ct) in enumerate(seq):
        refill(p)
        while any(k in (("a", ak), ("b", bk)) for k, _ in q):
            q.pop(0)[1]()
        d = v(ACC + 4 * ct, 4)
        b.I(MF, d, v(DA, 4) if ak == "D" else v(slot[("a", ak)], 4), v(slot[("b", bk)], 4), d if ct in started else "0")
        started.add(ct)
        for key in (("a", ak), ("b", bk)):
            if last.get(key) == p:
                free.append(slot[key])
        if q and len(b.lgq) < 15:
            q.pop(0)[1]()
        if yt and p == len(seq) - 1 - P["yfp"]:
            yflag()
    st()
    rts(68)
    for ct in range(8):
        r = ACC + 4 * ct
        b.I("v_cvt_pk_bf16_f32", v(r), v(r), v(r + 1))
        b.I("v_cvt_pk_bf16_f32", v(r + 1), v(r + 2), v(r + 3))
        b.I("ds_write_b64", v(YW), v(r, 2), mods=f"offset:{512 * ct}")
    b.I("v_mov_b32", v(11), 1)
    b.I("ds_write_b32", v(SW), v(11))
    b.raw(f"""  s_mov_b32 s37, 0x100000
{name}_ep:
  ds_read_b32 v10, v{SR}
  s_waitcnt lgkmcnt(0)
  v_cmp_ne_u32 vcc, 1, v10
  s_cbranch_vccz {name}_epd
  s_sub_u32 s37, s37, 1
  s_cbranch_scc0 {name}_ep
{name}_epd:""")
    b.lgq = []
    st()
    rts(78)
    if yt and P["yfp"] == -1:
        yflag()
    for k in range(8):
        b.I("ds_read_b64_tr_b16", v(64 + (2 * k << yt), 2), v(YR), mods=f"offset:{128 * k}")
    for k in range(8):
        b.I("s_add_u32", s(24 + (k & 1)), s(32), 4 * k * BS)
        b.I("buffer_store_dwordx4" if yt else "buffer_store_dwordx2", v(64 + (2 * k << yt), 2 << yt), v(YS), s(8, 4), s(24 + (k & 1)), mods="offen " + P["yaux"])
    if P["fuse"]:
        if yt and P["yfp"] == -2:
            yflag()
        if P["wdef"]:
            b.I("s_mov_b32", s(39), 0)
            if P["wtrig"]:
                b.I("v_mov_b32", v(10), P["gcnt"])
                b.I("v_mov_b32", v(11), 1)
                b.I("s_mov_b64", "exec", 1)
                b.I("ds_add_u32", v(10), v(11))
                b.I("s_mov_b64", "exec", -1)
        b.I("s_branch", P["fuse"])
        return
    b.wait_all()
    st()
    st.dump(s(8, 4), 3)
    tl.end(b)
    b.I("s_endpgm")


def emit_rl(b, name, P, wg0, nwg):
    st = St(b, P["stamps"], base=60)
    st()
    b.I("s_load_dwordx4", s(44, 4), s(0, 2), 88)
    b.I("s_memrealtime", s(40, 2))
    b.wait(lgkm=0)
    b.I("s_load_dwordx4", s(12, 4), s(0, 2), 56)
    b.I("s_load_dwordx2", s(20, 2), s(0, 2), 72)
    b.I("s_mov_b32", s(8), s(46))
    b.I("s_mov_b32", s(9), s(47))
    if P["fuse"]:
        b.I("s_mov_b32", s(46), 256)
        b.I("s_mov_b32", s(47), 0x20000)
    b.I("s_cmp_lg_u32", s(2), wg0)
    b.I("s_cbranch_scc1", f"{name}_nl")
    b.I("s_mov_b32", s(46), 256)
    b.I("s_mov_b32", s(47), 0x20000)
    b.I("s_or_b32", s(41), s(41), 0x40000000)
    if P["fuse"]:
        b.I("s_or_b32", s(40), s(40), 1)
    b.I("v_mov_b32", v(2), s(40))
    b.I("v_mov_b32", v(3), s(41))
    b.I("v_mov_b32", v(4), 0)
    b.I("v_cmp_eq_u32", "vcc", 0, v(0))
    b.I("s_and_saveexec_b64", s(42, 2), "vcc")
    b.I("s_cbranch_execz", f"{name}_nl2")
    b.I("buffer_store_dwordx2", v(2, 2), v(4), s(44, 4), 0, mods="offen sc1")
    b.label(f"{name}_nl2")
    b.I("s_mov_b64", "exec", -1)
    b.label(f"{name}_nl")
    b.I("v_lshrrev_b32", v(1), 6, v(0))
    b.I("v_readfirstlane_b32", s(3), v(1))
    b.I("s_sub_u32", s(4), s(2), wg0)
    b.I("s_lshr_b32", s(4), s(4), 3)
    b.I("s_mov_b32", s(10), WS_BYTES)
    b.I("s_mov_b32", s(11), 0x20000)
    if P["zero"]:
        if P["zero"] == "ld":
            b.I("s_sub_u32", s(36), s(2), wg0)
            b.I("s_lshl_b32", s(36), s(36), 13)
            b.I("s_add_u32", s(36), s(36), FLG)
            b.I("v_lshlrev_b32", v(8), 4, v(0))
        else:
            b.raw(f"""  s_sub_u32 s6, s2, {wg0}
  s_cmp_ge_u32 s6, {ZERO_BYTES // 8192}
  s_cbranch_scc1 {name}_nz
  s_lshl_b32 s6, s6, 13
  s_add_u32 s6, s6, {FLG}
  v_lshlrev_b32 v8, 4, v0
  v_mov_b32 v4, 0
  v_mov_b32 v5, 0
  v_mov_b32 v6, 0
  v_mov_b32 v7, 0
  buffer_store_dwordx4 v[4:7], v8, s[8:11], s6 offen sc1
{name}_nz:""")
    b.I("s_mul_i32", s(6), s(3), nwg // 8)
    b.I("s_add_u32", s(6), s(6), s(4))
    b.I("s_mul_i32", s(5), s(3), 9216)
    rl = RL(b, P, P["rl"], st, name + "_r")
    rl.setup(6, 5)
    b.wait(lgkm=0)
    st()
    rl.srds()
    if P["fuse"]:
        rl.exit = f"{name}_rx"
        rl.touch = P["zero"] == "ld"
    rl.run(6)
    if P["fuse"]:
        b.raw(f"""{name}_rx:
  s_cmp_lg_u32 s3, 0
  s_cbranch_scc1 {name}_rw
  v_mov_b32 v4, 0
  s_mov_b32 s43, 0x40000
{name}_rt:
  buffer_load_dwordx2 v[2:3], v4, s[44:47], 0 offen sc1
  s_waitcnt vmcnt(0)
  v_cmp_eq_u32 vcc, 0, v2
  s_cbranch_vccz {name}_ru
  s_sub_u32 s43, s43, 1
  s_cbranch_scc0 {name}_rt
{name}_ru:
  v_mov_b32 v5, {P["gcnt"] + 8}
  ds_write_b64 v5, v[2:3]
  s_lshl_b32 s6, s2, 7
  s_add_u32 s6, s6, {GFL + 0x8000}
  s_waitcnt lgkmcnt(0)
  s_barrier
  s_mov_b64 exec, 1
  buffer_store_dword v2, v4, s[8:11], s6 offen sc1
  s_mov_b64 exec, -1
  s_branch {P["fuse"]}
{name}_rw:
  s_waitcnt vmcnt(0)
  s_barrier
  s_branch {P["fuse"]}""")


DEFF = dict(stamps=False, gaux="nt", psleep=1, nfr=36, cla=24, pf="ln2_kernel_end", haux="nt", yaux="", raux="sc1", rlaux="nt",
            ilv=True, hdelay=0, touch=0, zero=False, qpf=0, fuse=None, gcnt=0, ytag=False, wdef=False, wtrig=0, ystr=0, fst=False, yfp=0, yfw=0, ycp=4,
            rl=[("g", 0, 112, True), ("g", 112, 50, False)], hl=[("d", 0, 72, True), ("d", 72, 9, False)], nrl=112)


def k_front(name, **kw):
    P = dict(DEFF)
    P.update(kw)
    b = AB()
    b.raw(f".globl {name}\n.p2align 8\n.type {name},@function\n{name}:")
    if P["fuse"]:
        name = "fr"
    tl.start(b)
    b.I("s_load_dwordx8", s(12, 8), s(0, 2), 8)
    if P["pf"]:
        b.raw(f"  s_getpc_b64 s[36:37]\n{name}_pc:")
        b.I("s_lshr_b32", s(38), s(2), 3)
        b.I("s_lshl_b32", s(38), s(38), 13)
        b.I("v_lshlrev_b32", v(240), 4, v(0))
        b.I("v_add_u32", v(240), s(38), v(240))
        b.raw(f"  v_min_u32 v240, {P['pf']}-{name}_pc-16, v240")
        b.I("global_load_dwordx4", v(244, 4), v(240), s(36, 2))
    b.I("s_cmp_ge_u32", s(2), NCONV)
    b.I("s_cbranch_scc1", f"{name}_rl")
    snap = b.snapshot()
    emit_conv(b, name, P)
    b.restore(snap)
    b.raw(".p2align 6")
    b.label(f"{name}_rl")
    b.I("s_cmp_ge_u32", s(2), NCONV + P["nrl"])
    b.I("s_cbranch_scc1", f"{name}_end")
    if P["nrl"]:
        emit_rl(b, name, P, NCONV, P["nrl"])
    b.label(f"{name}_end")
    b.raw("  s_waitcnt vmcnt(0) lgkmcnt(0)")
    b.I("s_endpgm")
    return b
```

```python
from ab import *
from lay import *
import tl
from k_front import St, conv_order
MF = "v_mfma_f32_16x16x32_bf16"

HS = 4416
UB = 4 * HS
WSZ = UB + 4672
YL = 4 * WSZ
HLB = YL + 16640
SY = HLB + 4 * 9216
FRONT_LDS = SY + 64
NCONV = 144


class RL:
    GL, DL, GW, GR, DW, DR = 207, 208, 209, 210, 211, 212
    GW2 = [209, 213, 214, 215]
    LN = 216
    US = 48

    def __init__(self, b, P, units, st, name):
        self.b, self.P, self.units, self.st, self.name, self.nl = b, P, units, st, name, 0

    def setup(self, idx, ldsbase):
        b = self.b
        T = 217
        b.I("v_and_b32", v(T), 63, v(0))
        b.I("v_lshlrev_b32", v(self.LN), 4, v(T))
        b.I("v_lshrrev_b32", v(T + 1), 3, v(T))
        b.I("v_and_b32", v(T + 2), 7, v(T))
        b.I("v_lshrrev_b32", v(T + 3), 4, v(T))
        b.I("v_bfe_u32", v(T + 4), v(T), 2, 2)
        b.I("v_lshl_add_u32", v(T + 3), v(T + 3), 3, v(T + 4))
        b.I("v_and_b32", v(T + 4), 3, v(T))
        tys = {u[0] for u in self.units}
        def mk(dst, m, r1, r2, sh, base):
            b.I("v_mul_u32_u24", v(dst), m, v(r1))
            b.I("v_lshl_add_u32", v(dst), v(r2), sh, v(dst))
            if base:
                b.I("v_add_u32", v(dst), s(ldsbase), v(dst))
        if "g" in tys:
            mk(self.GL, 9216, T + 1, T + 2, 4, 0)
            mk(self.GW, 264, T + 1, T + 2, 5, 1)
            mk(self.GR, 264, T + 3, T + 4, 5, 1)
            for i in range(1, 4):
                b.I("v_add_u32", v(self.GW2[i]), i * 8 * 264, v(self.GW))
        if "d" in tys:
            mk(self.DL, 1152, T + 1, T + 2, 4, 0)
            mk(self.DW, 144, T + 1, T + 2, 4, 1)
            mk(self.DR, 144, T + 3, T + 4, 4, 1)
        b.I("s_and_b32", s(24), s(2), 7)
        b.I("s_mul_i32", s(24), s(24), 9)
        for r, (ty, first, cnt, full) in enumerate(self.units):
            so, do = self.US + 2 * r, self.US + 1 + 2 * r
            b.I("s_add_u32", s(27), s(idx), first)
            b.I("s_mul_i32", s(25), s(27), 7282)
            b.I("s_lshr_b32", s(25), s(25), 16)
            b.I("s_mul_i32", s(26), s(25), 9)
            b.I("s_sub_u32", s(26), s(27), s(26))
            if ty == "g":
                b.I("s_add_u32", s(26), s(26), s(24))
                b.I("s_mul_i32", s(so), s(25), 32 * 9216)
                b.I("s_lshl_b32", s(27), s(26), 7)
                b.I("s_add_u32", s(so), s(so), s(27))
                b.I("s_mul_i32", s(27), s(26), 36)
                b.I("s_add_u32", s(27), s(27), s(25))
                b.I("s_lshl_b32", s(27), s(27), 12)
                b.I("s_add_u32", s(do), s(27), WGU)
            else:
                b.I("s_add_u32", s(25), s(25), s(24))
                b.I("s_mul_i32", s(so), s(25), 64 * 1152)
                b.I("s_lshl_b32", s(27), s(26), 7)
                b.I("s_add_u32", s(so), s(so), s(27))
                b.I("s_mul_i32", s(27), s(25), 18)
                b.I("s_add_u32", s(27), s(27), s(26))
                b.I("s_lshl_b32", s(27), s(27), 12)
                b.I("s_add_u32", s(do), s(27), WD)

    def srds(self):
        b = self.b
        b.I("s_mov_b32", s(16), s(14))
        b.I("s_mov_b32", s(17), s(15))
        b.I("s_mov_b32", s(18), F * D * 2)
        b.I("s_mov_b32", s(19), 0x20000)
        b.I("s_mov_b32", s(14), F * D * 2)
        b.I("s_mov_b32", s(15), 0x20000)
        b.I("s_mov_b32", s(22), F * D * 2)
        b.I("s_mov_b32", s(23), 0x20000)

    def masked(self, r, fn):
        fn()

    def loads(self, r, RB=16):
        b, laux = self.b, self.P["rlaux"]
        ty = self.units[r][0]
        R = RB + 32 * r
        so = self.US + 2 * r

        def fn():
            if ty == "g":
                for i in range(4):
                    b.I("s_add_u32", s(28 + (i & 1)), s(so), i * 8 * 9216)
                    b.I("buffer_load_dwordx4", v(R + 4 * i, 4), v(self.GL), s(12, 4), s(28 + (i & 1)), mods="offen " + laux)
                    b.I("buffer_load_dwordx4", v(R + 16 + 4 * i, 4), v(self.GL), s(16, 4), s(28 + (i & 1)), mods="offen " + laux)
            else:
                for i in range(8):
                    b.I("s_add_u32", s(28 + (i & 1)), s(so), i * 8 * 1152)
                    b.I("buffer_load_dwordx4", v(R + 4 * i, 4), v(self.DL), s(20, 4), s(28 + (i & 1)), mods="offen " + laux)
        self.masked(r, fn)

    def proc(self, r, RB=16):
        b, aux = self.b, self.P["raux"]
        ty = self.units[r][0]
        R = RB + 32 * r
        O = RB + 32 * len(self.units) + 32 * (r % 2)
        assert O + 32 <= 207
        do = self.US + 1 + 2 * r
        if ty == "g":
            for i in range(4):
                for k in range(4):
                    b.I("ds_write2_b32", v(self.GW2[i]), v(R + 4 * i + k), v(R + 16 + 4 * i + k), mods=f"offset0:{2 * k} offset1:{2 * k + 1}")
        else:
            for i in range(8):
                b.I("ds_write_b128", v(self.DW), v(R + 4 * i, 4), mods=f"offset:{i * 8 * 144}")
        for kl in range(2):
            for t in range(4):
                o = O + (kl * 4 + t) * 4
                for h in range(2):
                    if ty == "g":
                        b.I("ds_read_b64_tr_b16", v(o + 2 * h, 2), v(self.GR), mods=f"offset:{kl * 128 + t * 8 + h * 4 * 264}")
                    else:
                        b.I("ds_read_b64_tr_b16", v(o + 2 * h, 2), v(self.DR), mods=f"offset:{(kl * 32 + h * 4) * 144 + (t >> 1) * 64 + (t & 1) * 8}")
        b.I("s_add_u32", s(30), s(do), 18 * 4096 if ty == "g" else 36 * 1024)

        def fn():
            for kl in range(2):
                for t in range(4):
                    o = O + (kl * 4 + t) * 4
                    b.I("buffer_store_dwordx4", v(o, 4), v(self.LN), s(8, 4), s(do) if kl == 0 else s(30), mods=f"offen offset:{t * 1024} {aux}")
        self.masked(r, fn)

    def qpf(self):
        b = self.b
        b.I("s_load_dwordx2", s(32, 2), s(0, 2), 0)
        b.I("s_and_b32", s(24), s(2), 0xf0)
        b.I("s_and_b32", s(25), s(2), 7)
        b.I("s_lshl_b32", s(25), s(25), 1)
        b.I("s_add_u32", s(24), s(24), s(25))
        b.I("s_bfe_u32", s(25), s(2), 0x10003)
        b.I("s_add_u32", s(24), s(24), s(25))
        b.I("s_mul_i32", s(24), s(24), 9216)
        b.I("s_and_b32", s(25), s(3), 3)
        b.I("s_mul_i32", s(25), s(25), 2304)
        b.I("s_add_u32", s(24), s(24), s(25))
        b.I("v_add_u32", v(220), s(24), v(self.LN))
        b.I("s_mov_b32", s(34), S * D * 2)
        b.I("s_mov_b32", s(35), 0x20000)
        for i in range(3):
            b.I("buffer_load_dwordx4", v(224 + 4 * i, 4), v(220), s(32, 4), 0, mods=f"offen offset:{min(1024 * i, 1280)}")

    def run(self, idx):
        b, st = self.b, self.st
        ths = sorted({u[2] for u in self.units if not u[3]})
        n0 = st.n
        for vi, lo in enumerate([0] + ths):
            if vi < len(ths):
                b.I("s_cmp_ge_u32", s(idx), ths[vi])
                b.I("s_cbranch_scc1", f"{self.name}_v{vi + 1}")
                snap = b.snapshot()
            st.n = n0
            rs = [r for r, u in enumerate(self.units) if u[3] or lo < u[2]]
            for r in rs:
                self.loads(r)
            st()
            if self.P["qpf"] == 1:
                self.qpf()
            for r in range(len(self.units)):
                if r in rs:
                    self.proc(r)
                st()
            if self.P["qpf"] == 2:
                self.qpf()
            b.wait_all()
            st()
            st.dump(s(8, 4), 3)
            tl.end(b)
            b.I("s_endpgm")
            if vi < len(ths):
                b.restore(snap)
                b.label(f"{self.name}_v{vi + 1}")


def emit_conv(b, name, P):
    st = St(b, P["stamps"], base=60)
    st()
    b.I("s_load_dwordx2", s(24, 2), s(0, 2), 40)
    b.I("s_load_dwordx2", s(8, 2), s(0, 2), 96)
    b.I("v_lshrrev_b32", v(1), 6, v(0))
    b.I("v_and_b32", v(2), 63, v(0))
    b.I("v_readfirstlane_b32", s(3), v(1))
    b.I("s_and_b32", s(33), s(2), 7)
    b.I("s_mul_i32", s(33), s(33), 18)
    b.I("s_lshr_b32", s(7), s(2), 3)
    b.I("s_add_u32", s(33), s(33), s(7))
    GA, GH = 6, 7
    K, V, PP, T, O = 172, 186, 196, 212, 228
    W = 52
    b.I("s_lshl_b32", s(7), s(33), 3)
    b.I("v_mul_u32_u24", v(GA), 4 * 1152, v(0))
    b.I("v_add_u32", v(GA), s(7), v(GA))
    b.I("v_subrev_u32", v(GH), 3 * 1152, v(GA))
    b.I("s_mov_b32", s(30), S * D * 2)
    b.I("s_mov_b32", s(31), 0x20000)
    H = 64
    b.I("v_lshlrev_b32", v(3), 4, v(2))
    b.I("s_lshl_b32", s(4), s(33), 2)
    b.I("s_add_u32", s(4), s(4), s(3))
    b.I("s_lshl_b32", s(6), s(4), 12)
    b.I("s_mov_b32", s(22), 4096)
    b.I("s_mov_b32", s(23), 0x20000)
    b.I("s_mov_b32", s(26), 1152)
    b.I("s_mov_b32", s(27), 0x20000)
    b.I("v_add_u32", v(11), 16, v(3))
    b.I("s_lshl_b32", s(7), s(4), 1)
    b.I("v_mov_b32", v(12), s(7))
    b.I("s_lshl_b32", s(34), s(33), 5)
    b.wait(lgkm=0)
    st()
    b.I("s_mov_b32", s(28), s(14))
    b.I("s_mov_b32", s(29), s(15))
    b.I("s_mov_b32", s(14), S * D * 2)
    b.I("s_mov_b32", s(15), 0x20000)
    b.I("s_add_u32", s(20), s(18), s(6))
    b.I("s_addc_u32", s(21), s(19), 0)
    ga, ha = P["gaux"], P["haux"]

    def hloads():
        b.I("s_cmp_ge_u32", s(3), 4)
        b.I("s_cbranch_scc1", f"{name}_nh")
        vq = list(b.vmq)
        for r in range(4):
            b.I("buffer_load_dwordx4", v(H + 8 * r, 4), v(3), s(20, 4), 0, mods=f"offen offset:{1024 * r} {ha}")
        for r in range(4):
            b.I("buffer_load_dword", v(H + 8 * r + 4), v(11), s(20, 4), 0, mods=f"offen offset:{1024 * r} {ha}")
        b.I("buffer_load_ushort", v(8), v(12), s(24, 4), 0, mods="offen")
        b.vmq = vq
        b.label(f"{name}_nh")
    if P["hfirst"]:
        hloads()
    for r in range(4):
        b.I("buffer_load_dwordx2", v(K + 6 + 2 * r, 2), v(GA), s(12, 4), 0, mods=f"offen offset:{1152 * r} {ga}", tag="g")
    b.I("s_mov_b64", "exec", 1)
    for r in range(3):
        b.I("buffer_load_dwordx2", v(K + 2 * r, 2), v(GH), s(12, 4), 0, mods=f"offen offset:{1152 * r} {ga}", tag="g")
    b.I("s_mov_b64", "exec", -1)
    for r in range(4):
        b.I("buffer_load_dwordx2", v(V + 2 * r, 2), v(GA), s(28, 4), 0, mods=f"offen offset:{1152 * r} {ga}", tag="g")
    b.I("s_load_dwordx8", s(W, 8), s(16, 2), s(34))
    b.I("s_mov_b32", s(10), WS_BYTES)
    b.I("s_mov_b32", s(11), 0x20000)
    b.I("s_mov_b32", s(38), 0x05040100)
    b.I("s_mov_b32", s(39), 0x07060302)
    I_, TW = 4, 18
    b.I("v_and_b32", v(I_), 15, v(0))
    b.I("v_lshlrev_b32", v(TW), 3, v(0))
    b.I("v_sub_u32", v(TW), UB + 32 + 4088, v(TW))
    st()

    def kv(hook=None):
        b.wait(lgkm=0)
        for r in range(3):
            for dw in range(2):
                b.I("v_mov_b32_dpp", v(K + 2 * r + dw), v(K + 8 + 2 * r + dw), mods="wave_shr:1 row_mask:0xf bank_mask:0xf")
        if hook:
            hook()
        st()
        for ch in range(4):
            dw, h = ch >> 1, ch & 1
            pp = PP + 8 * (ch & 1)
            t = T + 8 * (ch & 1)
            for r in range(1, 7):
                b.I("v_perm_b32", v(pp + r), v(K + 2 * (r - 1) + dw), v(K + 2 * r + dw), s(38 + h))
            for i in range(4):
                b.I("v_dot2_f32_bf16", v(t + i), v(pp + i + 1), s(W + 2 * ch + 1), 0)
            for i in range(4):
                if h == 0:
                    b.I("v_lshlrev_b32", v(t + 4 + i), 16, v(V + 2 * i + dw))
                else:
                    b.I("v_and_b32", v(t + 4 + i), 0xffff0000, v(V + 2 * i + dw))
            for i in range(4):
                b.I("v_dot2_f32_bf16", v(t + i), v(pp + i + 3), s(W + 2 * ch), v(t + i))
            if ch > 0:
                b.I("ds_write_b64", v(TW), v(O + 2 * (ch - 1), 2), mods=f"offset:{(ch - 1) * WSZ}")
            for i in range(4):
                b.I("v_mul_f32", v(t + i), v(t + i), v(t + 4 + i))
            for q in range(2):
                b.I("v_cvt_pk_bf16_f32", v(O + 2 * ch + q), v(t + 3 - 2 * q), v(t + 2 - 2 * q))
        b.I("v_add_u32", v(TW), 3 * WSZ, v(TW))
        b.I("ds_write_b64", v(TW), v(O + 6, 2))
    b.I("s_cmp_lt_u32", s(3), 4)
    b.I("s_cbranch_scc1", f"{name}_cv")
    snap = b.snapshot()
    rl = RL(b, P, P["hl"], st, name + "_h")
    b.I("s_sub_u32", s(6), s(3), 4)
    b.I("s_mul_i32", s(37), s(6), 9216)
    b.I("s_add_u32", s(37), s(37), HLB)
    b.I("s_mul_i32", s(6), s(6), 18)
    b.I("s_lshr_b32", s(7), s(2), 3)
    b.I("s_add_u32", s(6), s(6), s(7))
    kv(lambda: (b.I("s_load_dwordx4", s(12, 4), s(0, 2), 56), b.I("s_load_dwordx2", s(20, 2), s(0, 2), 72)))
    b.wait(lgkm=0)
    st()
    b.barrier()
    rl.setup(6, 37)
    rl.srds()
    st()
    rl.run(6)
    b.restore(snap)
    st.n = 3
    b.raw(".p2align 6")
    b.label(f"{name}_cv")
    b.I("s_lshl_b32", s(6), s(4), 12)
    b.I("s_mul_i32", s(5), s(3), WSZ)
    G_ = 5
    b.I("v_lshrrev_b32", v(G_), 4, v(2))
    for k in range(4):
        b.I("v_mov_b32", v(12 + k), 0)
    b.I("v_add_u32", v(9), s(5), v(3))
    b.I("s_mov_b32", "exec_hi", 0)
    b.I("ds_write_b128", v(9), v(12, 4), mods=f"offset:{UB + 32 + 4096}")
    b.I("s_mov_b64", "exec", 31)
    for c in range(4):
        b.I("ds_write_b128", v(9), v(12, 4), mods=f"offset:{c * HS}")
        b.I("ds_write_b128", v(9), v(12, 4), mods=f"offset:{c * HS + 4144}")
    b.I("s_mov_b64", "exec", 3)
    b.I("ds_write_b128", v(9), v(12, 4), mods=f"offset:{UB}")
    b.I("s_mov_b64", "exec", -1)
    SW, SR = 21, 22
    b.I("s_lshl_b32", s(7), s(3), 2)
    b.I("s_add_u32", s(7), s(7), SY)
    b.I("v_mov_b32", v(SW), s(7))
    b.I("ds_write_b32", v(SW), v(12))
    b.I("v_and_b32", v(SR), 3, v(2))
    b.I("v_lshlrev_b32", v(SR), 2, v(SR))
    b.I("v_add_u32", v(SR), SY, v(SR))
    AA, BA = 16, 17
    b.I("v_add_u32", v(11), 1, v(I_))
    b.I("v_and_b32", v(AA), 3, v(11))
    b.I("v_mul_u32_u24", v(AA), HS, v(AA))
    b.I("v_lshrrev_b32", v(11), 2, v(11))
    b.I("v_lshl_add_u32", v(AA), v(11), 3, v(AA))
    b.I("v_lshl_add_u32", v(AA), v(G_), 4, v(AA))
    b.I("v_add_u32", v(AA), s(5), v(AA))
    b.I("v_lshlrev_b32", v(11), 5, v(I_))
    b.I("v_lshlrev_b32", v(BA), 4, v(G_))
    b.I("v_sub_u32", v(BA), v(BA), v(11))
    b.I("s_add_u32", s(24), s(5), UB + 480)
    b.I("v_add_u32", v(BA), s(24), v(BA))
    YW, YR, YS = 96, 97, 98
    b.I("s_mul_i32", s(24), s(3), 4160)
    b.I("s_add_u32", s(24), s(24), YL)
    b.I("v_lshlrev_b32", v(YW), 5, v(I_))
    b.I("v_lshl_add_u32", v(YW), v(G_), 3, v(YW))
    b.I("v_add_u32", v(YW), s(24), v(YW))
    b.I("v_bfe_u32", v(11), v(2), 2, 2)
    b.I("v_mul_u32_u24", v(YR), 4160, v(11))
    b.I("v_lshl_add_u32", v(YR), v(G_), 5, v(YR))
    b.I("v_and_b32", v(11), 3, v(2))
    b.I("v_lshl_add_u32", v(YR), v(11), 3, v(YR))
    b.I("s_lshl_b32", s(24), s(3), 10)
    b.I("s_add_u32", s(24), s(24), YL)
    b.I("v_add_u32", v(YR), s(24), v(YR))
    b.I("v_mul_u32_u24", v(YS), 18432, v(G_))
    b.I("v_lshl_add_u32", v(YS), v(I_), 3, v(YS))
    b.I("s_mul_i32", s(32), s(3), 32 * 18432)
    b.I("s_lshl_b32", s(24), s(33), 7)
    b.I("s_add_u32", s(32), s(32), s(24))
    b.I("s_add_u32", s(32), s(32), YB)
    assert P["hfirst"]
    b.force_wait("vmcnt(11)")
    b.I("v_lshlrev_b32", v(11), 16, v(H))
    for par in range(2):
        for r in range(4):
            hr = H + 8 * r
            if par:
                for k in range(4):
                    b.I("v_alignbyte_b32", v(hr + k), v(hr + k + 1), v(hr + k), 2)
            else:
                b.I("v_add_u32", v(116 + r), 2 * HS + 1024 * r, v(9))
                b.I("v_add_u32", v(120 + r), 3 * HS + 1024 * r, v(9))
            b.I("ds_write_b128", v(9), v(hr, 4), mods=f"offset:{par * HS + 64 + 1024 * r}")
            ad = 116 + 4 * par + r
            b.I("ds_write2_b32", v(ad), v(hr), v(hr + 1), mods="offset0:15 offset1:16")
            b.I("ds_write2_b32", v(ad), v(hr + 2), v(hr + 3), mods="offset0:17 offset1:18")
    b.I("s_mov_b64", "exec", 1)
    b.I("ds_write_b32", v(9), v(11), mods=f"offset:{HS + 60}")
    b.I("ds_write_b32", v(9), v(11), mods=f"offset:{3 * HS + 56}")
    b.I("s_mov_b64", "exec", -1)
    DA = 24
    b.I("v_lshlrev_b32", v(10), 3, v(G_))
    b.I("v_add_u32", v(10), v(10), v(I_))
    b.I("v_sub_u32", v(10), 31, v(10))
    b.I("v_lshlrev_b32", v(11), 16, v(8))
    for r in range(4):
        b.I("v_cmp_eq_u32", "vcc", 2 * r, v(10))
        b.I("v_cndmask_b32", v(DA + r), 0, v(8), "vcc")
        b.I("v_cmp_eq_u32", "vcc", 2 * r + 1, v(10))
        b.I("v_cndmask_b32", v(DA + r), v(DA + r), v(11), "vcc")
    ACC = 28
    seq = conv_order()
    free = [100 + 4 * i for i in range(P["nfr"])]
    last = {}
    need = []
    for p, (ak, bk, ct) in enumerate(seq):
        for key in (("a", ak), ("b", bk)):
            if key == ("a", "D"):
                continue
            if key not in last:
                need.append((key, p))
            last[key] = p
    slot = {}
    q = []
    ni = [0]

    def refill(p):
        while ni[0] < len(need) and need[ni[0]][1] <= p + P["cla"] and free:
            key = need[ni[0]][0]
            ni[0] += 1
            r = free.pop(0)
            slot[key] = r
            if key[0] == "a":
                q.append((key, lambda r=r, mu=key[1]: b.I("ds_read_b64", v(r, 2), v(AA), mods=f"offset:{64 * mu}")))
                q.append((key, lambda r=r, mu=key[1]: b.I("ds_read_b64", v(r + 2, 2), v(AA), mods=f"offset:{64 * mu + 8}")))
            else:
                q.append((key, lambda r=r, be=key[1]: b.I("ds_read_b128", v(r, 4), v(BA), mods=f"offset:{(56 - be) * 64}")))
    kv()
    st()
    refill(0)
    for it in [x for x in q if x[0][0] == "a"][:10]:
        q.remove(it)
        it[1]()
    b.wait(lgkm=0)
    b.barrier()
    st()
    b.I("s_setprio", 2)
    for i in range(7):
        if q:
            q.pop(0)[1]()
    started = set()
    for p, (ak, bk, ct) in enumerate(seq):
        refill(p)
        while any(k in (("a", ak), ("b", bk)) for k, _ in q):
            q.pop(0)[1]()
        d = v(ACC + 4 * ct, 4)
        b.I(MF, d, v(DA, 4) if ak == "D" else v(slot[("a", ak)], 4), v(slot[("b", bk)], 4), d if ct in started else "0")
        started.add(ct)
        for key in (("a", ak), ("b", bk)):
            if last.get(key) == p:
                free.append(slot[key])
        if q and len(b.lgq) < 15:
            q.pop(0)[1]()
    st()
    for ct in range(8):
        r = ACC + 4 * ct
        b.I("v_cvt_pk_bf16_f32", v(r), v(r), v(r + 1))
        b.I("v_cvt_pk_bf16_f32", v(r + 1), v(r + 2), v(r + 3))
        b.I("ds_write_b64", v(YW), v(r, 2), mods=f"offset:{512 * ct}")
    b.I("v_mov_b32", v(11), 1)
    b.I("ds_write_b32", v(SW), v(11))
    b.raw(f"""  s_mov_b32 s37, 0x100000
{name}_ep:
  ds_read_b32 v10, v{SR}
  s_waitcnt lgkmcnt(0)
  v_cmp_ne_u32 vcc, 1, v10
  s_cbranch_vccz {name}_epd
  s_sub_u32 s37, s37, 1
  s_cbranch_scc0 {name}_ep
{name}_epd:""")
    b.lgq = []
    st()
    for k in range(8):
        b.I("ds_read_b64_tr_b16", v(64 + 2 * k, 2), v(YR), mods=f"offset:{128 * k}")
    for k in range(8):
        b.I("s_add_u32", s(24 + (k & 1)), s(32), 4 * k * 18432)
        b.I("buffer_store_dwordx2", v(64 + 2 * k, 2), v(YS), s(8, 4), s(24 + (k & 1)), mods="offen " + P["yaux"])
    b.wait_all()
    st()
    st.dump(s(8, 4), 3)
    tl.end(b)
    b.I("s_endpgm")


def emit_rl(b, name, P, wg0, nwg):
    st = St(b, P["stamps"], base=60)
    st()
    b.wait(lgkm=0)
    b.I("s_load_dwordx2", s(8, 2), s(0, 2), 96)
    b.I("s_load_dwordx4", s(12, 4), s(0, 2), 56)
    b.I("s_load_dwordx2", s(20, 2), s(0, 2), 72)
    b.I("v_lshrrev_b32", v(1), 6, v(0))
    b.I("v_readfirstlane_b32", s(3), v(1))
    b.I("s_sub_u32", s(4), s(2), wg0)
    b.I("s_lshr_b32", s(4), s(4), 3)
    b.I("s_mov_b32", s(10), WS_BYTES)
    b.I("s_mov_b32", s(11), 0x20000)
    if P["zero"]:
        b.wait(lgkm=0)
        b.raw(f"""  s_sub_u32 s6, s2, {wg0}
  s_cmp_ge_u32 s6, {ZERO_BYTES // 8192}
  s_cbranch_scc1 {name}_nz
  s_lshl_b32 s6, s6, 13
  s_add_u32 s6, s6, {FLG}
  v_lshlrev_b32 v8, 4, v0
  v_mov_b32 v4, 0
  v_mov_b32 v5, 0
  v_mov_b32 v6, 0
  v_mov_b32 v7, 0
  buffer_store_dwordx4 v[4:7], v8, s[8:11], s6 offen sc1
{name}_nz:""")
    b.I("s_mul_i32", s(6), s(3), nwg // 8)
    b.I("s_add_u32", s(6), s(6), s(4))
    b.I("s_mul_i32", s(5), s(3), 9216)
    rl = RL(b, P, P["rl"], st, name + "_r")
    rl.setup(6, 5)
    b.wait(lgkm=0)
    st()
    rl.srds()
    rl.run(6)


DEFF = dict(stamps=False, gaux="nt", psleep=1, nfr=36, cla=24, pf="ln2_kernel_end", haux="nt", yaux="", raux="sc1", rlaux="nt",
            ilv=True, hdelay=0, touch=0, hfirst=True, zero=False, qpf=0,
            rl=[("g", 0, 112, True), ("g", 112, 50, False)], hl=[("d", 0, 72, True), ("d", 72, 9, False)], nrl=112)


def k_front(name, **kw):
    P = dict(DEFF)
    P.update(kw)
    b = AB()
    b.raw(f".globl {name}\n.p2align 8\n.type {name},@function\n{name}:")
    tl.start(b)
    b.I("s_load_dwordx8", s(12, 8), s(0, 2), 8)
    if P["pf"]:
        b.raw(f"  s_getpc_b64 s[36:37]\n{name}_pc:")
        b.I("s_lshr_b32", s(38), s(2), 3)
        b.I("s_lshl_b32", s(38), s(38), 13)
        b.I("v_lshlrev_b32", v(240), 4, v(0))
        b.I("v_add_u32", v(240), s(38), v(240))
        b.raw(f"  v_min_u32 v240, {P['pf']}-{name}_pc-16, v240")
        b.I("global_load_dwordx4", v(244, 4), v(240), s(36, 2))
    b.I("s_cmp_ge_u32", s(2), NCONV)
    b.I("s_cbranch_scc1", f"{name}_rl")
    snap = b.snapshot()
    emit_conv(b, name, P)
    b.restore(snap)
    b.raw(".p2align 6")
    b.label(f"{name}_rl")
    b.I("s_cmp_ge_u32", s(2), NCONV + P["nrl"])
    b.I("s_cbranch_scc1", f"{name}_end")
    if P["nrl"]:
        emit_rl(b, name, P, NCONV, P["nrl"])
    b.label(f"{name}_end")
    b.raw("  s_waitcnt vmcnt(0) lgkmcnt(0)")
    b.I("s_endpgm")
    return b
```

```python
from k_ffl import *
import k_ffl

PB1, LACC1, RX1, RE1 = 40, 76, 8, 12
PZ, PA = 230, 232
HO = 32768


class PSt:
    def __init__(self, b, on):
        self.b, self.on = b, on

    def at(self, i):
        if self.on:
            self.b.I("s_memrealtime" if self.on == 2 else "s_memtime", s(60 + 2 * i, 2))

    def dump(self):
        b = self.b
        if not self.on:
            return
        b.wait_all()
        b.I("s_lshl_b32", s(28), s(2), 3)
        b.I("s_add_u32", s(28), s(28), s(3))
        b.I("s_lshl_b32", s(28), s(28), 7)
        b.I("s_add_u32", s(28), s(28), STAMP)
        b.I("v_mov_b32", v(4), 0)
        for i in range(11):
            b.I("v_mov_b32", v(8), s(60 + 2 * i))
            b.I("buffer_store_dword", v(8), v(4), WS, s(28), mods=f"offen offset:{4 * i}")
        if tl.ON:
            b.I("v_mov_b32", v(8), s(88))
            b.I("buffer_store_dword", v(8), v(4), WS, s(28), mods=f"offen offset:44")
            for i in range(3):
                b.I("v_mov_b32", v(8), s((100, 98, 101)[i]))
                b.I("buffer_store_dword", v(8), v(4), WS, s(28), mods=f"offen offset:{48 + 4 * i}")
        b.wait_all()


def lanes(b):
    t0, t1 = T, T + 1
    b.I("v_lshrrev_b32", v(LANE), 4, v(0))
    b.I("v_and_b32", v(CQ), 3, v(LANE))
    b.I("v_bfe_u32", v(DS), v(LANE), 2, 2)
    b.I("v_lshrrev_b32", v(G), 4, v(LANE))
    b.I("v_and_b32", v(GL), 1, v(G))
    b.I("v_lshrrev_b32", v(GH), 1, v(G))
    b.I("v_and_b32", v(t0), 0x24, v(LANE))
    b.I("v_lshrrev_b32", v(t1), 1, v(LANE))
    b.I("v_and_b32", v(t1), 12, v(t1))
    b.I("v_or_b32", v(t1), v(t1), v(CQ))
    b.I("v_lshlrev_b32", v(t1), 4, v(t1))
    b.I("v_lshl_add_u32", v(VRE), v(t0), 26, v(t1))


def part_flag(b, name):
    b.I("s_lshl_b32", s(6), s(2), 7)
    b.I("s_lshl_b32", s(7), s(S_W), 2)
    b.I("s_add_u32", s(6), s(6), s(7))
    b.I("s_add_u32", s(6), s(6), s(S_LAY))
    b.I("s_add_u32", s(6), s(6), PF - FLG)
    b.I("v_mov_b32", v(V_T), 0)
    b.I("v_mov_b32", v(V_Z), 1)
    b.wait(vm=0)
    b.I("s_mov_b64", "exec", 1)
    b.I("buffer_store_dword", v(V_Z), v(V_T), WS, s(6), mods="offen sc1")
    b.I("s_mov_b64", "exec", -1)


def gather(b, name, mode, P, ps):
    t0, t1 = T, T + 1
    L = mode - 1
    lanes(b)
    ra = "sc1"
    b.I("buffer_load_dwordx4", v(RX, 4), v(0), WS, s(S_R), mods="offen " + ra)
    if mode == 1:
        b.I("buffer_load_dwordx4", v(RE, 4), v(VRE), WS, s(S_R), mods="offen offset:1024 " + ra)
        b.I("buffer_load_dwordx4", v(RY, 4), v(0), WS, s(S_R), mods="offen offset:2048 " + ra)
    else:
        b.I("s_load_dwordx2", s(48, 2), s(0, 2), 80)
        b.I("buffer_load_dwordx2", v(RE, 2), v(VRE), WS, s(S_R), mods="offen offset:1024 " + ra)
        b.I("s_add_u32", s(6), s(S_R), 4 * 3072)
        b.I("buffer_load_dwordx4", v(RX1, 4), v(0), WS, s(6), mods="offen " + ra)
        b.I("buffer_load_dwordx2", v(RE1, 2), v(VRE), WS, s(6), mods="offen offset:1024 " + ra)
    b.I("v_lshrrev_b32", v(PA), 2, v(LANE))
    b.I("v_lshlrev_b32", v(PA), 7, v(PA))
    b.I("v_lshl_add_u32", v(PA), v(CQ), 3, v(PA))
    b.I("s_lshl_b32", s(S_A), s(5), 11)
    b.I("s_add_u32", s(S_A), s(S_A), PF + L * FLG_L)
    b.I("v_mul_u32_u24", v(VP), 147456, v(G))
    b.I("v_lshl_add_u32", v(VP), v(DS), 10, v(VP))
    b.I("v_lshl_add_u32", v(VP), v(CQ), 4, v(VP))
    b.I("s_lshl_b32", s(6), s(5), 6)
    b.I("s_add_u32", s(6), s(6), s(4))
    b.I("s_mul_i32", s(6), s(6), 18432)
    b.I("s_add_u32", s(6), s(6), PART + L * LOFF)
    b.I("s_lshl_b32", s(7), s(S_TOK), 5)
    b.I("s_add_u32", s(S_PXS), s(6), s(7))
    b.I("s_add_u32", s(S_P), s(S_PXS), s(7))
    b.I("s_add_u32", s(S_PXS), s(S_PXS), 8192)
    b.I("v_and_b32", v(t0), 1, v(DS))
    b.I("v_lshl_add_u32", v(t1), v(t0), 2, v(G))
    b.I("v_mul_u32_u24", v(VPX), 147456, v(t1))
    b.I("v_mul_u32_u24", v(t0), 3, v(t0))
    b.I("v_xor_b32", v(t0), v(t0), v(CQ))
    b.I("v_lshl_add_u32", v(VPX), v(t0), 3, v(VPX))
    b.I("v_lshrrev_b32", v(t0), 1, v(DS))
    b.I("v_mul_u32_u24", v(t0), 9216, v(t0))
    b.I("v_add_u32", v(VPX), v(VPX), v(t0))
    pl = f"  buffer_load_dwordx2 v[{PZ}:{PZ + 1}], v{PA}, s[8:11], s{S_A} offen sc1"
    b.raw(pl)
    b.I("v_and_b32", v(t1), 15, v(LANE))
    b.I("v_mov_b32", v(T + 2), 0x3f80)
    b.I("v_mov_b32", v(T + 3), 0x3f800000)
    for r in range(4):
        for (AR, off) in ((A1, 0), (A2, 8)):
            b.I("v_cmp_eq_u32", "vcc", off + 2 * r, v(t1))
            b.I("v_cndmask_b32", v(AR + r), 0, v(T + 2), "vcc")
            b.I("v_cmp_eq_u32", "vcc", off + 2 * r + 1, v(t1))
            b.I("v_cndmask_b32", v(AR + r), v(AR + r), v(T + 3), "vcc")
    if mode == 1:
        xn_setup(b, 1, LOFF)
        b.I("s_mul_i32", s(6), s(S_W), 3072)
        b.I("s_add_u32", s(6), s(6), HO)
        b.I("v_add_u32", v(VQ), s(6), v(0))
    else:
        b.I("v_and_b32", v(t0), 15, v(LANE))
        b.I("v_lshlrev_b32", v(VQ), 4, v(t0))
        b.I("v_lshl_add_u32", v(VQ), v(GH), 8, v(VQ))
        b.I("v_mul_u32_u24", v(t0), 576, v(GL))
        b.I("v_add_u32", v(VQ), v(VQ), v(t0))
        b.I("v_lshrrev_b32", v(t0), 1, v(DS))
        b.I("v_mul_u32_u24", v(t0), 576, v(t0))
        b.I("v_lshl_add_u32", v(t0), v(CQ), 4, v(t0))
        b.I("v_lshl_add_u32", v(t0), v(GL), 3, v(t0))
        b.I("v_add_u32", v(t0), 512, v(t0))
        b.I("v_and_b32", v(t1), 0x24, v(LANE))
        b.I("v_lshl_add_u32", v(VQE), v(t1), 24, v(t0))
    for r in range(4):
        b.I("v_mov_b32", v(T + 12 + r), 0)
        b.I("v_mov_b32", v(Y + r), 0)
    b.I("v_mov_b32", v(T + 10), fhex(OUTSCALE))
    b.wait(lgkm=0)
    nm = f"{name}_g{mode}"
    txt = f"""  s_mov_b32 s56, 0x1ff
  s_mov_b32 s{S_CNT}, 0x20000
  s_branch {nm}_chk
{nm}_lp:
  s_sleep {P["gsl"]}
{pl}
{nm}_chk:
  s_waitcnt vmcnt(0)
  v_and_b32 v{PZ}, v{PZ}, v{PZ + 1}
  v_cmp_ne_u32 vcc, 0, v{PZ}
  s_nop 1
  s_mov_b64 s[54:55], vcc
"""
    u = 0
    for h in range(2):
        for a_ in range(2):
            for jj in range(2):
                k = a_ * 4 + h * 2 + jj
                pat = (0x3333 << (2 * h)) << (16 * jj)
                c = jj * 589824 + a_ * 9216 + h * 4096
                txt += f"""  s_bitcmp1_b32 s56, {u}
  s_cbranch_scc0 {nm}_u{u}
  s_and_b32 s6, s{54 + a_}, {pat}
  s_cmp_eq_u32 s6, {pat}
  s_cbranch_scc0 {nm}_u{u}
  s_add_u32 s6, s{S_P}, {c}
  s_bitset0_b32 s56, {u}
  buffer_load_dwordx4 v[{PB + 4 * k}:{PB + 4 * k + 3}], v{VP}, s[8:11], s6 offen sc1
  buffer_load_dwordx4 v[{PB1 + 4 * k}:{PB1 + 4 * k + 3}], v{VP}, s[8:11], s6 offen offset:256 sc1
{nm}_u{u}:
"""
                u += 1
        if h == 0:
            txt += f"""  s_bitcmp1_b32 s56, {u}
  s_cbranch_scc0 {nm}_u{u}
  s_and_b32 s6, s54, s55
  s_and_b32 s6, s6, 0x33333333
  s_cmp_eq_u32 s6, 0x33333333
  s_cbranch_scc0 {nm}_u{u}
  s_bitset0_b32 s56, {u}
"""
            if P["pst"] and mode == 1:
                txt += ("  s_memrealtime" if P["pst"] == 2 else "  s_memtime") + " s[66:67]\n"
            for hh in range(2):
                txt += f"  buffer_load_dwordx2 v[{PB + 32 + 2 * hh}:{PB + 33 + 2 * hh}], v{VPX}, s[8:11], s{S_PXS} offen offset:{512 * hh} sc1\n"
                txt += f"  buffer_load_dwordx2 v[{PB1 + 32 + 2 * hh}:{PB1 + 33 + 2 * hh}], v{VPX}, s[8:11], s{S_PXS} offen offset:{512 * hh + 128} sc1\n"
            txt += f"{nm}_u{u}:\n"
            u += 1
    txt += f"""  s_cmp_eq_u32 s56, 0
  s_cbranch_scc1 {nm}_dn
  s_sub_u32 s{S_CNT}, s{S_CNT}, 1
  s_cbranch_scc0 {nm}_lp
{nm}_dn:"""
    b.raw(txt)
    b.vmq = []
    ps.at(2 if mode == 1 else 9)
    b.force_wait("vmcnt(0)")
    for (pb, la) in ((PB1, LACC1), (PB, LACC)):
        k = 0
        for a_ in range(2):
            for h in range(2):
                for jj in range(2):
                    d = v(la + 4 * a_, 4)
                    b.I(MF, d, v(A1 if h == 0 else A2, 4), v(pb + 4 * k, 4), "0" if (h == 0 and jj == 0) else d)
                    k += 1
        b.I(MF, v(la + 8, 4), v(A1, 4), v(pb + 32, 4), "0")
    dpp = "row_half_mirror row_mask:0x3 bank_mask:0x5"
    if mode == 1:
        b.I("ds_write_b128", v(VQ), v(LACC1, 4))
        b.I("ds_write_b128", v(VQ), v(LACC1 + 4, 4), mods="offset:1024")
        for r in range(4):
            b.I("v_add_f32_dpp", v(Y + r), v(LACC1 + 8 + r), v(LACC1 + 8 + r), mods=dpp)
        b.I("ds_write_b128", v(VQ), v(Y, 4), mods="offset:2048")
        for r in range(4):
            b.I("v_add_f32_dpp", v(T + 12 + r), v(LACC + 8 + r), v(LACC + 8 + r), mods=dpp)
        b.wait(lgkm=0)
        b.barrier()
        return
    b.I("s_mov_b32", s(50), S * D * 2)
    b.I("s_mov_b32", s(51), 0x20000)
    b.I("s_add_u32", s(6), s(S_B), 4 * 1152)
    SC = T + 10
    for (la, e, rx, re, so) in ((LACC1, Y, RX1, RE1, 6), (LACC, T + 12, RX, RE, S_B)):
        for r in range(4):
            b.I("v_add_f32_dpp", v(e + r), v(la + 8 + r), v(la + 8 + r), mods=dpp)
        for i in range(4):
            unpack(b, X + 2 * i, rx + i)
        for i in range(2):
            unpack(b, X + 8 + 2 * i, re + i)
        for i in range(4):
            b.I("v_pk_fma_f32", v(X + 2 * i, 2), v(la + 2 * i, 2), v(SC, 2), v(X + 2 * i, 2), mods="op_sel_hi:[1,0,1]")
        for i in range(2):
            b.I("v_pk_fma_f32", v(X + 8 + 2 * i, 2), v(e + 2 * i, 2), v(SC, 2), v(X + 8 + 2 * i, 2), mods="op_sel_hi:[1,0,1]")
        for i in range(4):
            b.I("v_cvt_pk_bf16_f32", v(rx + i), v(X + 2 * i), v(X + 2 * i + 1))
        for i in range(2):
            b.I("v_cvt_pk_bf16_f32", v(re + i), v(X + 8 + 2 * i), v(X + 8 + 2 * i + 1))
        b.I("v_permlane16_swap_b32", v(rx), v(rx + 2))
        b.I("v_permlane16_swap_b32", v(rx + 1), v(rx + 3))
        b.I("buffer_store_dwordx4", v(rx, 4), v(VQ), IO, s(so), mods="offen " + P["oaux"])
        b.I("buffer_store_dwordx2", v(re, 2), v(VQE), IO, s(so), mods="offen " + P["oaux"])
    b.wait_all()
    ps.at(10)
    ps.dump()
    tl.end(b)
    b.I("s_endpgm")


class PTail(Tail):
    def finish(self, b, role):
        nm, ps = self.name, self.ps
        b.I("s_setprio", 0)
        b.I("s_cmp_lg_u32", s(S_LO), 0)
        b.I("s_cbranch_scc1", f"{nm}_{role}_fin")
        snap = b.snapshot()
        ps.at(0)
        part_flag(b, nm)
        ps.at(1)
        if role == "A":
            gather(b, nm, 1, self.P, ps)
        else:
            lanes(b)
            b.I("buffer_load_dwordx4", v(RX, 4), v(0), WS, s(S_R), mods="offen sc1")
            b.I("buffer_load_dwordx4", v(RE, 4), v(VRE), WS, s(S_R), mods="offen offset:1024 sc1")
            b.I("buffer_load_dwordx4", v(RY, 4), v(0), WS, s(S_R), mods="offen offset:2048 sc1")
            xn_setup(b, 1, LOFF)
            b.I("s_mul_i32", s(6), s(S_W), 3072)
            b.I("s_add_u32", s(6), s(6), HO - 4 * 3072)
            b.I("v_add_u32", v(VQ), s(6), v(0))
            b.I("v_mov_b32", v(T + 10), fhex(OUTSCALE))
            b.wait(vm=0)
            b.barrier()
            b.I("ds_read_b128", v(LACC, 4), v(VQ))
            b.I("ds_read_b128", v(LACC + 4, 4), v(VQ), mods="offset:1024")
            b.I("ds_read_b128", v(T + 12, 4), v(VQ), mods="offset:2048")
            b.wait(lgkm=0)
        b.I("s_branch", f"{nm}_ln1")
        b.restore(snap)
        b.label(f"{nm}_{role}_fin")
        ps.at(8)
        part_flag(b, nm)
        if role == "A":
            gather(b, nm, 2, self.P, ps)
        else:
            b.wait_all()
            ps.dump()
            tl.end(b)
            b.I("s_endpgm")


def ln1(b, name, P, ps):
    b.hist, b.vmq, b.lgq = [], [], []
    b.label(f"{name}_ln1")
    b.nop(2)
    ps.at(4)
    b.I("v_mov_b32", v(7), 0)
    b.I("ds_write_b32", v(V_FW), v(7))
    for i in range(4):
        unpack(b, X + 2 * i, RX + i)
    for i in range(2):
        unpack(b, X + 8 + 2 * i, RE + i)
    SC = T + 10
    for i in range(4):
        b.I("v_pk_fma_f32", v(X + 2 * i, 2), v(LACC + 2 * i, 2), v(SC, 2), v(X + 2 * i, 2), mods="op_sel_hi:[1,0,1]")
    for i in range(2):
        b.I("v_pk_fma_f32", v(X + 8 + 2 * i, 2), v(T + 12 + 2 * i, 2), v(SC, 2), v(X + 8 + 2 * i, 2), mods="op_sel_hi:[1,0,1]")
    for i in range(4):
        unpack(b, Y + 2 * i, RY + i)
    for i in range(2):
        unpack(b, Y + 8 + 2 * i, RE + 2 + i)
    ln_math(b, 1, P, Stamps(b, False))
    ps.at(5)


def k_per(n0, **kw):
    P = dict(DEF)
    P.update(LDEF)
    P.update(dict(gsl=1, oaux="", pst=False))
    P.update(kw)
    b = AB()
    name = "per"
    ps = PSt(b, P["pst"])
    ln_phase(b, n0, 0, P, f"{name}_end")
    b.I("s_branch", f"{name}_pub")
    ln1(b, name, P, ps)
    b.vmq, b.lgq = [], []
    b.label(f"{name}_pub")
    publish(b, name, P)
    ps.at(6)
    b.I("s_cmp_ge_u32", s(S_W), 4)
    b.I("s_cbranch_scc1", f"{name}_B")
    snap = b.snapshot()
    tail = PTail(name, P)
    tail.ps = ps
    tail.after = lambda: ps.at(7)
    ffn_role(b, "A", P, name, tail)
    b.restore(snap)
    b.raw(".p2align 6")
    b.label(f"{name}_B")
    ffn_role(b, "B", P, name, tail)
    b.label(f"{name}_end")
    b.I("s_endpgm")
    return b
```

```python
from k_ffl import *
from k_per import PSt, lanes

PB1, LACC1 = 40, 76
PZ, PA, VHO, VMW, VONE = 230, 232, 233, 234, 235
HO = FFN3_LDS
CNT = HO + 4 * 3072
PER_LDS = CNT + 64
S_FIN, S_MASK, S_PEND = 59, 58, 56
S_EX, S_TM, S_OR, S_RDY, S_N, S_W3 = 20, 22, 24, 25, 26, 27
ABITS, BBITS = 0x8888, 0x88880000
S_HOB, S_FL, S_TH = 22, 23, 24


SKIP = set()


def at2(b, ps, i0, i1, k, ret=False):
    if not ps.on or i0 in SKIP:
        return ""
    op = "s_memrealtime" if ps.on == 2 else "s_memtime"
    t = f"  s_cmp_lg_u32 s{S_FIN}, 0\n  s_cbranch_scc1 st{k}_a\n"
    if i0 is not None:
        t += f"  {op} s[{60 + 2 * i0}:{61 + 2 * i0}]\n"
    t += f"  s_branch st{k}_b\nst{k}_a:\n"
    if i1 is not None:
        t += f"  {op} s[{60 + 2 * i1}:{61 + 2 * i1}]\n"
    t += f"st{k}_b:\n  s_waitcnt lgkmcnt(0)"
    if ret:
        return t + "\n"
    b.raw(t)


POLL0 = f"""  s_waitcnt vmcnt(0)
  @CMP@
  s_nop 1
  s_andn2_b32 s{S_EX}, s{S_EX}, vcc_lo
  s_lshr_b32 s54, vcc_lo, 1
  s_and_b32 s54, s54, vcc_lo
  s_lshr_b32 s55, s54, 2
  s_and_b32 s54, s54, s55
  s_and_b32 s54, s54, 0x11111111
  s_lshl_b32 s54, s54, 3
  v_mov_b32 v{V_T}, s54
  s_mov_b64 exec, 1
  ds_or_rtn_b32 v{V_F}, v{VMW}, v{V_T}
  s_mov_b64 exec, -1
  s_waitcnt lgkmcnt(0)
  v_readfirstlane_b32 s{S_MASK}, v{V_F}
  s_nop 1
  s_or_b32 s{S_MASK}, s{S_MASK}, s54
"""
READ = f"""  ds_read_b32 v{V_F}, v{VMW}
  s_waitcnt lgkmcnt(0)
  v_readfirstlane_b32 s{S_MASK}, v{V_F}
  s_nop 1
"""


def pissue(lab):
    return f"""  s_cmp_eq_u32 s{S_EX}, 0
  s_cbranch_scc1 {lab}
  s_mov_b64 exec, s[{S_EX}:{S_EX + 1}]
  buffer_load_dword v{PZ}, v{PA}, s[8:11], s{S_A} offen sc1
  s_mov_b64 exec, -1
{lab}:
"""


def seam(b, name, P, ps):
    t0, t1 = T, T + 1
    POLL = POLL0.replace("@CMP@", f"v_cmp_eq_u32 vcc, s{P['tag']}, v{PZ}" if P.get("tag") else f"v_cmp_ne_u32 vcc, 0, v{PZ}")
    nm = f"{name}_s"
    b.hist, b.vmq, b.lgq = [], [], []
    b.label(f"{name}_seam")
    b.I("s_setprio", P["sprio"])
    b.I("s_mov_b32", s(S_FIN), s(S_LO))
    at2(b, ps, 0, 8, 0)
    b.I("s_sub_u32", s(7), s(S_LAY), FLG)
    b.I("s_lshl_b32", s(7), s(7), 1)
    b.I("s_lshl_b32", s(6), s(5), 14)
    b.I("s_add_u32", s(7), s(7), s(6))
    b.I("s_add_u32", s(7), s(7), PF2)
    b.I("s_lshl_b32", s(S_A), s(4), 11)
    b.I("s_add_u32", s(S_A), s(S_A), s(7))
    b.I("s_and_b32", s(S_FL), s(2), 15)
    b.I("s_lshl_b32", s(S_FL), s(S_FL), 7)
    b.I("s_add_u32", s(S_FL), s(S_FL), s(7))
    b.I("s_lshl_b32", s(13), s(5), 6)
    b.I("s_add_u32", s(13), s(13), s(4))
    b.I("s_mul_i32", s(13), s(13), 18432)
    b.I("s_add_u32", s(13), s(13), PART)
    b.I("s_add_u32", s(13), s(13), s(S_LO))
    b.I("s_lshl_b32", s(7), s(S_TOK), 5)
    b.I("s_add_u32", s(S_PXS), s(13), s(7))
    b.I("s_add_u32", s(S_P), s(S_PXS), s(7))
    b.I("s_add_u32", s(S_PXS), s(S_PXS), 8192)
    b.I("s_and_b32", s(S_W3), s(S_W), 3)
    b.I("s_lshl_b32", s(S_HOB), s(S_W3), 2)
    b.I("s_lshl_b32", s(S_HOB), 1, s(S_HOB))
    b.I("s_cmp_eq_u32", s(S_W3), 0)
    b.I("s_cselect_b32", s(S_EX), -1, 0)
    b.I("s_mov_b32", s(S_EX + 1), 0)
    lanes(b)
    b.I("v_and_b32", v(PA), 15, v(LANE))
    b.I("v_lshlrev_b32", v(PA), 7, v(PA))
    b.I("v_lshl_add_u32", v(PA), v(GL), 2, v(PA))
    b.I("v_mov_b32", v(PZ), 0)
    b.I("v_mov_b32", v(VMW), CNT + 8)
    b.I("v_mov_b32", v(V_Z), fval(P))
    b.I("v_mov_b32", v(VONE), 1)
    b.I("v_mul_u32_u24", v(VP), 147456, v(G))
    b.I("v_lshl_add_u32", v(VP), v(DS), 10, v(VP))
    b.I("v_lshl_add_u32", v(VP), v(CQ), 4, v(VP))
    b.I("v_and_b32", v(t0), 1, v(DS))
    b.I("v_lshl_add_u32", v(t1), v(t0), 2, v(G))
    b.I("v_mul_u32_u24", v(VPX), 147456, v(t1))
    b.I("v_mul_u32_u24", v(t0), 3, v(t0))
    b.I("v_xor_b32", v(t0), v(t0), v(CQ))
    b.I("v_lshl_add_u32", v(VPX), v(t0), 3, v(VPX))
    b.I("v_lshrrev_b32", v(t0), 1, v(DS))
    b.I("v_mul_u32_u24", v(t0), 9216, v(t0))
    b.I("v_add_u32", v(VPX), v(VPX), v(t0))
    b.I("v_lshlrev_b32", v(PZ + 1), 11, v(LANE))
    b.I("v_mov_b32", v(V_F), CNT)
    b.I("v_mov_b32", v(V_T), P["bh1"] + 8)
    b.raw(f"""  s_cmp_ge_u32 s{S_W}, 4
  s_cbranch_scc0 {nm}_aa
  s_waitcnt vmcnt(0)
  ds_write_b32 v{V_FW}, v{V_T}
  s_branch {nm}_nf
{nm}_aa:
  s_mov_b64 exec, 1
  s_waitcnt vmcnt(0)
  ds_add_rtn_u32 v{V_F}, v{V_F}, v{VONE}
  s_waitcnt lgkmcnt(0)
  v_cmp_eq_u32 vcc, 3, v{V_F}
  s_mov_b64 exec, 0xff
  s_cbranch_vccz {nm}_ab
  buffer_store_dword v{V_Z}, v{PZ + 1}, s[8:11], s{S_FL} offen sc1
{nm}_ab:
  s_mov_b64 exec, -1
{nm}_nf:""")
    at2(b, ps, 1, None, 1)
    b.raw(pissue(nm + "_p0"))
    ra = "sc1"
    b.I("buffer_load_dwordx4", v(RX, 4), v(0), WS, s(S_R), mods="offen " + ra)
    b.I("buffer_load_dwordx4", v(RE, 4), v(VRE), WS, s(S_R), mods="offen offset:1024 " + ra)
    b.I("v_and_b32", v(t1), 15, v(LANE))
    b.I("v_and_b32", v(t0), 1, v(LANE))
    b.I("v_lshlrev_b32", v(t0), 4, v(t0))
    b.I("v_mov_b32", v(T + 2), 0x3f80)
    b.I("v_lshlrev_b32", v(T + 2), v(t0), v(T + 2))
    b.I("v_lshrrev_b32", v(t1), 1, v(t1))
    for r in range(8):
        b.I("v_cmp_eq_u32_e64", s(28 if r % 2 == 0 else 32, 2), r, v(t1))
        if r > 0:
            b.I("v_cndmask_b32_e64", v(A1 + r - 1), 0, v(T + 2), s(28 if (r - 1) % 2 == 0 else 32, 2))
    b.I("v_cndmask_b32_e64", v(A1 + 7), 0, v(T + 2), s(32, 2))
    b.I("s_mul_i32", s(6), s(S_W3), 3072)
    b.I("s_add_u32", s(6), s(6), HO)
    b.I("v_add_u32", v(VHO), s(6), v(0))
    for r in range(4):
        b.I("v_mov_b32", v(T + 12 + r), 0)
        b.I("v_mov_b32", v(Y + r), 0)
    b.I("v_mov_b32", v(T + 10), fhex(OUTSCALE))
    b.I("s_cmp_lg_u32", s(S_FIN), 0)
    b.I("s_cbranch_scc1", f"{nm}_f1")
    snap = b.snapshot()
    b.I("buffer_load_dwordx4", v(RY, 4), v(0), WS, s(S_R), mods="offen offset:2048 " + ra)
    xn_setup(b, 1, LOFF)
    b.I("s_branch", f"{nm}_f2")
    b.restore(snap)
    b.label(f"{nm}_f1")
    b.I("s_load_dwordx2", s(48, 2), s(0, 2), 80)
    b.I("v_and_b32", v(t0), 15, v(LANE))
    b.I("v_lshlrev_b32", v(VQ), 4, v(t0))
    b.I("v_lshl_add_u32", v(VQ), v(GH), 8, v(VQ))
    b.I("v_mul_u32_u24", v(t0), 576, v(GL))
    b.I("v_add_u32", v(VQ), v(VQ), v(t0))
    b.I("v_lshrrev_b32", v(t0), 1, v(DS))
    b.I("v_mul_u32_u24", v(t0), 576, v(t0))
    b.I("v_lshl_add_u32", v(t0), v(CQ), 4, v(t0))
    b.I("v_lshl_add_u32", v(t0), v(GL), 3, v(t0))
    b.I("v_add_u32", v(t0), 512, v(t0))
    b.I("v_and_b32", v(t1), 0x24, v(LANE))
    b.I("v_lshl_add_u32", v(VQE), v(t1), 24, v(t0))
    b.I("s_mov_b32", s(50), S * D * 2)
    b.I("s_mov_b32", s(51), 0x20000)
    b.wait(lgkm=0)
    b.label(f"{nm}_f2")
    b.vmq, b.lgq = [], []
    b.I("s_cmp_ge_u32", s(S_W), 4)
    b.I("s_cbranch_scc1", f"{nm}_B0")

    def kc(a_, h, jj):
        return a_ * 4 + h * 2 + jj, jj * 589824 + a_ * 9216 + h * 4096, 3 + 16 * h + 8 * a_ + 4 * jj

    if P["psta"]:
        at2(b, ps, 6, None, 6)
    b.raw(f"""  s_cmp_lg_u32 s{S_W}, 1
  s_cbranch_scc1 {nm}_Pe
  s_mov_b32 s{S_TH}, {P["bh1"] + 1}
  s_mov_b32 s{S_CNT}, 0x40000
  v_mov_b32 v{V_T}, 4
{nm}_Pl:
  ds_read_b32 v{V_F}, v{V_FR} offset:1024
  s_waitcnt lgkmcnt(0)
{nm}_Pc:
  v_cmp_gt_u32 vcc, s{S_TH}, v{V_F}
  s_cbranch_vccnz {nm}_Pw
  s_mov_b64 exec, 1
  buffer_store_dword v{V_Z}, v{V_T}, s[8:11], s{S_FL} offen sc1
  s_mov_b64 exec, -1
  s_add_u32 s{S_FL}, s{S_FL}, 2048
  s_add_u32 s{S_TH}, s{S_TH}, 1
  s_cmp_le_u32 s{S_TH}, {P["bh1"] + 8}
  s_cbranch_scc1 {nm}_Pc
  s_branch {nm}_Pd
{nm}_Pw:
  s_sleep {P["psl2"]}
  s_sub_u32 s{S_CNT}, s{S_CNT}, 1
  s_cbranch_scc0 {nm}_Pl
{nm}_Pd:
  s_mov_b64 exec, 1
  ds_or_b32 v{VMW}, v{V_T}
  s_mov_b64 exec, -1
{at2(b, ps, 1, None, 7, True)}{nm}_Pe:""")
    gate = f"  s_bitcmp1_b32 s{S_MASK}, 2\n  s_cbranch_scc0 {nm}_A3\n" if P["gateb"] else ""
    txt = f"""  s_mov_b32 s{S_PEND}, {ABITS | 2}
  s_mov_b32 s{S_CNT}, 0x20000
{nm}_Al:
  s_cmp_eq_u32 s{S_EX}, 0
  s_cbranch_scc1 {nm}_Ar
{POLL}  s_branch {nm}_Ag
{nm}_Ar:
{READ}{nm}_Ag:
{gate}  s_and_b32 s{S_RDY}, s{S_MASK}, s{S_PEND}
  s_cbranch_scc0 {nm}_A3
  s_andn2_b32 s{S_PEND}, s{S_PEND}, s{S_RDY}
"""
    u = 0
    for jj in range(2):
        for a_ in range(2):
            k, c, bit = kc(a_, 0, jj)
            txt += f"""  s_bitcmp1_b32 s{S_RDY}, {bit}
  s_cbranch_scc0 {nm}_A{u}
  s_add_u32 s6, s{S_P}, {c}
  buffer_load_dwordx4 v[{PB + 4 * k}:{PB + 4 * k + 3}], v{VP}, s[8:11], s6 offen sc1
  buffer_load_dwordx4 v[{PB1 + 4 * k}:{PB1 + 4 * k + 3}], v{VP}, s[8:11], s6 offen offset:256 sc1
{nm}_A{u}:
"""
            u += 1
    txt += f"""  s_cmp_eq_u32 s{S_PEND}, 2
  s_cbranch_scc1 {nm}_Ad
  s_sleep {P["gsl"]}
{pissue(nm + "_Ap")}  s_sub_u32 s{S_CNT}, s{S_CNT}, 1
  s_cbranch_scc0 {nm}_Al
{nm}_Ad:
"""
    if P["psta"]:
        txt += at2(b, ps, 5, None, 5, True)
    for hh in range(2):
        txt += f"  buffer_load_dwordx2 v[{PB + 32 + 2 * hh}:{PB + 33 + 2 * hh}], v{VPX}, s[8:11], s{S_PXS} offen offset:{512 * hh} sc1\n"
        txt += f"  buffer_load_dwordx2 v[{PB1 + 32 + 2 * hh}:{PB1 + 33 + 2 * hh}], v{VPX}, s[8:11], s{S_PXS} offen offset:{512 * hh + 128} sc1\n"
    txt += f"""  s_mov_b32 s{S_EX}, 0
  s_waitcnt vmcnt(0)"""
    b.raw(txt)
    at2(b, ps, 3, None, 3)
    for (pb, la) in ((PB1, LACC1), (PB, LACC)):
        b.I(MF, v(la + 8, 4), v(A1, 4), v(pb + 32, 4), "0")
        for jj in range(2):
            for a_ in range(2):
                d = v(la + 4 * a_, 4)
                b.I(MF, d, v(A1, 4), v(pb + 4 * kc(a_, 0, jj)[0], 4), "0" if jj == 0 else d)
    dpp = "row_half_mirror row_mask:0x3 bank_mask:0x5"
    for r in range(4):
        b.I("v_add_f32_dpp", v(Y + r), v(LACC1 + 8 + r), v(LACC1 + 8 + r), mods=dpp)
    b.I("ds_write_b128", v(VHO), v(LACC1, 4))
    b.I("ds_write_b128", v(VHO), v(LACC1 + 4, 4), mods="offset:1024")
    b.I("ds_write_b128", v(VHO), v(Y, 4), mods="offset:2048")
    b.I("v_mov_b32", v(V_T), s(S_HOB))
    b.I("s_mov_b64", "exec", 1)
    b.I("ds_or_b32", v(VMW), v(V_T))
    b.I("s_mov_b64", "exec", -1)
    for r in range(4):
        b.I("v_add_f32_dpp", v(T + 12 + r), v(LACC + 8 + r), v(LACC + 8 + r), mods=dpp)
    b.I("s_mov_b32", s(S_PEND), BBITS)
    b.I("s_branch", f"{nm}_B1")
    b.label(f"{nm}_B0")
    b.I("s_or_b32", s(S_PEND), s(S_HOB), BBITS)
    b.label(f"{nm}_B1")
    txt = f"""  s_mov_b32 s{S_CNT}, 0x20000
{nm}_Bl:
  s_cmp_eq_u32 s{S_EX}, 0
  s_cbranch_scc1 {nm}_Br
{POLL}  s_cmp_eq_u32 s{S_EX}, 0
  s_cbranch_scc1 {nm}_Bg
  s_sleep {P["gslb"]}
{pissue(nm + "_Bp")}  s_branch {nm}_Bn
{nm}_Br:
{READ}{nm}_Bg:
  s_and_b32 s{S_RDY}, s{S_MASK}, s{S_PEND}
  s_cbranch_scc0 {nm}_Bs
"""
    u = 0
    for jj in range(2):
        for a_ in range(2):
            k, c, bit = kc(a_, 1, jj)
            txt += f"""  s_bitcmp1_b32 s{S_RDY}, {bit}
  s_cbranch_scc0 {nm}_Bu{u}
  s_add_u32 s6, s{S_P}, {c}
  buffer_load_dwordx4 v[{PB + 4 * k}:{PB + 4 * k + 3}], v{VP}, s[8:11], s6 offen sc1
{nm}_Bu{u}:
"""
            u += 1
    txt += f"""  s_and_b32 s6, s{S_RDY}, 0xffff
  s_cbranch_scc0 {nm}_Bh
  ds_read_b128 v[{LACC}:{LACC + 3}], v{VHO}
  ds_read_b128 v[{LACC + 4}:{LACC + 7}], v{VHO} offset:1024
  ds_read_b128 v[{T + 12}:{T + 15}], v{VHO} offset:2048
{nm}_Bh:
  s_andn2_b32 s{S_PEND}, s{S_PEND}, s{S_RDY}
  s_cbranch_scc0 {nm}_Bd
{nm}_Bs:
  s_sleep {P["lsl"]}
{nm}_Bn:
  s_sub_u32 s{S_CNT}, s{S_CNT}, 1
  s_cbranch_scc0 {nm}_Bl
{nm}_Bd:"""
    b.raw(txt)
    b.hist, b.vmq, b.lgq = [], [], []
    at2(b, ps, 2, 9, 2)
    b.force_wait("vmcnt(4)")
    for i in range(4):
        unpack(b, X + 2 * i, RX + i)
    for i in range(2):
        unpack(b, X + 8 + 2 * i, RE + i)
    for i in range(4):
        unpack(b, Y + 2 * i, RY + i)
    for i in range(2):
        unpack(b, Y + 8 + 2 * i, RE + 2 + i)
    b.force_wait("lgkmcnt(0)")
    SC = T + 10
    for i in range(2):
        b.I("v_pk_fma_f32", v(X + 8 + 2 * i, 2), v(T + 12 + 2 * i, 2), v(SC, 2), v(X + 8 + 2 * i, 2), mods="op_sel_hi:[1,0,1]")
    b.force_wait("vmcnt(0)")
    for jj in range(2):
        for a_ in range(2):
            d = v(LACC + 4 * a_, 4)
            b.I(MF, d, v(A2, 4), v(PB + 4 * kc(a_, 1, jj)[0], 4), d)
    at2(b, ps, 4, None, 4)
    for i in range(4):
        b.I("v_pk_fma_f32", v(X + 2 * i, 2), v(LACC + 2 * i, 2), v(SC, 2), v(X + 2 * i, 2), mods="op_sel_hi:[1,0,1]")
    b.I("s_cmp_lg_u32", s(S_FIN), 0)
    b.I("s_cbranch_scc0", f"{name}_ln1")
    snap = b.snapshot()
    for i in range(6):
        b.I("v_cvt_pk_bf16_f32", v(RX + i), v(X + 2 * i), v(X + 2 * i + 1))
    b.I("v_permlane16_swap_b32", v(RX), v(RX + 2))
    b.I("v_permlane16_swap_b32", v(RX + 1), v(RX + 3))
    b.I("buffer_store_dwordx4", v(RX, 4), v(VQ), IO, s(S_B), mods="offen " + P["oaux"])
    b.I("buffer_store_dwordx2", v(RE, 2), v(VQE), IO, s(S_B), mods="offen " + P["oaux"])
    b.wait_all()
    ps.at(10)
    ps.dump()
    tl.end(b)
    b.I("s_endpgm")
    b.restore(snap)
    b.label(f"{name}_ln1")
    ln_math(b, 1, P, Stamps(b, False))
    if not P["psta"] and not P.get("pl0"):
        ps.at(5)


class PTail(Tail):
    def finish(self, b, role):
        b.I("s_branch", f"{self.name}_seam")


def k_per2(n0, b=None, **kw):
    P = dict(DEF)
    P.update(LDEF)
    P.update(dict(gsl=2, gslb=1, lsl=1, thr=2, sprio=0, oaux="", pst=False, zpub=CNT, psta=False, pern=3, bh1=23, psl2=1, ysl=2, ysl2=1, ycp=4, ypw=0, yspec=False, wdk=8, gateb=False))
    P.update(kw)
    b = b or AB()
    name = "per"
    ps = PSt(b, P["pst"])
    SKIP.clear()
    if P.get("pl0"):
        SKIP.update({1, 3})
    if P.get('fst'):
        SKIP.update({2, 4})
    if P.get("pl0"):
        P["hook0"] = lambda: ps.at(5)
        P["hook1"] = lambda: b.raw("  s_memrealtime s[98:99]\n  s_waitcnt lgkmcnt(0)\n  s_mov_b32 s100, s98")
        P["hook3"] = "  s_memrealtime s[82:83]\n  s_waitcnt lgkmcnt(0)\n  s_mov_b32 s101, s82\n"
        P["hook2"] = lambda: b.raw("  s_memrealtime s[98:99]\n  s_waitcnt lgkmcnt(0)")
    ln_phase(b, n0, 0, P, f"{name}_end")
    if P.get("pl0"):
        ps.at(3)
    b.I("s_branch", f"{name}_pub")
    seam(b, name, P, ps)
    b.vmq, b.lgq = [], []
    b.label(f"{name}_pub")
    publish(b, name, P)
    def l0(i, k):
        b.raw(f"  s_cmp_lg_u32 s{S_LO}, 0\n  s_cbranch_scc1 l0_{k}\n  s_memrealtime s[{60 + 2 * i}:{61 + 2 * i}]\n  s_waitcnt lgkmcnt(0)\nl0_{k}:")
    if P.get("pl0"):
        l0(6, 0)
    elif not P["psta"]:
        ps.at(6)
    b.I("s_cmp_ge_u32", s(S_W), 4)
    b.I("s_cbranch_scc1", f"{name}_B")
    snap = b.snapshot()
    tail = PTail(name, P)
    cnt = [0]

    def after():
        ps.at(7)
        if P.get("pl0"):
            cnt[0] += 1
            l0(1, cnt[0])
    tail.after = after
    ffn_role(b, "A", P, name, tail)
    b.restore(snap)
    b.raw(".p2align 6")
    b.label(f"{name}_B")
    ffn_role(b, "B", P, name, tail)
    b.label(f"{name}_end")
    b.I("s_endpgm")
    return b
```

```python
S, D, F = 2048, 576, 4608
KVT  = 0x0
YB   = 0x240000
X1   = 0x480000
X3   = 0x6C0000
XN   = 0x900000
WGU  = 0xC00000
WD   = WGU + 144*18*4*1024
PART = 0x1C00000
HX   = 0x3000000
FLG  = 0x4200000
KFL  = 0x42F0000
GFL  = 0x42E0000
GFY  = 0x6C0000
QST  = 0x740000
FLG_L = 0x20000
XF   = FLG + 0x10000
PF   = FLG + 0x18000
LOFF = 0x6000000
PF2  = FLG + 0x40000
ZERO_BYTES = 0xC0000
REC  = 0x4400000
STAMP= 0x4300000
WS_BYTES = 0x10000000
import math
C2 = -2.0*math.log2(math.e)*math.sqrt(2.0/math.pi)
C1 = 0.044715*C2
ALPHA = (-C1)**(1.0/3.0)
KP = (1.0/0.044715)*ALPHA*ALPHA
OUTSCALE = 1.0/(ALPHA*ALPHA)
import struct
def f2u(x): return struct.unpack("<I", struct.pack("<f", x))[0]
def fhex(x): return hex(f2u(x))
```

```python
import sys
sys.path.insert(0, "dev")
import tl
tl.ON = "--tl" in sys.argv
from gen import *
for a in sys.argv[1:]:
    if a == "--tl": continue
    nm, _, js = a.partition("=")
    kw = eval("dict(" + js + ")") if js else {}
    f = kw.pop('f', {}); z = kw.pop('z', {})
    txt, ks = full6(front_kw=kw, ffn_kw=f)
    open(f"dev/{nm}{'_tl' if tl.ON else ''}.s", "w").write(txt)
```

```python
from ab import *
from lay import *
import tl
from k_ffn4 import *
from k_ffn4 import ffn_role, DEF

YS_LDS, XT = 0, 16384
LANE, CQ, DS, G, GL, GH = 5, 90, 91, 92, 93, 94
VP, VPX, VQ, VQE = 96, 97, 98, 99
PB = 100
RX, RE, RY = 136, 140, 144
A1, A2 = 148, 152
LACC = 156
X, Y, T = 168, 180, 192
XO, VXS, VXR, VXW, VXE = 208, 216, 217, 218, 219
VYD, YA0, YA1, YAE = 220, 221, 222, 223
PFD, PFA = 224, 228
VRE = 229
S_P, S_PXS, S_R, S_XFO, S_XFG, S_XS, S_TOK, S_A, S_B, S_LAY = 40, 41, 42, 43, 44, 45, 46, 47, 52, 53
S_LO = 57
USE = dict(x=1, p=1, h=1, a=0)
IO = s(48, 4)
WS = s(8, 4)
VALID = 0x0F0F0F0F


def pf_code(b, name, first, last):
    b.raw(f"  s_getpc_b64 s[54:55]\n{name}_pc:")
    b.raw(f"  s_add_u32 s54, s54, {first}-{name}_pc\n  s_addc_u32 s55, s55, 0" if True else "")
    b.I("s_lshr_b32", s(56), s(2), 3)
    b.I("s_lshl_b32", s(56), s(56), 13)
    b.I("v_add_u32", v(PFA), s(56), v(PFA))
    b.raw(f"  v_min_u32 v{PFA}, {last}-{first}-16, v{PFA}")
    b.I("global_load_dwordx4", v(PFD, 4), v(PFA), s(54, 2))


def ffn_setup(b):
    b.I("v_add_u32", v(1), 0x10000, v(0))
    b.I("v_add_u32", v(2), 0x20000, v(0))
    b.I("v_and_b32", v(6), 15, v(5))
    b.I("v_lshrrev_b32", v(7), 4, v(5))
    b.I("v_lshl_add_u32", v(6), v(6), 2, v(7))
    b.I("v_lshlrev_b32", v(VS), 4, v(6))
    b.I("v_lshlrev_b32", v(VS2), 3, v(6))
    b.I("s_lshl_b32", s(13), s(4), 1)
    b.I("s_add_u32", s(13), s(13), s(12))
    b.I("s_xor_b32", s(14), s(13), 1)
    b.I("s_mul_i32", s(6), s(13), 9)
    b.I("s_add_u32", s(7), s(6), s(S_W))
    b.I("s_mul_i32", s(S_GU), s(7), 18 * 4096)
    b.I("s_add_u32", s(S_GU), s(S_GU), WGU)
    b.I("s_add_u32", s(7), s(6), 8)
    b.I("s_mul_i32", s(S_GUX), s(7), 18 * 4096)
    b.I("s_lshl_b32", s(7), s(S_W), 10)
    b.I("s_add_u32", s(S_GUX), s(S_GUX), s(7))
    b.I("s_add_u32", s(S_GUX), s(S_GUX), WGU)
    b.I("s_and_b32", s(19), s(S_W), 3)
    b.I("s_lshl_b32", s(S_XL), s(19), 11)
    b.I("s_lshl_b32", s(S_W8), s(19), 13)
    b.I("s_mul_i32", s(S_XG), s(5), 147456)
    b.I("s_add_u32", s(S_XG), s(S_XG), s(S_XL))
    b.I("s_add_u32", s(S_XG), s(S_XG), XN)
    if USE["x"]:
        b.I("s_add_u32", s(S_XG), s(S_XG), s(S_LO))
    b.I("s_mul_i32", s(15), s(12), 18 * 1024)
    b.I("s_add_u32", s(15), s(15), WD)
    b.I("s_lshl_b32", s(16), s(S_W), 11)
    b.I("s_and_b32", s(17), s(S_W), 1)
    b.I("s_lshl_b32", s(17), s(17), 10)
    b.I("s_add_u32", s(17), s(17), 16 * 1024)
    for (sm, sx, f) in ((S_DO, S_DOX, 13), (S_DP, S_DPX, 14)):
        b.I("s_mul_i32", s(7), s(f), 9 * 36 * 1024)
        b.I("s_add_u32", s(7), s(7), s(15))
        b.I("s_add_u32", s(sm), s(7), s(16))
        b.I("s_add_u32", s(sx), s(7), s(17))
    if USE["a"]:
        b.I("s_lshl_b32", s(7), s(5), 4)
        b.I("s_add_u32", s(7), s(7), s(14))
        b.I("s_mul_i32", s(7), s(7), 73728)
        b.I("s_add_u32", s(7), s(7), HX)
    else:
        b.I("s_lshl_b32", s(7), s(5), 3)
        b.I("s_add_u32", s(7), s(7), s(4))
        b.I("s_mul_i32", s(7), s(7), 8 * 18432)
        b.I("s_mul_i32", s(15), s(12), 9 * 1024)
        b.I("s_add_u32", s(7), s(7), s(15))
        b.I("s_add_u32", s(7), s(7), PART)
    if USE["p"]:
        b.I("s_add_u32", s(7), s(7), s(S_LO))
    b.I("s_lshl_b32", s(15), s(S_W), 10)
    b.I("s_add_u32", s(S_PM), s(7), s(15))
    b.I("s_and_b32", s(15), s(S_W), 1)
    b.I("s_lshl_b32", s(15), s(15), 9)
    b.I("s_add_u32", s(S_PX), s(7), s(15))
    b.I("s_add_u32", s(S_PX), s(S_PX), 8192)
    b.I("s_cmp_ge_u32", s(S_W), 4)
    b.I("s_cselect_b32", s(17), 5 * 8192, 0)
    b.I("s_cselect_b32", s(16), 10 * 8192, 0)
    b.I("s_add_u32", s(17), s(17), s(S_W8))
    b.I("s_add_u32", s(16), s(16), s(S_W8))
    b.I("v_add_u32", v(V_HW), s(16), v(0))
    b.I("s_lshl_b32", s(7), s(5), 4)
    for (sh, shx, sf, f) in ((S_HO, S_HOX, S_FO, 13), (S_HP, S_HPX, S_FP, 14)):
        b.I("s_add_u32", s(15), s(7), s(f))
        b.I("s_lshl_b32", s(sf), s(15), 8)
        b.I("s_add_u32", s(sf), s(sf), s(S_LAY))
        b.I("s_lshl_b32", s(16), s(S_W if sf == S_FO else 19), 5)
        b.I("s_add_u32", s(sf), s(sf), s(16))
        b.I("s_mul_i32", s(15), s(15), 73728)
        b.I("s_add_u32", s(15), s(15), HX)
        if USE["h"]:
            b.I("s_add_u32", s(15), s(15), s(S_LO))
        b.I("s_add_u32", s(sh), s(15), s(17 if sh == S_HO else S_W8))
        b.I("s_add_u32", s(shx), s(15), s(S_XL))
        b.I("s_add_u32", s(shx), s(shx), 32768)
    b.I("s_lshl_b32", s(7), s(S_W), 2)
    b.I("s_add_u32", s(7), s(7), 4 * 8192)
    b.I("v_add_u32", v(V_HWX), s(7), v(0))
    b.I("v_and_b32", v(6), 3, v(5))
    b.I("v_lshlrev_b32", v(6), 8, v(6))
    b.I("v_add_u32", v(V_FR), LDS_FX, v(6))
    b.I("s_cmp_eq_u32", s(S_W), 2)
    b.I("s_cselect_b32", s(7), 1, 0)
    b.I("s_cmp_eq_u32", s(S_W), 3)
    b.I("s_cselect_b32", s(7), 1, s(7))
    b.I("s_lshl_b32", s(S_H4), s(7), 10)
    b.I("s_mul_i32", s(7), s(7), 9216 if USE["a"] else 18432)
    b.I("s_sub_u32", s(S_PMH), s(S_PM), s(7))
    b.I("s_add_u32", s(S_PM), s(S_PM), s(7))
    b.I("s_add_u32", s(S_PX), s(S_PX), s(7))


def xn_setup(b, layer, LO=0):
    b.I("s_mov_b32", s(S_LO), layer * LO)
    b.I("s_mov_b32", s(S_LAY), FLG + layer * FLG_L)
    b.I("s_lshl_b32", s(S_XFO), s(2), 7)
    b.I("s_add_u32", s(S_XFO), s(S_XFO), XF + layer * FLG_L)
    b.I("s_lshl_b32", s(S_XFG), s(5), 11)
    b.I("s_add_u32", s(S_XFG), s(S_XFG), XF + layer * FLG_L)
    b.I("s_mul_i32", s(S_XS), s(5), 147456)
    b.I("s_lshl_b32", s(7), s(4), 10)
    b.I("s_add_u32", s(S_XS), s(S_XS), s(7))
    b.I("s_lshl_b32", s(7), s(12), 7)
    b.I("s_add_u32", s(S_XS), s(S_XS), s(7))
    b.I("s_lshl_b32", s(7), s(S_W), 14)
    b.I("s_add_u32", s(S_XS), s(S_XS), s(7))
    b.I("s_add_u32", s(S_XS), s(S_XS), XN + layer * LO * USE['x'])
    t0, t1 = T, T + 1
    b.I("v_lshrrev_b32", v(t0), 3, v(LANE))
    b.I("v_and_b32", v(t1), 7, v(LANE))
    b.I("v_xor_b32", v(t1), v(t1), v(t0))
    b.I("v_lshlrev_b32", v(VXS), 4, v(t1))
    b.I("v_and_b32", v(t1), 3, v(t0))
    b.I("v_lshl_add_u32", v(VXS), v(t1), 8, v(VXS))
    b.I("v_lshl_add_u32", v(VXS), v(GH), 13, v(VXS))
    b.I("s_lshl_b32", s(7), s(S_W), 10)
    b.I("s_add_u32", s(7), s(7), XT)
    b.I("v_add_u32", v(VXR), s(7), v(0))
    b.I("v_and_b32", v(t0), 15, v(LANE))
    b.I("v_lshl_add_u32", v(t0), v(GH), 4, v(t0))
    b.I("v_mad_u32_u24", v(t0), v(GL), 36, v(t0))
    b.I("v_and_b32", v(t1), 7, v(t0))
    b.I("v_xor_b32", v(t1), s(S_W), v(t1))
    b.I("v_lshlrev_b32", v(t1), 4, v(t1))
    b.I("v_lshl_add_u32", v(VXW), v(t0), 7, v(t1))
    b.I("v_add_u32", v(VXW), XT, v(VXW))
    b.I("v_lshrrev_b32", v(t0), 1, v(DS))
    b.I("v_mad_u32_u24", v(t0), v(t0), 36, v(CQ))
    b.I("v_and_b32", v(t1), 7, v(t0))
    b.I("v_xor_b32", v(t1), s(S_W), v(t1))
    b.I("v_lshlrev_b32", v(t1), 4, v(t1))
    b.I("v_lshl_add_u32", v(VXE), v(t0), 7, v(t1))
    b.I("v_lshl_add_u32", v(VXE), v(GL), 3, v(VXE))
    b.I("v_add_u32", v(VXE), XT + 32 * 128, v(VXE))


def allreduce2(b, x0, x1, t0, t1):
    for m in ("quad_perm:[1,0,3,2]", "quad_perm:[2,3,0,1]", "row_half_mirror", "row_mirror"):
        for x in (x0, x1):
            b.I("v_add_f32_dpp", v(x), v(x), v(x), mods=m + " row_mask:0xf bank_mask:0xf")
    for op in ("v_permlane16_swap_b32", "v_permlane32_swap_b32"):
        b.I("v_mov_b32", v(t0), v(x0))
        b.I("v_mov_b32", v(t1), v(x1))
        b.I(op, v(t0), v(x0))
        b.I(op, v(t1), v(x1))
        b.I("v_add_f32", v(x0), v(x0), v(t0))
        b.I("v_add_f32", v(x1), v(x1), v(t1))


def rbf(b, x):
    b.I("v_cvt_pk_bf16_f32", v(x), v(x), v(x))
    b.I("v_lshlrev_b32", v(x), 16, v(x))


def stats(b, scale=None):
    p0, p1, q0, q1 = T, T + 2, T + 4, T + 6
    R, M = T + 8, T + 10
    b.I("v_pk_add_f32", v(p0, 2), v(X, 2), v(X + 2, 2))
    b.I("v_pk_mul_f32", v(q0, 2), v(X, 2), v(X, 2))
    b.I("v_pk_add_f32", v(p1, 2), v(X + 4, 2), v(X + 6, 2))
    b.I("v_pk_mul_f32", v(q1, 2), v(X + 2, 2), v(X + 2, 2))
    b.I("v_pk_add_f32", v(p0, 2), v(p0, 2), v(X + 8, 2))
    b.I("v_pk_fma_f32", v(q0, 2), v(X + 4, 2), v(X + 4, 2), v(q0, 2))
    b.I("v_pk_add_f32", v(p1, 2), v(p1, 2), v(X + 10, 2))
    b.I("v_pk_fma_f32", v(q1, 2), v(X + 6, 2), v(X + 6, 2), v(q1, 2))
    b.I("v_pk_fma_f32", v(q0, 2), v(X + 8, 2), v(X + 8, 2), v(q0, 2))
    b.I("v_pk_fma_f32", v(q1, 2), v(X + 10, 2), v(X + 10, 2), v(q1, 2))
    b.I("v_pk_add_f32", v(p0, 2), v(p0, 2), v(p1, 2))
    b.I("v_pk_add_f32", v(q0, 2), v(q0, 2), v(q1, 2))
    b.I("v_add_f32", v(M), v(p0), v(p0 + 1))
    b.I("v_add_f32", v(R), v(q0), v(q0 + 1))
    allreduce2(b, M, R, T, T + 1)
    b.I("v_mul_f32", v(M), fhex(-1.0 / 576), v(M))
    b.I("v_mul_f32", v(R), fhex(1.0 / 576), v(R))
    b.I("v_fma_f32", v(R), "-" + v(M), v(M), v(R))
    b.I("v_cvt_pk_bf16_f32", v(M), v(M), v(M))
    b.I("v_max_f32", v(R), 0, v(R))
    b.I("v_lshlrev_b32", v(M), 16, v(M))
    rbf(b, R)
    b.I("v_add_f32", v(R), fhex(1e-5), v(R))
    rbf(b, R)
    b.I("v_sqrt_f32", v(R), v(R))
    rbf(b, R)
    b.I("v_rcp_f32", v(R), v(R))
    if scale is not None:
        b.I("v_mul_f32", v(R), fhex(scale), v(R))
    b.I("v_mul_f32", v(M), v(M), v(R))
    return R, M


def unpack(b, dst, src):
    b.I("v_lshlrev_b32", v(dst), 16, v(src))
    b.I("v_and_b32", v(dst + 1), 0xffff0000, v(src))


def ln_phase(b, name, mode, P, endlab):
    st = Stamps(b, P["stamps"] and mode != 2, base=60)
    fuse = P.get("fuse")
    if fuse:
        b.hist, b.vmq, b.lgq = [], [], []
        b.label(name)
        b.I("s_setprio", 0)
        b.I("s_load_dwordx2", s(48, 2), s(0, 2), 0)
        b.I("v_mov_b32", v(7), P["gcnt"] + 8)
        b.I("ds_read_b64", v(8, 2), v(7))
        b.I("v_mbcnt_lo_u32_b32", v(0), -1, 0)
        b.I("v_mbcnt_hi_u32_b32", v(0), -1, v(0))
        b.I("s_lshl_b32", s(6), s(S_W), 6)
        b.I("v_add_u32", v(0), s(6), v(0))
    else:
        b.raw(f".globl {name}\n.p2align 8\n.type {name},@function\n{name}:")
        tl.start(b)
        b.I("s_load_dwordx2", s(8, 2), s(0, 2), 96)
        if mode != 1:
            b.I("s_load_dwordx2", s(48, 2), s(0, 2), 0 if mode == 0 else 80)
        b.I("s_cmp_ge_u32", s(2), 256)
        b.I("s_cbranch_scc1", endlab)
    st()
    if P.get("hook0"):
        P["hook0"]()
    if P.get("body"):
        st.on = False
    b.I("v_lshrrev_b32", v(4), 6, v(0))
    b.I("v_and_b32", v(LANE), 63, v(0))
    if not fuse:
        b.I("v_readfirstlane_b32", s(S_W), v(4))
    b.I("v_lshlrev_b32", v(PFA), 4, v(0))
    b.I("v_lshlrev_b32", v(6), 2, v(0))
    b.I("v_lshlrev_b32", v(0), 4, v(LANE))
    b.I("v_and_b32", v(CQ), 3, v(LANE))
    b.I("v_bfe_u32", v(DS), v(LANE), 2, 2)
    b.I("v_lshrrev_b32", v(G), 4, v(LANE))
    b.I("v_and_b32", v(GL), 1, v(G))
    b.I("v_lshrrev_b32", v(GH), 1, v(G))
    b.I("s_mov_b32", s(10), WS_BYTES)
    b.I("s_mov_b32", s(11), 0x20000)
    b.I("s_and_b32", s(4), s(2), 7)
    b.I("s_bfe_u32", s(12), s(2), 0x10003)
    b.I("s_lshr_b32", s(5), s(2), 4)
    b.I("s_lshl_b32", s(S_TOK), s(12), 3)
    b.I("s_add_u32", s(S_TOK), s(S_TOK), s(S_W))
    b.I("s_lshl_b32", s(S_R), s(2), 3)
    b.I("s_add_u32", s(S_R), s(S_R), s(S_W))
    b.I("s_mul_i32", s(S_R), s(S_R), 3072)
    b.I("s_add_u32", s(S_R), s(S_R), REC)
    t0, t1 = T, T + 1
    b.I("v_and_b32", v(t0), 0x24, v(LANE))
    b.I("v_lshrrev_b32", v(t1), 1, v(LANE))
    b.I("v_and_b32", v(t1), 12, v(t1))
    b.I("v_or_b32", v(t1), v(t1), v(CQ))
    b.I("v_lshlrev_b32", v(t1), 4, v(t1))
    b.I("v_lshl_add_u32", v(VRE), v(t0), 26, v(t1))
    if mode != 0:
        b.I("v_mul_u32_u24", v(VP), 147456, v(G))
        b.I("v_lshl_add_u32", v(VP), v(DS), 10, v(VP))
        b.I("v_lshl_add_u32", v(VP), v(CQ), 4, v(VP))
        b.I("s_lshl_b32", s(6), s(5), 6)
        b.I("s_add_u32", s(6), s(6), s(4))
        b.I("s_mul_i32", s(6), s(6), 18432)
        b.I("s_add_u32", s(6), s(6), PART)
        b.I("s_lshl_b32", s(7), s(S_TOK), 5)
        b.I("s_add_u32", s(S_PXS), s(6), s(7))
        b.I("s_add_u32", s(S_P), s(S_PXS), s(7))
        b.I("s_add_u32", s(S_PXS), s(S_PXS), 8192)
        b.I("v_and_b32", v(t0), 1, v(DS))
        b.I("v_lshl_add_u32", v(t1), v(t0), 2, v(G))
        b.I("v_mul_u32_u24", v(VPX), 147456, v(t1))
        b.I("v_mul_u32_u24", v(t0), 3, v(t0))
        b.I("v_xor_b32", v(t0), v(t0), v(CQ))
        b.I("v_lshl_add_u32", v(VPX), v(t0), 3, v(VPX))
        b.I("v_lshrrev_b32", v(t0), 1, v(DS))
        b.I("v_mul_u32_u24", v(t0), 9216, v(t0))
        b.I("v_add_u32", v(VPX), v(VPX), v(t0))
    if mode != 1:
        def qaddr():
            b.I("v_and_b32", v(t0), 15, v(LANE))
            b.I("v_lshlrev_b32", v(VQ), 4, v(t0))
            b.I("v_lshl_add_u32", v(VQ), v(GH), 8, v(VQ))
            b.I("v_mul_u32_u24", v(t0), 576, v(GL))
            b.I("v_add_u32", v(VQ), v(VQ), v(t0))
            b.I("v_lshrrev_b32", v(t0), 1, v(DS))
            b.I("v_mul_u32_u24", v(t0), 576, v(t0))
            b.I("v_lshl_add_u32", v(t0), v(CQ), 4, v(t0))
            b.I("v_lshl_add_u32", v(t0), v(GL), 3, v(t0))
            b.I("v_add_u32", v(t0), 512, v(t0))
            b.I("v_and_b32", v(t1), 0x24, v(LANE))
            b.I("v_lshl_add_u32", v(VQE), v(t1), 24, v(t0))
            b.I("s_mov_b32", s(50), S * D * 2)
            b.I("s_mov_b32", s(51), 0x20000)
            b.I("s_lshl_b32", s(S_A), s(5), 3)
            b.I("s_add_u32", s(S_A), s(S_A), s(4))
            b.I("s_lshl_b32", s(S_B), s(S_A), 4)
            b.I("s_add_u32", s(S_B), s(S_B), s(S_TOK))
            b.I("s_mul_i32", s(S_B), s(S_B), 1152)
        if mode == 0:
            qaddr()
        if mode == 0 and P.get("ytag"):
            b.I("s_lshl_b32", s(S_A), s(S_A), 8)
            b.I("s_lshl_b32", s(7), s(12), 7)
            b.I("s_add_u32", s(S_A), s(S_A), s(7))
            b.I("s_add_u32", s(S_A), s(S_A), YB)
        elif mode == 0:
            b.I("v_xor_b32", v(t0), v(CQ), v(G))
            b.I("v_lshlrev_b32", v(t0), 4, v(t0))
            b.I("v_lshrrev_b32", v(t1), 2, v(LANE))
            BS, PS = (128, P["ystr"]) if P.get("ystr") else (18432, 128)
            if P.get("ystr"):
                b.I("v_mul_u32_u24", v(VYD), PS, v(t1))
                b.I("v_add_u32", v(VYD), v(VYD), v(t0))
            else:
                b.I("v_lshl_add_u32", v(VYD), v(t1), 7, v(t0))
            b.I("s_mul_i32", s(S_A), s(S_A), BS)
            b.I("s_lshl_b32", s(7), s(12), 6)
            b.I("s_add_u32", s(S_A), s(S_A), s(7))
            b.I("s_add_u32", s(S_A), s(S_A), YB)
            if P.get("ystr"):
                b.I("s_mul_i32", s(7), s(S_W), 16 * PS)
            else:
                b.I("s_lshl_b32", s(7), s(S_W), 11)
            b.I("s_add_u32", s(6), s(S_A), s(7))
            b.I("s_add_u32", s(S_A), s(S_A), 128 * PS)
            b.I("s_lshl_b32", s(7), s(S_W), 10)
    b.wait(lgkm=0)
    if fuse:
        b.I("v_readfirstlane_b32", s(P["tag"]), v(8))
        b.I("v_readfirstlane_b32", s(P["tag"] + 1), v(9))
    st()
    la = P["laux"]
    if mode == 0:
        b.I("buffer_load_dwordx4", v(RX, 4), v(VQ), IO, s(S_B), mods="offen")
        b.I("buffer_load_dwordx2", v(RE, 2), v(VQE), IO, s(S_B), mods="offen")

        def ydma(sa, sb):
            ya = " sc1" if fuse else ""
            b.I("s_cmp_lg_u32", s(S_W), 0)
            b.I("s_cbranch_scc1", f"{name}_y8")
            b.raw(f"  s_mov_b32 m0, {YS_LDS + 8192}\n  s_nop 0\n  buffer_load_dwordx4 v{VYD}, s[8:11], s{S_A} offen{ya} lds")
            b.label(f"{name}_y8")
            b.I("s_add_u32", "m0", s(sb), YS_LDS)
            b.I("buffer_load_dwordx4", v(VYD), WS, s(sa), mods=f"offen{ya} lds", tag="y")
        if fuse and P.get("ytag"):
            tg = f"s[{P['tag']}:{P['tag'] + 1}]"
            MK, OF = [18, 20, 22, 24, 26], [15, 16, 17, 28, 29]
            PS = P["ystr"]
            a0, a1, fa, FZ = PB + 20, PB + 21, PB + 24, PB + 25
            b.I("s_and_b32", s(7), s(S_W), 3)
            b.I("s_mul_i32", s(13), s(7), 8 * PS)
            b.I("v_lshrrev_b32", v(a0), 3, v(LANE))
            b.I("v_and_b32", v(a1), 7, v(LANE))
            b.I("v_lshl_add_u32", v(fa), v(a0), 5, v(a1))
            b.I("v_lshlrev_b32", v(fa), 7, v(fa))
            b.I("s_and_b32", s(6), s(2), P["ycp"] - 1)
            b.I("s_mul_i32", s(14), s(6), 18432)
            b.I("s_lshl_b32", s(6), s(7), 10)
            b.I("s_add_u32", s(14), s(14), s(6))
            b.I("s_add_u32", s(14), s(14), GFY)
            b.I("s_cmp_lt_u32", s(7), 2)
            b.I("s_cselect_b64", s(MK[4], 2), -1, 0)
            b.I("s_mov_b64", s(32, 2), s(MK[4], 2))
            b.raw(f"""  s_cmp_ge_u32 s{S_W}, 4
  s_cbranch_scc1 {name}_y0
  s_and_b32 exec_hi, s26, 0xff
  buffer_load_dword v{FZ}, v{fa}, s[8:11], s14 offen sc1
  s_mov_b64 exec, -1
{name}_y0:""")
            b.I("s_add_u32", s(OF[0]), s(S_A), s(13))
            for m in range(1, 5):
                b.I("s_add_u32", s(OF[m]), s(OF[0]), m * 32 * PS)
            for m in range(4):
                b.I("s_mov_b64", s(MK[m], 2), -1)
            b.I("v_mul_u32_u24", v(VYD), PS, v(a0))
            b.I("v_lshl_add_u32", v(VYD), v(a1), 4, v(VYD))
            b.I("s_lshl_b32", s(6), s(7), 1)
            b.I("v_add_u32", v(a1 + 1), s(6), v(GH))
            b.I("v_and_b32", v(a1 + 1), 3, v(a1 + 1))
            b.I("v_lshrrev_b32", v(a1 + 2), 1, v(a1))
            b.I("v_xor_b32", v(a1 + 1), v(a1 + 1), v(a1 + 2))
            b.I("v_lshlrev_b32", v(a1 + 1), 4, v(a1 + 1))
            b.I("v_lshl_add_u32", v(a1 + 1), v(a0), 6, v(a1 + 1))
            b.I("v_and_b32", v(a1), 1, v(a1))
            b.I("v_lshl_add_u32", v(a1), v(a1), 3, v(a1 + 1))
            b.I("s_lshl_b32", s(6), s(7), 9)
            b.I("s_add_u32", s(6), s(6), P["ys"])
            b.I("v_add_u32", v(a1), s(6), v(a1))

            def yloads(k):
                txt = ""
                for m in range(5):
                    txt += f"""  s_mov_b64 exec, s[{MK[m]}:{MK[m] + 1}]
  s_cbranch_execz {name}_ys{k}{m}
  buffer_load_dwordx4 v[{PB + 4 * m}:{PB + 4 * m + 3}], v{VYD}, s[8:11], s{OF[m]} offen sc1
{name}_ys{k}{m}:
"""
                return txt + "  s_mov_b64 exec, -1\n"

            def ypre():
                skip = f"  s_cmp_lt_u32 s2, 144\n  s_cbranch_scc1 {name}_y2\n" if P["yspec"] else ""
                b.raw(f"""  s_cmp_ge_u32 s{S_W}, 4
  s_cbranch_scc1 {name}_y3
{skip}  s_and_b32 exec_hi, s26, 0xff
  s_mov_b32 s{S_CNT}, 0x20000
{name}_y1:
  v_cmp_ne_u32 vcc, s{P["tag"]}, v{FZ}
  s_cbranch_vccz {name}_y2
  s_mov_b64 exec, vcc
  s_sleep {P["ysl"]}
  buffer_load_dword v{FZ}, v{fa}, s[8:11], s14 offen sc1
  s_waitcnt vmcnt(0)
  s_sub_u32 s{S_CNT}, s{S_CNT}, 1
  s_cbranch_scc0 {name}_y1
{name}_y2:
{P.get("hook3", "")}{yloads(0)}{name}_y3:""")
            P["ypre"] = ypre

            def ywait():
                txt = f"""  s_cmp_ge_u32 s{S_W}, 4
  s_cbranch_scc1 {name}_yh
  s_mov_b32 s{S_CNT}, 0x20000
{name}_yl:
  s_waitcnt vmcnt(0)
"""
                for m in range(5):
                    txt += f"""  s_mov_b64 exec, s[{MK[m]}:{MK[m] + 1}]
  v_cmp_ne_u64 s[{MK[m]}:{MK[m] + 1}], {tg}, v[{PB + 4 * m + 2}:{PB + 4 * m + 3}]
"""
                txt += f"""  s_mov_b64 exec, -1
  s_nop 1
  s_or_b64 vcc, s[18:19], s[20:21]
  s_or_b64 vcc, vcc, s[22:23]
  s_or_b64 vcc, vcc, s[24:25]
  s_or_b64 vcc, vcc, s[26:27]
  s_cbranch_scc0 {name}_yd
  s_sleep {P["ysl2"]}
{yloads(1)}  s_sub_u32 s{S_CNT}, s{S_CNT}, 1
  s_cbranch_scc0 {name}_yl
  s_waitcnt vmcnt(0)
{name}_yd:"""
                b.raw(txt)
                if P.get("hook2"):
                    P["hook2"]()
                for m in range(4):
                    b.I("ds_write_b64", v(a1), v(PB + 4 * m, 2), mods=f"offset:{2048 * m}")
                b.I("s_mov_b64", "exec", s(32, 2))
                b.I("ds_write_b64", v(a1), v(PB + 16, 2), mods=f"offset:{2048 * 4}")
                b.I("s_mov_b64", "exec", -1)
                b.wait(lgkm=0)
                b.I("s_branch", f"{name}_yn")
                txt = f"{name}_yh:\n"
                if P.get("wdef"):
                    txt += f"""  s_cmp_eq_u32 s39, 0
  s_cbranch_scc1 {name}_yn
  v_mov_b32 v{a0}, {P["gcnt"]}
  s_mov_b32 s{S_CNT}, 0x40000
{name}_wt:
  ds_read_b32 v{a1}, v{a0}
  s_waitcnt lgkmcnt(0)
  v_cmp_gt_u32 vcc, 4, v{a1}
  s_cbranch_vccz {name}_wu
  s_sleep 2
  s_sub_u32 s{S_CNT}, s{S_CNT}, 1
  s_cbranch_scc0 {name}_wt
{name}_wu:
"""
                    if P.get("hook2"):
                        txt += "  s_memrealtime s[98:99]\n  s_waitcnt lgkmcnt(0)\n"
                    for r in range(2):
                        if r:
                            txt += f"  s_cmp_eq_u32 s39, 1\n  s_cbranch_scc1 {name}_yn\n"
                        txt += f"  s_add_u32 s6, s{37 + r}, {36 * 1024}\n"
                        for kl in range(2):
                            for t in range(4):
                                o = 16 + 32 * r + (kl * 4 + t) * 4
                                txt += f"  buffer_store_dwordx4 v[{o}:{o + 3}], v0, s[8:11], s{6 if kl else 37 + r} offen offset:{t * 1024} sc1\n"
                b.raw(txt + f"{name}_yn:")
            P["ywait"] = ywait
        elif fuse:
            b.I("s_mov_b32", s(13), s(6))
            b.I("s_mov_b32", s(14), s(7))

            def wout(a0, a1):
                txt = f"""  s_cmp_eq_u32 s39, 0
  s_cbranch_scc1 {name}_yn
  v_mov_b32 v{a0}, {P["gcnt"]}
  s_mov_b32 s{S_CNT}, 0x40000
{name}_wt:
  ds_read_b32 v{a1}, v{a0}
  s_waitcnt lgkmcnt(0)
  v_cmp_gt_u32 vcc, {4 + 256 * P.get("wak", 0)}, v{a1}
  s_cbranch_vccz {name}_wu
  s_sleep 2
  s_sub_u32 s{S_CNT}, s{S_CNT}, 1
  s_cbranch_scc0 {name}_wt
{name}_wu:
"""
                if P.get("wsl"):
                    txt += f"  s_sleep {P['wsl']}\n"
                if P.get("hook3"):
                    txt += P["hook3"]
                for r in range(2):
                    if r:
                        txt += f"  s_cmp_eq_u32 s39, 1\n  s_cbranch_scc1 {name}_yn\n"
                    txt += f"  s_add_u32 s6, s{37 + r}, {36 * 1024}\n"
                    for kl in range(2):
                        for t in range(4):
                            o = 16 + 32 * r + (kl * 4 + t) * 4
                            txt += f"  buffer_store_dwordx4 v[{o}:{o + 3}], v0, s[8:11], s{6 if kl else 37 + r} offen offset:{t * 1024} sc1\n"
                return txt

            def ywait2():
                Z, NP = PFD, P["ynp"]
                YS = P["ys"]
                ld = lambda i: f"  s_mov_b64 exec, s[18:19]\n  buffer_load_dword v{Z + i}, v{PFA}, s[8:11], s15 offen sc1\n"
                txt = f"""  s_cmp_lt_u32 s{S_W}, 4
  s_cbranch_scc1 {name}_yp
{wout(Z, Z + 1)}  s_branch {name}_yn
{name}_yp:
  v_and_b32 v{PFA}, 15, v{LANE}
  v_lshl_add_u32 v{PFA}, v{G}, 6, v{PFA}
  v_lshlrev_b32 v{PFA}, 7, v{PFA}
  s_and_b32 s15, s2, {P["ncp"] - 1}
  s_mul_i32 s15, s15, 18432
  s_lshl_b32 s6, s{S_W}, 11
  s_add_u32 s15, s15, s6
  s_add_u32 s15, s15, {GFY}
  s_mov_b32 s18, -1
  s_cmp_eq_u32 s{S_W}, 0
  s_cselect_b32 s19, 0xffff, 0
  s_mov_b32 s{S_CNT}, 0x20000
"""
                for i in range(NP - 1):
                    txt += ld(i) + f"  s_sleep {P['ysl']}\n"
                txt += f"{name}_yl:\n"
                for i in range(NP):
                    txt += ld((i + NP - 1) % NP) + f"""  s_waitcnt vmcnt({NP - 1})
  v_cmp_ne_u32 vcc, s{P["tag"]}, v{Z + i}
  s_cbranch_vccz {name}_yd
  s_mov_b64 s[18:19], vcc
  s_sleep {P["ysl"]}
"""
                txt += f"""  s_sub_u32 s{S_CNT}, s{S_CNT}, 1
  s_cbranch_scc0 {name}_yl
{name}_yd:
  s_mov_b64 exec, -1
"""
                if P.get("hook2"):
                    txt += "  s_memrealtime s[98:99]\n  s_waitcnt lgkmcnt(0)\n"
                txt += f"""  s_add_u32 m0, s14, {YS}
  s_add_u32 s6, s13, {64 * 128}
  buffer_load_dwordx4 v{VYD}, s[8:11], s13 offen sc1 lds
  s_add_u32 m0, s14, {YS + 4096}
  s_cmp_lg_u32 s{S_W}, 0
  buffer_load_dwordx4 v{VYD}, s[8:11], s6 offen sc1 lds
  s_cbranch_scc1 {name}_y8
  s_mov_b32 m0, {YS + 8192}
  s_nop 0
  buffer_load_dwordx4 v{VYD}, s[8:11], s{S_A} offen sc1 lds
{name}_y8:
  s_waitcnt vmcnt(0)
{name}_yn:"""
                b.raw(txt)

            def ywait():
                Z = PFD
                F0, FS = (YB + 16384, P["ystr"]) if P.get("ystr") else (GFL, 128)
                if P.get("ncp"):
                    F0 = GFY
                txt = ""
                if P.get("wdef"):
                    txt += f"  s_cmp_lt_u32 s{S_W}, 4\n  s_cbranch_scc1 {name}_yp\n{wout(Z, Z + 1)}  s_branch {name}_yn\n{name}_yp:\n"
                wk = P.get("wak", 0)
                sig = f"  s_mov_b64 exec, 4\n  ds_add_u32 v{Z + 3}, v{PFA}\n  s_mov_b64 exec, -1\n"
                if wk:
                    txt += f"  v_mov_b32 v{Z + 3}, {P['gcnt']}\n  v_mul_u32_u24 v{PFA}, 128, v{LANE}\n"
                    if wk == 4:
                        txt += f"  s_cmp_eq_u32 s{S_W}, {P['ypw']}\n  s_cbranch_scc1 {name}_yq\n  s_waitcnt vmcnt(0)\n{sig}  s_branch {name}_yn\n{name}_yq:\n"
                    if wk == 3:
                        txt += f"  s_cmp_eq_u32 s{S_W}, {P['ypw']}\n  s_cbranch_scc1 {name}_yq\n  s_waitcnt vmcnt(0)\n{sig}  s_branch {name}_yn\n{name}_yq:\n"
                txt += f"""  s_cmp_lg_u32 s{S_W}, {P["ypw"]}
  s_cbranch_scc1 {name}_yn
  v_mul_u32_u24 v{PFA}, {FS}, v{LANE}
  s_and_b32 s15, s2, {P.get("ncp", 1) - 1}
  s_mul_i32 s15, s15, 18432
  s_add_u32 s15, s15, {F0}
  s_add_u32 s16, s15, {64 * FS}
  s_add_u32 s17, s15, {128 * FS}
  s_mov_b64 s[18:19], -1
  s_mov_b64 s[20:21], -1
  s_mov_b64 s[22:23], 0xffff
  s_mov_b32 s{S_CNT}, 0x20000
{name}_yl:
"""
                for i in range(3):
                    txt += f"""  s_mov_b64 exec, s[{18 + 2 * i}:{19 + 2 * i}]
  s_cbranch_execz {name}_ys{i}
  buffer_load_dword v{Z + i}, v{PFA}, s[8:11], s{15 + i} offen sc1
{name}_ys{i}:
"""
                txt += "  s_waitcnt vmcnt(0)\n"
                if wk in (1, 4):
                    txt += f"  s_cmp_lg_u32 s{S_CNT}, 0x20000\n  s_cbranch_scc1 {name}_yr\n{sig}{name}_yr:\n"
                for i in range(3):
                    txt += f"""  s_mov_b64 exec, s[{18 + 2 * i}:{19 + 2 * i}]
  v_cmp_ne_u32 s[{18 + 2 * i}:{19 + 2 * i}], s{P["tag"]}, v{Z + i}
"""
                txt += f"""  s_mov_b64 exec, -1
  s_nop 1
  s_or_b64 vcc, s[18:19], s[20:21]
  s_or_b64 vcc, vcc, s[22:23]
  s_cbranch_scc0 {name}_yn
  s_sleep {P["ysl"]}
  s_sub_u32 s{S_CNT}, s{S_CNT}, 1
  s_cbranch_scc0 {name}_yl
{name}_yn:"""
                b.raw(txt)
                b.barrier()
                for i in range(P.get("dly", 0)):
                    b.raw("  s_sleep 127")
                if P.get("hook2"):
                    P["hook2"]()
                if P.get("wdef"):
                    PS = P.get("ystr") or 128
                    b.raw(f"""  s_cmp_ge_u32 s{S_W}, 4
  s_cbranch_scc1 {name}_y9
  s_cmp_lg_u32 s{S_W}, 0
  s_cbranch_scc1 {name}_y8
  s_mov_b32 m0, {YS_LDS + 8192}
  s_nop 0
  buffer_load_dwordx4 v{VYD}, s[8:11], s{S_A} offen sc1 lds
{name}_y8:
  s_add_u32 m0, s14, {YS_LDS}
  s_add_u32 s6, s13, {64 * PS}
  buffer_load_dwordx4 v{VYD}, s[8:11], s13 offen sc1 lds
  s_add_u32 m0, s14, {YS_LDS + 4096}
  s_nop 0
  buffer_load_dwordx4 v{VYD}, s[8:11], s6 offen sc1 lds
  s_waitcnt vmcnt(0)
{name}_y9:""")
                else:
                    ydma(13, 14)
            P["ywait"] = ywait2 if P.get("ynp") else ywait
        else:
            ydma(6, 7)
    elif P.get("exp"):
        b.I("v_lshrrev_b32", v(VP), 5, v(LANE))
        b.I("v_and_b32", v(VPX), 31, v(LANE))
        b.I("v_lshlrev_b32", v(VPX), 4, v(VPX))
        b.I("v_lshl_add_u32", v(VP), v(VP), 10, v(VPX))
        b.I("s_mul_i32", s(6), s(S_W), 147456 - 64)
        b.I("s_add_u32", s(S_P), s(S_P), s(6))
        b.I("s_mul_i32", s(7), s(S_W), 9216)
        for k in range(9):
            b.I("s_add_u32", s(6), s(S_P), k * 2048)
            if P["exp"] == 1:
                b.I("buffer_load_dwordx4", v(PB + 4 * k, 4), v(VP), WS, s(6), mods="offen " + la)
            else:
                b.I("s_add_u32", "m0", s(7), k * 1024)
                b.I("buffer_load_dwordx4", v(VP), WS, s(6), mods="offen " + la + " lds")
        b.I("buffer_load_dwordx4", v(RX, 4), v(0), WS, s(S_R), mods="offen")
        b.I("buffer_load_dwordx2", v(RE, 2), v(0), WS, s(S_R), mods="offen offset:1024")
    else:
        k = 0
        for a_ in range(2):
            for h in range(2):
                for jj in range(2):
                    c = jj * 589824 + a_ * 9216 + h * 4096
                    if c:
                        b.I("s_add_u32", s(6 + (k & 1)), s(S_P), c)
                    b.I("buffer_load_dwordx4", v(PB + 4 * k, 4), v(VP), WS, s(6 + (k & 1)) if c else s(S_P), mods="offen " + la)
                    k += 1
        for h in range(2):
            b.I("buffer_load_dwordx2", v(PB + 32 + 2 * h, 2), v(VPX), WS, s(S_PXS), mods=f"offen offset:{512 * h} " + la)
        b.I("buffer_load_dwordx4", v(RX, 4), v(0), WS, s(S_R), mods="offen")
        if mode == 1:
            b.I("buffer_load_dwordx4", v(RE, 4), v(VRE), WS, s(S_R), mods="offen offset:1024")
            b.I("buffer_load_dwordx4", v(RY, 4), v(0), WS, s(S_R), mods="offen offset:2048")
        else:
            b.I("buffer_load_dwordx2", v(RE, 2), v(VRE), WS, s(S_R), mods="offen offset:1024")
    if P.get("pf") and mode != 2:
        vq = list(b.vmq)
        b.raw(f"  s_cmp_ge_u32 s2, {P['pfn'] * 8}\n  s_cbranch_scc1 {name}_npf")
        pf_code(b, name, *P["pf"])
        b.vmq = vq
        b.label(f"{name}_npf")
    if mode != 2:
        b.I("v_mov_b32", v(7), 0)
        b.I("v_add_u32", v(V_FW), LDS_FX, v(6))
        b.I("ds_write_b32", v(V_FW), v(7))
        xn_setup(b, mode)
    if mode == 2:
        qaddr()
    if mode == 0:
        b.I("s_lshr_b32", s(6), s(S_W), 1)
        b.I("s_and_b32", s(7), s(S_W), 1)
        b.I("s_lshl_b32", s(7), s(7), 3)
        b.I("s_add_u32", s(7), s(7), P.get("ys", YS_LDS))
        b.I("v_lshl_add_u32", v(t0), v(CQ), 1, v(GL))
        b.I("v_lshl_add_u32", v(t1), v(DS), 3, v(t0))
        b.I("v_lshl_add_u32", v(t1), v(GH), 5, v(t1))
        b.I("v_bfe_u32", v(YA1), v(t1), 2, 2)
        b.I("v_xor_b32", v(YA1), s(6), v(YA1))
        b.I("v_lshlrev_b32", v(YA1), 4, v(YA1))
        b.I("v_lshl_add_u32", v(YA0), v(t1), 6, v(YA1))
        b.I("v_add_u32", v(YA0), s(7), v(YA0))
        b.I("v_xor_b32", v(YA1), 32, v(YA0))
        b.I("v_lshrrev_b32", v(t1), 1, v(DS))
        b.I("v_mad_u32_u24", v(t1), v(t1), 36, v(CQ))
        b.I("v_lshl_add_u32", v(t1), v(t1), 1, v(GL))
        b.I("v_bfe_u32", v(YAE), v(t1), 2, 2)
        b.I("v_xor_b32", v(YAE), s(6), v(YAE))
        b.I("v_lshlrev_b32", v(YAE), 4, v(YAE))
        b.I("v_lshl_add_u32", v(YAE), v(t1), 6, v(YAE))
        b.I("v_add_u32", v(YAE), s(7), v(YAE))
        b.I("v_mov_b32", v(RE + 2), 0)
        b.I("v_mov_b32", v(RE + 3), 0)
    else:
        b.I("v_and_b32", v(t1), 15, v(LANE))
        b.I("v_mov_b32", v(T + 2), 0x3f80)
        b.I("v_mov_b32", v(T + 3), 0x3f800000)
        for r in range(4):
            for (AR, off) in ((A1, 0), (A2, 8)):
                b.I("v_cmp_eq_u32", "vcc", off + 2 * r, v(t1))
                b.I("v_cndmask_b32", v(AR + r), 0, v(T + 2), "vcc")
                b.I("v_cmp_eq_u32", "vcc", off + 2 * r + 1, v(t1))
                b.I("v_cndmask_b32", v(AR + r), v(AR + r), v(T + 3), "vcc")
        for r in range(4):
            b.I("v_mov_b32", v(T + 12 + r), 0)
        b.I("v_mov_b32", v(T + 10), fhex(OUTSCALE))
    if not P.get("sty"):
        st()
    if mode == 0 and fuse:
        b.I("s_and_b32", s(6), s(S_W), 4)
        b.I("s_add_u32", s(7), s(6), P["gcnt"])
        b.I("v_mov_b32", v(8), s(7))
        b.I("v_mov_b32", v(9), 1)
        b.I("v_mov_b32", v(10), s(P["tag"]))
        b.I("v_mov_b32", v(11), 0)
        b.I("s_lshl_b32", s(6), s(6), 13)
        b.I("s_lshl_b32", s(7), s(2), 7)
        b.I("s_add_u32", s(6), s(6), s(7))
        b.I("s_add_u32", s(6), s(6), GFL)
        if P.get("ystr") and not P.get("ytag"):
            b.I("s_mul_i32", s(7), s(2), P["ystr"])
            b.I("s_add_u32", s(7), s(7), YB + 16384)
            b.I("s_cmp_lt_u32", s(S_W), 4)
            b.I("s_cselect_b32", s(6), s(7), s(6))
        if P.get("ncp"):
            b.I("s_lshl_b32", s(6), s(2), 7)
            b.I("s_add_u32", s(6), s(6), GFY)
            b.I("v_mul_u32_u24", v(11), 18432, v(LANE))
            if P.get("rlne"):
                b.I("s_cmp_ge_u32", s(S_W), 4)
                b.I("s_mov_b32", s(30), 1 << 20)
                b.I("s_cselect_b32", s(30), s(30), (3 << 16) | ((1 << P["ncp"]) - 1))
                b.I("s_cmp_ge_u32", s(2), 144)
                b.I("s_cselect_b32", s(30), (7 << 16) | 1, s(30))
                b.I("s_cselect_b32", s(7), GFL + 0x8000 - GFY, 0)
                b.I("s_add_u32", s(6), s(6), s(7))
                b.I("s_cmp_ge_u32", s(2), 144)
                b.I("s_cselect_b32", s(7), 4, 0)
                b.I("s_add_u32", s(7), s(7), P["gcnt"])
                b.I("v_mov_b32", v(8), s(7))
            if P.get("hg"):
                b.I("s_cmp_ge_u32", s(S_W), 4)
                b.I("s_cselect_b32", s(7), GFL - GFY, 0)
                b.I("s_add_u32", s(6), s(6), s(7))
                b.I("s_cmp_ge_u32", s(S_W), 4)
                b.I("s_cselect_b32", s(30), 1, (1 << P["ncp"]) - 1)
        b.wait(vm=0, lgkm=0)
        b.force_wait("vmcnt(0)")
        if P.get("wdef") and P.get("ytag"):
            if not P.get("wtrig"):
                b.raw(f"""  s_cmp_ge_u32 s{S_W}, 4
  s_cbranch_scc1 {name}_g1
  s_mov_b64 exec, 1
  ds_add_u32 v8, v9
  s_mov_b64 exec, -1
{name}_g1:""")
        elif P.get("rlne"):
            b.raw(f"""  s_bfe_u32 s7, s30, 0x10014
  s_cbranch_scc1 {name}_g1
  s_mov_b64 exec, 1
  ds_add_rtn_u32 v8, v8, v9
  s_lshr_b32 s7, s30, 16
  s_waitcnt lgkmcnt(0)
  v_and_b32 v8, 0xff, v8
  v_cmp_eq_u32 vcc, s7, v8
  s_cbranch_vccz {name}_g0
  s_and_b32 exec_lo, s30, 0xffff
  buffer_store_dword v10, v11, s[8:11], s6 offen sc1
{name}_g0:
  s_mov_b64 exec, -1
{name}_g1:""")
        else:
            if P.get("ytag"):
                b.raw(f"  s_cmp_lt_u32 s{S_W}, 4\n  s_cbranch_scc1 {name}_g1")
            elif P.get("wdef") and not P.get("hg"):
                b.raw(f"  s_cmp_ge_u32 s{S_W}, 4\n  s_cbranch_scc1 {name}_g1")
            b.raw(f"""  s_cmp_ge_u32 s2, 144
  s_cbranch_scc1 {name}_g1
  s_mov_b64 exec, 1
  ds_add_rtn_u32 v8, v8, v9
  s_waitcnt lgkmcnt(0)
  v_and_b32 v8, 0xff, v8
  v_cmp_eq_u32 vcc, 3, v8
  s_cbranch_vccz {name}_g0
  s_mov_b32 exec_lo, {"s30" if P.get("hg") else (1 << P.get("ncp", 1)) - 1}
  buffer_store_dword v10, v11, s[8:11], s6 offen sc1
{name}_g0:
  s_mov_b64 exec, -1
{name}_g1:""")
        if P.get("hook1"):
            P["hook1"]()
        if P.get("ytag"):
            P["ypre"]()
    if mode == 0:
        b.I("v_permlane16_swap_b32", v(RX), v(RX + 2))
        b.I("v_permlane16_swap_b32", v(RX + 1), v(RX + 3))
    else:
        k = 0
        for a_ in range(2):
            for h in range(2):
                for jj in range(2):
                    d = v(LACC + 4 * a_, 4)
                    b.I(MF, d, v(A1 if h == 0 else A2, 4), v(PB + 4 * k, 4), "0" if (h == 0 and jj == 0) else d)
                    k += 1
        b.I(MF, v(LACC + 8, 4), v(A1, 4), v(PB + 32, 4), "0")
    for i in range(4):
        unpack(b, X + 2 * i, RX + i)
    for i in range(2):
        unpack(b, X + 8 + 2 * i, RE + i)
    if mode == 1:
        for i in range(4):
            unpack(b, Y + 2 * i, RY + i)
        for i in range(2):
            unpack(b, Y + 8 + 2 * i, RE + 2 + i)
    if mode != 0:
        SC = T + 10
        for i in range(4):
            b.I("v_pk_fma_f32", v(X + 2 * i, 2), v(LACC + 2 * i, 2), v(SC, 2), v(X + 2 * i, 2), mods="op_sel_hi:[1,0,1]")
        for r in range(4):
            b.I("v_add_f32_dpp", v(T + 12 + r), v(LACC + 8 + r), v(LACC + 8 + r), mods="row_half_mirror row_mask:0x3 bank_mask:0x5")
        for i in range(2):
            b.I("v_pk_fma_f32", v(X + 8 + 2 * i, 2), v(T + 12 + 2 * i, 2), v(SC, 2), v(X + 8 + 2 * i, 2), mods="op_sel_hi:[1,0,1]")
    st()
    if mode == 2:
        for i in range(6):
            b.I("v_cvt_pk_bf16_f32", v(RX + i), v(X + 2 * i), v(X + 2 * i + 1))
        b.I("v_permlane16_swap_b32", v(RX), v(RX + 2))
        b.I("v_permlane16_swap_b32", v(RX + 1), v(RX + 3))
        b.I("buffer_store_dwordx4", v(RX, 4), v(VQ), IO, s(S_B), mods="offen")
        b.I("buffer_store_dwordx2", v(RE, 2), v(VQE), IO, s(S_B), mods="offen")
        b.wait_all()
        tl.end(b)
        return st
    ln_math(b, mode, P, st)
    return st


def ln_math(b, mode, P, st):
    R, B = stats(b)
    if P.get("sty") == 1:
        st()
    if mode == 0 and P.get("fuse"):
        P["ywait"]()
    if mode == 0:
        b.wait_tag_vm("y")
    if P.get("sty") == 2:
        st()
    if mode == 0:
        b.barrier()
        b.I("ds_read_b64", v(RY, 2), v(YA0))
        b.I("ds_read_b64", v(RY + 2, 2), v(YA1), mods=f"offset:{72 * 64}")
        b.I("s_mov_b64", "exec", VALID)
        b.I("ds_read_b64", v(RE + 2, 2), v(YAE), mods=f"offset:{64 * 64}")
        b.I("s_mov_b64", "exec", -1)
    for i in range(6):
        b.I("v_pk_fma_f32", v(LACC + 2 * i, 2), v(X + 2 * i, 2), v(R, 2), v(B, 2), mods="op_sel_hi:[1,0,0]")
    if mode == 0:
        for i in range(4):
            unpack(b, Y + 2 * i, RY + i)
        for i in range(2):
            unpack(b, Y + 8 + 2 * i, RE + 2 + i)
    for i in range(6):
        b.I("v_pk_fma_f32", v(X + 2 * i, 2), v(LACC + 2 * i, 2), v(Y + 2 * i, 2), v(X + 2 * i, 2))
    for i in range(6):
        b.I("v_cvt_pk_bf16_f32", v(RX + i), v(X + 2 * i), v(X + 2 * i + 1))
    ra = P["raux"]
    if P["rec"] == 0:
        b.I("buffer_store_dwordx4", v(RX, 4), v(0), WS, s(S_R), mods="offen " + ra)
        b.I("buffer_store_dwordx4", v(RE, 4), v(VRE), WS, s(S_R), mods="offen offset:1024 " + ra)
    if mode == 0:
        b.I("buffer_store_dwordx4", v(RY, 4), v(0), WS, s(S_R), mods="offen offset:2048 " + ra)
    R, B = stats(b, scale=ALPHA)
    for i in range(6):
        b.I("v_pk_fma_f32", v(LACC + 2 * i, 2), v(X + 2 * i, 2), v(R, 2), v(B, 2), mods="op_sel_hi:[1,0,0]")
    for i in range(6):
        b.I("v_cvt_pk_bf16_f32", v(XO + i), v(LACC + 2 * i), v(LACC + 2 * i + 1))
    b.I("v_permlane16_swap_b32", v(XO), v(XO + 2))
    b.I("v_permlane16_swap_b32", v(XO + 1), v(XO + 3))
    b.I("s_mov_b64", "exec", VALID)
    b.I("ds_write_b64", v(VXE), v(XO + 4, 2))
    b.I("s_mov_b64", "exec", -1)
    b.I("ds_write_b128", v(VXW), v(XO, 4))
    b.wait(lgkm=0)
    st()


def publish(b, name, P):
    b.barrier()
    if P.get("zpub"):
        b.I("v_mov_b32", v(7), 0)
        b.I("ds_write_b32", v(V_FW), v(7))
        b.I("v_mov_b32", v(8), 0)
        b.I("v_mov_b32", v(9), 0)
        b.I("v_mov_b32", v(10), 0)
        b.I("v_mov_b32", v(11), 0)
        b.I("v_mov_b32", v(6), P["zpub"])
        b.I("ds_write_b128", v(6), v(8, 4))
    if P.get("fuse"):
        hg = f"  v_cmp_gt_u32 vcc, {18 * 16}, v0\n  v_subrev_u32 v{V_Z}, 0x8000, v{V_T}\n  v_cndmask_b32 v{V_T}, v{V_T}, v{V_Z}, vcc\n" if P.get("hg") else ""
        b.raw(f"""  v_lshlrev_b32 v{V_T}, 6, v0
  v_add_u32 v{V_T}, 0x8000, v{V_T}
{hg}  s_lshl_b32 s15, s4, 7
  s_add_u32 s15, s15, {GFL}
  s_cmp_lg_u32 s{S_W}, 5
  s_cbranch_scc1 {name}_wn
  s_cmp_lg_u32 s{S_LO}, 0
  s_cbranch_scc1 {name}_wn
  s_mov_b64 exec, {0xfffc0000 if P.get("wdef") and not P.get("hg") else 0xffffffff}
  buffer_load_dword v{V_Z}, v{V_T}, s[8:11], s15 offen sc1
  s_mov_b64 exec, -1
{name}_wn:""")
    b.I("ds_read_b128", v(XO, 4), v(VXR))
    b.raw(f"""  s_cmp_lg_u32 s{S_W}, 0
  s_cbranch_scc1 {name}_n8
  ds_read_b128 v[{XO + 4}:{XO + 7}], v{VXR} offset:8192
  s_add_u32 s6, s{S_XS}, {8 * 16384}
  s_waitcnt lgkmcnt(0)
  buffer_store_dwordx4 v[{XO + 4}:{XO + 7}], v{VXS}, s[8:11], s6 offen sc1
{name}_n8:""")
    b.I("buffer_store_dwordx4", v(XO, 4), v(VXS), WS, s(S_XS), mods="offen sc1", tag="xn")
    if P["rec"] >= 1:
        ra = P["raux"]
        if P["rec"] == 2:
            b.barrier()
        b.I("buffer_store_dwordx4", v(RX, 4), v(0), WS, s(S_R), mods="offen " + ra)
        b.I("buffer_store_dwordx4", v(RE, 4), v(VRE), WS, s(S_R), mods="offen offset:1024 " + ra)
    b.wait_tag_vm("xn")
    if P.get("fuse"):
        b.raw(f"""  s_cmp_lg_u32 s{S_W}, 5
  s_cbranch_scc1 {name}_wm
  s_cmp_lg_u32 s{S_LO}, 0
  s_cbranch_scc1 {name}_wm
  s_mov_b64 exec, {0xfffc0000 if P.get("wdef") and not P.get("hg") else 0xffffffff}
  s_mov_b32 s{S_CNT}, 0x20000
{name}_wl:
  {notset_t(P, V_Z)}
  s_cbranch_vccz {name}_we
  buffer_load_dword v{V_Z}, v{V_T}, s[8:11], s15 offen sc1
  s_waitcnt vmcnt(0)
  s_sub_u32 s{S_CNT}, s{S_CNT}, 1
  s_cbranch_scc0 {name}_wl
{name}_we:
  s_mov_b64 exec, -1
{name}_wm:""")
    if P["stamps"] and not P.get("body"):
        b.I("s_memtime", s(70, 2))
    b.barrier()
    b.raw(f"""  s_cmp_lg_u32 s{S_W}, 0
  s_cbranch_scc1 {name}_nf
  v_mov_b32 v{V_T}, 0
  v_mov_b32 v{V_Z}, {fval(P)}
  s_mov_b64 exec, 1
  buffer_store_dword v{V_Z}, v{V_T}, s[8:11], s{S_XFO} offen sc1
  s_mov_b64 exec, -1
{name}_nf:""")
    if P.get("wdef"):
        b.raw(f"""  s_cmp_lg_u32 s{S_W}, 1
  s_cbranch_scc1 {name}_nd
  s_cmp_lg_u32 s{S_LO}, 0
  s_cbranch_scc1 {name}_nd
  s_cmp_ge_u32 s2, 144
  s_cbranch_scc1 {name}_nd
  v_mov_b32 v{V_T}, 0
  v_mov_b32 v{V_Z}, {fval(P)}
  s_lshl_b32 s6, s2, 7
  s_add_u32 s6, s6, {GFL + 0x8000}
  s_mov_b64 exec, 1
  buffer_store_dword v{V_Z}, v{V_T}, s[8:11], s6 offen sc1
  s_mov_b64 exec, -1
{name}_nd:""")
    ffn_setup(b)


class Tail:
    def __init__(self, name, P):
        self.name, self.P, self.k = name, P, 0


    def handoff(self, b, role, slow, P):
        nm = f"{self.name}_{role}_h"
        if role == "A":
            pass
        elif P["npoll"] > 1:
            NPL = P["npoll"]
            R0 = 232
            ld = lambda i: f"  buffer_load_dword v{R0 + i}, v{V_T}, s[8:11], s{S_XFG} offen sc1\n"
            txt = f"""  s_cmp_lg_u32 s{S_W}, 4
  s_cbranch_scc1 {nm}_np
  v_lshlrev_b32 v{V_T}, 3, v0
  s_mov_b64 exec, 0xffff
  s_mov_b32 s{S_CNT}, 0x20000
"""
            for i in range(NPL - 1):
                txt += ld(i) + f"  s_sleep {P['psl']}\n"
            txt += f"{nm}_pl:\n"
            for i in range(NPL):
                txt += ld((i + NPL - 1) % NPL) + f"""  s_waitcnt vmcnt({NPL - 1})
  v_cmp_eq_u32 vcc, 0, v{R0 + i}
  s_cbranch_vccz {nm}_pe
  s_sleep {P['psl']}
"""
            txt += f"""  s_sub_u32 s{S_CNT}, s{S_CNT}, 1
  s_cbranch_scc0 {nm}_pl
{nm}_pe:
  s_mov_b64 exec, -1
{nm}_np:"""
            b.raw(txt)
        else:
            b.raw(f"""  s_cmp_lg_u32 s{S_W}, 4
  s_cbranch_scc1 {nm}_np
  v_lshlrev_b32 v{V_T}, 3, v0
  s_mov_b64 exec, 0xffff
  s_mov_b32 s{S_CNT}, 0x40000
{nm}_pl:
  buffer_load_dword v{V_Z}, v{V_T}, s[8:11], s{S_XFG} offen sc1
  s_waitcnt vmcnt(0)
  {notset_t(P, V_Z)}
  s_cbranch_vccz {nm}_pe
  s_sleep {P["psl"]}
  s_sub_u32 s{S_CNT}, s{S_CNT}, 1
  s_cbranch_scc0 {nm}_pl
{nm}_pe:
  s_mov_b64 exec, -1
{nm}_np:""")
        b.barrier()


LDEF = dict(rec=2, npoll=1, laux="", raux="sc1", pf=None, pfn=9, stbase=60, stn0=6)


def k_ffl(n0, n1, **kw):
    P = dict(DEF)
    P.update(LDEF)
    P.update(kw)
    if P.get("body"):
        P["stn0"] = 1
    b = AB()
    name = "ffl"
    ln_phase(b, n0, 0, P, f"{name}_end")
    b.I("s_branch", f"{name}_pub")
    b.hist, b.vmq, b.lgq = [], [], []
    ln_phase(b, n1, 1, P, f"{name}_end")
    b.vmq, b.lgq = [], []
    b.label(f"{name}_pub")
    publish(b, name, P)
    b.I("s_cmp_ge_u32", s(S_W), 4)
    b.I("s_cbranch_scc1", f"{name}_B")
    b.label(f"{name}_A")
    snap = b.snapshot()
    tail = Tail(name, P)
    ffn_role(b, "A", P, name, tail)
    b.restore(snap)
    b.raw(".p2align 6")
    b.label(f"{name}_B")
    ffn_role(b, "B", P, name, tail)
    b.label(f"{name}_end")
    b.I("s_endpgm")
    return b


def k_lnz(name, **kw):
    P = dict(DEF)
    P.update(LDEF)
    P.update(kw)
    b = AB()
    ln_phase(b, name, 2, P, f"{name}_end")
    b.label(f"{name}_end")
    b.I("s_endpgm")
    return b
```

```python
from ab import *
from lay import *
import tl
from k_front import St, conv_order
MF = "v_mfma_f32_16x16x32_bf16"

HS = 4416
UB = 4 * HS
WSZ = UB + 4672
YL = 4 * WSZ
HLB = YL + 16640
SY = HLB + 4 * 9216
FRONT_LDS = SY + 64
NCONV = 144


class RL:
    GL, DL, GW, GR, DW, DR = 207, 208, 209, 210, 211, 212
    GW2 = [209, 213, 214, 215]
    LN = 216
    US = 48

    def __init__(self, b, P, units, st, name):
        self.b, self.P, self.units, self.st, self.name, self.nl = b, P, units, st, name, 0
        self.exit = P["fuse"]
        self.touch = False
        self.defer = False
        self.mid = False

    def setup(self, idx, ldsbase):
        b = self.b
        T = 217
        b.I("v_and_b32", v(T), 63, v(0))
        b.I("v_lshlrev_b32", v(self.LN), 4, v(T))
        b.I("v_lshrrev_b32", v(T + 1), 3, v(T))
        b.I("v_and_b32", v(T + 2), 7, v(T))
        b.I("v_lshrrev_b32", v(T + 3), 4, v(T))
        b.I("v_bfe_u32", v(T + 4), v(T), 2, 2)
        b.I("v_lshl_add_u32", v(T + 3), v(T + 3), 3, v(T + 4))
        b.I("v_and_b32", v(T + 4), 3, v(T))
        tys = {u[0] for u in self.units}
        def mk(dst, m, r1, r2, sh, base):
            b.I("v_mul_u32_u24", v(dst), m, v(r1))
            b.I("v_lshl_add_u32", v(dst), v(r2), sh, v(dst))
            if base:
                b.I("v_add_u32", v(dst), s(ldsbase), v(dst))
        if "g" in tys:
            mk(self.GL, 9216, T + 1, T + 2, 4, 0)
            mk(self.GW, 264, T + 1, T + 2, 5, 1)
            mk(self.GR, 264, T + 3, T + 4, 5, 1)
            for i in range(1, 4):
                b.I("v_add_u32", v(self.GW2[i]), i * 8 * 264, v(self.GW))
        if "d" in tys:
            mk(self.DL, 1152, T + 1, T + 2, 4, 0)
            mk(self.DW, 144, T + 1, T + 2, 4, 1)
            mk(self.DR, 144, T + 3, T + 4, 4, 1)
        b.I("s_and_b32", s(24), s(2), 7)
        b.I("s_mul_i32", s(24), s(24), 9)
        for r, (ty, first, cnt, full) in enumerate(self.units):
            so, do = self.US + 2 * r, self.US + 1 + 2 * r
            b.I("s_add_u32", s(27), s(idx), first)
            b.I("s_mul_i32", s(25), s(27), 7282)
            b.I("s_lshr_b32", s(25), s(25), 16)
            b.I("s_mul_i32", s(26), s(25), 9)
            b.I("s_sub_u32", s(26), s(27), s(26))
            if ty == "g":
                b.I("s_add_u32", s(26), s(26), s(24))
                b.I("s_mul_i32", s(so), s(25), 32 * 9216)
                b.I("s_lshl_b32", s(27), s(26), 7)
                b.I("s_add_u32", s(so), s(so), s(27))
                b.I("s_mul_i32", s(27), s(26), 36)
                b.I("s_add_u32", s(27), s(27), s(25))
                b.I("s_lshl_b32", s(27), s(27), 12)
                b.I("s_add_u32", s(do), s(27), WGU)
            else:
                b.I("s_add_u32", s(25), s(25), s(24))
                b.I("s_mul_i32", s(so), s(25), 64 * 1152)
                b.I("s_lshl_b32", s(27), s(26), 7)
                b.I("s_add_u32", s(so), s(so), s(27))
                b.I("s_mul_i32", s(27), s(25), 18)
                b.I("s_add_u32", s(27), s(27), s(26))
                b.I("s_lshl_b32", s(27), s(27), 12)
                b.I("s_add_u32", s(do), s(27), WD)

    def srds(self):
        b = self.b
        b.I("s_mov_b32", s(16), s(14))
        b.I("s_mov_b32", s(17), s(15))
        b.I("s_mov_b32", s(18), F * D * 2)
        b.I("s_mov_b32", s(19), 0x20000)
        b.I("s_mov_b32", s(14), F * D * 2)
        b.I("s_mov_b32", s(15), 0x20000)
        b.I("s_mov_b32", s(22), F * D * 2)
        b.I("s_mov_b32", s(23), 0x20000)

    def masked(self, r, fn):
        fn()

    def loads(self, r, RB=16):
        b, laux = self.b, self.P["rlaux"]
        ty = self.units[r][0]
        R = RB + 32 * r
        so = self.US + 2 * r

        def fn():
            if ty == "g":
                for i in range(4):
                    b.I("s_add_u32", s(28 + (i & 1)), s(so), i * 8 * 9216)
                    b.I("buffer_load_dwordx4", v(R + 4 * i, 4), v(self.GL), s(12, 4), s(28 + (i & 1)), mods="offen " + laux)
                    b.I("buffer_load_dwordx4", v(R + 16 + 4 * i, 4), v(self.GL), s(16, 4), s(28 + (i & 1)), mods="offen " + laux)
            else:
                for i in range(8):
                    b.I("s_add_u32", s(28 + (i & 1)), s(so), i * 8 * 1152)
                    b.I("buffer_load_dwordx4", v(R + 4 * i, 4), v(self.DL), s(20, 4), s(28 + (i & 1)), mods="offen " + laux)
        self.masked(r, fn)

    def proc(self, r, RB=16):
        b, aux = self.b, self.P["raux"]
        ty = self.units[r][0]
        R = RB + 32 * r
        O = RB + 32 * len(self.units) + 32 * (r % 2)
        dfr = self.defer and ty == "d"
        if dfr:
            O = R
        assert O + 32 <= 207
        do = self.US + 1 + 2 * r
        if ty == "g":
            for i in range(4):
                for k in range(4):
                    b.I("ds_write2_b32", v(self.GW2[i]), v(R + 4 * i + k), v(R + 16 + 4 * i + k), mods=f"offset0:{2 * k} offset1:{2 * k + 1}")
        else:
            for i in range(8):
                b.I("ds_write_b128", v(self.DW), v(R + 4 * i, 4), mods=f"offset:{i * 8 * 144}")
        for kl in range(2):
            for t in range(4):
                o = O + (kl * 4 + t) * 4
                for h in range(2):
                    if ty == "g":
                        b.I("ds_read_b64_tr_b16", v(o + 2 * h, 2), v(self.GR), mods=f"offset:{kl * 128 + t * 8 + h * 4 * 264}")
                    else:
                        b.I("ds_read_b64_tr_b16", v(o + 2 * h, 2), v(self.DR), mods=f"offset:{(kl * 32 + h * 4) * 144 + (t >> 1) * 64 + (t & 1) * 8}")
        if dfr:
            b.I("s_mov_b32", s(37 + r), s(do))
            return
        b.I("s_add_u32", s(30), s(do), 18 * 4096 if ty == "g" else 36 * 1024)

        def fn():
            for kl in range(2):
                for t in range(4):
                    o = O + (kl * 4 + t) * 4
                    b.I("buffer_store_dwordx4", v(o, 4), v(self.LN), s(8, 4), s(do) if kl == 0 else s(30), mods=f"offen offset:{t * 1024} {aux}")
        self.masked(r, fn)

    def qpf(self):
        b = self.b
        b.I("s_load_dwordx2", s(32, 2), s(0, 2), 0)
        b.I("s_and_b32", s(24), s(2), 0xf0)
        b.I("s_and_b32", s(25), s(2), 7)
        b.I("s_lshl_b32", s(25), s(25), 1)
        b.I("s_add_u32", s(24), s(24), s(25))
        b.I("s_bfe_u32", s(25), s(2), 0x10003)
        b.I("s_add_u32", s(24), s(24), s(25))
        b.I("s_mul_i32", s(24), s(24), 9216)
        b.I("s_and_b32", s(25), s(3), 3)
        b.I("s_mul_i32", s(25), s(25), 2304)
        b.I("s_add_u32", s(24), s(24), s(25))
        b.I("v_add_u32", v(220), s(24), v(self.LN))
        b.I("s_mov_b32", s(34), S * D * 2)
        b.I("s_mov_b32", s(35), 0x20000)
        for i in range(3):
            b.I("buffer_load_dwordx4", v(224 + 4 * i, 4), v(220), s(32, 4), 0, mods=f"offen offset:{min(1024 * i, 1280)}", tag="qpf")

    def run(self, idx):
        b, st = self.b, self.st
        ths = sorted({u[2] for u in self.units if not u[3]})
        n0 = st.n
        for vi, lo in enumerate([0] + ths):
            if vi < len(ths):
                b.I("s_cmp_ge_u32", s(idx), ths[vi])
                b.I("s_cbranch_scc1", f"{self.name}_v{vi + 1}")
                snap = b.snapshot()
            st.n = n0
            rs = [r for r, u in enumerate(self.units) if u[3] or lo < u[2]]
            order = list(range(len(self.units)))
            if self.defer:
                order.sort(key=lambda r: self.units[r][0] == "d")
            for r in order:
                if r in rs:
                    self.loads(r)
            st()
            if self.P["qpf"] == 1 and not (self.P["rdly"] == -2 and self.name.endswith("_r")):
                self.qpf()
            if self.touch:
                b.I("buffer_load_dwordx4", v(236, 4), v(8), s(8, 4), s(36), mods="offen sc1", tag="qpf")
            if self.mid:
                b.raw(f"""  s_cmp_lg_u32 s3, 0
  s_cbranch_scc1 {self.name}_m{vi}a
  buffer_load_dwordx2 v[2:3], v4, s[44:47], 0 offen sc1
{self.name}_m{vi}a:""")
            if not rs:
                st()
            for r in order:
                if r in rs:
                    self.proc(r)
                if self.mid and r == order[0]:
                    m = f"{self.name}_m{vi}"
                    b.raw(f"""  s_cmp_lg_u32 s3, 0
  s_cbranch_scc1 {m}c
  s_waitcnt vmcnt(8)
  s_mov_b32 s43, 0x40000
{m}l:
  v_cmp_eq_u32 vcc, 0, v2
  s_cbranch_vccz {m}b
  buffer_load_dwordx2 v[2:3], v4, s[44:47], 0 offen sc1
  s_waitcnt vmcnt(0)
  s_sub_u32 s43, s43, 1
  s_cbranch_scc0 {m}l
{m}b:
  v_mov_b32 v5, {self.P["gcnt"] + 4}
  ds_write_b32 v5, v4
  ds_write_b64 v5, v[2:3] offset:4
  s_waitcnt lgkmcnt(0)
{m}c:
  s_barrier""")
                st()
            if self.P["qpf"] == 2:
                self.qpf()
            if self.P["fuse"]:
                b.wait_tag_vm("qpf")
                if self.P["wdef"]:
                    b.I("s_mov_b32", s(39), len([r for r in rs if self.units[r][0] == "d"]) if self.defer else 0)
                    b.wait(lgkm=0)
                b.I("s_branch", self.exit)
            else:
                b.wait_all()
                st()
                st.dump(s(8, 4), 3)
                tl.end(b)
                b.I("s_endpgm")
            if vi < len(ths):
                b.restore(snap)
                b.label(f"{self.name}_v{vi + 1}")


def emit_conv(b, name, P):
    st = St(b, P["stamps"], base=60)
    st()
    b.I("s_load_dwordx2", s(24, 2), s(0, 2), 40)
    b.I("s_load_dwordx4", s(44, 4), s(0, 2), 88)
    b.I("v_lshrrev_b32", v(1), 6, v(0))
    b.I("v_and_b32", v(2), 63, v(0))
    b.I("v_readfirstlane_b32", s(3), v(1))
    KT, VT, WT = 0, 136 * 128, 264 * 128
    b.I("s_mul_i32", s(33), s(2), 7282)
    b.I("s_lshr_b32", s(33), s(33), 16)
    b.I("s_mul_i32", s(34), s(33), 9)
    b.I("s_sub_u32", s(34), s(2), s(34))
    b.I("s_mul_i32", s(6), s(33), 128 * 1152)
    b.I("s_lshl_b32", s(7), s(34), 7)
    b.I("s_add_u32", s(6), s(6), s(7))
    GA, GH, GW = 6, 7, 10
    b.I("v_lshrrev_b32", v(GA), 3, v(0))
    b.I("v_and_b32", v(GW), 7, v(0))
    b.I("v_mul_u32_u24", v(GA), 1152, v(GA))
    b.I("v_lshl_add_u32", v(GA), v(GW), 4, v(GA))
    b.I("v_add_u32", v(GA), s(6), v(GA))
    b.I("s_lshl_b32", s(5), s(3), 10)
    b.I("s_mov_b32", s(4), 64 * 1152)
    b.I("s_mov_b32", s(30), S * D * 2)
    b.I("s_mov_b32", s(31), 0x20000)
    b.I("s_add_u32", "m0", s(5), KT + 1024)
    b.wait(lgkm=0)
    st()
    b.I("s_mov_b32", s(28), s(14))
    b.I("s_mov_b32", s(29), s(15))
    b.I("s_mov_b32", s(14), S * D * 2)
    b.I("s_mov_b32", s(15), 0x20000)
    ga = P["gaux"]
    b.I("buffer_load_dwordx4", v(GA), s(12, 4), 0, mods=f"offen {ga} lds")
    b.I("s_add_u32", "m0", s(5), KT + 1024 + 8192)
    b.I("buffer_load_dwordx4", v(GA), s(12, 4), s(4), mods=f"offen {ga} lds")
    b.I("s_add_u32", "m0", s(5), VT)
    b.I("buffer_load_dwordx4", v(GA), s(28, 4), 0, mods=f"offen {ga} lds")
    b.I("s_add_u32", "m0", s(5), VT + 8192)
    b.I("buffer_load_dwordx4", v(GA), s(28, 4), s(4), mods=f"offen {ga} lds")
    b.I("s_cmp_gt_u32", s(3), 1)
    b.I("s_cbranch_scc1", f"{name}_nx")
    b.I("s_cmp_eq_u32", s(3), 0)
    b.I("s_cbranch_scc0", f"{name}_w1")
    b.I("v_subrev_u32", v(GH), 8 * 1152, v(GA))
    b.I("s_mov_b32", "m0", KT)
    b.I("buffer_load_dwordx4", v(GH), s(12, 4), 0, mods=f"offen {ga} lds")
    b.I("s_branch", f"{name}_nx")
    b.label(f"{name}_w1")
    b.I("s_lshl_b32", s(7), s(34), 9)
    b.I("s_mov_b32", s(40), s(16))
    b.I("s_mov_b32", s(41), s(17))
    b.I("s_mov_b32", s(42), 576 * 8)
    b.I("s_mov_b32", s(43), 0x20000)
    b.I("v_lshlrev_b32", v(GH), 4, v(2))
    b.I("v_add_u32", v(GH), s(7), v(GH))
    b.I("s_mov_b32", "m0", WT)
    b.I("buffer_load_dwordx4", v(GH), s(40, 4), 0, mods="offen lds")
    b.label(f"{name}_nx")
    H = 64
    b.I("v_lshlrev_b32", v(3), 4, v(2))
    if P["fuse"]:
        b.I("v_mov_b32", v(14), 0)
        b.I("v_mov_b32", v(15), 0)
        b.I("v_mov_b32", v(13), P["gcnt"])
        b.I("ds_write_b64", v(13), v(14, 2))
    b.barrier()
    b.I("s_cmp_ge_u32", s(3), 4)
    b.I("s_cbranch_scc1", f"{name}_nh")
    b.I("s_lshl_b32", s(4), s(2), 2)
    b.I("s_add_u32", s(4), s(4), s(3))
    b.I("s_lshl_b32", s(6), s(4), 12)
    b.I("s_add_u32", s(20), s(18), s(6))
    b.I("s_addc_u32", s(21), s(19), 0)
    b.I("s_mov_b32", s(22), 4096)
    b.I("s_mov_b32", s(23), 0x20000)
    b.I("s_mov_b32", s(26), 1152)
    b.I("s_mov_b32", s(27), 0x20000)
    b.I("v_add_u32", v(11), 16, v(3))
    b.I("s_lshl_b32", s(7), s(4), 1)
    b.I("v_mov_b32", v(12), s(7))
    ha = P["haux"]
    if P["hdly"]:
        b.I("s_sleep", P["hdly"])
    vq = list(b.vmq)
    for r in range(4):
        b.I("buffer_load_dwordx4", v(H + 8 * r, 4), v(3), s(20, 4), 0, mods=f"offen offset:{1024 * r} {ha}")
    for r in range(4):
        b.I("buffer_load_dword", v(H + 8 * r + 4), v(11), s(20, 4), 0, mods=f"offen offset:{1024 * r} {ha}")
    b.I("buffer_load_ushort", v(8), v(12), s(24, 4), 0, mods="offen")
    b.vmq = vq
    if P["touch"]:
        b.I("s_branch", f"{name}_nh2")
    b.label(f"{name}_nh")
    if P["touch"]:
        b.I("s_mov_b32", s(8), s(46))
        b.I("s_mov_b32", s(9), s(47))
        b.I("s_mov_b32", s(10), WS_BYTES)
        b.I("s_mov_b32", s(11), 0x20000)
        b.I("s_sub_u32", s(7), s(3), 5)
        b.I("s_mul_i32", s(7), s(7), 144)
        b.I("s_add_u32", s(7), s(7), s(2))
        b.I("s_cmp_ge_u32", s(3), 6)
        b.I("s_cselect_b32", s(6), 112, 0)
        b.I("s_add_u32", s(7), s(7), s(6))
        b.I("s_min_u32", s(7), s(7), 511)
        b.I("s_lshl_b32", s(7), s(7), 7)
        b.I("s_add_u32", s(7), s(7), GFL)
        b.I("v_mov_b32", v(12), 0)
        b.I("s_cmp_eq_u32", s(3), 5)
        b.I("s_cbranch_scc0", f"{name}_t0")
        b.I("s_lshl_b32", s(7), s(2), 7)
        b.I("s_add_u32", s(7), s(7), GFY)
        b.I("v_and_b32", v(12), P["ncp"] - 1, v(0))
        b.I("v_mul_u32_u24", v(12), 18432, v(12))
        b.I("v_mov_b32", v(13), GFL - GFY)
        b.I("v_cmp_eq_u32", "vcc", 63, v(2))
        b.I("v_cndmask_b32", v(12), v(12), v(13), "vcc")
        b.label(f"{name}_t0")
        b.I("s_cmp_eq_u32", s(3), 4)
        b.I("s_cbranch_scc0", f"{name}_t1")
        b.I("s_lshr_b32", s(7), s(2), 4)
        b.I("s_lshl_b32", s(7), s(7), 7)
        b.I("s_add_u32", s(7), s(7), KFL if P["touch"] == 2 else GFL)
        b.I("v_and_b32", v(12), 15, v(0))
        b.I("v_mul_u32_u24", v(12), 9 * 128, v(12))
        b.label(f"{name}_t1")
        b.I("buffer_load_dword", v(59), v(12), s(8, 4), s(7), mods="offen sc1")
        b.vmq = vq
        b.label(f"{name}_nh2")
    NV = 60
    TP, I_ = 1, 4
    K, V, W = 100, 116, 124
    b.I("v_lshrrev_b32", v(TP), 4, v(0))
    b.I("v_and_b32", v(I_), 15, v(0))
    b.I("s_mov_b32", s(8), s(46))
    b.I("s_mov_b32", s(9), s(47))
    b.I("s_mov_b32", s(46), 256)
    b.I("s_mov_b32", s(47), 0x20000)
    b.I("s_mov_b32", s(10), WS_BYTES)
    b.I("s_mov_b32", s(11), 0x20000)
    b.I("v_lshlrev_b32", v(GA), 9, v(TP))
    b.I("v_lshl_add_u32", v(GA), v(I_), 3, v(GA))
    b.I("v_lshlrev_b32", v(GW), 5, v(I_))
    TW, TR, TR2, TS = 18, 19, 20, 23
    b.I("v_lshrrev_b32", v(TW), 1, v(TP))
    b.I("v_sub_u32", v(TW), 15, v(TW))
    b.I("v_xor_b32", v(TW), v(TW), v(I_))
    b.I("v_lshlrev_b32", v(TW), 4, v(TW))
    b.I("v_lshl_add_u32", v(TW), v(I_), 10, v(TW))
    b.I("v_and_b32", v(11), 1, v(TP))
    b.I("v_lshlrev_b32", v(11), 3, v(11))
    b.I("v_sub_u32", v(TW), v(TW), v(11))
    b.I("v_add_u32", v(TW), YL + 8, v(TW))
    b.I("v_xor_b32", v(TR), s(3), v(I_))
    b.I("v_lshlrev_b32", v(TR), 4, v(TR))
    b.I("v_lshl_add_u32", v(TR), v(TP), 8, v(TR))
    b.I("v_xor_b32", v(TR2), 128, v(TR))
    b.I("v_add_u32", v(TR), YL, v(TR))
    b.I("v_add_u32", v(TR2), YL + 8192, v(TR2))
    b.I("v_lshlrev_b32", v(TS), 12, v(TP))
    b.I("v_lshl_add_u32", v(TS), v(I_), 4, v(TS))
    b.I("s_lshl_b32", s(35), s(34), 18)
    b.I("s_lshl_b32", s(7), s(33), 8)
    b.I("s_sub_u32", s(35), s(35), s(7))
    b.I("s_add_u32", s(35), s(35), KVT + 3840)
    b.I("s_add_u32", s(36), s(35), 32 * 4096)
    b.I("s_mov_b32", s(38), 0x05040100)
    b.I("s_mov_b32", s(39), 0x07060302)
    st()
    NA = 58
    b.I("v_mov_b32", v(NA), 0)
    b.I("s_and_b32", s(43), s(3), 6)
    b.raw(f"""  s_cmp_ge_u32 s3, 4
  s_cbranch_scc1 {name}_w0
  s_waitcnt vmcnt(9)
  s_branch {name}_w9
{name}_w0:
  s_waitcnt vmcnt({1 if P["touch"] else 0})
{name}_w9:""")
    b.vmq = []
    b.barrier()
    b.I("s_cmp_eq_u32", s(43), 4)
    b.I("s_cbranch_scc0", f"{name}_nt")
    b.raw(f"  buffer_load_dwordx2 v[{NV}:{NV + 1}], v{NA}, s[44:47], 0 offen sc1")
    b.label(f"{name}_nt")
    for i in range(7):
        b.I("ds_read_b64", v(K + 2 * i, 2), v(GA), mods=f"offset:{KT + (5 + i) * 128}")
    for i in range(2):
        b.I("ds_read_b128", v(W + 4 * i, 4), v(GW), mods=f"offset:{WT + 16 * i}")
    for i in range(4):
        b.I("ds_read_b64", v(V + 2 * i, 2), v(GA), mods=f"offset:{VT + i * 128}")
    PP, T, O = 132, 148, 164
    for ch in range(4):
        dw, h = ch >> 1, ch & 1
        pp = PP + 8 * (ch & 1)
        t = T + 8 * (ch & 1)
        for r in range(1, 7):
            b.I("v_perm_b32", v(pp + r), v(K + 2 * (r - 1) + dw), v(K + 2 * r + dw), s(38 + h))
        if ch == 0:
            st()
        for i in range(4):
            b.I("v_dot2_f32_bf16", v(t + i), v(pp + i + 1), v(W + 2 * ch + 1), 0)
        for i in range(4):
            if h == 0:
                b.I("v_lshlrev_b32", v(t + 4 + i), 16, v(V + 2 * i + dw))
            else:
                b.I("v_and_b32", v(t + 4 + i), 0xffff0000, v(V + 2 * i + dw))
        for i in range(4):
            b.I("v_dot2_f32_bf16", v(t + i), v(pp + i + 3), v(W + 2 * ch), v(t + i))
        if ch > 0:
            b.I("ds_write_b64", v(TW), v(O + 2 * (ch - 1), 2), mods=f"offset:{(ch - 1) * 256}")
        for i in range(4):
            b.I("v_mul_f32", v(t + i), v(t + i), v(t + 4 + i))
        for q in range(2):
            b.I("v_cvt_pk_bf16_f32", v(O + 2 * ch + q), v(t + 3 - 2 * q), v(t + 2 - 2 * q))
    b.I("ds_write_b64", v(TW), v(O + 6, 2), mods=f"offset:{3 * 256}")
    b.wait(lgkm=0)
    st()
    b.barrier()
    b.I("ds_read_b128", v(K, 4), v(TR))
    b.I("ds_read_b128", v(K + 4, 4), v(TR2))
    b.I("buffer_store_dwordx4", v(K, 4), v(TS), s(8, 4), s(35), mods="offen sc1")
    b.I("buffer_store_dwordx4", v(K + 4, 4), v(TS), s(8, 4), s(36), mods="offen sc1", tag="kv")
    st()
    b.I("s_cmp_lt_u32", s(3), 4)
    b.I("s_cbranch_scc1", f"{name}_cv")
    snap = b.snapshot()
    b.I("s_load_dwordx4", s(12, 4), s(0, 2), 56)
    b.I("s_load_dwordx2", s(20, 2), s(0, 2), 72)
    CO, CN = 56, 57
    b.I("s_lshl_b32", s(7), s(2), 7)
    b.I("v_mov_b32", v(CO), s(7))
    b.I("s_lshr_b32", s(7), s(2), 4)
    b.I("s_lshl_b32", s(7), s(7), 7)
    b.I("v_mul_u32_u24", v(CN), 9 * 128, v(I_))
    b.I("v_add_u32", v(CN), s(7), v(CN))
    b.I("s_mov_b32", s(42), KFL)
    b.wait(vm=0)
    tagw = f"  v_mov_b32 v{NV + 2}, {P['gcnt'] + 8}\n  ds_write_b64 v{NV + 2}, v[{NV}:{NV + 1}]\n  s_waitcnt lgkmcnt(0)\n" if P["fuse"] else ""
    b.raw(f"""  s_cmp_eq_u32 s43, 4
  s_cbranch_scc0 {name}_tge
  s_mov_b32 s43, 0x40000
{name}_tg:
  v_cmp_eq_u32 vcc, 0, v{NV + 1}
  s_cbranch_vccz {name}_tgw
  buffer_load_dwordx2 v[{NV}:{NV + 1}], v{NA}, s[44:47], 0 offen sc1
  s_waitcnt vmcnt(0)
  s_sub_u32 s43, s43, 1
  s_cbranch_scc0 {name}_tg
{name}_tgw:
{tagw}{name}_tge:""")
    st()
    b.barrier()
    b.I("s_cmp_lg_u32", s(3), 4)
    b.I("s_cbranch_scc1", f"{name}_nf")
    b.I("s_mov_b64", "exec", 1)
    b.I("buffer_store_dwordx2", v(NV, 2), v(CO), s(8, 4), s(42), mods="offen sc1")
    b.I("s_mov_b64", "exec", -1)
    b.label(f"{name}_nf")
    b.I("s_cmp_lg_u32", s(3), 5)
    b.I("s_cbranch_scc1", f"{name}_np")
    b.raw(f"""  s_mov_b64 exec, 0xffff
  s_mov_b32 s43, 0x40000
{name}_poll:
  buffer_load_dwordx2 v[{NV + 2}:{NV + 3}], v{CN}, s[8:11], s42 offen sc1
  s_waitcnt vmcnt(0)
  v_cmp_ne_u64 vcc, v[{NV}:{NV + 1}], v[{NV + 2}:{NV + 3}]
  s_cbranch_vccz {name}_pe
  s_sleep {P["psleep"]}
  s_sub_u32 s43, s43, 1
  s_cbranch_scc0 {name}_poll
{name}_pe:
  s_mov_b64 exec, -1""")
    b.barrier()
    b.label(f"{name}_np")
    rl = RL(b, P, P["hl"], st, name + "_h")
    rl.defer = P["wdef"]
    b.I("s_sub_u32", s(6), s(3), 4)
    b.I("s_mul_i32", s(37), s(6), 9216)
    b.I("s_add_u32", s(37), s(37), HLB)
    b.I("s_mul_i32", s(6), s(6), 18)
    b.I("s_lshr_b32", s(7), s(2), 3)
    b.I("s_add_u32", s(6), s(6), s(7))
    rl.setup(6, 37)
    rl.srds()
    b.I("s_cmp_eq_u32", s(3), 5)
    b.I("s_cbranch_scc1", f"{name}_pd")
    b.barrier()
    b.label(f"{name}_pd")
    if P["wdly"]:
        b.I("s_sleep", P["wdly"])
    st()
    rl.run(6)
    b.restore(snap)
    st.n = 6
    b.raw(".p2align 6")
    b.label(f"{name}_cv")
    b.I("s_lshl_b32", s(6), s(4), 12)
    b.I("s_mul_i32", s(5), s(3), WSZ)
    G_ = 5
    b.I("v_lshrrev_b32", v(G_), 4, v(2))
    for k in range(4):
        b.I("v_mov_b32", v(12 + k), 0)
    b.I("v_add_u32", v(9), s(5), v(3))
    b.I("s_mov_b32", "exec_hi", 0)
    b.I("ds_write_b128", v(9), v(12, 4), mods=f"offset:{UB + 32 + 4096}")
    b.I("s_mov_b64", "exec", 31)
    for c in range(4):
        b.I("ds_write_b128", v(9), v(12, 4), mods=f"offset:{c * HS}")
        b.I("ds_write_b128", v(9), v(12, 4), mods=f"offset:{c * HS + 4144}")
    b.I("s_mov_b64", "exec", 3)
    b.I("ds_write_b128", v(9), v(12, 4), mods=f"offset:{UB}")
    b.I("s_mov_b64", "exec", -1)
    SW, SR = 21, 22
    b.I("s_lshl_b32", s(7), s(3), 2)
    b.I("s_add_u32", s(7), s(7), SY)
    b.I("v_mov_b32", v(SW), s(7))
    b.I("ds_write_b32", v(SW), v(12))
    b.I("s_add_u32", "m0", s(5), UB + 32)
    b.I("s_add_u32", s(7), s(6), KVT)
    b.I("v_and_b32", v(SR), 3, v(2))
    b.I("v_lshlrev_b32", v(SR), 2, v(SR))
    b.I("v_add_u32", v(SR), SY, v(SR))
    AA, BA = 16, 17
    b.I("v_add_u32", v(11), 1, v(I_))
    b.I("v_and_b32", v(AA), 3, v(11))
    b.I("v_mul_u32_u24", v(AA), HS, v(AA))
    b.I("v_lshrrev_b32", v(11), 2, v(11))
    b.I("v_lshl_add_u32", v(AA), v(11), 3, v(AA))
    b.I("v_lshl_add_u32", v(AA), v(G_), 4, v(AA))
    b.I("v_add_u32", v(AA), s(5), v(AA))
    b.I("v_lshlrev_b32", v(11), 5, v(I_))
    b.I("v_lshlrev_b32", v(BA), 4, v(G_))
    b.I("v_sub_u32", v(BA), v(BA), v(11))
    b.I("s_add_u32", s(24), s(5), UB + 480)
    b.I("v_add_u32", v(BA), s(24), v(BA))
    YW, YR, YS = 96, 97, 98
    b.I("s_mul_i32", s(24), s(3), 4160)
    b.I("s_add_u32", s(24), s(24), YL)
    b.I("v_lshlrev_b32", v(YW), 5, v(I_))
    b.I("v_lshl_add_u32", v(YW), v(G_), 3, v(YW))
    b.I("v_add_u32", v(YW), s(24), v(YW))
    b.I("v_bfe_u32", v(11), v(2), 2, 2)
    b.I("v_mul_u32_u24", v(YR), 4160, v(11))
    b.I("v_lshl_add_u32", v(YR), v(G_), 5, v(YR))
    b.I("v_and_b32", v(11), 3, v(2))
    b.I("v_lshl_add_u32", v(YR), v(11), 3, v(YR))
    b.I("s_lshl_b32", s(24), s(3), 10)
    b.I("s_add_u32", s(24), s(24), YL)
    b.I("v_add_u32", v(YR), s(24), v(YR))
    yt = 1 if P["ytag"] else 0
    BS, PS = ((128 << yt), P["ystr"]) if P["ystr"] else (18432 << yt, 128 << yt)
    b.I("v_mul_u32_u24", v(YS), BS, v(G_))
    b.I("v_lshl_add_u32", v(YS), v(I_), 3 + yt, v(YS))
    b.I("s_mul_i32", s(32), s(3), 32 * BS)
    b.I("s_mul_i32", s(24), s(2), PS)
    b.I("s_add_u32", s(32), s(32), s(24))
    b.I("s_add_u32", s(32), s(32), YB)
    b.wait_tag_vm("kv")
    st()
    b.barrier()
    b.I("v_lshlrev_b32", v(11), 16, v(H))
    for par in range(2):
        for r in range(4):
            hr = H + 8 * r
            if par:
                for k in range(4):
                    b.I("v_alignbyte_b32", v(hr + k), v(hr + k + 1), v(hr + k), 2)
            else:
                b.I("v_add_u32", v(116 + r), 2 * HS + 1024 * r, v(9))
                b.I("v_add_u32", v(120 + r), 3 * HS + 1024 * r, v(9))
            b.I("ds_write_b128", v(9), v(hr, 4), mods=f"offset:{par * HS + 64 + 1024 * r}")
            ad = 116 + 4 * par + r
            b.I("ds_write2_b32", v(ad), v(hr), v(hr + 1), mods="offset0:15 offset1:16")
            b.I("ds_write2_b32", v(ad), v(hr + 2), v(hr + 3), mods="offset0:17 offset1:18")
    b.I("s_mov_b64", "exec", 1)
    b.I("ds_write_b32", v(9), v(11), mods=f"offset:{HS + 60}")
    b.I("ds_write_b32", v(9), v(11), mods=f"offset:{3 * HS + 56}")
    b.I("s_mov_b64", "exec", -1)
    DA = 24
    b.I("v_lshlrev_b32", v(10), 3, v(G_))
    b.I("v_add_u32", v(10), v(10), v(I_))
    b.I("v_sub_u32", v(10), 31, v(10))
    b.I("v_lshlrev_b32", v(11), 16, v(8))
    for r in range(4):
        b.I("v_cmp_eq_u32", "vcc", 2 * r, v(10))
        b.I("v_cndmask_b32", v(DA + r), 0, v(8), "vcc")
        b.I("v_cmp_eq_u32", "vcc", 2 * r + 1, v(10))
        b.I("v_cndmask_b32", v(DA + r), v(DA + r), v(11), "vcc")
    ACC = 28
    seq = conv_order()
    free = [100 + 4 * i for i in range(P["nfr"])]
    last = {}
    need = []
    for p, (ak, bk, ct) in enumerate(seq):
        for key in (("a", ak), ("b", bk)):
            if key == ("a", "D"):
                continue
            if key not in last:
                need.append((key, p))
            last[key] = p
    slot = {}
    q = []
    ni = [0]

    def refill(p):
        while ni[0] < len(need) and need[ni[0]][1] <= p + P["cla"] and free:
            key = need[ni[0]][0]
            ni[0] += 1
            r = free.pop(0)
            slot[key] = r
            if key[0] == "a":
                q.append((key, lambda r=r, mu=key[1]: b.I("ds_read_b64", v(r, 2), v(AA), mods=f"offset:{64 * mu}")))
                q.append((key, lambda r=r, mu=key[1]: b.I("ds_read_b64", v(r + 2, 2), v(AA), mods=f"offset:{64 * mu + 8}")))
            else:
                q.append((key, lambda r=r, be=key[1]: b.I("ds_read_b128", v(r, 4), v(BA), mods=f"offset:{(56 - be) * 64}")))
    refill(0)
    for it in [x for x in q if x[0][0] == "a"][:10]:
        q.remove(it)
        it[1]()
    if yt:
        b.I("v_mov_b32", v(60), P["gcnt"] + 8)
        b.I("ds_read_b64", v(60, 2), v(60))
    b.wait(lgkm=0)
    b.barrier()
    st()
    for r in range(4):
        b.I("buffer_load_dwordx4", v(3), s(8, 4), s(7), mods=f"offen offset:{1024 * r} sc1 lds", tag="u")
    if yt:
        for k in range(8):
            b.I("v_mov_b32", v(66 + 4 * k), v(60))
            b.I("v_mov_b32", v(67 + 4 * k), v(61))
        b.I("v_mul_u32_u24", v(62), 18432, v(2))
        b.I("s_lshl_b32", s(33), s(2), 7)
        b.I("s_add_u32", s(33), s(33), GFY)

    def yflag():
        b.raw(f"""  s_cmp_lg_u32 s3, {P["yfw"]}
  s_cbranch_scc1 {name}_yf
  s_mov_b64 exec, {(1 << P["ycp"]) - 1}
  buffer_store_dword v60, v62, s[8:11], s33 offen sc1
  s_mov_b64 exec, -1
{name}_yf:""")
    b.I("s_setprio", 2)
    b.wait_tag_vm("u")
    st()
    rts = lambda r: b.raw(f"  s_memrealtime s[{r}:{r + 1}]") if P["fst"] else None
    rts(64)
    for i in range(7):
        if q:
            q.pop(0)[1]()
    started = set()
    for p, (ak, bk, ct) in enumerate(seq):
        refill(p)
        while any(k in (("a", ak), ("b", bk)) for k, _ in q):
            q.pop(0)[1]()
        d = v(ACC + 4 * ct, 4)
        b.I(MF, d, v(DA, 4) if ak == "D" else v(slot[("a", ak)], 4), v(slot[("b", bk)], 4), d if ct in started else "0")
        started.add(ct)
        for key in (("a", ak), ("b", bk)):
            if last.get(key) == p:
                free.append(slot[key])
        if q and len(b.lgq) < 15:
            q.pop(0)[1]()
        if yt and p == len(seq) - 1 - P["yfp"]:
            yflag()
    st()
    rts(68)
    for ct in range(8):
        r = ACC + 4 * ct
        b.I("v_cvt_pk_bf16_f32", v(r), v(r), v(r + 1))
        b.I("v_cvt_pk_bf16_f32", v(r + 1), v(r + 2), v(r + 3))
        b.I("ds_write_b64", v(YW), v(r, 2), mods=f"offset:{512 * ct}")
    b.I("v_mov_b32", v(11), 1)
    b.I("ds_write_b32", v(SW), v(11))
    b.raw(f"""  s_mov_b32 s37, 0x100000
{name}_ep:
  ds_read_b32 v10, v{SR}
  s_waitcnt lgkmcnt(0)
  v_cmp_ne_u32 vcc, 1, v10
  s_cbranch_vccz {name}_epd
  s_sub_u32 s37, s37, 1
  s_cbranch_scc0 {name}_ep
{name}_epd:""")
    b.lgq = []
    st()
    rts(78)
    if yt and P["yfp"] == -1:
        yflag()
    for k in range(8):
        b.I("ds_read_b64_tr_b16", v(64 + (2 * k << yt), 2), v(YR), mods=f"offset:{128 * k}")
    for k in range(8):
        b.I("s_add_u32", s(24 + (k & 1)), s(32), 4 * k * BS)
        b.I("buffer_store_dwordx4" if yt else "buffer_store_dwordx2", v(64 + (2 * k << yt), 2 << yt), v(YS), s(8, 4), s(24 + (k & 1)), mods="offen " + P["yaux"])
    if P["fuse"]:
        if yt and P["yfp"] == -2:
            yflag()
        if P["wdef"]:
            b.I("s_mov_b32", s(39), 0)
            if P["wtrig"]:
                b.I("v_mov_b32", v(10), P["gcnt"])
                b.I("v_mov_b32", v(11), 1)
                b.I("s_mov_b64", "exec", 1)
                b.I("ds_add_u32", v(10), v(11))
                b.I("s_mov_b64", "exec", -1)
        b.I("s_branch", P["fuse"])
        return
    b.wait_all()
    st()
    st.dump(s(8, 4), 3)
    tl.end(b)
    b.I("s_endpgm")


def emit_rl(b, name, P, wg0, nwg):
    st = St(b, P["stamps"], base=60)
    st()
    b.I("s_load_dwordx4", s(44, 4), s(0, 2), 88)
    b.I("s_memrealtime", s(40, 2))
    b.wait(lgkm=0)
    b.I("s_load_dwordx4", s(12, 4), s(0, 2), 56)
    b.I("s_load_dwordx2", s(20, 2), s(0, 2), 72)
    b.I("s_mov_b32", s(8), s(46))
    b.I("s_mov_b32", s(9), s(47))
    if P["fuse"]:
        b.I("s_mov_b32", s(46), 256)
        b.I("s_mov_b32", s(47), 0x20000)
    b.I("s_cmp_lg_u32", s(2), wg0)
    b.I("s_cbranch_scc1", f"{name}_nl")
    b.I("s_mov_b32", s(46), 256)
    b.I("s_mov_b32", s(47), 0x20000)
    b.I("s_or_b32", s(41), s(41), 0x40000000)
    if P["fuse"]:
        b.I("s_or_b32", s(40), s(40), 1)
    b.I("v_mov_b32", v(2), s(40))
    b.I("v_mov_b32", v(3), s(41))
    b.I("v_mov_b32", v(4), 0)
    b.I("v_cmp_eq_u32", "vcc", 0, v(0))
    b.I("s_and_saveexec_b64", s(42, 2), "vcc")
    b.I("s_cbranch_execz", f"{name}_nl2")
    b.I("buffer_store_dwordx2", v(2, 2), v(4), s(44, 4), 0, mods="offen sc1")
    b.label(f"{name}_nl2")
    b.I("s_mov_b64", "exec", -1)
    b.label(f"{name}_nl")
    b.I("v_lshrrev_b32", v(1), 6, v(0))
    b.I("v_readfirstlane_b32", s(3), v(1))
    b.I("s_sub_u32", s(4), s(2), wg0)
    b.I("s_lshr_b32", s(4), s(4), 3)
    b.I("s_mov_b32", s(10), WS_BYTES)
    b.I("s_mov_b32", s(11), 0x20000)
    if P["zero"]:
        if P["zero"] == "ld":
            b.I("s_sub_u32", s(36), s(2), wg0)
            b.I("s_lshl_b32", s(36), s(36), 13)
            b.I("s_add_u32", s(36), s(36), FLG)
            b.I("v_lshlrev_b32", v(8), 4, v(0))
        else:
            b.raw(f"""  s_sub_u32 s6, s2, {wg0}
  s_cmp_ge_u32 s6, {ZERO_BYTES // 8192}
  s_cbranch_scc1 {name}_nz
  s_lshl_b32 s6, s6, 13
  s_add_u32 s6, s6, {FLG}
  v_lshlrev_b32 v8, 4, v0
  v_mov_b32 v4, 0
  v_mov_b32 v5, 0
  v_mov_b32 v6, 0
  v_mov_b32 v7, 0
  buffer_store_dwordx4 v[4:7], v8, s[8:11], s6 offen sc1
{name}_nz:""")
    if P["rlne"]:
        b.I("s_sub_u32", s(6), 7, s(3))
        b.I("s_mul_i32", s(6), s(6), nwg // 8)
        b.I("v_mov_b32", v(4), 0)
    else:
        b.I("s_mul_i32", s(6), s(3), nwg // 8)
    b.I("s_add_u32", s(6), s(6), s(4))
    b.I("s_mul_i32", s(5), s(3), 9216)
    rl = RL(b, P, P["rl"], st, name + "_r")
    rl.setup(6, 5)
    b.wait(lgkm=0)
    st()
    rl.srds()
    if P["rdly"] > 0:
        b.I("s_sleep", P["rdly"])
    if P["rdly"] < 0:
        b.raw("  buffer_load_dwordx4 v[236:239], v8, s[8:11], s36 offen sc1")
        if P["rdly"] == -2:
            rl.qpf()
        b.raw("  s_waitcnt vmcnt(0)")
    if P["fuse"]:
        rl.exit = f"{name}_rx"
        rl.touch = P["zero"] == "ld" and P["rdly"] >= 0
        if P["rlne"]:
            rl.exit, rl.mid = P["fuse"], True
    rl.run(6)
    if P["fuse"] and not P["rlne"]:
        b.raw(f"""{name}_rx:
  s_cmp_lg_u32 s3, 0
  s_cbranch_scc1 {name}_rw
  v_mov_b32 v4, 0
  s_mov_b32 s43, 0x40000
{name}_rt:
  buffer_load_dwordx2 v[2:3], v4, s[44:47], 0 offen sc1
  s_waitcnt vmcnt(0)
  v_cmp_eq_u32 vcc, 0, v2
  s_cbranch_vccz {name}_ru
  s_sub_u32 s43, s43, 1
  s_cbranch_scc0 {name}_rt
{name}_ru:
  v_mov_b32 v5, {P["gcnt"] + 8}
  ds_write_b64 v5, v[2:3]
  s_lshl_b32 s6, s2, 7
  s_add_u32 s6, s6, {GFL + 0x8000}
  s_waitcnt lgkmcnt(0)
  s_barrier
  s_mov_b64 exec, 1
  buffer_store_dword v2, v4, s[8:11], s6 offen sc1
  s_mov_b64 exec, -1
  s_branch {P["fuse"]}
{name}_rw:
  s_waitcnt vmcnt(0)
  s_barrier
  s_branch {P["fuse"]}""")


DEFF = dict(stamps=False, gaux="nt", psleep=1, nfr=36, cla=24, pf="ln2_kernel_end", haux="nt", yaux="", raux="sc1", rlaux="nt",
            ilv=True, hdelay=0, touch=0, zero=False, qpf=0, fuse=None, gcnt=0, ytag=False, rlne=False, wdly=0, rdly=0, hdly=0, ncp=4, wdef=False, wtrig=0, ystr=0, fst=False, yfp=0, yfw=0, ycp=4,
            rl=[("g", 0, 112, True), ("g", 112, 50, False)], hl=[("d", 0, 72, True), ("d", 72, 9, False)], nrl=112)


def k_front(name, **kw):
    P = dict(DEFF)
    P.update(kw)
    b = AB()
    b.raw(f".globl {name}\n.p2align 8\n.type {name},@function\n{name}:")
    if P["fuse"]:
        name = "fr"
    tl.start(b)
    b.I("s_load_dwordx8", s(12, 8), s(0, 2), 8)
    if P["pf"]:
        b.raw(f"  s_getpc_b64 s[36:37]\n{name}_pc:")
        b.I("s_lshr_b32", s(38), s(2), 3)
        b.I("s_lshl_b32", s(38), s(38), 13)
        b.I("v_lshlrev_b32", v(240), 4, v(0))
        b.I("v_add_u32", v(240), s(38), v(240))
        b.raw(f"  v_min_u32 v240, {P['pf']}-{name}_pc-16, v240")
        b.I("global_load_dwordx4", v(244, 4), v(240), s(36, 2))
    b.I("s_cmp_ge_u32", s(2), NCONV)
    b.I("s_cbranch_scc1", f"{name}_rl")
    snap = b.snapshot()
    emit_conv(b, name, P)
    b.restore(snap)
    b.raw(".p2align 6")
    b.label(f"{name}_rl")
    b.I("s_cmp_ge_u32", s(2), NCONV + P["nrl"])
    b.I("s_cbranch_scc1", f"{name}_end")
    if P["nrl"]:
        emit_rl(b, name, P, NCONV, P["nrl"])
    b.label(f"{name}_end")
    b.raw("  s_waitcnt vmcnt(0) lgkmcnt(0)")
    b.I("s_endpgm")
    return b
```

```python
from k_ffl import *
from k_per import PSt, lanes

PB1, LACC1 = 40, 76
PZ, PA, VHO, VMW, VONE = 230, 232, 233, 234, 235
HO = FFN3_LDS
CNT = HO + 4 * 3072
PER_LDS = CNT + 64
S_FIN, S_MASK, S_PEND = 59, 58, 56
S_EX, S_TM, S_OR, S_RDY, S_N, S_W3 = 20, 22, 24, 25, 26, 27
ABITS, BBITS = 0x8888, 0x88880000
S_HOB, S_FL, S_TH = 22, 23, 24


SKIP = set()


def at2(b, ps, i0, i1, k, ret=False):
    if not ps.on or i0 in SKIP:
        return ""
    op = "s_memrealtime" if ps.on == 2 else "s_memtime"
    t = f"  s_cmp_lg_u32 s{S_FIN}, 0\n  s_cbranch_scc1 st{k}_a\n"
    if i0 is not None:
        t += f"  {op} s[{60 + 2 * i0}:{61 + 2 * i0}]\n"
    t += f"  s_branch st{k}_b\nst{k}_a:\n"
    if i1 is not None:
        t += f"  {op} s[{60 + 2 * i1}:{61 + 2 * i1}]\n"
    t += f"st{k}_b:\n  s_waitcnt lgkmcnt(0)"
    if ret:
        return t + "\n"
    b.raw(t)


POLL0 = f"""  s_waitcnt vmcnt(0)
  @CMP@
  s_nop 1
  s_andn2_b32 s{S_EX}, s{S_EX}, vcc_lo
  s_lshr_b32 s54, vcc_lo, 1
  s_and_b32 s54, s54, vcc_lo
  s_lshr_b32 s55, s54, 2
  s_and_b32 s54, s54, s55
  s_and_b32 s54, s54, 0x11111111
  s_lshl_b32 s54, s54, 3
  v_mov_b32 v{V_T}, s54
  s_mov_b64 exec, 1
  ds_or_rtn_b32 v{V_F}, v{VMW}, v{V_T}
  s_mov_b64 exec, -1
  s_waitcnt lgkmcnt(0)
  v_readfirstlane_b32 s{S_MASK}, v{V_F}
  s_nop 1
  s_or_b32 s{S_MASK}, s{S_MASK}, s54
"""
READ = f"""  ds_read_b32 v{V_F}, v{VMW}
  s_waitcnt lgkmcnt(0)
  v_readfirstlane_b32 s{S_MASK}, v{V_F}
  s_nop 1
"""


def pissue(lab):
    return f"""  s_cmp_eq_u32 s{S_EX}, 0
  s_cbranch_scc1 {lab}
  s_mov_b64 exec, s[{S_EX}:{S_EX + 1}]
  buffer_load_dword v{PZ}, v{PA}, s[8:11], s{S_A} offen sc1
  s_mov_b64 exec, -1
{lab}:
"""


def seam(b, name, P, ps):
    t0, t1 = T, T + 1
    POLL = POLL0.replace("@CMP@", f"v_cmp_eq_u32 vcc, s{P['tag']}, v{PZ}" if P.get("tag") else f"v_cmp_ne_u32 vcc, 0, v{PZ}")
    nm = f"{name}_s"
    b.hist, b.vmq, b.lgq = [], [], []
    b.label(f"{name}_seam")
    b.I("s_setprio", P["sprio"])
    b.I("s_mov_b32", s(S_FIN), s(S_LO))
    at2(b, ps, 0, 8, 0)
    b.I("s_sub_u32", s(7), s(S_LAY), FLG)
    b.I("s_lshl_b32", s(7), s(7), 1)
    b.I("s_lshl_b32", s(6), s(5), 14)
    b.I("s_add_u32", s(7), s(7), s(6))
    b.I("s_add_u32", s(7), s(7), PF2)
    b.I("s_lshl_b32", s(S_A), s(4), 11)
    b.I("s_add_u32", s(S_A), s(S_A), s(7))
    b.I("s_and_b32", s(S_FL), s(2), 15)
    b.I("s_lshl_b32", s(S_FL), s(S_FL), 7)
    b.I("s_add_u32", s(S_FL), s(S_FL), s(7))
    al = USE["a"]
    b.I("s_lshl_b32", s(13), s(5), 7 if al else 6)
    b.I("s_add_u32", s(13), s(13), s(4))
    b.I("s_mul_i32", s(13), s(13), 9216 if al else 18432)
    b.I("s_add_u32", s(13), s(13), HX if al else PART)
    if USE["p"]:
        b.I("s_add_u32", s(13), s(13), s(S_LO))
    b.I("s_lshl_b32", s(7), s(S_TOK), 5)
    b.I("s_add_u32", s(S_PXS), s(13), s(7))
    b.I("s_add_u32", s(S_P), s(S_PXS), s(7))
    b.I("s_add_u32", s(S_PXS), s(S_PXS), 8192)
    b.I("s_and_b32", s(S_W3), s(S_W), 3)
    b.I("s_lshl_b32", s(S_HOB), s(S_W3), 2)
    b.I("s_lshl_b32", s(S_HOB), 1, s(S_HOB))
    b.I("s_cmp_eq_u32", s(S_W3), 0)
    b.I("s_cselect_b32", s(S_EX), -1, 0)
    b.I("s_mov_b32", s(S_EX + 1), 0)
    lanes(b)
    b.I("v_and_b32", v(PA), 15, v(LANE))
    b.I("v_lshlrev_b32", v(PA), 7, v(PA))
    b.I("v_lshl_add_u32", v(PA), v(GL), 2, v(PA))
    b.I("v_mov_b32", v(PZ), 0)
    b.I("v_mov_b32", v(VMW), CNT + 8)
    b.I("v_mov_b32", v(V_Z), fval(P))
    b.I("v_mov_b32", v(VONE), 1)
    b.I("v_mul_u32_u24", v(VP), 147456, v(G))
    b.I("v_lshl_add_u32", v(VP), v(DS), 10, v(VP))
    b.I("v_lshl_add_u32", v(VP), v(CQ), 4, v(VP))
    b.I("v_and_b32", v(t0), 1, v(DS))
    b.I("v_lshl_add_u32", v(t1), v(t0), 2, v(G))
    b.I("v_mul_u32_u24", v(VPX), 147456, v(t1))
    b.I("v_mul_u32_u24", v(t0), 3, v(t0))
    b.I("v_xor_b32", v(t0), v(t0), v(CQ))
    b.I("v_lshl_add_u32", v(VPX), v(t0), 3, v(VPX))
    b.I("v_lshrrev_b32", v(t0), 1, v(DS))
    if al:
        b.I("v_xor_b32", v(t0), 1, v(t0))
    b.I("v_mul_u32_u24", v(t0), 73728 if al else 9216, v(t0))
    b.I("v_add_u32", v(VPX), v(VPX), v(t0))
    b.I("v_lshlrev_b32", v(PZ + 1), 11, v(LANE))
    b.I("v_mov_b32", v(V_F), CNT)
    b.I("v_mov_b32", v(V_T), P["bh1"] + 8)
    b.raw(f"""  s_cmp_ge_u32 s{S_W}, 4
  s_cbranch_scc0 {nm}_aa
  s_waitcnt vmcnt(0)
  ds_write_b32 v{V_FW}, v{V_T}
  s_branch {nm}_nf
{nm}_aa:
  s_mov_b64 exec, 1
  s_waitcnt vmcnt(0)
  ds_add_rtn_u32 v{V_F}, v{V_F}, v{VONE}
  s_waitcnt lgkmcnt(0)
  v_cmp_eq_u32 vcc, 3, v{V_F}
  s_mov_b64 exec, 0xff
  s_cbranch_vccz {nm}_ab
  buffer_store_dword v{V_Z}, v{PZ + 1}, s[8:11], s{S_FL} offen sc1
{nm}_ab:
  s_mov_b64 exec, -1
{nm}_nf:""")
    at2(b, ps, 1, None, 1)
    b.raw(pissue(nm + "_p0"))
    ra = "sc1"
    b.I("buffer_load_dwordx4", v(RX, 4), v(0), WS, s(S_R), mods="offen " + ra)
    b.I("buffer_load_dwordx4", v(RE, 4), v(VRE), WS, s(S_R), mods="offen offset:1024 " + ra)
    b.I("v_and_b32", v(t1), 15, v(LANE))
    b.I("v_and_b32", v(t0), 1, v(LANE))
    b.I("v_lshlrev_b32", v(t0), 4, v(t0))
    b.I("v_mov_b32", v(T + 2), 0x3f80)
    b.I("v_lshlrev_b32", v(T + 2), v(t0), v(T + 2))
    b.I("v_lshrrev_b32", v(t1), 1, v(t1))
    for r in range(8):
        b.I("v_cmp_eq_u32_e64", s(28 if r % 2 == 0 else 32, 2), r, v(t1))
        if r > 0:
            b.I("v_cndmask_b32_e64", v(A1 + r - 1), 0, v(T + 2), s(28 if (r - 1) % 2 == 0 else 32, 2))
    b.I("v_cndmask_b32_e64", v(A1 + 7), 0, v(T + 2), s(32, 2))
    b.I("s_mul_i32", s(6), s(S_W3), 3072)
    b.I("s_add_u32", s(6), s(6), HO)
    b.I("v_add_u32", v(VHO), s(6), v(0))
    for r in range(4):
        b.I("v_mov_b32", v(T + 12 + r), 0)
        b.I("v_mov_b32", v(Y + r), 0)
    b.I("v_mov_b32", v(T + 10), fhex(OUTSCALE))
    b.I("s_cmp_lg_u32", s(S_FIN), 0)
    b.I("s_cbranch_scc1", f"{nm}_f1")
    snap = b.snapshot()
    b.I("buffer_load_dwordx4", v(RY, 4), v(0), WS, s(S_R), mods="offen offset:2048 " + ra)
    xn_setup(b, 1, LOFF)
    b.I("s_branch", f"{nm}_f2")
    b.restore(snap)
    b.label(f"{nm}_f1")
    b.I("s_load_dwordx2", s(48, 2), s(0, 2), 80)
    b.I("v_and_b32", v(t0), 15, v(LANE))
    b.I("v_lshlrev_b32", v(VQ), 4, v(t0))
    b.I("v_lshl_add_u32", v(VQ), v(GH), 8, v(VQ))
    b.I("v_mul_u32_u24", v(t0), 576, v(GL))
    b.I("v_add_u32", v(VQ), v(VQ), v(t0))
    b.I("v_lshrrev_b32", v(t0), 1, v(DS))
    b.I("v_mul_u32_u24", v(t0), 576, v(t0))
    b.I("v_lshl_add_u32", v(t0), v(CQ), 4, v(t0))
    b.I("v_lshl_add_u32", v(t0), v(GL), 3, v(t0))
    b.I("v_add_u32", v(t0), 512, v(t0))
    b.I("v_and_b32", v(t1), 0x24, v(LANE))
    b.I("v_lshl_add_u32", v(VQE), v(t1), 24, v(t0))
    b.I("s_mov_b32", s(50), S * D * 2)
    b.I("s_mov_b32", s(51), 0x20000)
    b.wait(lgkm=0)
    b.label(f"{nm}_f2")
    b.vmq, b.lgq = [], []
    b.I("s_cmp_ge_u32", s(S_W), 4)
    b.I("s_cbranch_scc1", f"{nm}_B0")

    def kc(a_, h, jj):
        return a_ * 4 + h * 2 + jj, jj * 589824 + ((1 - a_) * 73728 if al else a_ * 9216) + h * 4096, 3 + 16 * h + 8 * a_ + 4 * jj

    if P["psta"]:
        at2(b, ps, 6, None, 6)
    b.raw(f"""  s_cmp_lg_u32 s{S_W}, 1
  s_cbranch_scc1 {nm}_Pe
  s_mov_b32 s{S_TH}, {P["bh1"] + 1}
  s_mov_b32 s{S_CNT}, 0x40000
  v_mov_b32 v{V_T}, 4
{nm}_Pl:
  ds_read_b32 v{V_F}, v{V_FR} offset:1024
  s_waitcnt lgkmcnt(0)
{nm}_Pc:
  v_cmp_gt_u32 vcc, s{S_TH}, v{V_F}
  s_cbranch_vccnz {nm}_Pw
  s_mov_b64 exec, 1
  buffer_store_dword v{V_Z}, v{V_T}, s[8:11], s{S_FL} offen sc1
  s_mov_b64 exec, -1
  s_add_u32 s{S_FL}, s{S_FL}, 2048
  s_add_u32 s{S_TH}, s{S_TH}, 1
  s_cmp_le_u32 s{S_TH}, {P["bh1"] + 8}
  s_cbranch_scc1 {nm}_Pc
  s_branch {nm}_Pd
{nm}_Pw:
  s_sleep {P["psl2"]}
  s_sub_u32 s{S_CNT}, s{S_CNT}, 1
  s_cbranch_scc0 {nm}_Pl
{nm}_Pd:
  s_mov_b64 exec, 1
  ds_or_b32 v{VMW}, v{V_T}
  s_mov_b64 exec, -1
{at2(b, ps, 1, None, 7, True)}{nm}_Pe:""")
    gate = f"  s_bitcmp1_b32 s{S_MASK}, 2\n  s_cbranch_scc0 {nm}_A3\n" if P["gateb"] else ""
    txt = f"""  s_mov_b32 s{S_PEND}, {ABITS | 2}
  s_mov_b32 s{S_CNT}, 0x20000
{nm}_Al:
  s_cmp_eq_u32 s{S_EX}, 0
  s_cbranch_scc1 {nm}_Ar
{POLL}  s_branch {nm}_Ag
{nm}_Ar:
{READ}{nm}_Ag:
{gate}  s_and_b32 s{S_RDY}, s{S_MASK}, s{S_PEND}
  s_cbranch_scc0 {nm}_A3
  s_andn2_b32 s{S_PEND}, s{S_PEND}, s{S_RDY}
"""
    u = 0
    for jj in range(2):
        for a_ in range(2):
            k, c, bit = kc(a_, 0, jj)
            txt += f"""  s_bitcmp1_b32 s{S_RDY}, {bit}
  s_cbranch_scc0 {nm}_A{u}
  s_add_u32 s6, s{S_P}, {c}
  buffer_load_dwordx4 v[{PB + 4 * k}:{PB + 4 * k + 3}], v{VP}, s[8:11], s6 offen sc1
  buffer_load_dwordx4 v[{PB1 + 4 * k}:{PB1 + 4 * k + 3}], v{VP}, s[8:11], s6 offen offset:256 sc1
{nm}_A{u}:
"""
            u += 1
    txt += f"""  s_cmp_eq_u32 s{S_PEND}, 2
  s_cbranch_scc1 {nm}_Ad
  s_sleep {P["gsl"]}
{pissue(nm + "_Ap")}  s_sub_u32 s{S_CNT}, s{S_CNT}, 1
  s_cbranch_scc0 {nm}_Al
{nm}_Ad:
"""
    if P["psta"]:
        txt += at2(b, ps, 5, None, 5, True)
    for hh in range(2):
        txt += f"  buffer_load_dwordx2 v[{PB + 32 + 2 * hh}:{PB + 33 + 2 * hh}], v{VPX}, s[8:11], s{S_PXS} offen offset:{512 * hh} sc1\n"
        txt += f"  buffer_load_dwordx2 v[{PB1 + 32 + 2 * hh}:{PB1 + 33 + 2 * hh}], v{VPX}, s[8:11], s{S_PXS} offen offset:{512 * hh + 128} sc1\n"
    txt += f"""  s_mov_b32 s{S_EX}, 0
  s_waitcnt vmcnt(0)"""
    b.raw(txt)
    at2(b, ps, 3, None, 3)
    for (pb, la) in ((PB1, LACC1), (PB, LACC)):
        b.I(MF, v(la + 8, 4), v(A1, 4), v(pb + 32, 4), "0")
        for jj in range(2):
            for a_ in range(2):
                d = v(la + 4 * a_, 4)
                b.I(MF, d, v(A1, 4), v(pb + 4 * kc(a_, 0, jj)[0], 4), "0" if jj == 0 else d)
    dpp = "row_half_mirror row_mask:0x3 bank_mask:0x5"
    for r in range(4):
        b.I("v_add_f32_dpp", v(Y + r), v(LACC1 + 8 + r), v(LACC1 + 8 + r), mods=dpp)
    b.I("ds_write_b128", v(VHO), v(LACC1, 4))
    b.I("ds_write_b128", v(VHO), v(LACC1 + 4, 4), mods="offset:1024")
    b.I("ds_write_b128", v(VHO), v(Y, 4), mods="offset:2048")
    b.I("v_mov_b32", v(V_T), s(S_HOB))
    b.I("s_mov_b64", "exec", 1)
    b.I("ds_or_b32", v(VMW), v(V_T))
    b.I("s_mov_b64", "exec", -1)
    for r in range(4):
        b.I("v_add_f32_dpp", v(T + 12 + r), v(LACC + 8 + r), v(LACC + 8 + r), mods=dpp)
    b.I("s_mov_b32", s(S_PEND), BBITS)
    b.I("s_branch", f"{nm}_B1")
    b.label(f"{nm}_B0")
    b.I("s_or_b32", s(S_PEND), s(S_HOB), BBITS)
    b.label(f"{nm}_B1")
    txt = f"""  s_mov_b32 s{S_CNT}, 0x20000
{nm}_Bl:
  s_cmp_eq_u32 s{S_EX}, 0
  s_cbranch_scc1 {nm}_Br
{POLL}  s_cmp_eq_u32 s{S_EX}, 0
  s_cbranch_scc1 {nm}_Bg
  s_sleep {P["gslb"]}
{pissue(nm + "_Bp")}  s_branch {nm}_Bn
{nm}_Br:
{READ}{nm}_Bg:
  s_and_b32 s{S_RDY}, s{S_MASK}, s{S_PEND}
  s_cbranch_scc0 {nm}_Bs
"""
    u = 0
    for jj in range(2):
        for a_ in range(2):
            k, c, bit = kc(a_, 1, jj)
            txt += f"""  s_bitcmp1_b32 s{S_RDY}, {bit}
  s_cbranch_scc0 {nm}_Bu{u}
  s_add_u32 s6, s{S_P}, {c}
  buffer_load_dwordx4 v[{PB + 4 * k}:{PB + 4 * k + 3}], v{VP}, s[8:11], s6 offen sc1
{nm}_Bu{u}:
"""
            u += 1
    txt += f"""  s_and_b32 s6, s{S_RDY}, 0xffff
  s_cbranch_scc0 {nm}_Bh
  ds_read_b128 v[{LACC}:{LACC + 3}], v{VHO}
  ds_read_b128 v[{LACC + 4}:{LACC + 7}], v{VHO} offset:1024
  ds_read_b128 v[{T + 12}:{T + 15}], v{VHO} offset:2048
{nm}_Bh:
  s_andn2_b32 s{S_PEND}, s{S_PEND}, s{S_RDY}
  s_cbranch_scc0 {nm}_Bd
{nm}_Bs:
  s_sleep {P["lsl"]}
{nm}_Bn:
  s_sub_u32 s{S_CNT}, s{S_CNT}, 1
  s_cbranch_scc0 {nm}_Bl
{nm}_Bd:"""
    b.raw(txt)
    b.hist, b.vmq, b.lgq = [], [], []
    at2(b, ps, 2, 9, 2)
    b.force_wait("vmcnt(4)")
    for i in range(4):
        unpack(b, X + 2 * i, RX + i)
    for i in range(2):
        unpack(b, X + 8 + 2 * i, RE + i)
    for i in range(4):
        unpack(b, Y + 2 * i, RY + i)
    for i in range(2):
        unpack(b, Y + 8 + 2 * i, RE + 2 + i)
    b.force_wait("lgkmcnt(0)")
    SC = T + 10
    for i in range(2):
        b.I("v_pk_fma_f32", v(X + 8 + 2 * i, 2), v(T + 12 + 2 * i, 2), v(SC, 2), v(X + 8 + 2 * i, 2), mods="op_sel_hi:[1,0,1]")
    b.force_wait("vmcnt(0)")
    for jj in range(2):
        for a_ in range(2):
            d = v(LACC + 4 * a_, 4)
            b.I(MF, d, v(A2, 4), v(PB + 4 * kc(a_, 1, jj)[0], 4), d)
    at2(b, ps, 4, None, 4)
    for i in range(4):
        b.I("v_pk_fma_f32", v(X + 2 * i, 2), v(LACC + 2 * i, 2), v(SC, 2), v(X + 2 * i, 2), mods="op_sel_hi:[1,0,1]")
    b.I("s_cmp_lg_u32", s(S_FIN), 0)
    b.I("s_cbranch_scc0", f"{name}_ln1")
    snap = b.snapshot()
    for i in range(6):
        b.I("v_cvt_pk_bf16_f32", v(RX + i), v(X + 2 * i), v(X + 2 * i + 1))
    b.I("v_permlane16_swap_b32", v(RX), v(RX + 2))
    b.I("v_permlane16_swap_b32", v(RX + 1), v(RX + 3))
    b.I("buffer_store_dwordx4", v(RX, 4), v(VQ), IO, s(S_B), mods="offen " + P["oaux"])
    b.I("buffer_store_dwordx2", v(RE, 2), v(VQE), IO, s(S_B), mods="offen " + P["oaux"])
    b.wait_all()
    ps.at(10)
    ps.dump()
    tl.end(b)
    b.I("s_endpgm")
    b.restore(snap)
    b.label(f"{name}_ln1")
    ln_math(b, 1, P, Stamps(b, False))
    if not P["psta"] and not P.get("pl0"):
        ps.at(5)


class PTail(Tail):
    def finish(self, b, role):
        b.I("s_branch", f"{self.name}_seam")


def k_per2(n0, b=None, **kw):
    P = dict(DEF)
    P.update(LDEF)
    P.update(dict(gsl=2, gslb=1, lsl=1, thr=2, sprio=0, oaux="", pst=False, zpub=CNT, psta=False, pern=3, bh1=23, psl2=1, ysl=2, ysl2=1, ycp=4, ypw=0, yspec=False, wdk=8, gateb=False))
    P.update(kw)
    USE.update({k: int(k in P.get("lo", "xph")) for k in USE})
    if USE["a"]:
        assert not USE["p"] and not USE["h"]
        P["pns"] = 9216
    b = b or AB()
    name = "per"
    ps = PSt(b, P["pst"])
    SKIP.clear()
    if P.get("pl0"):
        SKIP.update({1, 3})
    if P.get('fst'):
        SKIP.update({2, 4})
    if P.get("pl0"):
        P["hook0"] = lambda: ps.at(5)
        P["hook1"] = lambda: b.raw("  s_memrealtime s[98:99]\n  s_waitcnt lgkmcnt(0)\n  s_mov_b32 s100, s98")
        P["hook3"] = "  s_memrealtime s[82:83]\n  s_waitcnt lgkmcnt(0)\n  s_mov_b32 s101, s82\n"
        P["hook2"] = lambda: b.raw("  s_memrealtime s[98:99]\n  s_waitcnt lgkmcnt(0)")
    ln_phase(b, n0, 0, P, f"{name}_end")
    if P.get("pl0"):
        ps.at(3)
    b.I("s_branch", f"{name}_pub")
    seam(b, name, P, ps)
    b.vmq, b.lgq = [], []
    b.label(f"{name}_pub")
    publish(b, name, P)
    def l0(i, k):
        b.raw(f"  s_cmp_lg_u32 s{S_LO}, 0\n  s_cbranch_scc1 l0_{k}\n  s_memrealtime s[{60 + 2 * i}:{61 + 2 * i}]\n  s_waitcnt lgkmcnt(0)\nl0_{k}:")
    if P.get("pl0"):
        l0(6, 0)
    elif not P["psta"]:
        ps.at(6)
    b.I("s_cmp_ge_u32", s(S_W), 4)
    b.I("s_cbranch_scc1", f"{name}_B")
    snap = b.snapshot()
    tail = PTail(name, P)
    cnt = [0]

    def after():
        ps.at(7)
        if P.get("pl0"):
            cnt[0] += 1
            l0(1, cnt[0])
    tail.after = after
    ffn_role(b, "A", P, name, tail)
    b.restore(snap)
    b.raw(".p2align 6")
    b.label(f"{name}_B")
    ffn_role(b, "B", P, name, tail)
    b.label(f"{name}_end")
    b.I("s_endpgm")
    return b
```

```python
from ab import *
from lay import *
import tl
from k_ffn4 import *
from k_ffn4 import ffn_role, DEF

YS_LDS, XT = 0, 16384
LANE, CQ, DS, G, GL, GH = 5, 90, 91, 92, 93, 94
VP, VPX, VQ, VQE = 96, 97, 98, 99
PB = 100
RX, RE, RY = 136, 140, 144
A1, A2 = 148, 152
LACC = 156
X, Y, T = 168, 180, 192
XO, VXS, VXR, VXW, VXE = 208, 216, 217, 218, 219
VYD, YA0, YA1, YAE = 220, 221, 222, 223
PFD, PFA = 224, 228
VRE = 229
S_P, S_PXS, S_R, S_XFO, S_XFG, S_XS, S_TOK, S_A, S_B, S_LAY = 40, 41, 42, 43, 44, 45, 46, 47, 52, 53
S_LO = 57
USE = dict(x=1, p=1, h=1, a=0)
IO = s(48, 4)
WS = s(8, 4)
VALID = 0x0F0F0F0F


def pf_code(b, name, first, last):
    b.raw(f"  s_getpc_b64 s[54:55]\n{name}_pc:")
    b.raw(f"  s_add_u32 s54, s54, {first}-{name}_pc\n  s_addc_u32 s55, s55, 0" if True else "")
    b.I("s_lshr_b32", s(56), s(2), 3)
    b.I("s_lshl_b32", s(56), s(56), 13)
    b.I("v_add_u32", v(PFA), s(56), v(PFA))
    b.raw(f"  v_min_u32 v{PFA}, {last}-{first}-16, v{PFA}")
    b.I("global_load_dwordx4", v(PFD, 4), v(PFA), s(54, 2))


def ffn_setup(b):
    if USE.get("x2"):
        b.I("v_lshrrev_b32", v(1), 1, v(0))
        b.I("v_add_u32", v(2), 0x20000 >> (USE["x2"] - 1), v(1))
    else:
        b.I("v_add_u32", v(1), 0x10000, v(0))
        b.I("v_add_u32", v(2), 0x20000, v(0))
    b.I("v_and_b32", v(6), 15, v(5))
    b.I("v_lshrrev_b32", v(7), 4, v(5))
    b.I("v_lshl_add_u32", v(6), v(6), 2, v(7))
    b.I("v_lshlrev_b32", v(VS), 4, v(6))
    if USE.get("x2") == 2:
        b.I("v_add_u32", v(VS2), 0x20000, v(1))
    else:
        b.I("v_lshlrev_b32", v(VS2), 3, v(6))
    if USE.get("raw"):
        b.I("v_bfe_u32", v(6), v(5), 3, 1)
        b.I("v_lshrrev_b32", v(7), 4, v(5))
        b.I("v_xor_b32", v(7), v(7), v(6))
        b.I("v_lshl_add_u32", v(6), v(6), 2, v(7))
        b.I("v_and_b32", v(7), 7, v(5))
        b.I("v_lshlrev_b32", v(7), 3, v(7))
        b.I("v_lshl_add_u32", v(6), v(6), 6, v(7))
        if USE["raw"] == 2:
            b.I("s_cmp_eq_u32", s(S_LO), 0)
            b.I("s_cselect_b64", "vcc", -1, 0)
            b.I("v_cndmask_b32", v(1), v(6), v(1), "vcc")
        elif not USE.get("lin"):
            b.I("v_mov_b32", v(1), v(6))
        b.I("v_add_u32", v(2), 0x20000, v(1))
    b.I("s_lshl_b32", s(13), s(4), 1)
    b.I("s_add_u32", s(13), s(13), s(12))
    b.I("s_xor_b32", s(14), s(13), 1)
    b.I("s_mul_i32", s(6), s(13), 9)
    b.I("s_add_u32", s(7), s(6), s(S_W))
    b.I("s_mul_i32", s(S_GU), s(7), 18 * 4096)
    b.I("s_add_u32", s(S_GU), s(S_GU), WGU)
    b.I("s_add_u32", s(7), s(6), 8)
    b.I("s_mul_i32", s(S_GUX), s(7), 18 * 4096)
    b.I("s_lshl_b32", s(7), s(S_W), 10)
    b.I("s_add_u32", s(S_GUX), s(S_GUX), s(7))
    b.I("s_add_u32", s(S_GUX), s(S_GUX), WGU)
    b.I("s_and_b32", s(19), s(S_W), 3)
    b.I("s_lshl_b32", s(S_XL), s(19), 11)
    b.I("s_lshl_b32", s(S_W8), s(19), 13)
    b.I("s_mul_i32", s(S_XG), s(5), 147456)
    b.I("s_add_u32", s(S_XG), s(S_XG), s(S_XL))
    b.I("s_add_u32", s(S_XG), s(S_XG), XN)
    if USE["x"]:
        b.I("s_add_u32", s(S_XG), s(S_XG), s(S_LO))
    b.I("s_mul_i32", s(15), s(12), 18 * 1024)
    b.I("s_add_u32", s(15), s(15), WD)
    b.I("s_lshl_b32", s(16), s(S_W), 11)
    b.I("s_and_b32", s(17), s(S_W), 1)
    b.I("s_lshl_b32", s(17), s(17), 10)
    b.I("s_add_u32", s(17), s(17), 16 * 1024)
    for (sm, sx, f) in ((S_DO, S_DOX, 13), (S_DP, S_DPX, 14)):
        b.I("s_mul_i32", s(7), s(f), 9 * 36 * 1024)
        b.I("s_add_u32", s(7), s(7), s(15))
        b.I("s_add_u32", s(sm), s(7), s(16))
        b.I("s_add_u32", s(sx), s(7), s(17))
    if USE["a"]:
        b.I("s_lshl_b32", s(7), s(5), 4)
        b.I("s_add_u32", s(7), s(7), s(14))
        b.I("s_mul_i32", s(7), s(7), 73728)
        b.I("s_add_u32", s(7), s(7), HX)
    else:
        b.I("s_lshl_b32", s(7), s(5), 3)
        b.I("s_add_u32", s(7), s(7), s(4))
        b.I("s_mul_i32", s(7), s(7), 8 * 18432)
        b.I("s_mul_i32", s(15), s(12), 9 * 1024)
        b.I("s_add_u32", s(7), s(7), s(15))
        b.I("s_add_u32", s(7), s(7), PART)
    if USE["p"]:
        b.I("s_add_u32", s(7), s(7), s(S_LO))
    b.I("s_lshl_b32", s(15), s(S_W), 10)
    b.I("s_add_u32", s(S_PM), s(7), s(15))
    b.I("s_and_b32", s(15), s(S_W), 1)
    b.I("s_lshl_b32", s(15), s(15), 9)
    b.I("s_add_u32", s(S_PX), s(7), s(15))
    b.I("s_add_u32", s(S_PX), s(S_PX), 8192)
    b.I("s_cmp_ge_u32", s(S_W), 4)
    b.I("s_cselect_b32", s(17), 5 * 8192, 0)
    b.I("s_cselect_b32", s(16), 10 * 8192, 0)
    b.I("s_add_u32", s(17), s(17), s(S_W8))
    b.I("s_add_u32", s(16), s(16), s(S_W8))
    b.I("v_add_u32", v(V_HW), s(16), v(0))
    b.I("s_lshl_b32", s(7), s(5), 4)
    for (sh, shx, sf, f) in ((S_HO, S_HOX, S_FO, 13), (S_HP, S_HPX, S_FP, 14)):
        b.I("s_add_u32", s(15), s(7), s(f))
        b.I("s_lshl_b32", s(sf), s(15), 8)
        b.I("s_add_u32", s(sf), s(sf), s(S_LAY))
        b.I("s_lshl_b32", s(16), s(S_W if sf == S_FO else 19), 5)
        b.I("s_add_u32", s(sf), s(sf), s(16))
        b.I("s_mul_i32", s(15), s(15), 73728)
        b.I("s_add_u32", s(15), s(15), HX)
        if USE["h"]:
            b.I("s_add_u32", s(15), s(15), s(S_LO))
        b.I("s_add_u32", s(sh), s(15), s(17 if sh == S_HO else S_W8))
        b.I("s_add_u32", s(shx), s(15), s(S_XL))
        b.I("s_add_u32", s(shx), s(shx), 32768)
    b.I("s_lshl_b32", s(7), s(S_W), 2)
    b.I("s_add_u32", s(7), s(7), 4 * 8192)
    b.I("v_add_u32", v(V_HWX), s(7), v(0))
    b.I("v_and_b32", v(6), 3, v(5))
    b.I("v_lshlrev_b32", v(6), 8, v(6))
    b.I("v_add_u32", v(V_FR), LDS_FX, v(6))
    b.I("s_cmp_eq_u32", s(S_W), 2)
    b.I("s_cselect_b32", s(7), 1, 0)
    b.I("s_cmp_eq_u32", s(S_W), 3)
    b.I("s_cselect_b32", s(7), 1, s(7))
    b.I("s_lshl_b32", s(S_H4), s(7), 10)
    b.I("s_mul_i32", s(7), s(7), 9216 if USE["a"] else 18432)
    b.I("s_sub_u32", s(S_PMH), s(S_PM), s(7))
    b.I("s_add_u32", s(S_PM), s(S_PM), s(7))
    b.I("s_add_u32", s(S_PX), s(S_PX), s(7))


def xn_setup(b, layer, LO=0):
    b.I("s_mov_b32", s(S_LO), layer * LO)
    b.I("s_mov_b32", s(S_LAY), FLG + layer * FLG_L)
    b.I("s_lshl_b32", s(S_XFO), s(2), 7)
    b.I("s_add_u32", s(S_XFO), s(S_XFO), XF + layer * FLG_L)
    b.I("s_lshl_b32", s(S_XFG), s(5), 11)
    b.I("s_add_u32", s(S_XFG), s(S_XFG), XF + layer * FLG_L)
    b.I("s_mul_i32", s(S_XS), s(5), 147456)
    b.I("s_lshl_b32", s(7), s(4), 10)
    b.I("s_add_u32", s(S_XS), s(S_XS), s(7))
    b.I("s_lshl_b32", s(7), s(12), 8 if USE.get("raw") else 7)
    b.I("s_add_u32", s(S_XS), s(S_XS), s(7))
    b.I("s_lshl_b32", s(7), s(S_W), 14)
    b.I("s_add_u32", s(S_XS), s(S_XS), s(7))
    b.I("s_add_u32", s(S_XS), s(S_XS), XN + layer * LO * USE['x'])
    t0, t1 = T, T + 1
    if USE.get("raw"):
        b.I("v_xor_b32", v(t0), v(CQ), v(G))
        b.I("v_lshlrev_b32", v(VXS), 4, v(t0))
        b.I("v_xor_b32", v(t0), s(12), v(DS))
        b.I("v_lshl_add_u32", v(VXS), v(t0), 6, v(VXS))
        b.I("v_lshl_add_u32", v(VXS), v(GL), 9, v(VXS))
        b.I("v_lshl_add_u32", v(VXS), v(GH), 13, v(VXS))
        b.I("s_lshl_b32", s(7), s(S_W), 10)
        b.I("s_add_u32", s(7), s(7), XT)
        b.I("v_add_u32", v(VXR), s(7), v(0))
        b.I("s_lshr_b32", s(6), s(S_W), 1)
        b.I("s_and_b32", s(7), s(S_W), 1)
        b.I("s_lshl_b32", s(7), s(7), 3)
        b.I("s_add_u32", s(7), s(7), XT)
        b.I("v_lshl_add_u32", v(t0), v(GL), 2, v(CQ))
        b.I("v_lshl_add_u32", v(t1), v(GH), 2, v(DS))
        b.I("v_lshl_add_u32", v(VXW), v(t1), 3, v(t0))
        b.I("v_lshrrev_b32", v(t1), 1, v(DS))
        b.I("v_mul_u32_u24", v(VXE), 72, v(t1))
        b.I("v_add_u32", v(VXE), v(VXE), v(t0))
        for r in (VXW, VXE):
            b.I("v_bfe_u32", v(t1), v(r), 2, 2)
            b.I("v_xor_b32", v(t1), s(6), v(t1))
            b.I("v_lshlrev_b32", v(t1), 4, v(t1))
            b.I("v_lshl_add_u32", v(r), v(r), 6, v(t1))
            b.I("v_add_u32", v(r), s(7), v(r))
        b.I("v_xor_b32", v(XO + 6), 32, v(VXW))
        return
    b.I("v_lshrrev_b32", v(t0), 3, v(LANE))
    b.I("v_and_b32", v(t1), 7, v(LANE))
    b.I("v_xor_b32", v(t1), v(t1), v(t0))
    b.I("v_lshlrev_b32", v(VXS), 4, v(t1))
    b.I("v_and_b32", v(t1), 3, v(t0))
    b.I("v_lshl_add_u32", v(VXS), v(t1), 8, v(VXS))
    b.I("v_lshl_add_u32", v(VXS), v(GH), 13, v(VXS))
    b.I("s_lshl_b32", s(7), s(S_W), 10)
    b.I("s_add_u32", s(7), s(7), XT)
    b.I("v_add_u32", v(VXR), s(7), v(0))
    b.I("v_and_b32", v(t0), 15, v(LANE))
    b.I("v_lshl_add_u32", v(t0), v(GH), 4, v(t0))
    b.I("v_mad_u32_u24", v(t0), v(GL), 36, v(t0))
    b.I("v_and_b32", v(t1), 7, v(t0))
    b.I("v_xor_b32", v(t1), s(S_W), v(t1))
    b.I("v_lshlrev_b32", v(t1), 4, v(t1))
    b.I("v_lshl_add_u32", v(VXW), v(t0), 7, v(t1))
    b.I("v_add_u32", v(VXW), XT, v(VXW))
    b.I("v_lshrrev_b32", v(t0), 1, v(DS))
    b.I("v_mad_u32_u24", v(t0), v(t0), 36, v(CQ))
    b.I("v_and_b32", v(t1), 7, v(t0))
    b.I("v_xor_b32", v(t1), s(S_W), v(t1))
    b.I("v_lshlrev_b32", v(t1), 4, v(t1))
    b.I("v_lshl_add_u32", v(VXE), v(t0), 7, v(t1))
    b.I("v_lshl_add_u32", v(VXE), v(GL), 3, v(VXE))
    b.I("v_add_u32", v(VXE), XT + 32 * 128, v(VXE))


def allreduce2(b, x0, x1, t0, t1):
    for m in ("quad_perm:[1,0,3,2]", "quad_perm:[2,3,0,1]", "row_half_mirror", "row_mirror"):
        for x in (x0, x1):
            b.I("v_add_f32_dpp", v(x), v(x), v(x), mods=m + " row_mask:0xf bank_mask:0xf")
    for op in ("v_permlane16_swap_b32", "v_permlane32_swap_b32"):
        b.I("v_mov_b32", v(t0), v(x0))
        b.I("v_mov_b32", v(t1), v(x1))
        b.I(op, v(t0), v(x0))
        b.I(op, v(t1), v(x1))
        b.I("v_add_f32", v(x0), v(x0), v(t0))
        b.I("v_add_f32", v(x1), v(x1), v(t1))


def rbf(b, x):
    b.I("v_cvt_pk_bf16_f32", v(x), v(x), v(x))
    b.I("v_lshlrev_b32", v(x), 16, v(x))


def stats(b, scale=None):
    p0, p1, q0, q1 = T, T + 2, T + 4, T + 6
    R, M = T + 8, T + 10
    b.I("v_pk_add_f32", v(p0, 2), v(X, 2), v(X + 2, 2))
    b.I("v_pk_mul_f32", v(q0, 2), v(X, 2), v(X, 2))
    b.I("v_pk_add_f32", v(p1, 2), v(X + 4, 2), v(X + 6, 2))
    b.I("v_pk_mul_f32", v(q1, 2), v(X + 2, 2), v(X + 2, 2))
    b.I("v_pk_add_f32", v(p0, 2), v(p0, 2), v(X + 8, 2))
    b.I("v_pk_fma_f32", v(q0, 2), v(X + 4, 2), v(X + 4, 2), v(q0, 2))
    b.I("v_pk_add_f32", v(p1, 2), v(p1, 2), v(X + 10, 2))
    b.I("v_pk_fma_f32", v(q1, 2), v(X + 6, 2), v(X + 6, 2), v(q1, 2))
    b.I("v_pk_fma_f32", v(q0, 2), v(X + 8, 2), v(X + 8, 2), v(q0, 2))
    b.I("v_pk_fma_f32", v(q1, 2), v(X + 10, 2), v(X + 10, 2), v(q1, 2))
    b.I("v_pk_add_f32", v(p0, 2), v(p0, 2), v(p1, 2))
    b.I("v_pk_add_f32", v(q0, 2), v(q0, 2), v(q1, 2))
    b.I("v_add_f32", v(M), v(p0), v(p0 + 1))
    b.I("v_add_f32", v(R), v(q0), v(q0 + 1))
    allreduce2(b, M, R, T, T + 1)
    b.I("v_mul_f32", v(M), fhex(-1.0 / 576), v(M))
    b.I("v_mul_f32", v(R), fhex(1.0 / 576), v(R))
    b.I("v_fma_f32", v(R), "-" + v(M), v(M), v(R))
    b.I("v_cvt_pk_bf16_f32", v(M), v(M), v(M))
    b.I("v_max_f32", v(R), 0, v(R))
    b.I("v_lshlrev_b32", v(M), 16, v(M))
    rbf(b, R)
    b.I("v_add_f32", v(R), fhex(1e-5), v(R))
    rbf(b, R)
    b.I("v_sqrt_f32", v(R), v(R))
    rbf(b, R)
    b.I("v_rcp_f32", v(R), v(R))
    if scale is not None:
        b.I("v_mul_f32", v(R), fhex(scale), v(R))
    b.I("v_mul_f32", v(M), v(M), v(R))
    return R, M


def unpack(b, dst, src):
    b.I("v_lshlrev_b32", v(dst), 16, v(src))
    b.I("v_and_b32", v(dst + 1), 0xffff0000, v(src))


def entry_tail(b, name, P):
    b.raw(f"""  s_cmp_lg_u32 s{S_W}, 5
  s_cbranch_scc1 {name}_wm
  v_lshlrev_b32 v{V_T}, 6, v0
  s_lshl_b32 s15, s4, 7
  s_add_u32 s15, s15, {GFL + 0x8000}
  s_mov_b64 exec, 0xfffc0000
  s_mov_b32 s{S_CNT}, 0x20000
{name}_wl:
  buffer_load_dword v{V_Z}, v{V_T}, s[8:11], s15 offen sc1
  s_waitcnt vmcnt(0)
  {notset_t(P, V_Z)}
  s_cbranch_vccz {name}_we
  s_sleep 1
  s_sub_u32 s{S_CNT}, s{S_CNT}, 1
  s_cbranch_scc0 {name}_wl
{name}_we:
  s_mov_b64 exec, -1
{name}_wm:
  s_waitcnt vmcnt(0) lgkmcnt(0)
  s_barrier""")
    if P.get("hookp"):
        P["hookp"]()
    txt = f"  s_cmp_eq_u32 s39, 0\n  s_cbranch_scc1 {name}_yn\n"
    for r in range(2):
        if r:
            txt += f"  s_cmp_eq_u32 s39, 1\n  s_cbranch_scc1 {name}_yn\n"
        txt += f"  s_add_u32 s6, s{37 + r}, {36 * 1024}\n"
        for kl in range(2):
            for t in range(4):
                o = 16 + 32 * r + (kl * 4 + t) * 4
                txt += f"  buffer_store_dwordx4 v[{o}:{o + 3}], v0, s[8:11], s{6 if kl else 37 + r} offen offset:{t * 1024} sc1\n"
    b.raw(txt + f"{name}_yn:")


def ln_phase(b, name, mode, P, endlab):
    st = Stamps(b, P["stamps"] and mode != 2, base=60)
    fuse = P.get("fuse")
    dx = mode == 0 and P.get("dx")
    if fuse:
        b.hist, b.vmq, b.lgq = [], [], []
        b.label(name)
        b.I("s_setprio", 0)
        b.I("s_load_dwordx2", s(48, 2), s(0, 2), 0)
        b.I("v_mov_b32", v(7), P["gcnt"] + 8)
        b.I("ds_read_b64", v(8, 2), v(7))
        b.I("v_mbcnt_lo_u32_b32", v(0), -1, 0)
        b.I("v_mbcnt_hi_u32_b32", v(0), -1, v(0))
        b.I("s_lshl_b32", s(6), s(S_W), 6)
        b.I("v_add_u32", v(0), s(6), v(0))
    else:
        b.raw(f".globl {name}\n.p2align 8\n.type {name},@function\n{name}:")
        tl.start(b)
        b.I("s_load_dwordx2", s(8, 2), s(0, 2), 96)
        if mode != 1:
            b.I("s_load_dwordx2", s(48, 2), s(0, 2), 0 if mode == 0 else 80)
        b.I("s_cmp_ge_u32", s(2), 256)
        b.I("s_cbranch_scc1", endlab)
    st()
    if P.get("hook0"):
        P["hook0"]()
    if P.get("body"):
        st.on = False
    b.I("v_lshrrev_b32", v(4), 6, v(0))
    b.I("v_and_b32", v(LANE), 63, v(0))
    if not fuse:
        b.I("v_readfirstlane_b32", s(S_W), v(4))
    b.I("v_lshlrev_b32", v(PFA), 4, v(0))
    b.I("v_lshlrev_b32", v(6), 2, v(0))
    b.I("v_lshlrev_b32", v(0), 4, v(LANE))
    b.I("v_and_b32", v(CQ), 3, v(LANE))
    b.I("v_bfe_u32", v(DS), v(LANE), 2, 2)
    b.I("v_lshrrev_b32", v(G), 4, v(LANE))
    b.I("v_and_b32", v(GL), 1, v(G))
    b.I("v_lshrrev_b32", v(GH), 1, v(G))
    b.I("s_mov_b32", s(10), WS_BYTES)
    b.I("s_mov_b32", s(11), 0x20000)
    b.I("s_and_b32", s(4), s(2), 7)
    b.I("s_bfe_u32", s(12), s(2), 0x10003)
    b.I("s_lshr_b32", s(5), s(2), 4)
    b.I("s_lshl_b32", s(S_TOK), s(12), 3)
    b.I("s_add_u32", s(S_TOK), s(S_TOK), s(S_W))
    b.I("s_lshl_b32", s(S_R), s(2), 3)
    b.I("s_add_u32", s(S_R), s(S_R), s(S_W))
    b.I("s_mul_i32", s(S_R), s(S_R), 3072)
    b.I("s_add_u32", s(S_R), s(S_R), REC)
    t0, t1 = T, T + 1
    b.I("v_and_b32", v(t0), 0x24, v(LANE))
    b.I("v_lshrrev_b32", v(t1), 1, v(LANE))
    b.I("v_and_b32", v(t1), 12, v(t1))
    b.I("v_or_b32", v(t1), v(t1), v(CQ))
    b.I("v_lshlrev_b32", v(t1), 4, v(t1))
    b.I("v_lshl_add_u32", v(VRE), v(t0), 26, v(t1))
    if mode != 0:
        b.I("v_mul_u32_u24", v(VP), 147456, v(G))
        b.I("v_lshl_add_u32", v(VP), v(DS), 10, v(VP))
        b.I("v_lshl_add_u32", v(VP), v(CQ), 4, v(VP))
        b.I("s_lshl_b32", s(6), s(5), 6)
        b.I("s_add_u32", s(6), s(6), s(4))
        b.I("s_mul_i32", s(6), s(6), 18432)
        b.I("s_add_u32", s(6), s(6), PART)
        b.I("s_lshl_b32", s(7), s(S_TOK), 5)
        b.I("s_add_u32", s(S_PXS), s(6), s(7))
        b.I("s_add_u32", s(S_P), s(S_PXS), s(7))
        b.I("s_add_u32", s(S_PXS), s(S_PXS), 8192)
        b.I("v_and_b32", v(t0), 1, v(DS))
        b.I("v_lshl_add_u32", v(t1), v(t0), 2, v(G))
        b.I("v_mul_u32_u24", v(VPX), 147456, v(t1))
        b.I("v_mul_u32_u24", v(t0), 3, v(t0))
        b.I("v_xor_b32", v(t0), v(t0), v(CQ))
        b.I("v_lshl_add_u32", v(VPX), v(t0), 3, v(VPX))
        b.I("v_lshrrev_b32", v(t0), 1, v(DS))
        b.I("v_mul_u32_u24", v(t0), 9216, v(t0))
        b.I("v_add_u32", v(VPX), v(VPX), v(t0))
    if mode != 1:
        def qaddr():
            b.I("v_and_b32", v(t0), 15, v(LANE))
            b.I("v_lshlrev_b32", v(VQ), 4, v(t0))
            b.I("v_lshl_add_u32", v(VQ), v(GH), 8, v(VQ))
            b.I("v_mul_u32_u24", v(t0), 576, v(GL))
            b.I("v_add_u32", v(VQ), v(VQ), v(t0))
            b.I("v_lshrrev_b32", v(t0), 1, v(DS))
            b.I("v_mul_u32_u24", v(t0), 576, v(t0))
            b.I("v_lshl_add_u32", v(t0), v(CQ), 4, v(t0))
            b.I("v_lshl_add_u32", v(t0), v(GL), 3, v(t0))
            b.I("v_add_u32", v(t0), 512, v(t0))
            b.I("v_and_b32", v(t1), 0x24, v(LANE))
            b.I("v_lshl_add_u32", v(VQE), v(t1), 24, v(t0))
            b.I("s_mov_b32", s(50), S * D * 2)
            b.I("s_mov_b32", s(51), 0x20000)
            b.I("s_lshl_b32", s(S_A), s(5), 3)
            b.I("s_add_u32", s(S_A), s(S_A), s(4))
            b.I("s_lshl_b32", s(S_B), s(S_A), 4)
            b.I("s_add_u32", s(S_B), s(S_B), s(S_TOK))
            b.I("s_mul_i32", s(S_B), s(S_B), 1152)
        if mode == 0 and not dx:
            qaddr()
        if dx:
            b.I("s_mov_b32", s(50), S * D * 2)
            b.I("s_mov_b32", s(51), 0x20000)
            b.I("s_lshl_b32", s(S_A), s(5), 3)
            b.I("s_add_u32", s(S_A), s(S_A), s(4))
            b.I("s_lshl_b32", s(S_B), s(S_A), 4)
            b.I("s_add_u32", s(S_B), s(S_B), s(S_TOK))
            b.I("s_mul_i32", s(S_B), s(S_B), 1152)
        elif mode == 0 and P.get("ytag"):
            b.I("s_lshl_b32", s(S_A), s(S_A), 8)
            b.I("s_lshl_b32", s(7), s(12), 7)
            b.I("s_add_u32", s(S_A), s(S_A), s(7))
            b.I("s_add_u32", s(S_A), s(S_A), YB)
        elif mode == 0:
            b.I("v_xor_b32", v(t0), v(CQ), v(G))
            b.I("v_lshlrev_b32", v(t0), 4, v(t0))
            b.I("v_lshrrev_b32", v(t1), 2, v(LANE))
            BS, PS = (128, P["ystr"]) if P.get("ystr") else (18432, 128)
            if P.get("ystr"):
                b.I("v_mul_u32_u24", v(VYD), PS, v(t1))
                b.I("v_add_u32", v(VYD), v(VYD), v(t0))
            else:
                b.I("v_lshl_add_u32", v(VYD), v(t1), 7, v(t0))
            b.I("s_mul_i32", s(S_A), s(S_A), BS)
            b.I("s_lshl_b32", s(7), s(12), 6)
            b.I("s_add_u32", s(S_A), s(S_A), s(7))
            b.I("s_add_u32", s(S_A), s(S_A), YB)
            if P.get("ystr"):
                b.I("s_mul_i32", s(7), s(S_W), 16 * PS)
            else:
                b.I("s_lshl_b32", s(7), s(S_W), 11)
            b.I("s_add_u32", s(6), s(S_A), s(7))
            b.I("s_add_u32", s(S_A), s(S_A), 128 * PS)
            b.I("s_lshl_b32", s(7), s(S_W), 10)
    b.wait(lgkm=0)
    if fuse:
        b.I("v_readfirstlane_b32", s(P["tag"]), v(8))
        b.I("v_readfirstlane_b32", s(P["tag"] + 1), v(9))
    st()
    la = P["laux"]
    if dx:
        pass
    elif mode == 0:
        b.I("buffer_load_dwordx4", v(RX, 4), v(VQ), IO, s(S_B), mods="offen")
        b.I("buffer_load_dwordx2", v(RE, 2), v(VQE), IO, s(S_B), mods="offen")

        def ydma(sa, sb):
            ya = " sc1" if fuse else ""
            b.I("s_cmp_lg_u32", s(S_W), 0)
            b.I("s_cbranch_scc1", f"{name}_y8")
            b.raw(f"  s_mov_b32 m0, {YS_LDS + 8192}\n  s_nop 0\n  buffer_load_dwordx4 v{VYD}, s[8:11], s{S_A} offen{ya} lds")
            b.label(f"{name}_y8")
            b.I("s_add_u32", "m0", s(sb), YS_LDS)
            b.I("buffer_load_dwordx4", v(VYD), WS, s(sa), mods=f"offen{ya} lds", tag="y")
        if fuse and P.get("ytag"):
            tg = f"s[{P['tag']}:{P['tag'] + 1}]"
            MK, OF = [18, 20, 22, 24, 26], [15, 16, 17, 28, 29]
            PS = P["ystr"]
            a0, a1, fa, FZ = PB + 20, PB + 21, PB + 24, PB + 25
            b.I("s_and_b32", s(7), s(S_W), 3)
            b.I("s_mul_i32", s(13), s(7), 8 * PS)
            b.I("v_lshrrev_b32", v(a0), 3, v(LANE))
            b.I("v_and_b32", v(a1), 7, v(LANE))
            b.I("v_lshl_add_u32", v(fa), v(a0), 5, v(a1))
            b.I("v_lshlrev_b32", v(fa), 7, v(fa))
            b.I("s_and_b32", s(6), s(2), P["ycp"] - 1)
            b.I("s_mul_i32", s(14), s(6), 18432)
            b.I("s_lshl_b32", s(6), s(7), 10)
            b.I("s_add_u32", s(14), s(14), s(6))
            b.I("s_add_u32", s(14), s(14), GFY)
            b.I("s_cmp_lt_u32", s(7), 2)
            b.I("s_cselect_b64", s(MK[4], 2), -1, 0)
            b.I("s_mov_b64", s(32, 2), s(MK[4], 2))
            b.raw(f"""  s_cmp_ge_u32 s{S_W}, 4
  s_cbranch_scc1 {name}_y0
  s_and_b32 exec_hi, s26, 0xff
  buffer_load_dword v{FZ}, v{fa}, s[8:11], s14 offen sc1
  s_mov_b64 exec, -1
{name}_y0:""")
            b.I("s_add_u32", s(OF[0]), s(S_A), s(13))
            for m in range(1, 5):
                b.I("s_add_u32", s(OF[m]), s(OF[0]), m * 32 * PS)
            for m in range(4):
                b.I("s_mov_b64", s(MK[m], 2), -1)
            b.I("v_mul_u32_u24", v(VYD), PS, v(a0))
            b.I("v_lshl_add_u32", v(VYD), v(a1), 4, v(VYD))
            b.I("s_lshl_b32", s(6), s(7), 1)
            b.I("v_add_u32", v(a1 + 1), s(6), v(GH))
            b.I("v_and_b32", v(a1 + 1), 3, v(a1 + 1))
            b.I("v_lshrrev_b32", v(a1 + 2), 1, v(a1))
            b.I("v_xor_b32", v(a1 + 1), v(a1 + 1), v(a1 + 2))
            b.I("v_lshlrev_b32", v(a1 + 1), 4, v(a1 + 1))
            b.I("v_lshl_add_u32", v(a1 + 1), v(a0), 6, v(a1 + 1))
            b.I("v_and_b32", v(a1), 1, v(a1))
            b.I("v_lshl_add_u32", v(a1), v(a1), 3, v(a1 + 1))
            b.I("s_lshl_b32", s(6), s(7), 9)
            b.I("s_add_u32", s(6), s(6), P["ys"])
            b.I("v_add_u32", v(a1), s(6), v(a1))

            def yloads(k):
                txt = ""
                for m in range(5):
                    txt += f"""  s_mov_b64 exec, s[{MK[m]}:{MK[m] + 1}]
  s_cbranch_execz {name}_ys{k}{m}
  buffer_load_dwordx4 v[{PB + 4 * m}:{PB + 4 * m + 3}], v{VYD}, s[8:11], s{OF[m]} offen sc1
{name}_ys{k}{m}:
"""
                return txt + "  s_mov_b64 exec, -1\n"

            def ypre():
                skip = f"  s_cmp_lt_u32 s2, 144\n  s_cbranch_scc1 {name}_y2\n" if P["yspec"] else ""
                b.raw(f"""  s_cmp_ge_u32 s{S_W}, 4
  s_cbranch_scc1 {name}_y3
{skip}  s_and_b32 exec_hi, s26, 0xff
  s_mov_b32 s{S_CNT}, 0x20000
{name}_y1:
  v_cmp_ne_u32 vcc, s{P["tag"]}, v{FZ}
  s_cbranch_vccz {name}_y2
  s_mov_b64 exec, vcc
  s_sleep {P["ysl"]}
  buffer_load_dword v{FZ}, v{fa}, s[8:11], s14 offen sc1
  s_waitcnt vmcnt(0)
  s_sub_u32 s{S_CNT}, s{S_CNT}, 1
  s_cbranch_scc0 {name}_y1
{name}_y2:
{P.get("hook3", "")}{yloads(0)}{name}_y3:""")
            P["ypre"] = ypre

            def ywait():
                txt = f"""  s_cmp_ge_u32 s{S_W}, 4
  s_cbranch_scc1 {name}_yh
  s_mov_b32 s{S_CNT}, 0x20000
{name}_yl:
  s_waitcnt vmcnt(0)
"""
                for m in range(5):
                    txt += f"""  s_mov_b64 exec, s[{MK[m]}:{MK[m] + 1}]
  v_cmp_ne_u64 s[{MK[m]}:{MK[m] + 1}], {tg}, v[{PB + 4 * m + 2}:{PB + 4 * m + 3}]
"""
                txt += f"""  s_mov_b64 exec, -1
  s_nop 1
  s_or_b64 vcc, s[18:19], s[20:21]
  s_or_b64 vcc, vcc, s[22:23]
  s_or_b64 vcc, vcc, s[24:25]
  s_or_b64 vcc, vcc, s[26:27]
  s_cbranch_scc0 {name}_yd
  s_sleep {P["ysl2"]}
{yloads(1)}  s_sub_u32 s{S_CNT}, s{S_CNT}, 1
  s_cbranch_scc0 {name}_yl
  s_waitcnt vmcnt(0)
{name}_yd:"""
                b.raw(txt)
                if P.get("hook2"):
                    P["hook2"]()
                for m in range(4):
                    b.I("ds_write_b64", v(a1), v(PB + 4 * m, 2), mods=f"offset:{2048 * m}")
                b.I("s_mov_b64", "exec", s(32, 2))
                b.I("ds_write_b64", v(a1), v(PB + 16, 2), mods=f"offset:{2048 * 4}")
                b.I("s_mov_b64", "exec", -1)
                b.wait(lgkm=0)
                b.I("s_branch", f"{name}_yn")
                txt = f"{name}_yh:\n"
                if P.get("wdef"):
                    txt += f"""  s_cmp_eq_u32 s39, 0
  s_cbranch_scc1 {name}_yn
  v_mov_b32 v{a0}, {P["gcnt"]}
  s_mov_b32 s{S_CNT}, 0x40000
{name}_wt:
  ds_read_b32 v{a1}, v{a0}
  s_waitcnt lgkmcnt(0)
  v_cmp_gt_u32 vcc, 4, v{a1}
  s_cbranch_vccz {name}_wu
  s_sleep 2
  s_sub_u32 s{S_CNT}, s{S_CNT}, 1
  s_cbranch_scc0 {name}_wt
{name}_wu:
"""
                    if P.get("hook2"):
                        txt += "  s_memrealtime s[98:99]\n  s_waitcnt lgkmcnt(0)\n"
                    for r in range(2):
                        if r:
                            txt += f"  s_cmp_eq_u32 s39, 1\n  s_cbranch_scc1 {name}_yn\n"
                        txt += f"  s_add_u32 s6, s{37 + r}, {36 * 1024}\n"
                        for kl in range(2):
                            for t in range(4):
                                o = 16 + 32 * r + (kl * 4 + t) * 4
                                txt += f"  buffer_store_dwordx4 v[{o}:{o + 3}], v0, s[8:11], s{6 if kl else 37 + r} offen offset:{t * 1024} sc1\n"
                b.raw(txt + f"{name}_yn:")
            P["ywait"] = ywait
        elif fuse:
            b.I("s_mov_b32", s(13), s(6))
            b.I("s_mov_b32", s(14), s(7))

            def wout(a0, a1):
                txt = f"""  s_cmp_eq_u32 s39, 0
  s_cbranch_scc1 {name}_yn
  v_mov_b32 v{a0}, {P["gcnt"]}
  s_mov_b32 s{S_CNT}, 0x40000
{name}_wt:
  ds_read_b32 v{a1}, v{a0}
  s_waitcnt lgkmcnt(0)
  v_cmp_gt_u32 vcc, {4 + 256 * P.get("wak", 0)}, v{a1}
  s_cbranch_vccz {name}_wu
  s_sleep 2
  s_sub_u32 s{S_CNT}, s{S_CNT}, 1
  s_cbranch_scc0 {name}_wt
{name}_wu:
"""
                if P.get("wsl"):
                    txt += f"  s_sleep {P['wsl']}\n"
                if P.get("hook3"):
                    txt += P["hook3"]
                for r in range(2):
                    if r:
                        txt += f"  s_cmp_eq_u32 s39, 1\n  s_cbranch_scc1 {name}_yn\n"
                    txt += f"  s_add_u32 s6, s{37 + r}, {36 * 1024}\n"
                    for kl in range(2):
                        for t in range(4):
                            o = 16 + 32 * r + (kl * 4 + t) * 4
                            txt += f"  buffer_store_dwordx4 v[{o}:{o + 3}], v0, s[8:11], s{6 if kl else 37 + r} offen offset:{t * 1024} sc1\n"
                return txt

            def ywait2():
                Z, NP = PFD, P["ynp"]
                YS = P["ys"]
                ld = lambda i: f"  s_mov_b64 exec, s[18:19]\n  buffer_load_dword v{Z + i}, v{PFA}, s[8:11], s15 offen sc1\n"
                txt = f"""  s_cmp_lt_u32 s{S_W}, 4
  s_cbranch_scc1 {name}_yp
{wout(Z, Z + 1)}  s_branch {name}_yn
{name}_yp:
  v_and_b32 v{PFA}, 15, v{LANE}
  v_lshl_add_u32 v{PFA}, v{G}, 6, v{PFA}
  v_lshlrev_b32 v{PFA}, 7, v{PFA}
  s_and_b32 s15, s2, {P["ncp"] - 1}
  s_mul_i32 s15, s15, 18432
  s_lshl_b32 s6, s{S_W}, 11
  s_add_u32 s15, s15, s6
  s_add_u32 s15, s15, {GFY}
  s_mov_b32 s18, -1
  s_cmp_eq_u32 s{S_W}, 0
  s_cselect_b32 s19, 0xffff, 0
  s_mov_b32 s{S_CNT}, 0x20000
"""
                for i in range(NP - 1):
                    txt += ld(i) + f"  s_sleep {P['ysl']}\n"
                txt += f"{name}_yl:\n"
                for i in range(NP):
                    txt += ld((i + NP - 1) % NP) + f"""  s_waitcnt vmcnt({NP - 1})
  v_cmp_ne_u32 vcc, s{P["tag"]}, v{Z + i}
  s_cbranch_vccz {name}_yd
  s_mov_b64 s[18:19], vcc
  s_sleep {P["ysl"]}
"""
                txt += f"""  s_sub_u32 s{S_CNT}, s{S_CNT}, 1
  s_cbranch_scc0 {name}_yl
{name}_yd:
  s_mov_b64 exec, -1
"""
                if P.get("hook2"):
                    txt += "  s_memrealtime s[98:99]\n  s_waitcnt lgkmcnt(0)\n"
                txt += f"""  s_add_u32 m0, s14, {YS}
  s_add_u32 s6, s13, {64 * 128}
  buffer_load_dwordx4 v{VYD}, s[8:11], s13 offen sc1 lds
  s_add_u32 m0, s14, {YS + 4096}
  s_cmp_lg_u32 s{S_W}, 0
  buffer_load_dwordx4 v{VYD}, s[8:11], s6 offen sc1 lds
  s_cbranch_scc1 {name}_y8
  s_mov_b32 m0, {YS + 8192}
  s_nop 0
  buffer_load_dwordx4 v{VYD}, s[8:11], s{S_A} offen sc1 lds
{name}_y8:
  s_waitcnt vmcnt(0)
{name}_yn:"""
                b.raw(txt)

            def ywait():
                Z = PFD
                F0, FS = (YB + 16384, P["ystr"]) if P.get("ystr") else (GFL, 128)
                if P.get("ncp"):
                    F0 = GFY
                txt = ""
                if P.get("wdef"):
                    txt += f"  s_cmp_lt_u32 s{S_W}, 4\n  s_cbranch_scc1 {name}_yp\n{wout(Z, Z + 1)}  s_branch {name}_yn\n{name}_yp:\n"
                wk = P.get("wak", 0)
                sig = f"  s_mov_b64 exec, 4\n  ds_add_u32 v{Z + 3}, v{PFA}\n  s_mov_b64 exec, -1\n"
                if wk:
                    txt += f"  v_mov_b32 v{Z + 3}, {P['gcnt']}\n  v_mul_u32_u24 v{PFA}, 128, v{LANE}\n"
                    if wk == 4:
                        txt += f"  s_cmp_eq_u32 s{S_W}, {P['ypw']}\n  s_cbranch_scc1 {name}_yq\n  s_waitcnt vmcnt(0)\n{sig}  s_branch {name}_yn\n{name}_yq:\n"
                    if wk == 3:
                        txt += f"  s_cmp_eq_u32 s{S_W}, {P['ypw']}\n  s_cbranch_scc1 {name}_yq\n  s_waitcnt vmcnt(0)\n{sig}  s_branch {name}_yn\n{name}_yq:\n"
                txt += f"""  s_cmp_lg_u32 s{S_W}, {P["ypw"]}
  s_cbranch_scc1 {name}_yn
  v_mul_u32_u24 v{PFA}, {FS}, v{LANE}
  s_and_b32 s15, s2, {P.get("ncp", 1) - 1}
  s_mul_i32 s15, s15, 18432
  s_add_u32 s15, s15, {F0}
  s_add_u32 s16, s15, {64 * FS}
  s_add_u32 s17, s15, {128 * FS}
  s_mov_b64 s[18:19], -1
  s_mov_b64 s[20:21], -1
  s_mov_b64 s[22:23], 0xffff
  s_mov_b32 s{S_CNT}, 0x20000
{name}_yl:
"""
                for i in range(3):
                    txt += f"""  s_mov_b64 exec, s[{18 + 2 * i}:{19 + 2 * i}]
  s_cbranch_execz {name}_ys{i}
  buffer_load_dword v{Z + i}, v{PFA}, s[8:11], s{15 + i} offen sc1
{name}_ys{i}:
"""
                txt += "  s_waitcnt vmcnt(0)\n"
                if wk in (1, 4):
                    txt += f"  s_cmp_lg_u32 s{S_CNT}, 0x20000\n  s_cbranch_scc1 {name}_yr\n{sig}{name}_yr:\n"
                for i in range(3):
                    txt += f"""  s_mov_b64 exec, s[{18 + 2 * i}:{19 + 2 * i}]
  v_cmp_ne_u32 s[{18 + 2 * i}:{19 + 2 * i}], s{P["tag"]}, v{Z + i}
"""
                txt += f"""  s_mov_b64 exec, -1
  s_nop 1
  s_or_b64 vcc, s[18:19], s[20:21]
  s_or_b64 vcc, vcc, s[22:23]
  s_cbranch_scc0 {name}_yn
  s_sleep {P["ysl"]}
  s_sub_u32 s{S_CNT}, s{S_CNT}, 1
  s_cbranch_scc0 {name}_yl
{name}_yn:"""
                b.raw(txt)
                b.barrier()
                for i in range(P.get("dly", 0)):
                    b.raw("  s_sleep 127")
                if P.get("hook2"):
                    P["hook2"]()
                if P.get("wdef"):
                    PS = P.get("ystr") or 128
                    b.raw(f"""  s_cmp_ge_u32 s{S_W}, 4
  s_cbranch_scc1 {name}_y9
  s_cmp_lg_u32 s{S_W}, 0
  s_cbranch_scc1 {name}_y8
  s_mov_b32 m0, {YS_LDS + 8192}
  s_nop 0
  buffer_load_dwordx4 v{VYD}, s[8:11], s{S_A} offen sc1 lds
{name}_y8:
  s_add_u32 m0, s14, {YS_LDS}
  s_add_u32 s6, s13, {64 * PS}
  buffer_load_dwordx4 v{VYD}, s[8:11], s13 offen sc1 lds
  s_add_u32 m0, s14, {YS_LDS + 4096}
  s_nop 0
  buffer_load_dwordx4 v{VYD}, s[8:11], s6 offen sc1 lds
  s_waitcnt vmcnt(0)
{name}_y9:""")
                else:
                    ydma(13, 14)
            P["ywait"] = ywait2 if P.get("ynp") else ywait
        else:
            ydma(6, 7)
    elif P.get("exp"):
        b.I("v_lshrrev_b32", v(VP), 5, v(LANE))
        b.I("v_and_b32", v(VPX), 31, v(LANE))
        b.I("v_lshlrev_b32", v(VPX), 4, v(VPX))
        b.I("v_lshl_add_u32", v(VP), v(VP), 10, v(VPX))
        b.I("s_mul_i32", s(6), s(S_W), 147456 - 64)
        b.I("s_add_u32", s(S_P), s(S_P), s(6))
        b.I("s_mul_i32", s(7), s(S_W), 9216)
        for k in range(9):
            b.I("s_add_u32", s(6), s(S_P), k * 2048)
            if P["exp"] == 1:
                b.I("buffer_load_dwordx4", v(PB + 4 * k, 4), v(VP), WS, s(6), mods="offen " + la)
            else:
                b.I("s_add_u32", "m0", s(7), k * 1024)
                b.I("buffer_load_dwordx4", v(VP), WS, s(6), mods="offen " + la + " lds")
        b.I("buffer_load_dwordx4", v(RX, 4), v(0), WS, s(S_R), mods="offen")
        b.I("buffer_load_dwordx2", v(RE, 2), v(0), WS, s(S_R), mods="offen offset:1024")
    else:
        k = 0
        for a_ in range(2):
            for h in range(2):
                for jj in range(2):
                    c = jj * 589824 + a_ * 9216 + h * 4096
                    if c:
                        b.I("s_add_u32", s(6 + (k & 1)), s(S_P), c)
                    b.I("buffer_load_dwordx4", v(PB + 4 * k, 4), v(VP), WS, s(6 + (k & 1)) if c else s(S_P), mods="offen " + la)
                    k += 1
        for h in range(2):
            b.I("buffer_load_dwordx2", v(PB + 32 + 2 * h, 2), v(VPX), WS, s(S_PXS), mods=f"offen offset:{512 * h} " + la)
        b.I("buffer_load_dwordx4", v(RX, 4), v(0), WS, s(S_R), mods="offen")
        if mode == 1:
            b.I("buffer_load_dwordx4", v(RE, 4), v(VRE), WS, s(S_R), mods="offen offset:1024")
            b.I("buffer_load_dwordx4", v(RY, 4), v(0), WS, s(S_R), mods="offen offset:2048")
        else:
            b.I("buffer_load_dwordx2", v(RE, 2), v(VRE), WS, s(S_R), mods="offen offset:1024")
    def ack_flag():
        b.I("s_and_b32", s(6), s(S_W), 4)
        b.I("s_add_u32", s(7), s(6), P["gcnt"])
        b.I("v_mov_b32", v(8), s(7))
        b.I("v_mov_b32", v(9), 1)
        b.I("v_mov_b32", v(10), s(P["tag"]))
        b.I("v_mov_b32", v(11), 0)
        b.I("s_lshl_b32", s(6), s(6), 13)
        b.I("s_lshl_b32", s(7), s(2), 7)
        b.I("s_add_u32", s(6), s(6), s(7))
        b.I("s_add_u32", s(6), s(6), GFL)
        if P.get("ystr") and not P.get("ytag"):
            b.I("s_mul_i32", s(7), s(2), P["ystr"])
            b.I("s_add_u32", s(7), s(7), YB + 16384)
            b.I("s_cmp_lt_u32", s(S_W), 4)
            b.I("s_cselect_b32", s(6), s(7), s(6))
        if P.get("ncp"):
            b.I("s_lshl_b32", s(6), s(2), 7)
            b.I("s_add_u32", s(6), s(6), GFY)
            b.I("v_mul_u32_u24", v(11), 18432, v(LANE))
            if P.get("rlne"):
                b.I("s_cmp_ge_u32", s(S_W), 4)
                b.I("s_mov_b32", s(30), 1 << 20)
                b.I("s_cselect_b32", s(30), s(30), (3 << 16) | ((1 << P["ncp"]) - 1))
                b.I("s_cmp_ge_u32", s(2), 144)
                b.I("s_cselect_b32", s(30), (7 << 16) | 1, s(30))
                b.I("s_cselect_b32", s(7), GFL + 0x8000 - GFY, 0)
                b.I("s_add_u32", s(6), s(6), s(7))
                b.I("s_cmp_ge_u32", s(2), 144)
                b.I("s_cselect_b32", s(7), 4, 0)
                b.I("s_add_u32", s(7), s(7), P["gcnt"])
                b.I("v_mov_b32", v(8), s(7))
            if P.get("hg"):
                b.I("s_cmp_ge_u32", s(S_W), 4)
                b.I("s_cselect_b32", s(7), GFL - GFY, 0)
                b.I("s_add_u32", s(6), s(6), s(7))
                b.I("s_cmp_ge_u32", s(S_W), 4)
                b.I("s_cselect_b32", s(30), 1, (1 << P["ncp"]) - 1)
        if P.get("qw"):
            assert len(b.vmq) == 2, b.vmq
            b.wait(lgkm=0)
            b.raw("  s_waitcnt vmcnt(2)")
        else:
            b.wait(vm=0, lgkm=0)
            b.force_wait("vmcnt(0)")
        if P.get("wdef") and P.get("ytag"):
            if not P.get("wtrig"):
                b.raw(f"""  s_cmp_ge_u32 s{S_W}, 4
  s_cbranch_scc1 {name}_g1
  s_mov_b64 exec, 1
  ds_add_u32 v8, v9
  s_mov_b64 exec, -1
{name}_g1:""")
        elif P.get("rlne"):
            b.raw(f"""  s_bfe_u32 s7, s30, 0x10014
  s_cbranch_scc1 {name}_g1
  s_mov_b64 exec, 1
  ds_add_rtn_u32 v8, v8, v9
  s_lshr_b32 s7, s30, 16
  s_waitcnt lgkmcnt(0)
  v_and_b32 v8, 0xff, v8
  v_cmp_eq_u32 vcc, s7, v8
  s_cbranch_vccz {name}_g0
  s_and_b32 exec_lo, s30, 0xffff
  buffer_store_dword v10, v11, s[8:11], s6 offen sc1
{name}_g0:
  s_mov_b64 exec, -1
{name}_g1:""")
        else:
            if P.get("ytag"):
                b.raw(f"  s_cmp_lt_u32 s{S_W}, 4\n  s_cbranch_scc1 {name}_g1")
            elif P.get("wdef") and not P.get("hg"):
                b.raw(f"  s_cmp_ge_u32 s{S_W}, 4\n  s_cbranch_scc1 {name}_g1")
            b.raw(f"""  s_cmp_ge_u32 s2, 144
  s_cbranch_scc1 {name}_g1
  s_mov_b64 exec, 1
  ds_add_rtn_u32 v8, v8, v9
  s_waitcnt lgkmcnt(0)
  v_and_b32 v8, 0xff, v8
  v_cmp_eq_u32 vcc, 3, v8
  s_cbranch_vccz {name}_g0
  s_mov_b32 exec_lo, {"s30" if P.get("hg") else (1 << P.get("ncp", 1)) - 1}
  buffer_store_dword v10, v11, s[8:11], s6 offen sc1
{name}_g0:
  s_mov_b64 exec, -1
{name}_g1:""")
        if P.get("hook1"):
            P["hook1"]()
        if P.get("wre"):
            txt = f"""  s_cmp_lt_u32 s2, 144
  s_cbranch_scc1 {name}_re
  s_cmp_lt_u32 s{S_W}, {P["wre"] - 1}
  s_cbranch_scc1 {name}_re
"""
            for r in range(2):
                if r:
                    txt += f"  s_cmp_eq_u32 s36, 1\n  s_cbranch_scc1 {name}_re\n"
                txt += f"  s_add_u32 s6, s{37 + r}, {18 * 4096}\n"
                for kl in range(2):
                    for t in range(4):
                        o = 16 + 32 * r + (kl * 4 + t) * 4
                        txt += f"  buffer_load_dwordx4 v[{o}:{o + 3}], v0, s[8:11], s{6 if kl else 37 + r} offen offset:{t * 1024}\n"
            b.raw(txt + f"{name}_re:")
        if P.get("ytag"):
            P["ypre"]()

    if mode == 0 and fuse and P.get("aer"):
        ack_flag()
    if P.get("pf") and mode != 2:
        vq = list(b.vmq)
        b.raw(f"  s_cmp_ge_u32 s2, {P['pfn'] * 8}\n  s_cbranch_scc1 {name}_npf")
        pf_code(b, name, *P["pf"])
        b.vmq = vq
        b.label(f"{name}_npf")
    if mode != 2:
        b.I("v_mov_b32", v(7), 0)
        b.I("v_add_u32", v(V_FW), LDS_FX, v(6))
        b.I("ds_write_b32", v(V_FW), v(7))
        xn_setup(b, mode)
    if mode == 2:
        qaddr()
    if dx:
        for i in range(4):
            b.I("v_mov_b32", v(8 + i), 0)
        b.I("v_mov_b32", v(12), P["zpub"])
        b.I("ds_write_b128", v(12), v(8, 4))
    elif mode == 0:
        b.I("s_lshr_b32", s(6), s(S_W), 1)
        b.I("s_and_b32", s(7), s(S_W), 1)
        b.I("s_lshl_b32", s(7), s(7), 3)
        b.I("s_add_u32", s(7), s(7), P.get("ys", YS_LDS))
        b.I("v_lshl_add_u32", v(t0), v(CQ), 1, v(GL))
        b.I("v_lshl_add_u32", v(t1), v(DS), 3, v(t0))
        b.I("v_lshl_add_u32", v(t1), v(GH), 5, v(t1))
        b.I("v_bfe_u32", v(YA1), v(t1), 2, 2)
        b.I("v_xor_b32", v(YA1), s(6), v(YA1))
        b.I("v_lshlrev_b32", v(YA1), 4, v(YA1))
        b.I("v_lshl_add_u32", v(YA0), v(t1), 6, v(YA1))
        b.I("v_add_u32", v(YA0), s(7), v(YA0))
        b.I("v_xor_b32", v(YA1), 32, v(YA0))
        b.I("v_lshrrev_b32", v(t1), 1, v(DS))
        b.I("v_mad_u32_u24", v(t1), v(t1), 36, v(CQ))
        b.I("v_lshl_add_u32", v(t1), v(t1), 1, v(GL))
        b.I("v_bfe_u32", v(YAE), v(t1), 2, 2)
        b.I("v_xor_b32", v(YAE), s(6), v(YAE))
        b.I("v_lshlrev_b32", v(YAE), 4, v(YAE))
        b.I("v_lshl_add_u32", v(YAE), v(t1), 6, v(YAE))
        b.I("v_add_u32", v(YAE), s(7), v(YAE))
        b.I("v_mov_b32", v(RE + 2), 0)
        b.I("v_mov_b32", v(RE + 3), 0)
    else:
        b.I("v_and_b32", v(t1), 15, v(LANE))
        b.I("v_mov_b32", v(T + 2), 0x3f80)
        b.I("v_mov_b32", v(T + 3), 0x3f800000)
        for r in range(4):
            for (AR, off) in ((A1, 0), (A2, 8)):
                b.I("v_cmp_eq_u32", "vcc", off + 2 * r, v(t1))
                b.I("v_cndmask_b32", v(AR + r), 0, v(T + 2), "vcc")
                b.I("v_cmp_eq_u32", "vcc", off + 2 * r + 1, v(t1))
                b.I("v_cndmask_b32", v(AR + r), v(AR + r), v(T + 3), "vcc")
        for r in range(4):
            b.I("v_mov_b32", v(T + 12 + r), 0)
        b.I("v_mov_b32", v(T + 10), fhex(OUTSCALE))
    if not P.get("sty"):
        st()
    if mode == 0 and fuse and not P.get("aer"):
        ack_flag()
    if dx:
        entry_tail(b, name, P)
        return st
    if mode == 0:
        b.I("v_permlane16_swap_b32", v(RX), v(RX + 2))
        b.I("v_permlane16_swap_b32", v(RX + 1), v(RX + 3))
    else:
        k = 0
        for a_ in range(2):
            for h in range(2):
                for jj in range(2):
                    d = v(LACC + 4 * a_, 4)
                    b.I(MF, d, v(A1 if h == 0 else A2, 4), v(PB + 4 * k, 4), "0" if (h == 0 and jj == 0) else d)
                    k += 1
        b.I(MF, v(LACC + 8, 4), v(A1, 4), v(PB + 32, 4), "0")
    for i in range(4):
        unpack(b, X + 2 * i, RX + i)
    for i in range(2):
        unpack(b, X + 8 + 2 * i, RE + i)
    if mode == 1:
        for i in range(4):
            unpack(b, Y + 2 * i, RY + i)
        for i in range(2):
            unpack(b, Y + 8 + 2 * i, RE + 2 + i)
    if mode != 0:
        SC = T + 10
        for i in range(4):
            b.I("v_pk_fma_f32", v(X + 2 * i, 2), v(LACC + 2 * i, 2), v(SC, 2), v(X + 2 * i, 2), mods="op_sel_hi:[1,0,1]")
        for r in range(4):
            b.I("v_add_f32_dpp", v(T + 12 + r), v(LACC + 8 + r), v(LACC + 8 + r), mods="row_half_mirror row_mask:0x3 bank_mask:0x5")
        for i in range(2):
            b.I("v_pk_fma_f32", v(X + 8 + 2 * i, 2), v(T + 12 + 2 * i, 2), v(SC, 2), v(X + 8 + 2 * i, 2), mods="op_sel_hi:[1,0,1]")
    st()
    if mode == 2:
        for i in range(6):
            b.I("v_cvt_pk_bf16_f32", v(RX + i), v(X + 2 * i), v(X + 2 * i + 1))
        b.I("v_permlane16_swap_b32", v(RX), v(RX + 2))
        b.I("v_permlane16_swap_b32", v(RX + 1), v(RX + 3))
        b.I("buffer_store_dwordx4", v(RX, 4), v(VQ), IO, s(S_B), mods="offen")
        b.I("buffer_store_dwordx2", v(RE, 2), v(VQE), IO, s(S_B), mods="offen")
        b.wait_all()
        tl.end(b)
        return st
    ln_math(b, mode, P, st)
    return st


def ln_math(b, mode, P, st):
    R, B = stats(b)
    if P.get("sty") == 1:
        st()
    if mode == 0 and P.get("fuse"):
        P["ywait"]()
    if mode == 0:
        b.wait_tag_vm("y")
    if P.get("sty") == 2:
        st()
    if mode == 0:
        b.barrier()
        b.I("ds_read_b64", v(RY, 2), v(YA0))
        b.I("ds_read_b64", v(RY + 2, 2), v(YA1), mods=f"offset:{72 * 64}")
        b.I("s_mov_b64", "exec", VALID)
        b.I("ds_read_b64", v(RE + 2, 2), v(YAE), mods=f"offset:{64 * 64}")
        b.I("s_mov_b64", "exec", -1)
    for i in range(6):
        b.I("v_pk_fma_f32", v(LACC + 2 * i, 2), v(X + 2 * i, 2), v(R, 2), v(B, 2), mods="op_sel_hi:[1,0,0]")
    if mode == 0:
        for i in range(4):
            unpack(b, Y + 2 * i, RY + i)
        for i in range(2):
            unpack(b, Y + 8 + 2 * i, RE + 2 + i)
    for i in range(6):
        b.I("v_pk_fma_f32", v(X + 2 * i, 2), v(LACC + 2 * i, 2), v(Y + 2 * i, 2), v(X + 2 * i, 2))
    for i in range(6):
        b.I("v_cvt_pk_bf16_f32", v(RX + i), v(X + 2 * i), v(X + 2 * i + 1))
    ra = P["raux"]
    if P["rec"] == 0:
        b.I("buffer_store_dwordx4", v(RX, 4), v(0), WS, s(S_R), mods="offen " + ra)
        b.I("buffer_store_dwordx4", v(RE, 4), v(VRE), WS, s(S_R), mods="offen offset:1024 " + ra)
    if mode == 0 and not P.get("ryl"):
        b.I("buffer_store_dwordx4", v(RY, 4), v(0), WS, s(S_R), mods="offen offset:2048 " + ra)
    if P.get("raw"):
        b.I("ds_write_b64", v(VXW), v(RX, 2))
        b.I("ds_write_b64", v(XO + 6), v(RX + 2, 2), mods=f"offset:{72 * 64}")
        b.I("s_mov_b64", "exec", VALID)
        b.I("ds_write_b64", v(VXE), v(RE, 2), mods=f"offset:{64 * 64}")
        b.I("s_mov_b64", "exec", -1)
        b.wait(lgkm=0)
        st()
        return
    R, B = stats(b, scale=ALPHA)
    for i in range(6):
        b.I("v_pk_fma_f32", v(LACC + 2 * i, 2), v(X + 2 * i, 2), v(R, 2), v(B, 2), mods="op_sel_hi:[1,0,0]")
    for i in range(6):
        b.I("v_cvt_pk_bf16_f32", v(XO + i), v(LACC + 2 * i), v(LACC + 2 * i + 1))
    b.I("v_permlane16_swap_b32", v(XO), v(XO + 2))
    b.I("v_permlane16_swap_b32", v(XO + 1), v(XO + 3))
    b.I("s_mov_b64", "exec", VALID)
    b.I("ds_write_b64", v(VXE), v(XO + 4, 2))
    b.I("s_mov_b64", "exec", -1)
    b.I("ds_write_b128", v(VXW), v(XO, 4))
    b.wait(lgkm=0)
    st()


def publish(b, name, P):
    b.barrier()
    if P.get("zpub"):
        b.I("v_mov_b32", v(7), 0)
        b.I("ds_write_b32", v(V_FW), v(7))
        b.I("v_mov_b32", v(8), 0)
        b.I("v_mov_b32", v(9), 0)
        b.I("v_mov_b32", v(10), 0)
        b.I("v_mov_b32", v(11), 0)
        b.I("v_mov_b32", v(6), P["zpub"])
        b.I("ds_write_b128", v(6), v(8, 4))
    if P.get("fuse") and not P.get("dx"):
        hg = f"  v_cmp_gt_u32 vcc, {18 * 16}, v0\n  v_subrev_u32 v{V_Z}, 0x8000, v{V_T}\n  v_cndmask_b32 v{V_T}, v{V_T}, v{V_Z}, vcc\n" if P.get("hg") else ""
        b.raw(f"""  v_lshlrev_b32 v{V_T}, 6, v0
  v_add_u32 v{V_T}, 0x8000, v{V_T}
{hg}  s_lshl_b32 s15, s4, 7
  s_add_u32 s15, s15, {GFL}
  s_cmp_lg_u32 s{S_W}, 5
  s_cbranch_scc1 {name}_wn
  s_cmp_lg_u32 s{S_LO}, 0
  s_cbranch_scc1 {name}_wn
  s_mov_b64 exec, {0xfffc0000 if P.get("wdef") and not P.get("hg") else 0xffffffff}
  buffer_load_dword v{V_Z}, v{V_T}, s[8:11], s15 offen sc1
  s_mov_b64 exec, -1
{name}_wn:""")
    b.I("ds_read_b128", v(XO, 4), v(VXR))
    b.raw(f"""  s_cmp_lg_u32 s{S_W}, 0
  s_cbranch_scc1 {name}_n8
  ds_read_b128 v[{XO + 4}:{XO + 7}], v{VXR} offset:8192
  s_add_u32 s6, s{S_XS}, {8 * 16384}
  s_waitcnt lgkmcnt(0)
  buffer_store_dwordx4 v[{XO + 4}:{XO + 7}], v{VXS}, s[8:11], s6 offen sc1
{name}_n8:""")
    b.I("buffer_store_dwordx4", v(XO, 4), v(VXS), WS, s(S_XS), mods="offen sc1", tag="xn")
    if P["rec"] in (1, 2):
        ra = P["raux"]
        if P["rec"] == 2:
            b.barrier()
        b.I("buffer_store_dwordx4", v(RX, 4), v(0), WS, s(S_R), mods="offen " + ra)
        b.I("buffer_store_dwordx4", v(RE, 4), v(VRE), WS, s(S_R), mods="offen offset:1024 " + ra)
    b.wait_tag_vm("xn")
    if P.get("fuse") and not P.get("dx"):
        b.raw(f"""  s_cmp_lg_u32 s{S_W}, 5
  s_cbranch_scc1 {name}_wm
  s_cmp_lg_u32 s{S_LO}, 0
  s_cbranch_scc1 {name}_wm
  s_mov_b64 exec, {0xfffc0000 if P.get("wdef") and not P.get("hg") else 0xffffffff}
  s_mov_b32 s{S_CNT}, 0x20000
{name}_wl:
  {notset_t(P, V_Z)}
  s_cbranch_vccz {name}_we
  buffer_load_dword v{V_Z}, v{V_T}, s[8:11], s15 offen sc1
  s_waitcnt vmcnt(0)
  s_sub_u32 s{S_CNT}, s{S_CNT}, 1
  s_cbranch_scc0 {name}_wl
{name}_we:
  s_mov_b64 exec, -1
{name}_wm:""")
    if P["stamps"] and not P.get("body"):
        b.I("s_memtime", s(70, 2))
    b.barrier()
    b.raw(f"""  s_cmp_lg_u32 s{S_W}, 0
  s_cbranch_scc1 {name}_nf
  v_mov_b32 v{V_T}, 0
  v_mov_b32 v{V_Z}, {fval(P)}
  s_mov_b64 exec, 1
  buffer_store_dword v{V_Z}, v{V_T}, s[8:11], s{S_XFO} offen sc1
  s_mov_b64 exec, -1
{name}_nf:""")
    if P.get("ryl"):
        b.raw(f"""  s_cmp_lg_u32 s{S_LO}, 0
  s_cbranch_scc1 {name}_ny
  buffer_store_dwordx4 v[{RY}:{RY + 3}], v0, s[8:11], s{S_R} offen offset:2048 {P["raux"]}
{name}_ny:""")
    if P["rec"] == 3:
        b.I("buffer_store_dwordx4", v(RX, 4), v(0), WS, s(S_R), mods="offen " + P["raux"])
        b.I("buffer_store_dwordx4", v(RE, 4), v(VRE), WS, s(S_R), mods="offen offset:1024 " + P["raux"])
    if P.get("wdef") and not P.get("dx"):
        b.raw(f"""  s_cmp_lg_u32 s{S_W}, 1
  s_cbranch_scc1 {name}_nd
  s_cmp_lg_u32 s{S_LO}, 0
  s_cbranch_scc1 {name}_nd
  s_cmp_ge_u32 s2, 144
  s_cbranch_scc1 {name}_nd
  v_mov_b32 v{V_T}, 0
  v_mov_b32 v{V_Z}, {fval(P)}
  s_lshl_b32 s6, s2, 7
  s_add_u32 s6, s6, {GFL + 0x8000}
  s_mov_b64 exec, 1
  buffer_store_dword v{V_Z}, v{V_T}, s[8:11], s6 offen sc1
  s_mov_b64 exec, -1
{name}_nd:""")
    if P.get("dx"):
        b.label(f"{name}_ffn")
        b.hist, b.vmq, b.lgq = [], [], []
    ffn_setup(b)


class Tail:
    def __init__(self, name, P):
        self.name, self.P, self.k = name, P, 0


    def handoff(self, b, role, slow, P):
        nm = f"{self.name}_{role}_h"
        if role == "A" and P.get("dx"):
            Z, ZA = 232, 235
            MK = ["s[14:15]", "s[6:7]", "s[58:59]"]
            txt = f"""  s_cmp_lg_u32 s{S_W}, {P["ypw"]}
  s_cbranch_scc1 {nm}_yn
  s_cmp_lg_u32 s{S_LO}, 0
  s_cbranch_scc1 {nm}_yn
  v_lshlrev_b32 v{ZA}, 3, v0
  s_and_b32 s54, s2, {P["ncp"] - 1}
  s_mul_i32 s54, s54, 18432
  s_add_u32 s54, s54, {GFY}
  s_add_u32 s55, s54, {64 * 128}
  s_add_u32 s56, s54, {128 * 128}
  s_mov_b64 s[14:15], -1
  s_mov_b64 s[6:7], -1
  s_mov_b64 s[58:59], 0xffff
  s_mov_b32 s{S_CNT}, 0x20000
{nm}_yl:
"""
            for i in range(3):
                txt += f"""  s_mov_b64 exec, {MK[i]}
  s_cbranch_execz {nm}_ys{i}
  buffer_load_dword v{Z + i}, v{ZA}, s[8:11], s{54 + i} offen sc1
{nm}_ys{i}:
"""
            txt += "  s_waitcnt vmcnt(0)\n"
            for i in range(3):
                txt += f"""  s_mov_b64 exec, {MK[i]}
  v_cmp_ne_u32 {MK[i]}, s{P["tag"]}, v{Z + i}
"""
            txt += f"""  s_mov_b64 exec, -1
  s_nop 1
  s_or_b64 vcc, s[14:15], s[6:7]
  s_or_b64 vcc, vcc, s[58:59]
  s_cbranch_scc0 {nm}_yn
  s_sleep {P["ysl"]}
  s_sub_u32 s{S_CNT}, s{S_CNT}, 1
  s_cbranch_scc0 {nm}_yl
{nm}_yn:"""
            b.raw(txt)
        elif role == "A":
            pass
        elif P["npoll"] > 1:
            NPL = P["npoll"]
            R0 = 232
            ld = lambda i: f"  buffer_load_dword v{R0 + i}, v{V_T}, s[8:11], s{S_XFG} offen sc1\n"
            txt = f"""  s_cmp_lg_u32 s{S_W}, 4
  s_cbranch_scc1 {nm}_np
  v_lshlrev_b32 v{V_T}, 3, v0
  s_mov_b64 exec, 0xffff
  s_mov_b32 s{S_CNT}, 0x20000
"""
            for i in range(NPL - 1):
                txt += ld(i) + f"  s_sleep {P['psl']}\n"
            txt += f"{nm}_pl:\n"
            for i in range(NPL):
                txt += ld((i + NPL - 1) % NPL) + f"""  s_waitcnt vmcnt({NPL - 1})
  v_cmp_eq_u32 vcc, 0, v{R0 + i}
  s_cbranch_vccz {nm}_pe
  s_sleep {P['psl']}
"""
            txt += f"""  s_sub_u32 s{S_CNT}, s{S_CNT}, 1
  s_cbranch_scc0 {nm}_pl
{nm}_pe:
  s_mov_b64 exec, -1
{nm}_np:"""
            b.raw(txt)
        else:
            if P.get("dx"):
                b.raw(f"  s_cmp_eq_u32 s{S_LO}, 0\n  s_cbranch_scc1 {nm}_np")
            b.raw(f"""  s_cmp_lg_u32 s{S_W}, 4
  s_cbranch_scc1 {nm}_np
  v_lshlrev_b32 v{V_T}, 3, v0
  s_mov_b64 exec, 0xffff
  s_mov_b32 s{S_CNT}, 0x40000
{nm}_pl:
  buffer_load_dword v{V_Z}, v{V_T}, s[8:11], s{S_XFG} offen sc1
  s_waitcnt vmcnt(0)
  {notset_t(P, V_Z)}
  s_cbranch_vccz {nm}_pe
  s_sleep {P["psl"]}
  s_sub_u32 s{S_CNT}, s{S_CNT}, 1
  s_cbranch_scc0 {nm}_pl
{nm}_pe:
  s_mov_b64 exec, -1
{nm}_np:""")
        b.barrier()


LDEF = dict(rec=2, npoll=1, laux="", raux="sc1", pf=None, pfn=9, stbase=60, stn0=6)


def k_ffl(n0, n1, **kw):
    P = dict(DEF)
    P.update(LDEF)
    P.update(kw)
    if P.get("body"):
        P["stn0"] = 1
    b = AB()
    name = "ffl"
    ln_phase(b, n0, 0, P, f"{name}_end")
    b.I("s_branch", f"{name}_pub")
    b.hist, b.vmq, b.lgq = [], [], []
    ln_phase(b, n1, 1, P, f"{name}_end")
    b.vmq, b.lgq = [], []
    b.label(f"{name}_pub")
    publish(b, name, P)
    b.I("s_cmp_ge_u32", s(S_W), 4)
    b.I("s_cbranch_scc1", f"{name}_B")
    b.label(f"{name}_A")
    snap = b.snapshot()
    tail = Tail(name, P)
    ffn_role(b, "A", P, name, tail)
    b.restore(snap)
    b.raw(".p2align 6")
    b.label(f"{name}_B")
    ffn_role(b, "B", P, name, tail)
    b.label(f"{name}_end")
    b.I("s_endpgm")
    return b


def k_lnz(name, **kw):
    P = dict(DEF)
    P.update(LDEF)
    P.update(kw)
    b = AB()
    ln_phase(b, name, 2, P, f"{name}_end")
    b.label(f"{name}_end")
    b.I("s_endpgm")
    return b
```

```python
from ab import *
from lay import *
import tl

MF = "v_mfma_f32_16x16x32_bf16"
LDS_FX = 147456
FFN3_LDS = LDS_FX + 2048

DEF = dict(
    xring=6, space=True, mergew=True,
    a0w=0, a0w2=0, a1w=0, xpre=1, pace0=4, wpg0=3, wpg=1, bwk=14, la0=lambda gi: 99,
    xfly0=3, xfly=1, xprio=3,
    xw=12, b0w=8,
    bx0=4, bxr=0,
    nprio=1, fprioB=0,
    xchk=list(range(2, 19)),
    gate=9,
    knm=4,
    stamps=False,
    stampsteps=[],
    aux="sc1",
    a_plan=[("k", "oA", 0, 8), ("k", "pM", 0, 4), ("k", "oB", 0, 4), ("k", "pM", 4, 8), ("k", "pQ", 0, 8),
            ("k", "oB", 4, 8), ("n", "pB", 0, 8)],
    d0=1, dper=3, nw0=4, ap0=5,
    ap1=7, b2=False, b3=False, ringA=2, ringB=4, aprio=2, gprioA=0, pprioA=0, bprio=1, laX=8,
    evB=[(14, "P1")],
    evA=[(-1, "qr"), (1, "qs"), (2, "d0"), (16, "P1"), (24, "w0"), (26, "p1"), (32, "d1"), (56, "w1"), (60, "p2"), (66, "d2"), (92, "w2"),
         (106, "p3"), (112, "D3"), (124, "w3")],
    b_plan=[("k", "oA pM pQ", 0, 8), ("n", "oB pB", 0, 8)],
    laA=12, laB=16,
    delay=3,
    gdelay=2,
    xaux="sc1", preA=5, preB=0, psl=1,
    gper=4,
    bp0=6,
    bp1=40,
)


def fval(P):
    return s(P["tag"]) if P.get("tag") else 1


def notset(P, r):
    return ("v_cmp_ne_u32", "vcc", s(P["tag"]), v(r)) if P.get("tag") else ("v_cmp_eq_u32", "vcc", 0, v(r))


def notset_t(P, r):
    t = notset(P, r)
    return t[0] + " " + ", ".join(str(x) for x in t[1:])


class Stamps:
    def __init__(self, b, on, base=40):
        self.b, self.on, self.n, self.base = b, on, 0, base
        self.gmode = False

    def __call__(self, g=False):
        if self.on and (g or not self.gmode or self.n == 0) and self.base + 2 * self.n <= 80:
            self.b.I("s_memtime", s(self.base + 2 * self.n, 2))
            self.n += 1


NOSC = [0]


def gelu_thunks(b, tiles, temps, sc=None, nxt=None):
    out = []
    I = lambda *a: out.append(lambda: b.I(*a))
    if sc is not None and not NOSC[0]:
        for (ab_, dst) in tiles:
            I("v_mul_f32", v(ab_), v(sc), v(ab_))
            I("v_mul_f32", v(ab_ + 1), v(sc), v(ab_ + 1))
        if nxt:
            out.append(nxt)
    G = 2
    for i in range(0, len(tiles), G):
        grp = tiles[i:i + G]
        vals = []
        for j, (ab_, dst) in enumerate(grp):
            vals.append((ab_, ab_ + 2, temps[(2 * j) % len(temps)]))
            vals.append((ab_ + 1, ab_ + 3, temps[(2 * j + 1) % len(temps)]))
        for g, u, t in vals:
            I("v_fmaak_f32", v(t), v(g), v(g), fhex(KP))
        for g, u, t in vals:
            I("v_mul_f32", v(u), v(g), v(u))
        for g, u, t in vals:
            I("v_mul_f32", v(g), v(t), v(g))
        for g, u, t in vals:
            I("v_exp_f32_e64", v(g), "-" + v(g))
        for g, u, t in vals:
            I("v_add_f32", v(g), "1.0", v(g))
        for g, u, t in vals:
            I("v_rcp_f32", v(g), v(g))
        for g, u, t in vals:
            I("v_mul_f32", v(u), v(u), v(g))
        for (ab_, dst) in grp:
            I("v_cvt_pk_bf16_f32", v(dst), v(ab_ + 2), v(ab_ + 3))
    return out


S_W = 3
S_GU, S_GUX = 20, 21
S_DO, S_DOX, S_DP, S_DPX = 22, 23, 32, 33
S_XG, S_XL = 24, 25
S_PM, S_PX = 26, 27
S_T0, S_T1, S_T2 = 28, 29, 30
S_HO, S_HP = 34, 35
S_HOX, S_HPX = 36, 37
S_FO, S_FP = 38, 39
S_CNT = 31
S_PMH, S_H4 = 16, 17
S_W8 = 18
VL = [0, 1, 2]
VS, VS2 = 3, 255
V_HW, V_HWX = 252, 253
V_FR, V_FW = 254, 251
V_F = 250
V_Z = 249
V_T = 248

KS = {"oA": [("o", k) for k in (0, 1, 2, 3, 8)], "pM": [("p", k) for k in (0, 1, 2, 3)], "pQ": [("p", 8)],
      "oB": [("o", k) for k in (4, 5, 6, 7)], "pB": [("p", k) for k in (4, 5, 6, 7)]}


def slot_of(side, k):
    if k < 4 or k == 8:
        return (0 if side == "o" else 5) + (k if k < 4 else 4)
    return (6 if side == "o" else 10) + k


def ffn_role(b, role, P, name, late_setup):
    A = role == "A"
    NT = 5 if A else 4
    XR = 4
    NX = P["xring"]
    WR = XR + 4 * NX
    NW = 15
    ACC = WR + 4 * NW
    assert ACC + 160 <= 248, ACC
    acc = lambda t, n: ACC + (t * 8 + n) * 4
    RAW = P.get("raw")
    NOSC[0] = P.get("nosc")
    VXD = acc(4, 7) + 3
    temps = [XR, XR + 1, XR + 2, XR + 3] if A else [acc(4, 7) + i for i in range(4)]
    st = Stamps(b, P["stamps"], base=P.get("stbase", 40))
    st.n = P.get("stn0", 0)
    st.gmode = bool(P.get("sg"))
    SRD = s(8, 4)
    aux = P["aux"]
    slow = []
    KNM = P["knm"]
    K0 = 18 - KNM
    assert K0 >= 14
    psig = sorted(set([4, 9, 13, P["gate"]]))
    B0 = 20 if RAW else 19
    bval = {k: B0 + i for i, k in enumerate(psig)}
    B_H = [B0 + len(psig), B0 + 1 + len(psig)]
    def req_of(cls, n):
        return {"oA": ("A", 3), "pM": ("A", 4 + n // 4), "pQ": ("A", 5), "oB": ("B", B_H[n // 4]),
                "pB": (("B", B_H[1] + 1) if P["b2"] else ("A", 6)) if n < 4 else (("B", B_H[1] + 2) if P["b3"] else ("A", 7))}[cls]

    groups = []
    wdef = {}
    cover = lambda ks: min(x for x in P["xchk"] if x >= ks + 1)
    for ks in range(18):
        for t in range(4):
            wdef[("g", ks, t)] = (S_GU, ks * 4096, t * 1024)
        if A:
            wdef[("g", ks, 4)] = (S_GUX, ks * 4096, 0)

    def p1_group(ks, n):
        return dict(b=(ks * 8 + n) * 1024, req=("A", 1) if ks == 0 else ("B", cover(ks) if A else (4 if ks < 4 else 18)), p2=False,
                    mf=[(acc(t, n), ("g", ks, t), ks == 0) for t in range(NT)], tag=("p1", ks, n))
    if A:
        for ks in range(18):
            for n in range(8):
                groups.append(p1_group(ks, n))
    else:
        for ks in range(K0):
            for n in range(8):
                groups.append(p1_group(ks, n))
        for n in range(8):
            for ks in range(K0, 18):
                groups.append(p1_group(ks, n))
    NP1 = len(groups)

    VP2 = acc(3, 6)

    def p2_w(side, kp):
        sm, sx = (S_DO, S_DOX) if side == "o" else (S_DP, S_DPX)
        for h in range(2):
            wdef[("d", side, kp, h)] = (sm, kp * 36 * 1024, h * 1024)
        if A:
            wdef[("d", side, kp, 2)] = (sx, kp * 36 * 1024, 0)

    cnt = {n: 0 for n in range(8)}
    marks = {}

    def p2_group(cls, side, kp, n):
        first = cnt[n] == 0
        cnt[n] += 1
        mf = [(acc(h, n), ("d", side, kp, h), first) for h in range(2)]
        if A and n % 2 == 0:
            mf.append((acc(2, n // 2), ("d", side, kp, 2), first))
        groups.append(dict(b=(slot_of(side, kp) * 8 + n) * 1024, req=req_of(cls, n), p2=True, mf=mf,
                           tag=("p2", n, cnt[n] == 18), n=n))

    for c in KS:
        for (sd, k) in KS[c]:
            p2_w(sd, k)
    for seg in P["a_plan" if A else "b_plan"]:
        if isinstance(seg, str):
            marks.setdefault(len(groups), []).append(seg)
            continue
        mode, cl, n0, n1 = seg
        ks_ = [(c, sd, k) for c in cl.split() for (sd, k) in KS[c]]
        if mode == "k":
            for (c, sd, k) in ks_:
                for n in range(n0, n1):
                    p2_group(c, sd, k, n)
        elif mode == "p":
            for n in range(n0, n1, 2):
                for (c, sd, k) in ks_:
                    p2_group(c, sd, k, n)
                    p2_group(c, sd, k, n + 1)
        else:
            for n in range(n0, n1):
                for (c, sd, k) in ks_:
                    p2_group(c, sd, k, n)
    assert all(c == 18 for c in cnt.values())

    wseq, last_use = [], {}
    for gi, g in enumerate(groups):
        for mi, (_, wk, _) in enumerate(g["mf"]):
            if wk not in last_use:
                wseq.append(wk)
            last_use[wk] = (gi, mi)
    wslot, bslot = {}, {}
    wfree = [WR + 4 * i for i in range(NW)]
    if not A:
        wfree += [acc(4, n) for n in range(7)]
    bfree = [XR + 4 * i for i in range(NX)]
    stt = dict(wi=0, bi=0, gi=0, lastsb=None, stmp=0, flagrd=None, nslow=0, own=0, blim=NP1, la=99)
    passed = {"A": 0, "B": 0}
    deferred = []
    pend = []
    events = {}
    bextra = []

    used = set()

    def issue_w(force=False):
        if stt["wi"] >= len(wseq) or not wfree:
            return False
        if not force and stt["wi"] - len(used) >= stt["la"]:
            return False
        wk = wseq[stt["wi"]]
        sb, c, imm = wdef[wk]
        if stt["lastsb"] != (sb, c):
            stt["stmp"] ^= 1
            b.I("s_add_u32", s(S_T0 + stt["stmp"]), s(sb), c)
            stt["lastsb"] = (sb, c)
        r = wfree.pop(0)
        wslot[wk] = r
        if role in P.get("ablW", "") and wk[0] == "g" and wk[1] >= 4:
            stt["wi"] += 1
            return True
        b.I("buffer_load_dwordx4", v(r, 4), v(VL[0]), SRD, s(S_T0 + stt["stmp"]), mods=f"offen offset:{imm}")
        stt["wi"] += 1
        return True

    def issue_x(ks):
        if ks > 17:
            return
        b.I("s_add_u32", "m0", s(S_XL), ks * 8192)
        b.I("s_add_u32", s(S_T2), s(S_XG), ks * 8192)
        xd = VL[0]
        b.I("buffer_load_dwordx4", v(xd), SRD, s(S_T2), mods=f"offen {P['xaux']} lds", tag=("x", ks))
        b.I("buffer_load_dwordx4", v(xd), SRD, s(S_T2), mods=f"offen offset:1024 {P['xaux']} lds", tag=("x", ks))

    SA, ON = acc(2, 5), acc(2, 4)

    def st_rd(k):
        for j in range(2):
            o = (16 * k + 2 * j) & 255
            b.I("ds_read2st64_b64", v(acc(1, 2 * (k & 1) + j), 4), v(SA + (k >> 4)), mods=f"offset0:{o} offset1:{o + 1}")

    def st_acc(k):
        for j in range(2):
            r = v(acc(1, 2 * (k & 1) + j), 4)
            for h in range(2):
                d = v(acc(2, 2 * j + h), 4)
                b.I(MF, d, r if h else v(ON, 4), r, "0" if k == 1 else d)

    def st_fin():
        t = acc(1, 0)
        MR = [(acc(2, 0), acc(2, 1)), (acc(2, 2), acc(2, 3))]
        b.I("v_bfe_u32", v(t), v(0), 4, 2)
        for r in range(1, 4):
            b.I("v_cmp_eq_u32", "vcc", r, v(t))
            for M, R in MR:
                b.I("v_cndmask_b32", v(R), v(R), v(R + r), "vcc")

        def each(op, f):
            for M, R in MR:
                b.I(op, *f(M, R))

        def rb():
            each("v_cvt_pk_bf16_f32", lambda M, R: (v(R), v(R), v(R)))
            each("v_lshlrev_b32", lambda M, R: (v(R), 16, v(R)))
        each("v_mul_f32", lambda M, R: (v(M), fhex(1.0 / 576), v(M)))
        each("v_mul_f32", lambda M, R: (v(R), fhex(1.0 / 576), v(R)))
        each("v_fma_f32", lambda M, R: (v(R), "-" + v(M), v(M), v(R)))
        each("v_max_f32", lambda M, R: (v(R), 0, v(R)))
        rb()
        each("v_add_f32", lambda M, R: (v(R), fhex(1e-5), v(R)))
        rb()
        each("v_sqrt_f32", lambda M, R: (v(R), v(R)))
        rb()
        each("v_rcp_f32", lambda M, R: (v(R), v(R)))
        each("v_mul_f32", lambda M, R: (v(R), fhex(ALPHA), v(R)))
        b.I("v_bfe_u32", v(V_HWX), v(0), 4, 4)
        b.I("v_lshl_add_u32", v(V_HWX), v(V_HWX), 2, s(15))
        b.I("s_lshr_b32", s(6), s(S_XL), 4)
        b.I("v_add_u32", v(t), s(6), v(V_HWX))
        b.I("s_mov_b32", "exec_lo", 0x00F0000F)
        b.I("s_mov_b32", "exec_hi", 0xF0000F00)
        for j in range(2):
            b.I("ds_write_b32", v(t), v(MR[j][1]), mods=f"offset:{64 * j}")
        b.I("s_mov_b64", "exec", -1)

    pfi = [0]

    def l2_prefetch():
        i = pfi[0]
        if not P.get("wpf") or i >= 15:
            return
        pfi[0] += 1
        q0 = P["wpf"]
        if i < 9:
            b.I("s_add_u32", s(6), s(5), q0 + 16 * i)
            if q0 + 15 + 16 * i > 161:
                b.I("s_min_u32", s(6), s(6), 161)
            b.I("s_mul_i32", s(7), s(6), 7282)
            b.I("s_lshr_b32", s(7), s(7), 16)
            b.I("s_mul_i32", s(6), s(6), 73728)
            b.I("s_mul_i32", s(7), s(7), 9 * 73728 - 4096)
            b.I("s_sub_u32", s(6), s(6), s(7))
            b.I("s_add_u32", s(6), s(6), s(14))
        else:
            b.I("s_add_u32", s(6), s(15), 64 * (i - 9))
            if i == 14:
                b.I("s_min_u32", s(6), s(6), 323)
            b.I("s_mul_i32", s(7), s(6), 3641)
            b.I("s_lshr_b32", s(7), s(7), 16)
            b.I("s_mul_i32", s(7), s(7), 18)
            b.I("s_add_u32", s(6), s(6), s(7))
            b.I("s_lshl_b32", s(6), s(6), 10)
            b.I("s_add_u32", s(6), s(6), s(13))
        b.I("buffer_load_dwordx4", v(acc(2 + i // 8, i % 8), 4), v(VL[0]), SRD, s(6), mods="offen")

    def signal(val):
        b.I("v_mov_b32", v(V_T), val)
        b.I("ds_write_b32", v(V_FW), v(V_T))
        stt["own"] = val

    def read_flag(grp):
        b.I("ds_read_b32", v(V_F), v(V_FR), mods=f"offset:{0 if grp == 'A' else 1024}")
        stt["flagrd"] = grp

    def ensure(grp, thr, sleep=0):
        if passed[grp] >= thr:
            return
        if grp == role:
            assert stt["own"] >= thr, (role, grp, thr, stt["own"])
        if stt["flagrd"] != grp:
            read_flag(grp)
        stt["flagrd"] = None
        i = stt["nslow"]
        stt["nslow"] += 1
        lab = f"{name}_{role}_x{i}"
        off = 0 if grp == "A" else 1024
        b.I("v_cmp_gt_u32", "vcc", thr, v(V_F))
        b.I("s_cbranch_vccnz", lab + "s")
        b.label(lab + "r")
        sl = f"  s_sleep {sleep}\n" if sleep else ""
        slow.append(f"{lab}s:\n  s_mov_b32 s{S_CNT}, 0x100000\n{lab}l:\n{sl}  ds_read_b32 v{V_F}, v{V_FR} offset:{off}\n  s_waitcnt lgkmcnt(0)\n"
                    f"  v_cmp_gt_u32 vcc, {thr}, v{V_F}\n  s_cbranch_vccz {lab}r\n  s_sub_u32 s{S_CNT}, s{S_CNT}, 1\n"
                    f"  s_cbranch_scc0 {lab}l\n  s_branch {lab}r")
        passed[grp] = thr

    def lim():
        return min([stt["blim"]] + [g for g in marks if g > stt["gi"] or (g == stt["gi"] and not stt.get("evdone") == g)])

    def issue_b():
        if stt["bi"] >= lim() or not bfree:
            return False
        g = groups[stt["bi"]]
        ensure(*g["req"], sleep=1 if g["p2"] else 0)
        if A and P.get("dx") and g["tag"] == ("p1", 1, 0):
            b.raw(f"""  s_cmp_lg_u32 s{S_W}, 1
  s_cbranch_scc1 {name}_nd
  s_cmp_lg_u32 s{P["slo"]}, 0
  s_cbranch_scc1 {name}_nd
  s_cmp_ge_u32 s2, 144
  s_cbranch_scc1 {name}_nd
  v_mov_b32 v{V_T}, 0
  v_mov_b32 v{V_Z}, {fval(P)}
  s_lshl_b32 s6, s2, 7
  s_add_u32 s6, s6, {GFL + 0x8000}
  s_mov_b64 exec, 1
  buffer_store_dword v{V_Z}, v{V_T}, s[8:11], s6 offen sc1
  s_mov_b64 exec, -1
{name}_nd:""")
        sl = bfree.pop(0)
        bslot[stt["bi"]] = sl
        addr = g["b"]
        base = VL[addr >> 16]
        if A and g["p2"]:
            base = VP2 + (addr >> 16) + (3 if g["n"] % 2 else 0)
        if P.get("x2") and g["p2"] and not stt.get("vl"):
            stt["vl"] = True
            b.I("v_add_u32", v(1), 0x10000, v(0))
            b.I("v_add_u32", v(2), 0x20000, v(0))
            if P["x2"] == 2:
                b.I("v_lshrrev_b32", v(VS2), 1, v(VS))
        if P.get("x2") == 1 and not g["p2"]:
            o = (addr & 0x1ffff) >> 9
            b.I("ds_read2st64_b64", v(sl, 4), v(1 + (addr >> 17)), mods=f"offset0:{o} offset1:{o + 1}")
        elif P.get("x2") == 2 and not g["p2"]:
            for h in range(2):
                b.I("ds_read_b64", v(sl + 2 * h, 2), v([1, 2, VS2][addr >> 16]), mods=f"offset:{(addr & 0xffff) + 512 * h}")
        elif not (role in P.get("ablB", "") and not g["p2"] and g["tag"][1] >= 4):
            b.I("ds_read_b128", v(sl, 4), v(base), mods=f"offset:{addr & 0xffff}")
        stt["bi"] += 1
        if stt["bi"] < lim():
            gr, th = groups[stt["bi"]]["req"]
            if passed[gr] < th:
                read_flag(gr)
        return True

    def tick():
        for d in deferred:
            d[0] -= 1
        while deferred and deferred[0][0] <= 0:
            deferred.pop(0)[1]()
        tg = P.get("tog") and not A and pend
        if tg:
            b.I("s_setprio", P["tog"][0])
        for i in range(P["gper"]):
            if pend:
                pend.pop(0)()
        if tg:
            b.I("s_setprio", P["tog"][1])

    def flush_deferred():
        while deferred or pend:
            while pend:
                pend.pop(0)()
            if deferred:
                deferred.pop(0)[1]()

    def out_n(n):
        def fn():
            if P.get("pern") and not A and n >= P["pern"]:
                b.wait_tag_vm(("o", n - P["pern"]))
                signal(B_H[1] + 1 + n - P["pern"])
            b.I("s_add_u32", s(S_T2), s(S_PM if n % 2 == 0 else S_PMH), n * P.get('pns', 18432))
            e, o = acc(0, n), acc(1, n)
            b.I("v_cvt_pk_bf16_f32", v(e), v(e), v(e + 1))
            b.I("v_cvt_pk_bf16_f32", v(e + 1), v(e + 2), v(e + 3))
            b.I("v_cvt_pk_bf16_f32", v(e + 2), v(o), v(o + 1))
            b.I("v_cvt_pk_bf16_f32", v(e + 3), v(o + 2), v(o + 3))
            b.I("buffer_store_dwordx4", v(e, 4), v(VS), SRD, s(S_T2), mods=f"offen {aux}", tag=("o", n))
            if A and n % 2 == 0:
                e = acc(2, n // 2)
                b.I("s_add_u32", s(S_T2), s(S_PX), n * P.get('pns', 18432))
                b.I("v_cvt_pk_bf16_f32", v(e), v(e), v(e + 1))
                b.I("v_cvt_pk_bf16_f32", v(e + 1), v(e + 2), v(e + 3))
                b.I("buffer_store_dwordx2", v(e, 2), v(VS2), SRD, s(S_T2), mods=f"offen {aux}")
        return fn

    def hstore(n):
        if P.get("nohst"):
            return
        b.I("s_add_u32", s(S_T2), s(S_HO), (n // 4) * 4096)
        b.I("buffer_store_dwordx4", v(acc(0, n), 4), v(VL[0]), SRD, s(S_T2), mods=f"offen offset:{(n % 4) * 1024} sc1", tag=("h", n // 4))

    def b_gelu(n):
        def fn():
            nxt = (lambda: b.I("ds_read_b32", v(VS2), v(V_HWX), mods=f"offset:{64 * n + 64}")) if n < 7 else None
            pend.extend(gelu_thunks(b, [(acc(t, n), acc(0, n) + t) for t in range(4)], temps, VS2 if RAW else None, nxt))
            pend.append(lambda: hstore(n))

            def wr():
                ensure("A", 2)
                ensure("B", bval[13])
                b.I("ds_write_b128", v(V_HW), v(acc(0, n), 4), mods=f"offset:{n * 1024}")
                if 2 * (7 - n) < P["ringB"]:
                    bextra.extend([acc(2, n), acc(3, n)])
                else:
                    wfree.extend([acc(2, n), acc(3, n)])
                if n == 3:
                    signal(B_H[0])
                if n == P["bp0"]:
                    st()
                    publish(0)
                    st()
                if n in (0, 3):
                    st()
            pend.append(wr)
        return fn

    def run_groups(end):
        while stt["gi"] < end:
            gi = stt["gi"]
            g = groups[gi]
            tag = g["tag"]
            if P.get("sg") and gi >= NP1 - (0 if A else 32) and (gi - NP1) % P["sg"] == 0:
                st(True)
            for fn in events.get(gi, []):
                fn()
            if gi in marks:
                stt["evdone"] = gi
                while issue_b():
                    pass
            while gi not in bslot:
                assert issue_b(), (role, gi, tag)
            nm = len(g["mf"])
            wcnt = 0
            if A and gi < NP1:
                stt["la"] = P["la0"](gi)
            if P["mergew"] and gi > 0 and all(wk in wslot for _, wk, _ in g["mf"]):
                regs = {("v", wslot[wk] + i) for _, wk, _ in g["mf"] for i in range(4)} | {("v", bslot[gi] + i) for i in range(4)}
                b.wait_regs(regs)
            for mi, (ar, wk, first) in enumerate(g["mf"]):
                while wk not in wslot:
                    assert issue_w(True), (role, gi, wk)
                d = v(ar, 4)
                b.I(MF, d, v(wslot[wk], 4), v(bslot[gi], 4), "0" if first else d)
                used.add(wk)
                if last_use[wk] == (gi, mi):
                    wfree.append(wslot[wk])
                if mi == nm - 1:
                    bfree.append(bslot[gi])
                if P["space"]:
                    wok = wcnt < (P["wpg0"] if gi < P["pace0"] else P["wpg"]) and mi >= 1
                    if (mi < nm - 1 or len(bfree) >= 2) and issue_b():
                        pass
                    elif wok and (mi < nm - 1 or nm < 4) and issue_w():
                        wcnt += 1
                else:
                    if last_use[wk] == (gi, mi):
                        issue_w()
                tick()
            if not P["space"]:
                while issue_b():
                    pass
                issue_w()
            if tag[0] == "p1":
                if not A and tag[2] == 7 and tag[1] in bval:
                    signal(bval[tag[1]])
                if not A and tag[2] == 7 and tag[1] == K0 - 1:
                    b.I("s_setprio", P["nprio"])
                    stt["la"] = P["laB"]
                if not A and tag[1] == 17:
                    deferred.append([P["gdelay"], b_gelu(tag[2])])
                if tag[2] == 7 and tag[1] in P["stampsteps"]:
                    st()
            if dq and gi % P["dper"] == 0:
                dq.pop(0)[1]()
            if tag[0] == "p2" and tag[2]:
                deferred.append([P["delay"], out_n(tag[1])])
            stt["gi"] = gi + 1

    def publish(half):
        b.wait_tag_vm(("h", half))
        b.I("v_mov_b32", v(V_T), 0)
        b.I("v_mov_b32", v(V_Z), fval(P))
        b.I("buffer_store_dword", v(V_Z), v(V_T), SRD, s(S_FO), mods=f"offen offset:{4 * half} sc1")

    FOFF = [0, 4, 128, 132]

    def poll_issue(which):
        b.I("v_mov_b32", v(V_T), 0)
        b.I("buffer_load_dword", v(V_Z), v(V_T), SRD, s(S_FP), mods=f"offen offset:{FOFF[which]} sc1")

    def poll_check(which):
        lab = f"{name}_{role}_poll{which}"
        b.I(*notset(P, V_Z))
        b.I("s_cbranch_vccnz", lab + "s")
        b.label(lab + "r")
        slow.append(f"{lab}s:\n  s_mov_b32 s{S_CNT}, 0x100000\n  v_mov_b32 v{V_T}, 0\n{lab}l:\n"
                    f"  buffer_load_dword v{V_Z}, v{V_T}, s[8:11], s{S_FP} offen offset:{FOFF[which]} sc1\n  s_waitcnt vmcnt(0)\n"
                    f"  {notset_t(P, V_Z)}\n  s_cbranch_vccz {lab}r\n  s_sleep 1\n  s_sub_u32 s{S_CNT}, s{S_CNT}, 1\n"
                    f"  s_cbranch_scc0 {lab}l\n  s_branch {lab}r")

    dq = []

    def dma_batch(bt):
        lb, gb = (5 * 8192, 0) if bt < 2 else (14 * 8192, 5 * 8192)
        q = bt % 2
        tag = ("hp", bt)

        def one(i):
            b.I("s_add_u32", "m0", s(S_W8), lb + q * 4096)
            b.I("s_add_u32", s(S_T2), s(S_HP), gb + q * 4096)
            b.I("buffer_load_dwordx4", v(VL[0]), SRD, s(S_T2), mods=f"offen offset:{i * 1024} {P.get('haux', 'sc1')} lds", tag=tag)

        def quad(i):
            b.I("s_add_u32", "m0", s(S_XL), 9 * 8192)
            b.I("buffer_load_dwordx4", v(VL[0]), SRD, s(S_HPX), mods=f"offen offset:{i * 1024} {P.get('haux', 'sc1')} lds", tag=tag)
        for i in range(4):
            dq.append((bt, lambda i=i: one(i)))
        if bt == 1:
            for i in range(2):
                dq.append((bt, lambda i=i: quad(i)))

    def dma_partner(bt, now=None):
        ensure("B", [bval[9], bval[9], B_H[0], B_H[1]][bt], sleep=1)
        dma_batch(bt)
        for i in range(P["d0"] if now is None else now):
            if dq:
                dq.pop(0)[1]()

    def lim_for(thr):
        return next((i for i in range(NP1, len(groups)) if groups[i]["req"][0] == "A" and groups[i]["req"][1] >= thr), len(groups))

    def limB(thr):
        return next((i for i in range(NP1, len(groups)) if groups[i]["req"][0] == "B" and groups[i]["req"][1] >= thr), len(groups))

    def dma_done(bt):
        while dq and dq[0][0] <= bt:
            dq.pop(0)[1]()
        b.wait_tag_vm(("hp", bt))
        if A:
            signal(4 + bt)
            stt["blim"] = lim_for(5 + bt)
        else:
            signal(B_H[1] + bt - 1)
            stt["blim"] = limB(B_H[1] + bt)
        st()

    tail = late_setup
    if A:
        for j in range(P["preA"]):
            issue_w()
    else:
        stt["la"] = P["laX"]
        for j in range(P["preB"]):
            issue_w(True)
    st()
    if A:
        b.I("s_setprio", 3)
    tail.handoff(b, role, slow, P)
    st()
    if hasattr(tail, "after"):
        tail.after()
    if A:
        issue_x(0)
        b.I("s_setprio", P["aprio"])
        for j in range(P["a0w"]):
            issue_w()
        b.wait_tag_vm(("x", 0))
        if P.get("st0"):
            st()
        signal(1)
        while issue_b():
            pass
        for j in range(P["a1w"]):
            issue_w()
    else:
        xsig = sorted(set(x - 1 for x in P["xchk"]) | {3})
        nx = 1 + P["xfly0"]
        if P.get("wpf"):
            b.I("s_mul_i32", s(14), s(13), 9 * 73728)
            b.I("s_lshl_b32", s(7), s(19), 10)
            b.I("s_add_u32", s(14), s(14), s(7))
            b.I("s_add_u32", s(14), s(14), WGU)
            b.I("s_lshl2_add_u32", s(15), s(5), s(19))
            b.I("s_mul_i32", s(13), s(4), 18 * 36)
            b.I("s_mul_i32", s(7), s(12), 18)
            b.I("s_add_u32", s(13), s(13), s(7))
            b.I("s_lshl_b32", s(13), s(13), 10)
            b.I("s_add_u32", s(13), s(13), WD)
        for k in range(1, nx):
            issue_x(k)
            if k == 1:
                b.I("s_setprio", P["xprio"])
        stt["blim"] = 32
        stt["la"] = P["laX"]
        if RAW:
            assert P["bxr"] == 0
            b.I("v_add_u32", v(SA), s(S_XL), v(1))
            b.I("v_add_u32", v(SA + 1), s(S_XL), v(2))
            b.I("s_mov_b32", s(15), P["srl"])
            for i in range(4):
                b.I("v_mov_b32", v(ON + i), 0x3f803f80)

            def first_sc():
                ensure("B", 19)
                b.I("ds_read_b32", v(VS2), v(V_HWX))
            events.setdefault(K0 * 8, []).append(first_sc)
        for k in range(1, 18):
            b.wait_tag_vm(("x", k))
            if P.get("st0") and k < 6:
                st()
            if P.get("wdef") and k == P["wdk"]:
                wa, wz = acc(0, 0), acc(0, 0) + 1
                b.I("v_min_u32", v(wa), 17 * 16, v(VL[0]))
                b.I("v_lshlrev_b32", v(wa), 6, v(wa))
                b.I("s_lshl_b32", s(6), s(4), 7)
                b.I("s_add_u32", s(6), s(6), GFL + 0x8000)
                b.I("buffer_load_dword", v(wz), v(wa), SRD, s(6), mods="offen sc1")
            if P.get("wdef") and k == P["wdk"] + 2:
                lab = f"{name}_wd"
                b.I(*notset(P, wz))
                b.I("s_cbranch_vccnz", lab + "s")
                b.label(lab + "r")
                slow.append(f"{lab}s:\n  s_mov_b32 s{S_CNT}, 0x40000\n{lab}l:\n"
                            f"  buffer_load_dword v{wz}, v{wa}, s[8:11], s6 offen sc1\n  s_waitcnt vmcnt(0)\n"
                            f"  {notset_t(P, wz)}\n  s_cbranch_vccz {lab}r\n  s_sleep 1\n  s_sub_u32 s{S_CNT}, s{S_CNT}, 1\n"
                            f"  s_cbranch_scc0 {lab}l\n  s_branch {lab}r")
            if k in xsig:
                signal(k + 1)
            for j in range(2):
                if nx < min(18, k + 1 + P["xfly"]):
                    issue_x(nx)
                    nx += 1
            if k >= P.get("wpf0", 1):
                for j in range(P.get("wpfn", 1)):
                    l2_prefetch()
            if k >= P["bwk"]:
                issue_w(True)
            if RAW and not P.get("nost"):
                st_rd(k)
                if k > 1:
                    st_acc(k - 1)
            if k >= P["bx0"]:
                run_groups(min(30, int((k + 1 - P["bx0"]) * P["bxr"])))
        b.I("s_setprio", P["bprio"])
        if RAW:
            if P.get("nost"):
                for i in range(16):
                    b.I("v_mov_b32", v(acc(2, 0) + i), fhex(3000.0) if i & 4 else 0)
            else:
                ensure("A", 1)
                st_rd(0)
                st_acc(17)
                st_acc(0)
            st_fin()
            signal(19)
        stt["la"] = 99
        stt["blim"] = NP1
        st()
        while issue_b():
            pass
    st()
    run_groups(NP1)
    if A:
        signal(2)
        b.I("s_setprio", P["gprioA"])
        stt["la"] = P["laA"]
        st()
        while issue_w():
            pass
        wrn = 0
        if RAW:
            b.I("v_bfe_u32", v(XR + 12), v(0), 4, 4)
            b.I("v_lshlrev_b32", v(XR + 12), 2, v(XR + 12))
            b.I("v_add_u32", v(XR + 12), P["srl"], v(XR + 12))
            ensure("B", 19, sleep=1)
            for n in range(8):
                b.I("ds_read_b32", v(XR + 4 + n), v(XR + 12), mods=f"offset:{64 * n}")
        for n in range(8):
            tiles = [(acc(t, n), acc(0, n) + t) for t in range(4)] + [(acc(4, n), acc(4, 4 * (n // 4)) + n % 4)]
            th = gelu_thunks(b, tiles, temps, XR + 4 + n if RAW else None)
            for i, f in enumerate(th):
                if n == P["nw0"] and i == 20:
                    read_flag("A")
                if n == P["nw0"] and i == 40:
                    ensure("A", 2)
                    read_flag("B")
                f()
            if n == P["ap1"]:
                poll_issue(0)
            hstore(n)
            if n >= P["nw0"]:
                ensure("B", bval[4], sleep=1)
                while wrn <= n:
                    b.I("ds_write_b32", v(V_HWX), v(acc(4, 4 * (wrn // 4)) + wrn % 4), mods=f"offset:{wrn * 1024}")
                    b.I("ds_write_b128", v(V_HW), v(acc(0, wrn), 4), mods=f"offset:{wrn * 1024}")
                    wrn += 1
            if n == P["ap0"]:
                publish(0)
        signal(3)
        st()
        for i in range(3):
            if P.get("x2") and i and not stt.get("vl"):
                b.I("v_add_u32", v(i), 0x10000 * i, v(0))
            b.I("v_add_u32", v(VP2 + i), s(S_H4), v(VL[i]))
            b.I("v_subrev_u32", v(VP2 + 3 + i), s(S_H4), v(VL[i]))
        b.I("v_add_u32", v(VP2 + 6), s(S_XL), v(VL[0]))
        ex = [acc(2, 4) + 4 * i for i in range(10)] + [acc(4, n) for n in range(6)]
        bfree.extend(ex[:P["ringA"]])
        wfree.extend(ex[P["ringA"]:])

        def q_read():
            ensure("A", 3)
            for i in range(2):
                b.I("ds_read_b128", v(acc(4, 6 + i), 4), v(VP2 + 6), mods=f"offset:{4 * 8192 + i * 1024}")

        def q_store():
            for i in range(2):
                b.I("buffer_store_dwordx4", v(acc(4, 6 + i), 4), v(VL[0]), SRD, s(S_HOX), mods=f"offen offset:{i * 1024} sc1", tag=("h", 1))
            wfree.extend([acc(4, 6), acc(4, 7)])
        mk = {"P1": lambda: publish(1), "qr": q_read, "qs": q_store}
        for pr in range(4):
            mk[f"r{pr}"] = lambda pr=pr: b.I("s_setprio", pr)
        for bt in range(4):
            mk[f"p{bt}"] = lambda bt=bt: poll_issue(bt)
            mk[f"d{bt}"] = lambda bt=bt: (poll_check(bt), dma_partner(bt), st())
            mk[f"D{bt}"] = lambda bt=bt: (poll_check(bt), dma_partner(bt, 6), st())
            mk[f"w{bt}"] = lambda bt=bt: dma_done(bt)
        for e, m in P["evA"]:
            if e == -1:
                mk[m]()
            else:
                events.setdefault(NP1 + e, []).append(mk[m])
        for gi, ms in marks.items():
            for m in ms:
                events.setdefault(gi, []).append(mk[m])
        ensure("B", bval[P["gate"]], sleep=2)
        st()
        stt["blim"] = lim_for(4)
        b.I("s_setprio", P["pprioA"])
    else:
        st()
        if P.get("flprio") is not None:
            b.I("s_setprio", P["flprio"])
        flush_deferred()
        signal(B_H[1])
        bfree.extend(bextra + [acc(4, 7)])
        b.I("s_setprio", P["fprioB"])
        st()
        stt["blim"] = limB(B_H[1] + 1)
        mk = {"P1": lambda: (publish(1), st())}
        for bt in (2, 3):
            mk[f"p{bt}"] = lambda bt=bt: poll_issue(bt)
            mk[f"d{bt}"] = lambda bt=bt: (poll_check(bt), dma_partner(bt), st())
            mk[f"w{bt}"] = lambda bt=bt: dma_done(bt)
        for pr in range(4):
            mk[f"r{pr}"] = lambda pr=pr: b.I("s_setprio", pr)
        for e, m in P["evB"]:
            events.setdefault(NP1 + e, []).append(mk[m])
    while issue_b():
        pass
    run_groups(len(groups))
    flush_deferred()
    if hasattr(tail, "finish"):
        if P.get("pern") and not A:
            assert B_H[1] == P["bh1"], B_H
            for n in range(8 - P["pern"], 7):
                b.wait_tag_vm(("o", n))
                signal(B_H[1] + 1 + n)
        tail.finish(b, role)
        for t in slow:
            b.raw(t)
        return
    if P["stamps"]:
        st(True)
        b.wait_all()
        st(True)
        b.wait_all()
        b.I("s_lshl_b32", s(28), s(2), 3)
        b.I("s_add_u32", s(28), s(28), s(3))
        b.I("s_lshl_b32", s(28), s(28), 7)
        b.I("s_add_u32", s(28), s(28), STAMP)
        b.I("v_mov_b32", v(4), 0)
        for i in range(st.n):
            b.I("v_mov_b32", v(8), s(st.base + 2 * i))
            b.I("buffer_store_dword", v(8), v(4), SRD, s(28), mods=f"offen offset:{4 * i}")
    b.wait_all()
    tl.end(b)
    b.I("s_endpgm")
    for t in slow:
        b.raw(t)
```

```python
from ab import *
from lay import *
import tl
from k_front import St, conv_order
MF = "v_mfma_f32_16x16x32_bf16"

HS = 4416
UB = 4 * HS
WSZ = UB + 4672
YL = 4 * WSZ
HLB = YL + 16640
SY = HLB + 4 * 9216
FRONT_LDS = SY + 64
NCONV = 144


class RL:
    GL, DL, GW, GR, DW, DR = 207, 208, 209, 210, 211, 212
    GW2 = [209, 213, 214, 215]
    LN = 216
    US = 48

    def __init__(self, b, P, units, st, name):
        self.b, self.P, self.units, self.st, self.name, self.nl = b, P, units, st, name, 0
        self.exit = P["fuse"]
        self.touch = False
        self.defer = False
        self.mid = False

    def setup(self, idx, ldsbase):
        b = self.b
        T = 217
        b.I("v_and_b32", v(T), 63, v(0))
        b.I("v_lshlrev_b32", v(self.LN), 4, v(T))
        b.I("v_lshrrev_b32", v(T + 1), 3, v(T))
        b.I("v_and_b32", v(T + 2), 7, v(T))
        b.I("v_lshrrev_b32", v(T + 3), 4, v(T))
        b.I("v_bfe_u32", v(T + 4), v(T), 2, 2)
        b.I("v_lshl_add_u32", v(T + 3), v(T + 3), 3, v(T + 4))
        b.I("v_and_b32", v(T + 4), 3, v(T))
        tys = {u[0] for u in self.units}
        def mk(dst, m, r1, r2, sh, base):
            b.I("v_mul_u32_u24", v(dst), m, v(r1))
            b.I("v_lshl_add_u32", v(dst), v(r2), sh, v(dst))
            if base:
                b.I("v_add_u32", v(dst), s(ldsbase), v(dst))
        if "g" in tys:
            mk(self.GL, 9216, T + 1, T + 2, 4, 0)
            mk(self.GW, 264, T + 1, T + 2, 5, 1)
            mk(self.GR, 264, T + 3, T + 4, 5, 1)
            for i in range(1, 4):
                b.I("v_add_u32", v(self.GW2[i]), i * 8 * 264, v(self.GW))
        if "d" in tys:
            mk(self.DL, 1152, T + 1, T + 2, 4, 0)
            mk(self.DW, 144, T + 1, T + 2, 4, 1)
            mk(self.DR, 144, T + 3, T + 4, 4, 1)
        b.I("s_and_b32", s(24), s(2), 7)
        b.I("s_mul_i32", s(24), s(24), 9)
        for r, (ty, first, cnt, full) in enumerate(self.units):
            so, do = self.US + 2 * r, self.US + 1 + 2 * r
            b.I("s_add_u32", s(27), s(idx), first)
            b.I("s_mul_i32", s(25), s(27), 7282)
            b.I("s_lshr_b32", s(25), s(25), 16)
            b.I("s_mul_i32", s(26), s(25), 9)
            b.I("s_sub_u32", s(26), s(27), s(26))
            if ty == "g":
                b.I("s_add_u32", s(26), s(26), s(24))
                b.I("s_mul_i32", s(so), s(25), 32 * 9216)
                b.I("s_lshl_b32", s(27), s(26), 7)
                b.I("s_add_u32", s(so), s(so), s(27))
                b.I("s_mul_i32", s(27), s(26), 36)
                b.I("s_add_u32", s(27), s(27), s(25))
                b.I("s_lshl_b32", s(27), s(27), 12)
                b.I("s_add_u32", s(do), s(27), WGU)
            else:
                b.I("s_add_u32", s(25), s(25), s(24))
                b.I("s_mul_i32", s(so), s(25), 64 * 1152)
                b.I("s_lshl_b32", s(27), s(26), 7)
                b.I("s_add_u32", s(so), s(so), s(27))
                b.I("s_mul_i32", s(27), s(25), 18)
                b.I("s_add_u32", s(27), s(27), s(26))
                b.I("s_lshl_b32", s(27), s(27), 12)
                b.I("s_add_u32", s(do), s(27), WD)

    def srds(self):
        b = self.b
        b.I("s_mov_b32", s(16), s(14))
        b.I("s_mov_b32", s(17), s(15))
        b.I("s_mov_b32", s(18), F * D * 2)
        b.I("s_mov_b32", s(19), 0x20000)
        b.I("s_mov_b32", s(14), F * D * 2)
        b.I("s_mov_b32", s(15), 0x20000)
        b.I("s_mov_b32", s(22), F * D * 2)
        b.I("s_mov_b32", s(23), 0x20000)

    def masked(self, r, fn):
        fn()

    def loads(self, r, RB=16):
        b, laux = self.b, self.P["rlaux"]
        ty = self.units[r][0]
        R = RB + 32 * r
        so = self.US + 2 * r

        def fn():
            if ty == "g":
                for i in range(4):
                    b.I("s_add_u32", s(28 + (i & 1)), s(so), i * 8 * 9216)
                    b.I("buffer_load_dwordx4", v(R + 4 * i, 4), v(self.GL), s(12, 4), s(28 + (i & 1)), mods="offen " + laux)
                    b.I("buffer_load_dwordx4", v(R + 16 + 4 * i, 4), v(self.GL), s(16, 4), s(28 + (i & 1)), mods="offen " + laux)
            else:
                for i in range(8):
                    b.I("s_add_u32", s(28 + (i & 1)), s(so), i * 8 * 1152)
                    b.I("buffer_load_dwordx4", v(R + 4 * i, 4), v(self.DL), s(20, 4), s(28 + (i & 1)), mods="offen " + laux)
        self.masked(r, fn)

    def proc(self, r, RB=16):
        b, aux = self.b, self.P["raux"]
        ty = self.units[r][0]
        R = RB + 32 * r
        O = RB + 32 * len(self.units) + 32 * (r % 2)
        dfr = self.defer and ty == "d"
        if dfr:
            O = R
        assert O + 32 <= 207
        do = self.US + 1 + 2 * r
        if ty == "g":
            for i in range(4):
                for k in range(4):
                    b.I("ds_write2_b32", v(self.GW2[i]), v(R + 4 * i + k), v(R + 16 + 4 * i + k), mods=f"offset0:{2 * k} offset1:{2 * k + 1}")
        else:
            for i in range(8):
                b.I("ds_write_b128", v(self.DW), v(R + 4 * i, 4), mods=f"offset:{i * 8 * 144}")
        for kl in range(2):
            for t in range(4):
                o = O + (kl * 4 + t) * 4
                for h in range(2):
                    if ty == "g":
                        b.I("ds_read_b64_tr_b16", v(o + 2 * h, 2), v(self.GR), mods=f"offset:{kl * 128 + t * 8 + h * 4 * 264}")
                    else:
                        b.I("ds_read_b64_tr_b16", v(o + 2 * h, 2), v(self.DR), mods=f"offset:{(kl * 32 + h * 4) * 144 + (t >> 1) * 64 + (t & 1) * 8}")
        if dfr:
            b.I("s_mov_b32", s(37 + r), s(do))
            return
        if self.P["rskip"] and self.mid and r >= 1:
            return
        b.I("s_add_u32", s(30), s(do), 18 * 4096 if ty == "g" else 36 * 1024)

        def fn():
            for kl in range(2):
                for t in range(4):
                    o = O + (kl * 4 + t) * 4
                    b.I("buffer_store_dwordx4", v(o, 4), v(self.LN), s(8, 4), s(do) if kl == 0 else s(30), mods=f"offen offset:{t * 1024} {aux}")
        self.masked(r, fn)

    def qpf(self):
        b = self.b
        b.I("s_load_dwordx2", s(32, 2), s(0, 2), 0)
        b.I("s_and_b32", s(24), s(2), 0xf0)
        b.I("s_and_b32", s(25), s(2), 7)
        b.I("s_lshl_b32", s(25), s(25), 1)
        b.I("s_add_u32", s(24), s(24), s(25))
        b.I("s_bfe_u32", s(25), s(2), 0x10003)
        b.I("s_add_u32", s(24), s(24), s(25))
        b.I("s_mul_i32", s(24), s(24), 9216)
        b.I("s_and_b32", s(25), s(3), 3)
        b.I("s_mul_i32", s(25), s(25), 2304)
        b.I("s_add_u32", s(24), s(24), s(25))
        b.I("v_add_u32", v(220), s(24), v(self.LN))
        b.I("s_mov_b32", s(34), S * D * 2)
        b.I("s_mov_b32", s(35), 0x20000)
        for i in range(3):
            b.I("buffer_load_dwordx4", v(224 + 4 * i, 4), v(220), s(32, 4), 0, mods=f"offen offset:{min(1024 * i, 1280)}", tag="qpf")
        if self.P["xs"] == 2:
            b.I("s_mov_b32", s(24), X1)
            for i in range(3):
                b.I("buffer_load_dwordx4", v(240 + 4 * i, 4), v(220), s(8, 4), s(24), mods=f"offen offset:{min(1024 * i, 1280)} sc1", tag="qpf")

    def tag_mid(self, m):
        self.b.raw(f"""  s_cmp_lg_u32 s3, 0
  s_cbranch_scc1 {m}c
  s_waitcnt vmcnt(0)
  s_mov_b32 s43, 0x40000
{m}l:
  v_cmp_eq_u32 vcc, 0, v2
  s_cbranch_vccz {m}b
  buffer_load_dwordx2 v[2:3], v4, s[44:47], 0 offen sc1
  s_waitcnt vmcnt(0)
  s_sub_u32 s43, s43, 1
  s_cbranch_scc0 {m}l
{m}b:
  v_mov_b32 v5, {self.P["gcnt"] + 4}
  ds_write_b32 v5, v4
  ds_write_b64 v5, v[2:3] offset:4
{m}c:
  s_waitcnt lgkmcnt(0)
  s_barrier""")

    def run_ctr(self, idx):
        b = self.b
        RB, CS, ON, PK, CA = 16, 112, 144, 148, 192
        CX = 8 * 9216
        for vi, nu in enumerate((3, 2)):
            if vi == 0:
                b.I("s_cmp_ge_u32", s(idx), 18)
                b.I("s_cbranch_scc1", f"{self.name}_v1")
                snap = b.snapshot()
            for r in range(nu):
                self.loads(r)
            if self.P["qpf"] == 1:
                self.qpf()
            b.raw(f"""  s_cmp_lg_u32 s3, 0
  s_cbranch_scc1 {self.name}_c{vi}a
  buffer_load_dwordx2 v[2:3], v4, s[44:47], 0 offen sc1
{self.name}_c{vi}a:""")
            for i in range(4):
                b.I("v_mov_b32", v(ON + i), 0x3f803f80)
            SE = 196
            b.I("v_bfe_u32", v(CA), v(self.LN), 6, 2)
            b.I("v_lshrrev_b32", v(CA + 1), 8, v(self.LN))
            b.I("v_cmp_eq_u32_e64", s(26, 2), v(CA), v(CA + 1))
            b.I("v_bfe_u32", v(CA), v(self.LN), 4, 1)
            b.I("v_lshlrev_b32", v(CA), 4, v(CA))
            b.I("v_mov_b32", v(CA + 1), 0x3f80)
            b.I("v_lshlrev_b32", v(CA + 1), v(CA), v(CA + 1))
            b.I("v_cndmask_b32_e64", v(CA + 1), 0, v(CA + 1), s(26, 2))
            b.I("v_bfe_u32", v(CA), v(self.LN), 5, 1)
            b.I("v_cmp_eq_u32", "vcc", 0, v(CA))
            b.I("v_cndmask_b32", v(SE), 0, v(CA + 1), "vcc")
            b.I("v_sub_u32", v(SE + 1), v(CA + 1), v(SE))
            for i in (2, 3, 4, 5):
                b.I("v_mov_b32", v(SE + i), 0)
            b.I("v_mov_b32", v(SE + 6), v(SE))
            b.I("v_mov_b32", v(SE + 7), v(SE + 1))
            b.I("v_and_b32", v(CA), 0xf0, v(self.LN))
            b.I("v_lshlrev_b32", v(CA), 1, v(CA))
            b.I("v_add_u32", v(CA), CX, v(CA))
            b.I("s_lshl_b32", s(26), s(3), 9)
            b.I("v_add_u32", v(CA + 1), s(26), v(CA))
            for r in range(nu):
                R = RB + 32 * r
                for i in range(4):
                    for k in range(4):
                        b.I("ds_write2_b32", v(self.GW2[i]), v(R + 4 * i + k), v(R + 16 + 4 * i + k), mods=f"offset0:{2 * k} offset1:{2 * k + 1}")
                for p in range(8):
                    for h in range(2):
                        b.I("ds_read_b64_tr_b16", v(R + 4 * p + 2 * h, 2), v(self.GR), mods=f"offset:{(p >> 2) * 128 + (p & 3) * 8 + h * 4 * 264}")
                for p in range(8):
                    b.I(MF, v(CS + 4 * p, 4), v(ON, 4), v(R + 4 * p, 4), v(CS + 4 * p, 4) if r else "0")
            for p in range(8):
                b.I("v_mov_b32", v(PK + p), v(CS + 4 * p))
            for h in range(2):
                b.I("ds_write_b128", v(CA + 1), v(PK + 4 * h, 4), mods=f"offset:{16 * h}")
            b.wait(lgkm=0)
            rts = lambda r: b.raw(f"  s_memrealtime s[{r}:{r + 1}]\n  s_waitcnt lgkmcnt(0)") if self.P["fst"] else None
            rts(64)
            self.tag_mid(f"{self.name}_m{vi}")
            rts(68)
            for w in range(8):
                for h in range(2):
                    b.I("ds_read_b128", v(168 + 4 * h if w == 0 else CS - 8 + 8 * w + 4 * h, 4), v(CA), mods=f"offset:{512 * w + 16 * h}")
            for w in range(1, 8):
                for p in range(8):
                    b.I("v_add_f32", v(168 + p), v(168 + p), v(CS - 8 + 8 * w + p))
            for p in range(8):
                for i in range(4):
                    b.I("v_mul_f32", v(CS + 4 * p + i), fhex(-1.0 / D), v(168 + p))
            for r in range(nu):
                R = RB + 32 * r
                do = self.US + 1 + 2 * r
                b.I("s_add_u32", s(30), s(do), 18 * 4096)

                def mf(p):
                    for h in range(2):
                        b.I(MF, v(144 + 8 * (p % 3) + 4 * h, 4), v(SE + 4 * h, 4), v(R + 4 * p, 4), v(CS + 4 * p, 4))
                if r == 0:
                    rts(78)
                mf(0)
                mf(1)
                for p in range(8):
                    if p + 2 < 8:
                        mf(p + 2)
                    for i in range(4):
                        tm = 144 + 8 * (p % 3) + 2 * i
                        b.I("v_cvt_pk_bf16_f32", v(R + 4 * p + i), v(tm), v(tm + 1))
                    b.I("buffer_store_dwordx4", v(R + 4 * p, 4), v(self.LN), s(8, 4), s(do) if p < 4 else s(30), mods=f"offen offset:{(p & 3) * 1024} {self.P['raux']}")
            b.wait_tag_vm("qpf")
            b.I("s_mov_b32", s(39), 0)
            b.I("s_branch", self.exit)
            if vi == 0:
                b.restore(snap)
                b.label(f"{self.name}_v1")

    def qstat(self):
        b = self.b
        m = self.name + "_q"
        b.I("s_load_dwordx2", s(32, 2), s(0, 2), 0)
        b.I("s_sub_u32", s(24), s(2), 144 + 72)
        b.I("s_lshl_b32", s(24), s(24), 3)
        b.I("s_add_u32", s(24), s(24), s(3))
        b.I("s_mov_b32", s(34), S * D * 2)
        b.I("s_mov_b32", s(35), 0x20000)
        b.I("s_mul_i32", s(25), s(24), 9216)
        b.I("v_and_b32", v(10), 63, v(0))
        b.I("v_lshrrev_b32", v(11), 3, v(10))
        b.I("v_and_b32", v(12), 7, v(10))
        b.I("v_mul_u32_u24", v(13), 1152, v(11))
        b.I("v_lshl_add_u32", v(13), v(12), 4, v(13))
        if self.P["dx"]:
            for i in range(9):
                b.I("buffer_load_dwordx4", v(16 + 4 * i, 4), v(13), s(32, 4), s(25), mods=f"offen offset:{128 * i}")
        else:
            self.qpf()
        b.raw(f"""  s_cmp_lg_u32 s3, 0
  s_cbranch_scc1 {m}a
  buffer_load_dwordx2 v[2:3], v4, s[44:47], 0 offen sc1
{m}a:""")
        if self.P["dx"]:
            M, R = 60, 61
            b.I("v_mov_b32", v(M), 0)
            b.I("v_mov_b32", v(R), 0)
            for i in range(36):
                b.I("v_dot2c_f32_bf16", v(M), 0x3f803f80, v(16 + i))
                b.I("v_dot2c_f32_bf16", v(R), v(16 + i), v(16 + i))
            for mm in ("quad_perm:[1,0,3,2]", "quad_perm:[2,3,0,1]", "row_half_mirror"):
                for x in (M, R):
                    b.I("v_add_f32_dpp", v(x), v(x), v(x), mods=mm + " row_mask:0xf bank_mask:0xf")

            def rb(x):
                b.I("v_cvt_pk_bf16_f32", v(x), v(x), v(x))
                b.I("v_lshlrev_b32", v(x), 16, v(x))
            b.I("v_mul_f32", v(M), fhex(-1.0 / D), v(M))
            b.I("v_mul_f32", v(R), fhex(1.0 / D), v(R))
            b.I("v_fma_f32", v(R), "-" + v(M), v(M), v(R))
            b.I("v_max_f32", v(R), 0, v(R))
            rb(M)
            rb(R)
            b.I("v_add_f32", v(R), fhex(1e-5), v(R))
            rb(R)
            b.I("v_sqrt_f32", v(R), v(R))
            rb(R)
            b.I("v_rcp_f32", v(R), v(R))
            b.I("v_mul_f32", v(M), v(M), v(R))
        self.tag_mid(m)
        if self.P["dx"]:
            b.I("v_mov_b32", v(14), self.P["gcnt"] + 8)
            b.I("ds_read_b64", v(62, 2), v(14))
            b.I("s_lshl_b32", s(25), s(24), 7)
            b.I("s_add_u32", s(25), s(25), QST)
            b.I("v_lshlrev_b32", v(11), 4, v(11))
            b.wait(lgkm=0)
            b.raw(f"""  s_cmp_ge_u32 s24, 256
  s_cbranch_scc1 {m}e
  s_mov_b32 exec_lo, 0x01010101
  s_mov_b32 exec_hi, 0x01010101
  buffer_store_dwordx4 v[60:63], v11, s[8:11], s25 offen sc1
  s_mov_b64 exec, -1
{m}e:""")
        b.wait_tag_vm("qpf")
        b.I("s_mov_b32", s(39), 0)
        b.I("s_branch", self.exit)

    def run(self, idx):
        b, st = self.b, self.st
        ths = sorted({u[2] for u in self.units if not u[3]})
        n0 = st.n
        for vi, lo in enumerate([0] + ths):
            if vi < len(ths):
                b.I("s_cmp_ge_u32", s(idx), ths[vi])
                b.I("s_cbranch_scc1", f"{self.name}_v{vi + 1}")
                snap = b.snapshot()
            st.n = n0
            rs = [r for r, u in enumerate(self.units) if u[3] or lo < u[2]]
            order = list(range(len(self.units)))
            if self.defer:
                order.sort(key=lambda r: self.units[r][0] == "d")
            ser = self.P["rser"] and self.mid
            for r in order:
                if r in rs and not (ser and r != order[0]):
                    self.loads(r)
            st()
            if self.P["qpf"] == 1 and not (self.P["rdly"] == -2 and self.name.endswith("_r")):
                self.qpf()
            if self.touch:
                b.I("buffer_load_dwordx4", v(236, 4), v(8), s(8, 4), s(36), mods="offen sc1", tag="qpf")
            if self.mid:
                b.raw(f"""  s_cmp_lg_u32 s3, 0
  s_cbranch_scc1 {self.name}_m{vi}a
  buffer_load_dwordx2 v[2:3], v4, s[44:47], 0 offen sc1
{self.name}_m{vi}a:""")
            if not rs:
                st()
            for r in order:
                if r in rs:
                    self.proc(r)
                if self.mid and r == order[0]:
                    m = f"{self.name}_m{vi}"
                    b.raw(f"""  s_cmp_lg_u32 s3, 0
  s_cbranch_scc1 {m}c
  s_waitcnt vmcnt(8)
  s_mov_b32 s43, 0x40000
{m}l:
  v_cmp_eq_u32 vcc, 0, v2
  s_cbranch_vccz {m}b
  buffer_load_dwordx2 v[2:3], v4, s[44:47], 0 offen sc1
  s_waitcnt vmcnt(0)
  s_sub_u32 s43, s43, 1
  s_cbranch_scc0 {m}l
{m}b:
  v_mov_b32 v5, {self.P["gcnt"] + 4}
  ds_write_b32 v5, v4
  ds_write_b64 v5, v[2:3] offset:4
  s_waitcnt lgkmcnt(0)
{m}c:
  s_barrier""")
                    if ser:
                        for r2 in order[1:]:
                            if r2 in rs:
                                self.loads(r2)
                st()
            if self.P["qpf"] == 2:
                self.qpf()
            if self.P["fuse"]:
                b.wait_tag_vm("qpf")
                if self.P["wdef"]:
                    b.I("s_mov_b32", s(39), len([r for r in rs if self.units[r][0] == "d"]) if self.defer else 0)
                    if self.mid and self.P["wre"]:
                        b.I("s_mov_b32", s(36), len(rs))
                        for r in range(2):
                            b.I("s_mov_b32", s(37 + r), s(self.US + 1 + 2 * r))
                    b.wait(lgkm=0)
                b.I("s_branch", self.exit)
            else:
                b.wait_all()
                st()
                st.dump(s(8, 4), 3)
                tl.end(b)
                b.I("s_endpgm")
            if vi < len(ths):
                b.restore(snap)
                b.label(f"{self.name}_v{vi + 1}")


def emit_conv(b, name, P):
    st = St(b, P["stamps"], base=60)
    st()
    b.I("s_load_dwordx2", s(24, 2), s(0, 2), 40)
    b.I("s_load_dwordx4", s(44, 4), s(0, 2), 88)
    b.I("v_lshrrev_b32", v(1), 6, v(0))
    b.I("v_and_b32", v(2), 63, v(0))
    b.I("v_readfirstlane_b32", s(3), v(1))
    KT, VT, WT = 0, 136 * 128, 264 * 128
    b.I("s_mul_i32", s(33), s(2), 7282)
    b.I("s_lshr_b32", s(33), s(33), 16)
    b.I("s_mul_i32", s(34), s(33), 9)
    b.I("s_sub_u32", s(34), s(2), s(34))
    b.I("s_mul_i32", s(6), s(33), 128 * 1152)
    b.I("s_lshl_b32", s(7), s(34), 7)
    b.I("s_add_u32", s(6), s(6), s(7))
    GA, GH, GW = 6, 7, 10
    b.I("v_lshrrev_b32", v(GA), 3, v(0))
    b.I("v_and_b32", v(GW), 7, v(0))
    b.I("v_mul_u32_u24", v(GA), 1152, v(GA))
    b.I("v_lshl_add_u32", v(GA), v(GW), 4, v(GA))
    b.I("v_add_u32", v(GA), s(6), v(GA))
    b.I("s_lshl_b32", s(5), s(3), 10)
    b.I("s_mov_b32", s(4), 64 * 1152)
    b.I("s_mov_b32", s(30), S * D * 2)
    b.I("s_mov_b32", s(31), 0x20000)
    b.I("s_add_u32", "m0", s(5), KT + 1024)
    b.wait(lgkm=0)
    st()
    b.I("s_mov_b32", s(28), s(14))
    b.I("s_mov_b32", s(29), s(15))
    b.I("s_mov_b32", s(14), S * D * 2)
    b.I("s_mov_b32", s(15), 0x20000)
    ga = P["gaux"]
    b.I("buffer_load_dwordx4", v(GA), s(12, 4), 0, mods=f"offen {ga} lds")
    b.I("s_add_u32", "m0", s(5), KT + 1024 + 8192)
    b.I("buffer_load_dwordx4", v(GA), s(12, 4), s(4), mods=f"offen {ga} lds")
    b.I("s_add_u32", "m0", s(5), VT)
    b.I("buffer_load_dwordx4", v(GA), s(28, 4), 0, mods=f"offen {ga} lds")
    b.I("s_add_u32", "m0", s(5), VT + 8192)
    b.I("buffer_load_dwordx4", v(GA), s(28, 4), s(4), mods=f"offen {ga} lds")
    b.I("s_cmp_gt_u32", s(3), 1)
    b.I("s_cbranch_scc1", f"{name}_nx")
    b.I("s_cmp_eq_u32", s(3), 0)
    b.I("s_cbranch_scc0", f"{name}_w1")
    b.I("v_subrev_u32", v(GH), 8 * 1152, v(GA))
    b.I("s_mov_b32", "m0", KT)
    b.I("buffer_load_dwordx4", v(GH), s(12, 4), 0, mods=f"offen {ga} lds")
    b.I("s_branch", f"{name}_nx")
    b.label(f"{name}_w1")
    b.I("s_lshl_b32", s(7), s(34), 9)
    b.I("s_mov_b32", s(40), s(16))
    b.I("s_mov_b32", s(41), s(17))
    b.I("s_mov_b32", s(42), 576 * 8)
    b.I("s_mov_b32", s(43), 0x20000)
    b.I("v_lshlrev_b32", v(GH), 4, v(2))
    b.I("v_add_u32", v(GH), s(7), v(GH))
    b.I("s_mov_b32", "m0", WT)
    b.I("buffer_load_dwordx4", v(GH), s(40, 4), 0, mods="offen lds")
    b.label(f"{name}_nx")
    H = 64
    b.I("v_lshlrev_b32", v(3), 4, v(2))
    if P["fuse"]:
        b.I("v_mov_b32", v(14), 0)
        b.I("v_mov_b32", v(15), 0)
        b.I("v_mov_b32", v(13), P["gcnt"])
        b.I("ds_write_b64", v(13), v(14, 2))
    b.barrier()
    b.I("s_cmp_ge_u32", s(3), 4)
    b.I("s_cbranch_scc1", f"{name}_nh")
    b.I("s_lshl_b32", s(4), s(2), 2)
    b.I("s_add_u32", s(4), s(4), s(3))
    b.I("s_lshl_b32", s(6), s(4), 12)
    b.I("s_add_u32", s(20), s(18), s(6))
    b.I("s_addc_u32", s(21), s(19), 0)
    b.I("s_mov_b32", s(22), 4096)
    b.I("s_mov_b32", s(23), 0x20000)
    b.I("s_mov_b32", s(26), 1152)
    b.I("s_mov_b32", s(27), 0x20000)
    b.I("v_add_u32", v(11), 16, v(3))
    b.I("s_lshl_b32", s(7), s(4), 1)
    b.I("v_mov_b32", v(12), s(7))
    ha = P["haux"]
    if P["hdly"]:
        b.I("s_sleep", P["hdly"])
    vq = list(b.vmq)
    for r in range(4):
        b.I("buffer_load_dwordx4", v(H + 8 * r, 4), v(3), s(20, 4), 0, mods=f"offen offset:{1024 * r} {ha}")
    for r in range(4):
        b.I("buffer_load_dword", v(H + 8 * r + 4), v(11), s(20, 4), 0, mods=f"offen offset:{1024 * r} {ha}")
    b.I("buffer_load_ushort", v(8), v(12), s(24, 4), 0, mods="offen")
    b.vmq = vq
    if P["touch"]:
        b.I("s_branch", f"{name}_nh2")
    b.label(f"{name}_nh")
    if P["touch"]:
        b.I("s_mov_b32", s(8), s(46))
        b.I("s_mov_b32", s(9), s(47))
        b.I("s_mov_b32", s(10), WS_BYTES)
        b.I("s_mov_b32", s(11), 0x20000)
        b.I("s_sub_u32", s(7), s(3), 5)
        b.I("s_mul_i32", s(7), s(7), 144)
        b.I("s_add_u32", s(7), s(7), s(2))
        b.I("s_cmp_ge_u32", s(3), 6)
        b.I("s_cselect_b32", s(6), 112, 0)
        b.I("s_add_u32", s(7), s(7), s(6))
        b.I("s_min_u32", s(7), s(7), 511)
        b.I("s_lshl_b32", s(7), s(7), 7)
        b.I("s_add_u32", s(7), s(7), GFL)
        b.I("v_mov_b32", v(12), 0)
        b.I("s_cmp_eq_u32", s(3), 5)
        b.I("s_cbranch_scc0", f"{name}_t0")
        b.I("s_lshl_b32", s(7), s(2), 7)
        b.I("s_add_u32", s(7), s(7), GFY)
        b.I("v_and_b32", v(12), P["ncp"] - 1, v(0))
        b.I("v_mul_u32_u24", v(12), 18432, v(12))
        b.I("v_mov_b32", v(13), GFL - GFY)
        b.I("v_cmp_eq_u32", "vcc", 63, v(2))
        b.I("v_cndmask_b32", v(12), v(12), v(13), "vcc")
        b.label(f"{name}_t0")
        b.I("s_cmp_eq_u32", s(3), 4)
        b.I("s_cbranch_scc0", f"{name}_t1")
        b.I("s_lshr_b32", s(7), s(2), 4)
        b.I("s_lshl_b32", s(7), s(7), 7)
        b.I("s_add_u32", s(7), s(7), KFL if P["touch"] == 2 else GFL)
        b.I("v_and_b32", v(12), 15, v(0))
        b.I("v_mul_u32_u24", v(12), 9 * 128, v(12))
        b.label(f"{name}_t1")
        b.I("buffer_load_dword", v(59), v(12), s(8, 4), s(7), mods="offen sc1")
        b.vmq = vq
        b.label(f"{name}_nh2")
    NV = 60
    TP, I_ = 1, 4
    K, V, W = 100, 116, 124
    b.I("v_lshrrev_b32", v(TP), 4, v(0))
    b.I("v_and_b32", v(I_), 15, v(0))
    b.I("s_mov_b32", s(8), s(46))
    b.I("s_mov_b32", s(9), s(47))
    b.I("s_mov_b32", s(46), 256)
    b.I("s_mov_b32", s(47), 0x20000)
    b.I("s_mov_b32", s(10), WS_BYTES)
    b.I("s_mov_b32", s(11), 0x20000)
    b.I("v_lshlrev_b32", v(GA), 9, v(TP))
    b.I("v_lshl_add_u32", v(GA), v(I_), 3, v(GA))
    b.I("v_lshlrev_b32", v(GW), 5, v(I_))
    TW, TR, TR2, TS = 18, 19, 20, 23
    b.I("v_lshrrev_b32", v(TW), 1, v(TP))
    b.I("v_sub_u32", v(TW), 15, v(TW))
    b.I("v_xor_b32", v(TW), v(TW), v(I_))
    b.I("v_lshlrev_b32", v(TW), 4, v(TW))
    b.I("v_lshl_add_u32", v(TW), v(I_), 10, v(TW))
    b.I("v_and_b32", v(11), 1, v(TP))
    b.I("v_lshlrev_b32", v(11), 3, v(11))
    b.I("v_sub_u32", v(TW), v(TW), v(11))
    b.I("v_add_u32", v(TW), YL + 8, v(TW))
    b.I("v_xor_b32", v(TR), s(3), v(I_))
    b.I("v_lshlrev_b32", v(TR), 4, v(TR))
    b.I("v_lshl_add_u32", v(TR), v(TP), 8, v(TR))
    b.I("v_xor_b32", v(TR2), 128, v(TR))
    b.I("v_add_u32", v(TR), YL, v(TR))
    b.I("v_add_u32", v(TR2), YL + 8192, v(TR2))
    b.I("v_lshlrev_b32", v(TS), 12, v(TP))
    b.I("v_lshl_add_u32", v(TS), v(I_), 4, v(TS))
    b.I("s_lshl_b32", s(35), s(34), 18)
    b.I("s_lshl_b32", s(7), s(33), 8)
    b.I("s_sub_u32", s(35), s(35), s(7))
    b.I("s_add_u32", s(35), s(35), KVT + 3840)
    b.I("s_add_u32", s(36), s(35), 32 * 4096)
    b.I("s_mov_b32", s(38), 0x05040100)
    b.I("s_mov_b32", s(39), 0x07060302)
    st()
    NA = 58
    b.I("v_mov_b32", v(NA), 0)
    b.I("s_and_b32", s(43), s(3), 6)
    b.raw(f"""  s_cmp_ge_u32 s3, 4
  s_cbranch_scc1 {name}_w0
  s_waitcnt vmcnt(9)
  s_branch {name}_w9
{name}_w0:
  s_waitcnt vmcnt({1 if P["touch"] else 0})
{name}_w9:""")
    b.vmq = []
    b.barrier()
    b.I("s_cmp_eq_u32", s(43), 4)
    b.I("s_cbranch_scc0", f"{name}_nt")
    b.raw(f"  buffer_load_dwordx2 v[{NV}:{NV + 1}], v{NA}, s[44:47], 0 offen sc1")
    b.label(f"{name}_nt")
    for i in range(7):
        b.I("ds_read_b64", v(K + 2 * i, 2), v(GA), mods=f"offset:{KT + (5 + i) * 128}")
    for i in range(2):
        b.I("ds_read_b128", v(W + 4 * i, 4), v(GW), mods=f"offset:{WT + 16 * i}")
    for i in range(4):
        b.I("ds_read_b64", v(V + 2 * i, 2), v(GA), mods=f"offset:{VT + i * 128}")
    PP, T, O = 132, 148, 164
    for ch in range(4):
        dw, h = ch >> 1, ch & 1
        pp = PP + 8 * (ch & 1)
        t = T + 8 * (ch & 1)
        for r in range(1, 7):
            b.I("v_perm_b32", v(pp + r), v(K + 2 * (r - 1) + dw), v(K + 2 * r + dw), s(38 + h))
        if ch == 0:
            st()
        for i in range(4):
            b.I("v_dot2_f32_bf16", v(t + i), v(pp + i + 1), v(W + 2 * ch + 1), 0)
        for i in range(4):
            if h == 0:
                b.I("v_lshlrev_b32", v(t + 4 + i), 16, v(V + 2 * i + dw))
            else:
                b.I("v_and_b32", v(t + 4 + i), 0xffff0000, v(V + 2 * i + dw))
        for i in range(4):
            b.I("v_dot2_f32_bf16", v(t + i), v(pp + i + 3), v(W + 2 * ch), v(t + i))
        if ch > 0:
            b.I("ds_write_b64", v(TW), v(O + 2 * (ch - 1), 2), mods=f"offset:{(ch - 1) * 256}")
        for i in range(4):
            b.I("v_mul_f32", v(t + i), v(t + i), v(t + 4 + i))
        for q in range(2):
            b.I("v_cvt_pk_bf16_f32", v(O + 2 * ch + q), v(t + 3 - 2 * q), v(t + 2 - 2 * q))
    b.I("ds_write_b64", v(TW), v(O + 6, 2), mods=f"offset:{3 * 256}")
    b.wait(lgkm=0)
    st()
    b.barrier()
    b.I("ds_read_b128", v(K, 4), v(TR))
    b.I("ds_read_b128", v(K + 4, 4), v(TR2))
    b.I("buffer_store_dwordx4", v(K, 4), v(TS), s(8, 4), s(35), mods="offen sc1")
    b.I("buffer_store_dwordx4", v(K + 4, 4), v(TS), s(8, 4), s(36), mods="offen sc1", tag="kv")
    st()
    b.I("s_cmp_lt_u32", s(3), 4)
    b.I("s_cbranch_scc1", f"{name}_cv")
    snap = b.snapshot()
    b.I("s_load_dwordx4", s(12, 4), s(0, 2), 56)
    b.I("s_load_dwordx2", s(20, 2), s(0, 2), 72)
    CO, CN = 56, 57
    b.I("s_lshl_b32", s(7), s(2), 7)
    b.I("v_mov_b32", v(CO), s(7))
    b.I("s_lshr_b32", s(7), s(2), 4)
    b.I("s_lshl_b32", s(7), s(7), 7)
    b.I("v_mul_u32_u24", v(CN), 9 * 128, v(I_))
    b.I("v_add_u32", v(CN), s(7), v(CN))
    b.I("s_mov_b32", s(42), KFL)
    b.wait(vm=0)
    tagw = f"  v_mov_b32 v{NV + 2}, {P['gcnt'] + 8}\n  ds_write_b64 v{NV + 2}, v[{NV}:{NV + 1}]\n  s_waitcnt lgkmcnt(0)\n" if P["fuse"] else ""
    b.raw(f"""  s_cmp_eq_u32 s43, 4
  s_cbranch_scc0 {name}_tge
  s_mov_b32 s43, 0x40000
{name}_tg:
  v_cmp_eq_u32 vcc, 0, v{NV + 1}
  s_cbranch_vccz {name}_tgw
  buffer_load_dwordx2 v[{NV}:{NV + 1}], v{NA}, s[44:47], 0 offen sc1
  s_waitcnt vmcnt(0)
  s_sub_u32 s43, s43, 1
  s_cbranch_scc0 {name}_tg
{name}_tgw:
{tagw}{name}_tge:""")
    st()
    b.barrier()
    b.I("s_cmp_lg_u32", s(3), 4)
    b.I("s_cbranch_scc1", f"{name}_nf")
    b.I("s_mov_b64", "exec", 1)
    b.I("buffer_store_dwordx2", v(NV, 2), v(CO), s(8, 4), s(42), mods="offen sc1")
    b.I("s_mov_b64", "exec", -1)
    b.label(f"{name}_nf")
    b.I("s_cmp_lg_u32", s(3), 5)
    b.I("s_cbranch_scc1", f"{name}_np")
    b.raw(f"""  s_mov_b64 exec, 0xffff
  s_mov_b32 s43, 0x40000
{name}_poll:
  buffer_load_dwordx2 v[{NV + 2}:{NV + 3}], v{CN}, s[8:11], s42 offen sc1
  s_waitcnt vmcnt(0)
  v_cmp_ne_u64 vcc, v[{NV}:{NV + 1}], v[{NV + 2}:{NV + 3}]
  s_cbranch_vccz {name}_pe
  s_sleep {P["psleep"]}
  s_sub_u32 s43, s43, 1
  s_cbranch_scc0 {name}_poll
{name}_pe:
  s_mov_b64 exec, -1""")
    b.barrier()
    b.label(f"{name}_np")
    rl = RL(b, P, P["hl"], st, name + "_h")
    rl.defer = P["wdef"]
    b.I("s_sub_u32", s(6), s(3), 4)
    b.I("s_mul_i32", s(37), s(6), 9216)
    b.I("s_add_u32", s(37), s(37), HLB)
    b.I("s_mul_i32", s(6), s(6), 18)
    b.I("s_lshr_b32", s(7), s(2), 3)
    b.I("s_add_u32", s(6), s(6), s(7))
    rl.setup(6, 37)
    rl.srds()
    b.I("s_cmp_eq_u32", s(3), 5)
    b.I("s_cbranch_scc1", f"{name}_pd")
    b.barrier()
    b.label(f"{name}_pd")
    if P["wdly"]:
        b.I("s_sleep", P["wdly"])
    st()
    rl.run(6)
    b.restore(snap)
    st.n = 6
    b.raw(".p2align 6")
    b.label(f"{name}_cv")
    b.I("s_lshl_b32", s(6), s(4), 12)
    b.I("s_mul_i32", s(5), s(3), WSZ)
    G_ = 5
    b.I("v_lshrrev_b32", v(G_), 4, v(2))
    for k in range(4):
        b.I("v_mov_b32", v(12 + k), 0)
    b.I("v_add_u32", v(9), s(5), v(3))
    b.I("s_mov_b32", "exec_hi", 0)
    b.I("ds_write_b128", v(9), v(12, 4), mods=f"offset:{UB + 32 + 4096}")
    b.I("s_mov_b64", "exec", 31)
    for c in range(4):
        b.I("ds_write_b128", v(9), v(12, 4), mods=f"offset:{c * HS}")
        b.I("ds_write_b128", v(9), v(12, 4), mods=f"offset:{c * HS + 4144}")
    b.I("s_mov_b64", "exec", 3)
    b.I("ds_write_b128", v(9), v(12, 4), mods=f"offset:{UB}")
    b.I("s_mov_b64", "exec", -1)
    SW, SR = 21, 22
    b.I("s_lshl_b32", s(7), s(3), 2)
    b.I("s_add_u32", s(7), s(7), SY)
    b.I("v_mov_b32", v(SW), s(7))
    b.I("ds_write_b32", v(SW), v(12))
    b.I("s_add_u32", "m0", s(5), UB + 32)
    b.I("s_add_u32", s(7), s(6), KVT)
    b.I("v_and_b32", v(SR), 3, v(2))
    b.I("v_lshlrev_b32", v(SR), 2, v(SR))
    b.I("v_add_u32", v(SR), SY, v(SR))
    AA, BA = 16, 17
    b.I("v_add_u32", v(11), 1, v(I_))
    b.I("v_and_b32", v(AA), 3, v(11))
    b.I("v_mul_u32_u24", v(AA), HS, v(AA))
    b.I("v_lshrrev_b32", v(11), 2, v(11))
    b.I("v_lshl_add_u32", v(AA), v(11), 3, v(AA))
    b.I("v_lshl_add_u32", v(AA), v(G_), 4, v(AA))
    b.I("v_add_u32", v(AA), s(5), v(AA))
    b.I("v_lshlrev_b32", v(11), 5, v(I_))
    b.I("v_lshlrev_b32", v(BA), 4, v(G_))
    b.I("v_sub_u32", v(BA), v(BA), v(11))
    b.I("s_add_u32", s(24), s(5), UB + 480)
    b.I("v_add_u32", v(BA), s(24), v(BA))
    YW, YR, YS = 96, 97, 98
    b.I("s_mul_i32", s(24), s(3), 4160)
    b.I("s_add_u32", s(24), s(24), YL)
    b.I("v_lshlrev_b32", v(YW), 5, v(I_))
    b.I("v_lshl_add_u32", v(YW), v(G_), 3, v(YW))
    b.I("v_add_u32", v(YW), s(24), v(YW))
    b.I("v_bfe_u32", v(11), v(2), 2, 2)
    b.I("v_mul_u32_u24", v(YR), 4160, v(11))
    b.I("v_lshl_add_u32", v(YR), v(G_), 5, v(YR))
    b.I("v_and_b32", v(11), 3, v(2))
    b.I("v_lshl_add_u32", v(YR), v(11), 3, v(YR))
    b.I("s_lshl_b32", s(24), s(3), 10)
    b.I("s_add_u32", s(24), s(24), YL)
    b.I("v_add_u32", v(YR), s(24), v(YR))
    yt = 1 if P["ytag"] else 0
    BS, PS = ((128 << yt), P["ystr"]) if P["ystr"] else (18432 << yt, 128 << yt)
    b.I("v_mul_u32_u24", v(YS), BS, v(G_))
    b.I("v_lshl_add_u32", v(YS), v(I_), 3 + yt, v(YS))
    b.I("s_mul_i32", s(32), s(3), 32 * BS)
    b.I("s_mul_i32", s(24), s(2), PS)
    b.I("s_add_u32", s(32), s(32), s(24))
    b.I("s_add_u32", s(32), s(32), YB)
    b.wait_tag_vm("kv")
    st()
    b.barrier()
    b.I("v_lshlrev_b32", v(11), 16, v(H))
    for par in range(2):
        for r in range(4):
            hr = H + 8 * r
            if par:
                for k in range(4):
                    b.I("v_alignbyte_b32", v(hr + k), v(hr + k + 1), v(hr + k), 2)
            else:
                b.I("v_add_u32", v(116 + r), 2 * HS + 1024 * r, v(9))
                b.I("v_add_u32", v(120 + r), 3 * HS + 1024 * r, v(9))
            b.I("ds_write_b128", v(9), v(hr, 4), mods=f"offset:{par * HS + 64 + 1024 * r}")
            ad = 116 + 4 * par + r
            b.I("ds_write2_b32", v(ad), v(hr), v(hr + 1), mods="offset0:15 offset1:16")
            b.I("ds_write2_b32", v(ad), v(hr + 2), v(hr + 3), mods="offset0:17 offset1:18")
    b.I("s_mov_b64", "exec", 1)
    b.I("ds_write_b32", v(9), v(11), mods=f"offset:{HS + 60}")
    b.I("ds_write_b32", v(9), v(11), mods=f"offset:{3 * HS + 56}")
    b.I("s_mov_b64", "exec", -1)
    DA = 24
    b.I("v_lshlrev_b32", v(10), 3, v(G_))
    b.I("v_add_u32", v(10), v(10), v(I_))
    b.I("v_sub_u32", v(10), 31, v(10))
    b.I("v_lshlrev_b32", v(11), 16, v(8))
    for r in range(4):
        b.I("v_cmp_eq_u32", "vcc", 2 * r, v(10))
        b.I("v_cndmask_b32", v(DA + r), 0, v(8), "vcc")
        b.I("v_cmp_eq_u32", "vcc", 2 * r + 1, v(10))
        b.I("v_cndmask_b32", v(DA + r), v(DA + r), v(11), "vcc")
    ACC = 28
    seq = conv_order()
    free = [100 + 4 * i for i in range(P["nfr"])]
    last = {}
    need = []
    for p, (ak, bk, ct) in enumerate(seq):
        for key in (("a", ak), ("b", bk)):
            if key == ("a", "D"):
                continue
            if key not in last:
                need.append((key, p))
            last[key] = p
    slot = {}
    q = []
    ni = [0]

    def refill(p):
        while ni[0] < len(need) and need[ni[0]][1] <= p + P["cla"] and free:
            key = need[ni[0]][0]
            ni[0] += 1
            r = free.pop(0)
            slot[key] = r
            if key[0] == "a":
                q.append((key, lambda r=r, mu=key[1]: b.I("ds_read_b64", v(r, 2), v(AA), mods=f"offset:{64 * mu}")))
                q.append((key, lambda r=r, mu=key[1]: b.I("ds_read_b64", v(r + 2, 2), v(AA), mods=f"offset:{64 * mu + 8}")))
            else:
                q.append((key, lambda r=r, be=key[1]: b.I("ds_read_b128", v(r, 4), v(BA), mods=f"offset:{(56 - be) * 64}")))
    refill(0)
    for it in [x for x in q if x[0][0] == "a"][:10]:
        q.remove(it)
        it[1]()
    if yt:
        b.I("v_mov_b32", v(60), P["gcnt"] + 8)
        b.I("ds_read_b64", v(60, 2), v(60))
    b.wait(lgkm=0)
    b.barrier()
    st()
    for r in range(4):
        b.I("buffer_load_dwordx4", v(3), s(8, 4), s(7), mods=f"offen offset:{1024 * r} sc1 lds", tag="u")
    if yt:
        for k in range(8):
            b.I("v_mov_b32", v(66 + 4 * k), v(60))
            b.I("v_mov_b32", v(67 + 4 * k), v(61))
        b.I("v_mul_u32_u24", v(62), 18432, v(2))
        b.I("s_lshl_b32", s(33), s(2), 7)
        b.I("s_add_u32", s(33), s(33), GFY)

    def yflag():
        b.raw(f"""  s_cmp_lg_u32 s3, {P["yfw"]}
  s_cbranch_scc1 {name}_yf
  s_mov_b64 exec, {(1 << P["ycp"]) - 1}
  buffer_store_dword v60, v62, s[8:11], s33 offen sc1
  s_mov_b64 exec, -1
{name}_yf:""")
    b.I("s_setprio", 2)
    b.wait_tag_vm("u")
    st()
    rts = lambda r: b.raw(f"  s_memrealtime s[{r}:{r + 1}]") if P["fst"] else None
    rts(64)
    for i in range(7):
        if q:
            q.pop(0)[1]()
    started = set()
    fin = {ct: p for p, (ak, bk, ct) in enumerate(seq)}
    done = set()

    def wr_tile(ct):
        done.add(ct)
        r = ACC + 4 * ct
        b.I("v_cvt_pk_bf16_f32", v(r), v(r), v(r + 1))
        b.I("v_cvt_pk_bf16_f32", v(r + 1), v(r + 2), v(r + 3))
        b.I("ds_write_b64", v(YW), v(r, 2), mods=f"offset:{512 * ct}")
    for p, (ak, bk, ct) in enumerate(seq):
        if P["early"]:
            for c in range(8):
                if c not in done and fin[c] + P["early"] <= p:
                    wr_tile(c)
        refill(p)
        while any(k in (("a", ak), ("b", bk)) for k, _ in q):
            q.pop(0)[1]()
        d = v(ACC + 4 * ct, 4)
        b.I(MF, d, v(DA, 4) if ak == "D" else v(slot[("a", ak)], 4), v(slot[("b", bk)], 4), d if ct in started else "0")
        started.add(ct)
        for key in (("a", ak), ("b", bk)):
            if last.get(key) == p:
                free.append(slot[key])
        if q and len(b.lgq) < 15:
            q.pop(0)[1]()
        if yt and p == len(seq) - 1 - P["yfp"]:
            yflag()
    st()
    rts(68)
    for ct in range(8):
        if ct not in done:
            wr_tile(ct)
    b.I("v_mov_b32", v(11), 1)
    b.I("ds_write_b32", v(SW), v(11))
    b.raw(f"""  s_mov_b32 s37, 0x100000
{name}_ep:
  ds_read_b32 v10, v{SR}
  s_waitcnt lgkmcnt(0)
  v_cmp_ne_u32 vcc, 1, v10
  s_cbranch_vccz {name}_epd
  s_sub_u32 s37, s37, 1
  s_cbranch_scc0 {name}_ep
{name}_epd:""")
    b.lgq = []
    st()
    rts(78)
    if yt and P["yfp"] == -1:
        yflag()
    for k in range(8):
        b.I("ds_read_b64_tr_b16", v(64 + (2 * k << yt), 2), v(YR), mods=f"offset:{128 * k}")
    if P["xs"]:
        b.I("v_lshlrev_b32", v(YS), 10, v(G_))
        b.I("v_lshl_add_u32", v(YS), v(I_), 4, v(YS))
        b.I("s_mul_i32", s(32), s(3), 4 * 147456)
        b.I("s_lshr_b32", s(24), s(2), 3)
        b.I("s_lshl_b32", s(24), s(24), 13)
        b.I("s_add_u32", s(32), s(32), s(24))
        b.I("s_bfe_u32", s(24), s(2), 0x20001)
        b.I("s_lshl_b32", s(24), s(24), 8)
        b.I("s_add_u32", s(32), s(32), s(24))
        b.I("s_and_b32", s(24), s(2), 1)
        b.I("s_lshl_b32", s(24), s(24), 3)
        b.I("s_add_u32", s(32), s(32), s(24))
        b.I("s_add_u32", s(32), s(32), X1)
    for k in range(8):
        b.I("s_add_u32", s(24 + (k & 1)), s(32), (k >> 1) * 147456 + (k & 1) * 4096 if P["xs"] else 4 * k * BS)
        b.I("buffer_store_dwordx4" if yt else "buffer_store_dwordx2", v(64 + (2 * k << yt), 2 << yt), v(YS), s(8, 4), s(24 + (k & 1)), mods="offen " + P["yaux"])
    if P["fuse"]:
        if yt and P["yfp"] == -2:
            yflag()
        if P["wdef"]:
            b.I("s_mov_b32", s(39), 0)
            if P["wtrig"]:
                b.I("v_mov_b32", v(10), P["gcnt"])
                b.I("v_mov_b32", v(11), 1)
                b.I("s_mov_b64", "exec", 1)
                b.I("ds_add_u32", v(10), v(11))
                b.I("s_mov_b64", "exec", -1)
        b.I("s_branch", P["fuse"])
        return
    b.wait_all()
    st()
    st.dump(s(8, 4), 3)
    tl.end(b)
    b.I("s_endpgm")


def emit_rl(b, name, P, wg0, nwg):
    st = St(b, P["stamps"], base=60)
    st()
    b.I("s_load_dwordx4", s(44, 4), s(0, 2), 88)
    b.I("s_memrealtime", s(40, 2))
    b.wait(lgkm=0)
    b.I("s_load_dwordx4", s(12, 4), s(0, 2), 56)
    b.I("s_load_dwordx2", s(20, 2), s(0, 2), 72)
    b.I("s_mov_b32", s(8), s(46))
    b.I("s_mov_b32", s(9), s(47))
    if P["fuse"]:
        b.I("s_mov_b32", s(46), 256)
        b.I("s_mov_b32", s(47), 0x20000)
    b.I("s_cmp_lg_u32", s(2), wg0)
    b.I("s_cbranch_scc1", f"{name}_nl")
    b.I("s_mov_b32", s(46), 256)
    b.I("s_mov_b32", s(47), 0x20000)
    b.I("s_or_b32", s(41), s(41), 0x40000000)
    if P["fuse"]:
        b.I("s_or_b32", s(40), s(40), 1)
    b.I("v_mov_b32", v(2), s(40))
    b.I("v_mov_b32", v(3), s(41))
    b.I("v_mov_b32", v(4), 0)
    b.I("v_cmp_eq_u32", "vcc", 0, v(0))
    b.I("s_and_saveexec_b64", s(42, 2), "vcc")
    b.I("s_cbranch_execz", f"{name}_nl2")
    b.I("buffer_store_dwordx2", v(2, 2), v(4), s(44, 4), 0, mods="offen sc1")
    b.label(f"{name}_nl2")
    b.I("s_mov_b64", "exec", -1)
    b.label(f"{name}_nl")
    b.I("v_lshrrev_b32", v(1), 6, v(0))
    b.I("v_readfirstlane_b32", s(3), v(1))
    b.I("s_sub_u32", s(4), s(2), wg0)
    b.I("s_lshr_b32", s(4), s(4), 3)
    b.I("s_mov_b32", s(10), WS_BYTES)
    b.I("s_mov_b32", s(11), 0x20000)
    if P["zero"]:
        if P["zero"] == "ld":
            b.I("s_sub_u32", s(36), s(2), wg0)
            b.I("s_lshl_b32", s(36), s(36), 13)
            b.I("s_add_u32", s(36), s(36), FLG)
            b.I("v_lshlrev_b32", v(8), 4, v(0))
        else:
            b.raw(f"""  s_sub_u32 s6, s2, {wg0}
  s_cmp_ge_u32 s6, {ZERO_BYTES // 8192}
  s_cbranch_scc1 {name}_nz
  s_lshl_b32 s6, s6, 13
  s_add_u32 s6, s6, {FLG}
  v_lshlrev_b32 v8, 4, v0
  v_mov_b32 v4, 0
  v_mov_b32 v5, 0
  v_mov_b32 v6, 0
  v_mov_b32 v7, 0
  buffer_store_dwordx4 v[4:7], v8, s[8:11], s6 offen sc1
{name}_nz:""")
    if P["rlne"]:
        b.I("s_sub_u32", s(6), 7, s(3))
        b.I("s_mul_i32", s(6), s(6), nwg // 8)
        b.I("v_mov_b32", v(4), 0)
    else:
        b.I("s_mul_i32", s(6), s(3), nwg // 8)
    if P["ctr"]:
        b.I("s_sub_u32", s(6), 7, s(3))
        b.I("s_mul_i32", s(6), s(6), 9)
    b.I("s_add_u32", s(6), s(6), s(4))
    b.I("s_mul_i32", s(5), s(3), 9216)
    rl = RL(b, P, [("g", 0, 72, True), ("g", 72, 72, True), ("g", 144, 18, False)] if P["ctr"] else P["rl"], st, name + "_r")
    rl.setup(6, 5)
    b.wait(lgkm=0)
    st()
    rl.srds()
    if P["ctr"]:
        rl.exit = P["fuse"]
        b.I("s_cmp_lt_u32", s(4), 9)
        b.I("s_cbranch_scc1", f"{name}_g")
        snap = b.snapshot()
        b.raw("  buffer_load_dwordx4 v[236:239], v8, s[8:11], s36 offen sc1")
        rl.qstat()
        b.restore(snap)
        b.label(f"{name}_g")
    if P["rdly"] > 0:
        b.I("s_sleep", P["rdly"])
    if P["rdly"] < 0:
        b.raw("  buffer_load_dwordx4 v[236:239], v8, s[8:11], s36 offen sc1")
        if P["rdly"] == -2:
            rl.qpf()
        b.raw("  s_waitcnt vmcnt(0)")
    if P["fuse"]:
        rl.exit = f"{name}_rx"
        rl.touch = P["zero"] == "ld" and P["rdly"] >= 0
        if P["rlne"]:
            rl.exit, rl.mid = P["fuse"], True
    if P["ctr"]:
        rl.run_ctr(6)
        return
    rl.run(6)
    if P["fuse"] and not P["rlne"]:
        b.raw(f"""{name}_rx:
  s_cmp_lg_u32 s3, 0
  s_cbranch_scc1 {name}_rw
  v_mov_b32 v4, 0
  s_mov_b32 s43, 0x40000
{name}_rt:
  buffer_load_dwordx2 v[2:3], v4, s[44:47], 0 offen sc1
  s_waitcnt vmcnt(0)
  v_cmp_eq_u32 vcc, 0, v2
  s_cbranch_vccz {name}_ru
  s_sub_u32 s43, s43, 1
  s_cbranch_scc0 {name}_rt
{name}_ru:
  v_mov_b32 v5, {P["gcnt"] + 8}
  ds_write_b64 v5, v[2:3]
  s_lshl_b32 s6, s2, 7
  s_add_u32 s6, s6, {GFL + 0x8000}
  s_waitcnt lgkmcnt(0)
  s_barrier
  s_mov_b64 exec, 1
  buffer_store_dword v2, v4, s[8:11], s6 offen sc1
  s_mov_b64 exec, -1
  s_branch {P["fuse"]}
{name}_rw:
  s_waitcnt vmcnt(0)
  s_barrier
  s_branch {P["fuse"]}""")


DEFF = dict(stamps=False, gaux="nt", psleep=1, nfr=36, cla=24, pf="ln2_kernel_end", haux="nt", yaux="", raux="sc1", rlaux="nt",
            early=0, wre=0, xs=0, rskip=0, rser=0, ctr=0, dx=0, ilv=True, hdelay=0, touch=0, zero=False, qpf=0, fuse=None, gcnt=0, ytag=False, rlne=False, wdly=0, rdly=0, hdly=0, ncp=4, wdef=False, wtrig=0, ystr=0, fst=False, yfp=0, yfw=0, ycp=4,
            rl=[("g", 0, 112, True), ("g", 112, 50, False)], hl=[("d", 0, 72, True), ("d", 72, 9, False)], nrl=112)


def k_front(name, **kw):
    P = dict(DEFF)
    P.update(kw)
    b = AB()
    b.raw(f".globl {name}\n.p2align 8\n.type {name},@function\n{name}:")
    if P["fuse"]:
        name = "fr"
    tl.start(b)
    b.I("s_load_dwordx8", s(12, 8), s(0, 2), 8)
    if P["pf"]:
        b.raw(f"  s_getpc_b64 s[36:37]\n{name}_pc:")
        b.I("s_lshr_b32", s(38), s(2), 3)
        b.I("s_lshl_b32", s(38), s(38), 13)
        b.I("v_lshlrev_b32", v(240), 4, v(0))
        b.I("v_add_u32", v(240), s(38), v(240))
        b.raw(f"  v_min_u32 v240, {P['pf']}-{name}_pc-16, v240")
        b.I("global_load_dwordx4", v(244, 4), v(240), s(36, 2))
    b.I("s_cmp_ge_u32", s(2), NCONV)
    b.I("s_cbranch_scc1", f"{name}_rl")
    snap = b.snapshot()
    emit_conv(b, name, P)
    b.restore(snap)
    b.raw(".p2align 6")
    b.label(f"{name}_rl")
    b.I("s_cmp_ge_u32", s(2), NCONV + P["nrl"])
    b.I("s_cbranch_scc1", f"{name}_end")
    if P["nrl"]:
        emit_rl(b, name, P, NCONV, P["nrl"])
    b.label(f"{name}_end")
    b.raw("  s_waitcnt vmcnt(0) lgkmcnt(0)")
    b.I("s_endpgm")
    return b
```

```python
from k_ffl import *
from k_per import PSt, lanes

PB1, LACC1 = 40, 76
PZ, PA, VHO, VMW, VONE = 230, 232, 233, 234, 235
HO = FFN3_LDS
CNT = HO + 4 * 3072
PER_LDS = CNT + 64
S_FIN, S_MASK, S_PEND = 59, 58, 56
S_EX, S_TM, S_OR, S_RDY, S_N, S_W3 = 20, 22, 24, 25, 26, 27
ABITS, BBITS = 0x8888, 0x88880000
S_HOB, S_FL, S_TH = 22, 23, 24


SKIP = set()


def at2(b, ps, i0, i1, k, ret=False):
    if not ps.on or i0 in SKIP:
        return ""
    op = "s_memrealtime" if ps.on == 2 else "s_memtime"
    t = f"  s_cmp_lg_u32 s{S_FIN}, 0\n  s_cbranch_scc1 st{k}_a\n"
    if i0 is not None:
        t += f"  {op} s[{60 + 2 * i0}:{61 + 2 * i0}]\n"
    t += f"  s_branch st{k}_b\nst{k}_a:\n"
    if i1 is not None:
        t += f"  {op} s[{60 + 2 * i1}:{61 + 2 * i1}]\n"
    t += f"st{k}_b:\n  s_waitcnt lgkmcnt(0)"
    if ret:
        return t + "\n"
    b.raw(t)


POLL0 = f"""  s_waitcnt vmcnt(0)
  @CMP@
  s_nop 1
  s_andn2_b32 s{S_EX}, s{S_EX}, vcc_lo
  s_lshr_b32 s54, vcc_lo, 1
  s_and_b32 s54, s54, vcc_lo
  s_lshr_b32 s55, s54, 2
  s_and_b32 s54, s54, s55
  s_and_b32 s54, s54, 0x11111111
  s_lshl_b32 s54, s54, 3
  v_mov_b32 v{V_T}, s54
  s_mov_b64 exec, 1
  ds_or_rtn_b32 v{V_F}, v{VMW}, v{V_T}
  s_mov_b64 exec, -1
  s_waitcnt lgkmcnt(0)
  v_readfirstlane_b32 s{S_MASK}, v{V_F}
  s_nop 1
  s_or_b32 s{S_MASK}, s{S_MASK}, s54
"""
READ = f"""  ds_read_b32 v{V_F}, v{VMW}
  s_waitcnt lgkmcnt(0)
  v_readfirstlane_b32 s{S_MASK}, v{V_F}
  s_nop 1
"""


def pissue(lab):
    return f"""  s_cmp_eq_u32 s{S_EX}, 0
  s_cbranch_scc1 {lab}
  s_mov_b64 exec, s[{S_EX}:{S_EX + 1}]
  buffer_load_dword v{PZ}, v{PA}, s[8:11], s{S_A} offen sc1
  s_mov_b64 exec, -1
{lab}:
"""


def seam(b, name, P, ps):
    t0, t1 = T, T + 1
    POLL = POLL0.replace("@CMP@", f"v_cmp_eq_u32 vcc, s{P['tag']}, v{PZ}" if P.get("tag") else f"v_cmp_ne_u32 vcc, 0, v{PZ}")
    nm = f"{name}_s"
    b.hist, b.vmq, b.lgq = [], [], []
    b.label(f"{name}_seam")
    b.I("s_setprio", P["sprio"])
    b.I("s_mov_b32", s(S_FIN), s(S_LO))
    at2(b, ps, 0, 8, 0)
    b.I("s_sub_u32", s(7), s(S_LAY), FLG)
    b.I("s_lshl_b32", s(7), s(7), 1)
    b.I("s_lshl_b32", s(6), s(5), 14)
    b.I("s_add_u32", s(7), s(7), s(6))
    b.I("s_add_u32", s(7), s(7), PF2)
    b.I("s_lshl_b32", s(S_A), s(4), 11)
    b.I("s_add_u32", s(S_A), s(S_A), s(7))
    b.I("s_and_b32", s(S_FL), s(2), 15)
    b.I("s_lshl_b32", s(S_FL), s(S_FL), 7)
    b.I("s_add_u32", s(S_FL), s(S_FL), s(7))
    al = USE["a"]
    b.I("s_lshl_b32", s(13), s(5), 7 if al else 6)
    b.I("s_add_u32", s(13), s(13), s(4))
    b.I("s_mul_i32", s(13), s(13), 9216 if al else 18432)
    b.I("s_add_u32", s(13), s(13), HX if al else PART)
    if USE["p"]:
        b.I("s_add_u32", s(13), s(13), s(S_LO))
    b.I("s_lshl_b32", s(7), s(S_TOK), 5)
    b.I("s_add_u32", s(S_PXS), s(13), s(7))
    b.I("s_add_u32", s(S_P), s(S_PXS), s(7))
    b.I("s_add_u32", s(S_PXS), s(S_PXS), 8192)
    b.I("s_and_b32", s(S_W3), s(S_W), 3)
    b.I("s_lshl_b32", s(S_HOB), s(S_W3), 2)
    b.I("s_lshl_b32", s(S_HOB), 1, s(S_HOB))
    b.I("s_cmp_eq_u32", s(S_W3), 0)
    b.I("s_cselect_b32", s(S_EX), -1, 0)
    b.I("s_mov_b32", s(S_EX + 1), 0)
    lanes(b)
    b.I("v_and_b32", v(PA), 15, v(LANE))
    b.I("v_lshlrev_b32", v(PA), 7, v(PA))
    b.I("v_lshl_add_u32", v(PA), v(GL), 2, v(PA))
    b.I("v_mov_b32", v(PZ), 0)
    b.I("v_mov_b32", v(VMW), CNT + 8)
    b.I("v_mov_b32", v(V_Z), fval(P))
    b.I("v_mov_b32", v(VONE), 1)
    b.I("v_mul_u32_u24", v(VP), 147456, v(G))
    b.I("v_lshl_add_u32", v(VP), v(DS), 10, v(VP))
    b.I("v_lshl_add_u32", v(VP), v(CQ), 4, v(VP))
    b.I("v_and_b32", v(t0), 1, v(DS))
    b.I("v_lshl_add_u32", v(t1), v(t0), 2, v(G))
    b.I("v_mul_u32_u24", v(VPX), 147456, v(t1))
    b.I("v_mul_u32_u24", v(t0), 3, v(t0))
    b.I("v_xor_b32", v(t0), v(t0), v(CQ))
    b.I("v_lshl_add_u32", v(VPX), v(t0), 3, v(VPX))
    b.I("v_lshrrev_b32", v(t0), 1, v(DS))
    if al:
        b.I("v_xor_b32", v(t0), 1, v(t0))
    b.I("v_mul_u32_u24", v(t0), 73728 if al else 9216, v(t0))
    b.I("v_add_u32", v(VPX), v(VPX), v(t0))
    b.I("v_lshlrev_b32", v(PZ + 1), 11, v(LANE))
    b.I("v_mov_b32", v(V_F), CNT)
    b.I("v_mov_b32", v(V_T), P["bh1"] + 8)
    b.raw(f"""  s_cmp_ge_u32 s{S_W}, 4
  s_cbranch_scc0 {nm}_aa
  s_waitcnt vmcnt(0)
  ds_write_b32 v{V_FW}, v{V_T}
  s_branch {nm}_nf
{nm}_aa:
  s_mov_b64 exec, 1
  s_waitcnt vmcnt(0)
  ds_add_rtn_u32 v{V_F}, v{V_F}, v{VONE}
  s_waitcnt lgkmcnt(0)
  v_cmp_eq_u32 vcc, 3, v{V_F}
  s_mov_b64 exec, 0xff
  s_cbranch_vccz {nm}_ab
  buffer_store_dword v{V_Z}, v{PZ + 1}, s[8:11], s{S_FL} offen sc1
{nm}_ab:
  s_mov_b64 exec, -1
{nm}_nf:""")
    at2(b, ps, 1, None, 1)
    b.raw(pissue(nm + "_p0"))
    ra = "sc1"
    b.I("buffer_load_dwordx4", v(RX, 4), v(0), WS, s(S_R), mods="offen " + ra)
    b.I("buffer_load_dwordx4", v(RE, 4), v(VRE), WS, s(S_R), mods="offen offset:1024 " + ra)
    b.I("v_and_b32", v(t1), 15, v(LANE))
    b.I("v_and_b32", v(t0), 1, v(LANE))
    b.I("v_lshlrev_b32", v(t0), 4, v(t0))
    b.I("v_mov_b32", v(T + 2), 0x3f80)
    b.I("v_lshlrev_b32", v(T + 2), v(t0), v(T + 2))
    b.I("v_lshrrev_b32", v(t1), 1, v(t1))
    for r in range(8):
        b.I("v_cmp_eq_u32_e64", s(28 if r % 2 == 0 else 32, 2), r, v(t1))
        if r > 0:
            b.I("v_cndmask_b32_e64", v(A1 + r - 1), 0, v(T + 2), s(28 if (r - 1) % 2 == 0 else 32, 2))
    b.I("v_cndmask_b32_e64", v(A1 + 7), 0, v(T + 2), s(32, 2))
    b.I("s_mul_i32", s(6), s(S_W3), 3072)
    b.I("s_add_u32", s(6), s(6), HO)
    b.I("v_add_u32", v(VHO), s(6), v(0))
    for r in range(4):
        b.I("v_mov_b32", v(T + 12 + r), 0)
        b.I("v_mov_b32", v(Y + r), 0)
    b.I("v_mov_b32", v(T + 10), fhex(OUTSCALE))
    b.I("s_cmp_lg_u32", s(S_FIN), 0)
    b.I("s_cbranch_scc1", f"{nm}_f1")
    snap = b.snapshot()
    b.I("buffer_load_dwordx4", v(RY, 4), v(0), WS, s(S_R), mods="offen offset:2048 " + ra)
    xn_setup(b, 1, LOFF)
    b.I("s_branch", f"{nm}_f2")
    b.restore(snap)
    b.label(f"{nm}_f1")
    b.I("s_load_dwordx2", s(48, 2), s(0, 2), 80)
    b.I("v_and_b32", v(t0), 15, v(LANE))
    b.I("v_lshlrev_b32", v(VQ), 4, v(t0))
    b.I("v_lshl_add_u32", v(VQ), v(GH), 8, v(VQ))
    b.I("v_mul_u32_u24", v(t0), 576, v(GL))
    b.I("v_add_u32", v(VQ), v(VQ), v(t0))
    b.I("v_lshrrev_b32", v(t0), 1, v(DS))
    b.I("v_mul_u32_u24", v(t0), 576, v(t0))
    b.I("v_lshl_add_u32", v(t0), v(CQ), 4, v(t0))
    b.I("v_lshl_add_u32", v(t0), v(GL), 3, v(t0))
    b.I("v_add_u32", v(t0), 512, v(t0))
    b.I("v_and_b32", v(t1), 0x24, v(LANE))
    b.I("v_lshl_add_u32", v(VQE), v(t1), 24, v(t0))
    b.I("s_mov_b32", s(50), S * D * 2)
    b.I("s_mov_b32", s(51), 0x20000)
    b.wait(lgkm=0)
    b.label(f"{nm}_f2")
    b.vmq, b.lgq = [], []
    b.I("s_cmp_ge_u32", s(S_W), 4)
    b.I("s_cbranch_scc1", f"{nm}_B0")

    def kc(a_, h, jj):
        return a_ * 4 + h * 2 + jj, jj * 589824 + ((1 - a_) * 73728 if al else a_ * 9216) + h * 4096, 3 + 16 * h + 8 * a_ + 4 * jj

    if P["psta"]:
        at2(b, ps, 6, None, 6)
    b.raw(f"""  s_cmp_lg_u32 s{S_W}, 1
  s_cbranch_scc1 {nm}_Pe
  s_mov_b32 s{S_TH}, {P["bh1"] + 1}
  s_mov_b32 s{S_CNT}, 0x40000
  v_mov_b32 v{V_T}, 4
{nm}_Pl:
  ds_read_b32 v{V_F}, v{V_FR} offset:1024
  s_waitcnt lgkmcnt(0)
{nm}_Pc:
  v_cmp_gt_u32 vcc, s{S_TH}, v{V_F}
  s_cbranch_vccnz {nm}_Pw
  s_mov_b64 exec, 1
  buffer_store_dword v{V_Z}, v{V_T}, s[8:11], s{S_FL} offen sc1
  s_mov_b64 exec, -1
  s_add_u32 s{S_FL}, s{S_FL}, 2048
  s_add_u32 s{S_TH}, s{S_TH}, 1
  s_cmp_le_u32 s{S_TH}, {P["bh1"] + 8}
  s_cbranch_scc1 {nm}_Pc
  s_branch {nm}_Pd
{nm}_Pw:
  s_sleep {P["psl2"]}
  s_sub_u32 s{S_CNT}, s{S_CNT}, 1
  s_cbranch_scc0 {nm}_Pl
{nm}_Pd:
  s_mov_b64 exec, 1
  ds_or_b32 v{VMW}, v{V_T}
  s_mov_b64 exec, -1
{at2(b, ps, 1, None, 7, True)}{nm}_Pe:""")
    gate = f"  s_bitcmp1_b32 s{S_MASK}, 2\n  s_cbranch_scc0 {nm}_A3\n" if P["gateb"] else ""
    txt = f"""  s_mov_b32 s{S_PEND}, {ABITS | 2}
  s_mov_b32 s{S_CNT}, 0x20000
{nm}_Al:
  s_cmp_eq_u32 s{S_EX}, 0
  s_cbranch_scc1 {nm}_Ar
{POLL}  s_branch {nm}_Ag
{nm}_Ar:
{READ}{nm}_Ag:
{gate}  s_and_b32 s{S_RDY}, s{S_MASK}, s{S_PEND}
  s_cbranch_scc0 {nm}_A3
  s_andn2_b32 s{S_PEND}, s{S_PEND}, s{S_RDY}
"""
    u = 0
    for jj in range(2):
        for a_ in range(2):
            k, c, bit = kc(a_, 0, jj)
            txt += f"""  s_bitcmp1_b32 s{S_RDY}, {bit}
  s_cbranch_scc0 {nm}_A{u}
  s_add_u32 s6, s{S_P}, {c}
  buffer_load_dwordx4 v[{PB + 4 * k}:{PB + 4 * k + 3}], v{VP}, s[8:11], s6 offen sc1
  buffer_load_dwordx4 v[{PB1 + 4 * k}:{PB1 + 4 * k + 3}], v{VP}, s[8:11], s6 offen offset:256 sc1
{nm}_A{u}:
"""
            u += 1
    txt += f"""  s_cmp_eq_u32 s{S_PEND}, 2
  s_cbranch_scc1 {nm}_Ad
  s_sleep {P["gsl"]}
{pissue(nm + "_Ap")}  s_sub_u32 s{S_CNT}, s{S_CNT}, 1
  s_cbranch_scc0 {nm}_Al
{nm}_Ad:
"""
    if P["psta"]:
        txt += at2(b, ps, 5, None, 5, True)
    for hh in range(2):
        txt += f"  buffer_load_dwordx2 v[{PB + 32 + 2 * hh}:{PB + 33 + 2 * hh}], v{VPX}, s[8:11], s{S_PXS} offen offset:{512 * hh} sc1\n"
        txt += f"  buffer_load_dwordx2 v[{PB1 + 32 + 2 * hh}:{PB1 + 33 + 2 * hh}], v{VPX}, s[8:11], s{S_PXS} offen offset:{512 * hh + 128} sc1\n"
    txt += f"""  s_mov_b32 s{S_EX}, 0
  s_waitcnt vmcnt(0)"""
    b.raw(txt)
    at2(b, ps, 3, None, 3)
    for (pb, la) in ((PB1, LACC1), (PB, LACC)):
        b.I(MF, v(la + 8, 4), v(A1, 4), v(pb + 32, 4), "0")
        for jj in range(2):
            for a_ in range(2):
                d = v(la + 4 * a_, 4)
                b.I(MF, d, v(A1, 4), v(pb + 4 * kc(a_, 0, jj)[0], 4), "0" if jj == 0 else d)
    dpp = "row_half_mirror row_mask:0x3 bank_mask:0x5"
    for r in range(4):
        b.I("v_add_f32_dpp", v(Y + r), v(LACC1 + 8 + r), v(LACC1 + 8 + r), mods=dpp)
    b.I("ds_write_b128", v(VHO), v(LACC1, 4))
    b.I("ds_write_b128", v(VHO), v(LACC1 + 4, 4), mods="offset:1024")
    b.I("ds_write_b128", v(VHO), v(Y, 4), mods="offset:2048")
    b.I("v_mov_b32", v(V_T), s(S_HOB))
    b.I("s_mov_b64", "exec", 1)
    b.I("ds_or_b32", v(VMW), v(V_T))
    b.I("s_mov_b64", "exec", -1)
    for r in range(4):
        b.I("v_add_f32_dpp", v(T + 12 + r), v(LACC + 8 + r), v(LACC + 8 + r), mods=dpp)
    b.I("s_mov_b32", s(S_PEND), BBITS)
    b.I("s_branch", f"{nm}_B1")
    b.label(f"{nm}_B0")
    b.I("s_or_b32", s(S_PEND), s(S_HOB), BBITS)
    b.label(f"{nm}_B1")
    txt = f"""  s_mov_b32 s{S_CNT}, 0x20000
{nm}_Bl:
  s_cmp_eq_u32 s{S_EX}, 0
  s_cbranch_scc1 {nm}_Br
{POLL}  s_cmp_eq_u32 s{S_EX}, 0
  s_cbranch_scc1 {nm}_Bg
  s_sleep {P["gslb"]}
{pissue(nm + "_Bp")}  s_branch {nm}_Bn
{nm}_Br:
{READ}{nm}_Bg:
  s_and_b32 s{S_RDY}, s{S_MASK}, s{S_PEND}
  s_cbranch_scc0 {nm}_Bs
"""
    u = 0
    for jj in range(2):
        for a_ in range(2):
            k, c, bit = kc(a_, 1, jj)
            txt += f"""  s_bitcmp1_b32 s{S_RDY}, {bit}
  s_cbranch_scc0 {nm}_Bu{u}
  s_add_u32 s6, s{S_P}, {c}
  buffer_load_dwordx4 v[{PB + 4 * k}:{PB + 4 * k + 3}], v{VP}, s[8:11], s6 offen sc1
{nm}_Bu{u}:
"""
            u += 1
    txt += f"""  s_and_b32 s6, s{S_RDY}, 0xffff
  s_cbranch_scc0 {nm}_Bh
  ds_read_b128 v[{LACC}:{LACC + 3}], v{VHO}
  ds_read_b128 v[{LACC + 4}:{LACC + 7}], v{VHO} offset:1024
  ds_read_b128 v[{T + 12}:{T + 15}], v{VHO} offset:2048
{nm}_Bh:
  s_andn2_b32 s{S_PEND}, s{S_PEND}, s{S_RDY}
  s_cbranch_scc0 {nm}_Bd
{nm}_Bs:
  s_sleep {P["lsl"]}
{nm}_Bn:
  s_sub_u32 s{S_CNT}, s{S_CNT}, 1
  s_cbranch_scc0 {nm}_Bl
{nm}_Bd:"""
    b.raw(txt)
    b.hist, b.vmq, b.lgq = [], [], []
    at2(b, ps, 2, 9, 2)
    b.force_wait("vmcnt(4)")
    for i in range(4):
        unpack(b, X + 2 * i, RX + i)
    for i in range(2):
        unpack(b, X + 8 + 2 * i, RE + i)
    for i in range(4):
        unpack(b, Y + 2 * i, RY + i)
    for i in range(2):
        unpack(b, Y + 8 + 2 * i, RE + 2 + i)
    b.force_wait("lgkmcnt(0)")
    SC = T + 10
    if P.get("raw"):
        R, _ = stats(b, scale=1.0 / ALPHA)
        b.I("v_mov_b32", v(SC), v(R))
    for i in range(2):
        b.I("v_pk_fma_f32", v(X + 8 + 2 * i, 2), v(T + 12 + 2 * i, 2), v(SC, 2), v(X + 8 + 2 * i, 2), mods="op_sel_hi:[1,0,1]")
    b.force_wait("vmcnt(0)")
    for jj in range(2):
        for a_ in range(2):
            d = v(LACC + 4 * a_, 4)
            b.I(MF, d, v(A2, 4), v(PB + 4 * kc(a_, 1, jj)[0], 4), d)
    at2(b, ps, 4, None, 4)
    for i in range(4):
        b.I("v_pk_fma_f32", v(X + 2 * i, 2), v(LACC + 2 * i, 2), v(SC, 2), v(X + 2 * i, 2), mods="op_sel_hi:[1,0,1]")
    b.I("s_cmp_lg_u32", s(S_FIN), 0)
    b.I("s_cbranch_scc0", f"{name}_ln1")
    snap = b.snapshot()
    for i in range(6):
        b.I("v_cvt_pk_bf16_f32", v(RX + i), v(X + 2 * i), v(X + 2 * i + 1))
    b.I("v_permlane16_swap_b32", v(RX), v(RX + 2))
    b.I("v_permlane16_swap_b32", v(RX + 1), v(RX + 3))
    b.I("buffer_store_dwordx4", v(RX, 4), v(VQ), IO, s(S_B), mods="offen " + P["oaux"])
    b.I("buffer_store_dwordx2", v(RE, 2), v(VQE), IO, s(S_B), mods="offen " + P["oaux"])
    b.wait_all()
    ps.at(10)
    ps.dump()
    tl.end(b)
    b.I("s_endpgm")
    b.restore(snap)
    b.label(f"{name}_ln1")
    ln_math(b, 1, P, Stamps(b, False))
    if not P["psta"] and not P.get("pl0"):
        ps.at(5)


class PTail(Tail):
    def finish(self, b, role):
        b.I("s_branch", f"{self.name}_seam")


def k_per2(n0, b=None, **kw):
    P = dict(DEF)
    P.update(LDEF)
    P.update(dict(gsl=2, gslb=1, lsl=1, thr=2, sprio=0, oaux="", pst=False, zpub=CNT, psta=False, pern=3, bh1=23, psl2=1, ysl=2, ysl2=1, ycp=4, ypw=0, yspec=False, wdk=8, gateb=False))
    P.update(kw)
    USE.update({k: int(k in P.get("lo", "xph")) for k in "xpha"})
    USE["x2"] = P.get("x2", 0)
    P["slo"] = S_LO
    USE["lin"] = P.get("lin")
    if P.get("raw"):
        P["x2"] = USE["x2"] = 1
        P["srl"] = HO
        P["bh1"] += 1
    USE["raw"] = (2 if P.get("dx") else 1) if P.get("raw") else 0
    if USE["a"]:
        assert not USE["p"] and not USE["h"]
        P["pns"] = 9216
    b = b or AB()
    name = "per"
    ps = PSt(b, P["pst"])
    SKIP.clear()
    if P.get("pl0"):
        SKIP.update({1, 3})
    if P.get('fst'):
        SKIP.update({2, 4})
    if P.get("pl0"):
        P["hook0"] = lambda: ps.at(5)
        P["hook1"] = lambda: b.raw("  s_memrealtime s[98:99]\n  s_waitcnt lgkmcnt(0)\n  s_mov_b32 s100, s98")
        P["hook3"] = "  s_memrealtime s[82:83]\n  s_waitcnt lgkmcnt(0)\n  s_mov_b32 s101, s82\n"
        P["hook2"] = lambda: b.raw("  s_memrealtime s[98:99]\n  s_waitcnt lgkmcnt(0)")
        P["hookp"] = lambda: b.raw("  s_memrealtime s[98:99]\n  s_waitcnt lgkmcnt(0)")
    ln_phase(b, n0, 0, P, f"{name}_end")
    if P.get("pl0"):
        ps.at(3)
    b.I("s_branch", f"{name}_ffn" if P.get("dx") else f"{name}_pub")
    seam(b, name, P, ps)
    b.vmq, b.lgq = [], []
    b.label(f"{name}_pub")
    publish(b, name, P)
    def l0(i, k):
        b.raw(f"  s_cmp_lg_u32 s{S_LO}, 0\n  s_cbranch_scc1 l0_{k}\n  s_memrealtime s[{60 + 2 * i}:{61 + 2 * i}]\n  s_waitcnt lgkmcnt(0)\nl0_{k}:")
    if P.get("pl0"):
        l0(6, 0)
    elif not P["psta"]:
        ps.at(6)
    b.I("s_cmp_ge_u32", s(S_W), 4)
    b.I("s_cbranch_scc1", f"{name}_B")
    snap = b.snapshot()
    tail = PTail(name, P)
    cnt = [0]

    def after():
        ps.at(7)
        if P.get("pl0"):
            cnt[0] += 1
            l0(1, cnt[0])
    tail.after = after
    ffn_role(b, "A", P, name, tail)
    b.restore(snap)
    b.raw(".p2align 6")
    b.label(f"{name}_B")
    ffn_role(b, "B", P, name, tail)
    b.label(f"{name}_end")
    b.I("s_endpgm")
    return b
```
